```python
import torch

def _softmax(x, axis=-1):
    return torch.softmax(x, dim=axis)
def _gelu(x):
    return torch.nn.functional.gelu(x, approximate="tanh")
def _silu(x):
    return torch.nn.functional.silu(x)
def _sigmoid(x):
    return torch.sigmoid(x)
def _layernorm(x, axis=-1, eps=1e-5):
    m = x.mean(dim=axis, keepdim=True)
    v = x.var(dim=axis, keepdim=True, unbiased=False)
    return (x - m) / torch.sqrt(v + eps)
def _scatter_add(tgt, idx, src, axis=0):
    return tgt.clone().index_add_(axis, idx, src)
def _segment_sum(src, seg, n):
    out = torch.zeros((n,) + src.shape[1:], dtype=src.dtype)
    return out.index_add_(0, seg, src)
def _pad(x, pw):
    flat = tuple(v for pair in reversed(pw) for v in pair)
    return torch.nn.functional.pad(x, flat)

kernel_name = 'standalone__mha_block_cached__near_ridge'

def setup_inputs():

    _w = (lambda a: (lambda t: t.to(torch.bfloat16) if t.is_floating_point() else t)(torch.as_tensor(a)))
    B, Sq, D = 8, 240, 640
    H, Sk, Dh = 32, 2048, 128
    return {
        "x": _w((lambda *s: torch.randn(*s, dtype=torch.bfloat16) * 0.8)(B, Sq, D)),
        "k_cache": _w((lambda *s: torch.randn(*s, dtype=torch.bfloat16) * 0.8)(B, H, Sk, Dh)),
        "v_cache": _w((lambda *s: torch.randn(*s, dtype=torch.bfloat16) * 0.05)(B, H, Sk, Dh)),
        "wq": _w((lambda *s: torch.randn(*s, dtype=torch.bfloat16) * 0.8)(D, H * Dh) * (D ** -0.5)),
        "wo": _w((lambda *s: torch.randn(*s, dtype=torch.bfloat16) * 0.05)(H * Dh, D) * ((H * Dh) ** -0.5)),
    }

def reference(x, k_cache, v_cache, wq, wo):
    B, Sq, D = x.shape
    H, Dh = 32, 128
    q = (lambda x, *d: x.permute(*d))((x @ wq).reshape(B, Sq, H, Dh), 0, 2, 1, 3)
    scores = torch.einsum("bhqd,bhkd->bhqk", q, k_cache) * (Dh ** -0.5)
    p = _softmax(scores, axis=-1)
    o = torch.einsum("bhqk,bhkd->bhqd", p, v_cache)
    return (lambda x, *d: x.permute(*d))(o, 0, 2, 1, 3).reshape(B, Sq, H * Dh) @ wo
```

```python
KN = "standalone__mha_block_cached__near_ridge_kernel"

HDR_COMMENT = """; Kernarg layout for this problem (64 bytes, ptrs only, base s[0:1]):
"""

def kd(name, vgpr, sgpr, accum):
    return f""".amdhsa_kernel {name}
  .amdhsa_next_free_vgpr {vgpr}
  .amdhsa_next_free_sgpr {sgpr}
  .amdhsa_accum_offset {accum}
  .amdhsa_group_segment_fixed_size 0
  .amdhsa_kernarg_size 64
  .amdhsa_user_sgpr_count 2
  .amdhsa_user_sgpr_kernarg_segment_ptr 1
  .amdhsa_system_sgpr_workgroup_id_x 1
.end_amdhsa_kernel
"""

def wrap(kernels):
    s = HDR_COMMENT
    if len(kernels) == 1 and kernels[0]["name"] == KN:
        k = kernels[0]
        s += f"; @launch grid=({k['grid']},1,1) block=({k['block']},1,1) lds={k['lds']}\n"
    else:
        for k in kernels:
            s += f"; @launch kernel={k['name']} grid=({k['grid']},1,1) block=({k['block']},1,1) lds={k['lds']}\n"
    s += '.amdgcn_target "amdgcn-amd-amdhsa--gfx950"\n.text\n'
    seen = set()
    for k in kernels:
        if k["name"] in seen: continue
        seen.add(k["name"])
        s += f".globl {k['name']}\n.p2align 8\n.type {k['name']},@function\n{k['name']}:\n"
        s += k["body"].rstrip("\n") + "\n"
    s += '.section .rodata,"a"\n'
    seen = set()
    for k in kernels:
        if k["name"] in seen: continue
        seen.add(k["name"])
        s += ".p2align 6\n" + kd(k["name"], k["vgpr"], k["sgpr"], k["accum"])
    return s

class Asm:
    def __init__(self):
        self.l = []
    def __call__(self, s):
        for line in s.strip("\n").split("\n"):
            self.l.append(line if line.rstrip().endswith(":") else "    " + line.strip())
    def text(self):
        return "\n".join(self.l) + "\n"

def stamp_store(a, nst, sbase, srd, vt0, wgreg="s2", label="L_nostamp"):
    a(f"v_cmp_eq_u32 vcc, 0, v0")
    a(f"s_and_saveexec_b64 s[90:91], vcc")
    a(f"s_cbranch_execz {label}")
    a(f"s_mul_i32 s92, {wgreg}, {nst*8}")
    a(f"v_mov_b32 v{vt0}, s92")
    for i in range(nst):
        a(f"v_mov_b32 v{vt0+2}, s{sbase+2*i}")
        a(f"v_mov_b32 v{vt0+3}, s{sbase+2*i+1}")
        a(f"buffer_store_dwordx2 v[{vt0+2}:{vt0+3}], v{vt0}, s[{srd}:{srd+3}], 0 offen offset:{8*i}")
        a(f"s_nop 1")
    a(f"{label}:")
    a(f"s_or_b64 exec, exec, s[90:91]")
```

```python
import sys
from gencommon import *

OPT = dict(kv.split("=") for kv in sys.argv[1:])
def opt(k, d): return type(d)(OPT.get(k, d))
STAMP = opt("stamp", 0)
MAP = opt("map", "mixed")
NT = opt("nt", 0)
FORCE_SAFE = opt("safe", 0)
LEAD = opt("lead", 12)

MF = "v_mfma_f32_16x16x32_bf16"
VBASE = 0
KBASE = 96 * 1024
SAFEBASE = 64 * 1024
QBUF = [0, 48 * 1024, 96 * 1024]
XOFF, WOFF = 0, 32768
def kslot(t): return (t + 3) % 4
def vslot(t): return t % 4
vO = 128; vS = 64; vNM = 48
vKR = 16; vVR = 20; vKD = 28; vVD = 32; vXD = 34; vWD = 42
vXR = 64; vWR = 66
aQ = 0; aK = 64; aV = 96; aL = 128; aONE = 144
aQA = [64, 96]; aQB = [148, 164]
sK, sV, sX, sW, sWS = 8, 12, 16, 20, 24
sWAVE, sKW, sVW, sXW, sWW = 28, 29, 30, 31, 32
sKoff, sVoff, sCNT, sB, sH, sT0, sT1 = 33, 34, 35, 36, 37, 38, 39
sST = 40
sSTAMP = 44
CSCALE = 0x3e029470
import struct, math
CSCALE = struct.unpack("<I", struct.pack("<f", math.log2(math.e) / math.sqrt(128.0)))[0]

def r(pfx, b, n=4): return f"{pfx}[{b}:{b+n-1}]"
def O(q, d): return r("v", vO + (q * 8 + d) * 4)
def S(p, q, kt): return vS + 32 * p + 8 * q + 4 * kt
def ntf(): return " nt" if NT else ""

nstamp = [0]
def stamp(a):
    if STAMP:
        i = nstamp[0]; nstamp[0] += 1
        a(f"s_memtime s[{sSTAMP+4*i}:{sSTAMP+4*i+1}]")
        a(f"s_memrealtime s[{sSTAMP+4*i+2}:{sSTAMP+4*i+3}]")

def dmaK(n): return f"buffer_load_dwordx4 v{vKD+n}, s[{sK}:{sK+3}], s{sKoff} offen offset:{n*1024} lds{ntf()}"
def dmaV(n): return f"buffer_load_dwordx4 v{vVD+(n&1)}, s[{sV}:{sV+3}], s{sVoff} offen offset:{n*1024} lds{ntf()}"
def issueK(a, t):
    a(f"s_add_u32 m0, s{sKW}, {kslot(t)*16384}")
    a(f"s_mov_b32 s{sKoff}, {t*16384}")
    for n in range(4): a(dmaK(n))
def issueV(a, t):
    a(f"s_add_u32 m0, s{sVW}, {vslot(t)*16384}")
    a(f"s_mov_b32 s{sVoff}, {t*16384}")
    for n in range(4): a(dmaV(n))

def kread(f, slot, half):
    kt, s = f >> 2, f & 3
    return f"ds_read_b128 {r('a', aK+4*f)}, v{vKR+s} offset:{slot*16384 + half*8192 + kt*4096}"
def vread(d, second, slot, half):
    return f"ds_read_b64_tr_b16 {r('a', aV+4*d+2*second, 2)}, v{vVR+d} offset:{slot*16384 + half*8192 + second*4096}"
def qk(p, q, kt, s, czero=False):
    b = S(p, q, kt)
    c = r("v", b) if s else ("0" if czero else r("v", vNM + 4 * q))
    return f"{MF} {r('v', b)}, {r('a', aK+4*(kt*4+s))}, {r('a', aQ+16*q+4*s)}, {c}"
def pv(p, q, d): return f"{MF} {O(q,d)}, {r('a', aV+4*d)}, {r('v', S(p,q,0))}, {O(q,d)}"
def sm(p, q): return f"{MF} {r('a', aL+4*q)}, {r('a', aONE)}, {r('v', S(p,q,0))}, {r('a', aL+4*q)}"
def softmax_ops(p, nq):
    ex, cv = [], []
    for kt in range(2):
        for q in range(nq):
            b = S(p, q, kt)
            for j in range(4): ex.append(f"v_exp_f32 v{b+j}, v{b+j}")
            for j in range(2): cv.append(f"v_cvt_pk_bf16_f32 v{S(p,q,0)+2*kt+j}, v{b+2*j}, v{b+2*j+1}")
    return ex, cv

class Body:
    def __init__(self):
        self.mf = []
        self.big = {}
        self.pre = {}
        self.cv = {}
        self.lastcv = 0
    def add(self, text, need=None): self.mf.append((text, need))
    def place_big(self, kind, text, target, tag=None, hi=None):
        n = len(self.mf)
        target = min(target, n - 1)
        hi = min(n - 1, target + 3 if hi is None else max(hi, target))
        g = target
        while g in self.big and g < hi: g += 1
        if g in self.big:
            g = min(range(target, hi + 1), key=lambda x: len(self.big[x]))
            self.big[g] = self.big[g] + [(kind, text, tag)]
        else:
            self.big[g] = [(kind, text, tag)]
        return g
    def place_cvt(self, text, lo, hi):
        n = len(self.mf)
        best = None
        lo = max(lo, self.lastcv)
        for g in range(lo, min(hi, lo + 4, n - 1) + 1):
            kinds = [k for k, _, _ in self.big.get(g, [])]
            cnt = len(self.cv.get(g, []))
            if kinds == ["D"] and cnt == 0: best = g; break
            if kinds == [] and cnt < 2: best = g; break
        if best is None: best = min(lo, n - 1)
        self.cv.setdefault(best, []).append(text)
        self.lastcv = best
        return best
    def place_s(self, text, lo, hi=None):
        n = len(self.mf)
        hi = lo if hi is None else hi
        for g in range(lo, min(hi, n - 1) + 1):
            kinds = [k for k, _, _ in self.big.get(g, [])]
            if not self.pre.get(g) and (kinds == ["E"] or kinds == [] or (kinds == ["D"] and not self.cv.get(g))):
                self.pre.setdefault(g, []).append(text); return g
        self.pre.setdefault(lo, []).append(text); return lo
    def emit(self, a, resident=()):
        q = []
        done = set(resident)
        n = len(self.mf)
        for g in range(n):
            text, need = self.mf[g]
            assert all(t in done for t in (need or [])), (g, text, need)
            a(text)
            nxt = self.mf[g + 1][1] if g + 1 < n else None
            if nxt:
                miss = [t for t in nxt if t not in done]
                if miss:
                    assert all(t in q for t in miss), (g, miss, q)
                    last = max(q.index(t) if q.count(t) == 1 else len(q) - 1 - q[::-1].index(t) for t in miss)
                    N = len(q) - 1 - last
                    a(f"s_waitcnt lgkmcnt({N})")
                    for t in q[:last + 1]: done.add(t)
                    q = q[last + 1:]
                    for t in q: done.discard(t)
            for t in self.pre.get(g, []): a(t)
            for kind, text, tag in self.big.get(g, []):
                a(text)
                if kind == "D":
                    q.append(tag); done.discard(tag)
                    assert len(q) <= 15
            for t in self.cv.get(g, []): a(t)

def gen_body(a, nq, u, last=False, loopctl=None):
    B = Body()
    vs, ks = vslot(u), kslot(u + 1)
    def g_qk(p, kts, gen):
        for kt in kts:
            for s in range(4):
                for q in range(nq): B.add(qk(p, q, kt, s), [("K", kt * 4 + s, gen)] if q == 0 else None)
    def g_pv(p, gen):
        for d in range(8):
            for q in range(nq): B.add(pv(p, q, d), [("V", d, gen)] if q == 0 else None)
        for q in range(nq): B.add(sm(p, q))
    g_qk(1, [1], 0); P0 = len(B.mf)
    g_pv(0, 0); Q1 = len(B.mf)
    if not last: g_qk(0, [0, 1], 1)
    P1 = len(B.mf)
    g_pv(1, 1); Q2 = len(B.mf)
    if not last: g_qk(1, [0], 2)
    n = len(B.mf)
    resident = [("K", f, 0) for f in range(4, 8)]
    sc = nq / 4.0
    for d in range(8):
        for h in range(2):
            B.place_big("D", vread(d, h, vs, 0), int((4 * d + 2 * h) * sc), ("V", d, 0))
    ex0, cv0 = softmax_ops(0, nq); ex1, cv1 = softmax_ops(1, nq)
    ne = len(ex0)
    win = (P1 - P0) if not last else (Q1 - P0)
    full = nq * 17
    ntail = NTAIL[nq]
    if not last:
        for f in range(8):
            B.place_big("D", kread(f, ks, 0), Q1 - int(20 * sc) + int(4 * f * sc), ("K", f, 1))
    for d in range(8):
        for h in range(2):
            lo = max(P1 - int(20 * sc) + int((4 * d + 2 * h) * sc), P0 + nq * d + nq)
            B.place_big("D", vread(d, h, vs, 1), lo, ("V", d, 1))
    if not last:
        for f in range(8):
            B.place_big("D", kread(f, ks, 1), P1 + int(12 * sc) + int(4 * f * sc), ("K", f, 2))
        g0 = Q1 - int(18 * sc)
        gs = [B.place_big("M", dmaV(i), g0 + int(8 * i * sc)) for i in range(4)]
        mV = gs[0]
        g0 = P1 + int(14 * sc)
        gs = [B.place_big("M", dmaK(i), g0 + int(8 * i * sc)) for i in range(4)]
        mK = gs[0]
    eg0 = {}
    nh = ne - ntail
    for i in range(ntail, ne):
        eg0[i] = B.place_big("E", ex0[i], max(1 + int((i - ntail) * (P0 - 4) / max(nh, 1)), eg0.get(i - 1, 0)))
    eg1 = {}
    for i in range(ne):
        eg1[i] = B.place_big("E", ex1[i], max(P0 + 1 + int(i * (win - 5) / ne), eg1.get(i - 1, 0)), hi=min(P0 + 4 + int(i * (win - 5) / ne), P1 - 4))
    egt = {}
    if not last:
        for i in range(ntail):
            egt[i] = B.place_big("E", ex0[i], max(P1 + 1 + int(i * (full - 5) / ne), egt.get(i - 1, 0)), hi=min(P1 + 4 + int(i * (full - 5) / ne), n - 2))
    for j in range(ntail // 2, ne // 2):
        q = (j // 2) % nq
        g = B.place_cvt(cv0[j], eg0[2 * j + 1] + 1, P0 + q - 2)
        assert g <= P0 + q - 2, ("cvt0 late", j, g, P0)
    for j in range(ne // 2):
        q = (j // 2) % nq
        g = B.place_cvt(cv1[j], eg1[2 * j + 1] + 1, P1 + q - 2)
        if not last: assert g <= P1 + q - 2, ("cvt1 late", j, g, P1)
    if not last:
        for j in range(ntail // 2):
            B.place_cvt(cv0[j], egt[2 * j + 1] + 1, n - 1)
        assert eg1[ne // 2] >= P0 + 5
        assert min(egt.values()) >= Q1 + 4 * nq + 5
        if ntail > ne // 2: assert egt[ne // 2] >= P1 + 5
        B.place_s(f"s_add_u32 m0, s{sVW}, {vslot(u+3)*16384}", mV - 4, mV - 1)
        B.place_s(f"s_add_u32 s{sVoff}, s{sVoff}, 16384", mV - 8, mV - 1)
        B.place_s(f"s_add_u32 m0, s{sKW}, {kslot(u+4)*16384}", mK - 4, mK - 1)
        B.place_s(f"s_add_u32 s{sKoff}, s{sKoff}, 16384", mK - 8, mK - 1)
        if loopctl:
            B.place_s(loopctl[0], n - 8, n - 5)
            B.place_s(loopctl[1], n - 4, n - 2)
    if last:
        pass
    if last:
        B2 = B
        moved_e, moved_c = [], []
        for g in sorted(list(B.big.keys())):
            if g >= P1 - 1:
                keep = []
                for it in B.big[g]:
                    (moved_e if it[0] == "E" else keep).append(it)
                B.big[g] = keep
        for g in sorted(list(B.cv.keys())):
            if g >= P1 - 1:
                moved_c += B.cv.pop(g)
        B.big[P1 - 1] = B.big.get(P1 - 1, []) + moved_e
        B.cv[P1 - 1] = ["s_nop 0"] + moved_c + ["s_nop 1"]
    B.emit(a, resident)
    if not last:
        a("s_waitcnt vmcnt(16) lgkmcnt(0)")
        a("s_barrier")

NTAIL = {4: 26, 3: 20}

def gen_attn_wave(a, nq, L):
    nx = 2 * nq
    def qstage_issue(st):
        out = []
        buf = QBUF[(st + 1) % 3]
        out.append(("s", f"s_mov_b32 s{sT0}, {st*128}"))
        out.append(("s", f"s_add_u32 m0, s{sXW}, {buf+XOFF}"))
        for n in range(nx):
            if n == 4: out.append(("s", f"s_add_u32 m0, s{sXW}, {buf+XOFF+4096}"))
            out.append(("M", f"buffer_load_dwordx4 v{vXD+n}, s[{sX}:{sX+3}], s{sT0} offen offset:{(n&3)*1024} lds"))
        out.append(("s", f"s_mov_b32 s{sT1}, {st*524288}"))
        out.append(("s", f"s_add_u32 m0, s{sWW}, {buf+WOFF}"))
        for n in range(4):
            out.append(("M", f"buffer_load_dwordx4 v{vWD+n}, s[{sW}:{sW+3}], s{sT1} offen offset:{n*1024} lds"))
        return out
    def kv_issue(kind, t):
        out = []
        if kind == "K":
            out.append(("s", f"s_mov_b32 s{sKoff}, {t*16384}"))
            out.append(("s", f"s_add_u32 m0, s{sKW}, {kslot(t)*16384}"))
            out += [("M", dmaK(n)) for n in range(4)]
        else:
            out.append(("s", f"s_mov_b32 s{sVoff}, {t*16384}"))
            out.append(("s", f"s_add_u32 m0, s{sVW}, {vslot(t)*16384}"))
            out += [("M", dmaV(n)) for n in range(4)]
        return out
    def flat(items):
        prev = None
        for k, t in items:
            if k == "M" and prev and "m0" in prev: a("s_nop 0")
            a(t); prev = t
    vm = []
    def log(items, tag):
        for k, t in items:
            if k == "M": vm.append(tag)
    def vmwait(tag):
        last = len(vm) - 1 - vm[::-1].index(tag)
        return len(vm) - 1 - last
    for st in range(3):
        it = qstage_issue(st); flat(it); log(it, ("q", st))
    it = kv_issue("K", 0); flat(it); log(it, ("K", 0))
    def qreads(st, sp):
        fs = sp
        out = []
        for q in range(nq):
            out.append(f"ds_read_b128 {r('a', aQB[fs]+4*q)}, v{vXR+sp} offset:{XOFF + q*2048}")
        for t in range(8):
            s, odd = t >> 1, t & 1
            for h in range(2):
                out.append(f"ds_read_b64_tr_b16 {r('a', aQA[fs]+4*t+2*h, 2)}, v{vWR+s} offset:{WOFF + odd*8 + h*1024 + sp*8192}")
        return out
    def qmf(st, sp):
        out = []
        for t in range(8):
            for q in range(nq):
                c = "0" if (st == 0 and sp == 0) else O(q, t)
                out.append(f"{MF} {O(q,t)}, {r('a', aQA[sp]+4*t)}, {r('a', aQB[sp]+4*q)}, {c}")
        return out
    def interleave(mfs, fill):
        fi = 0
        for m in mfs:
            a(m)
            big = False
            while fi < len(fill):
                k, t = fill[fi]
                if k in "DM":
                    if big: break
                    big = True
                    a(t); fi += 1
                    break
                a(t); fi += 1
                if "m0" in t: break
        rest = fill[fi:]
        flat(rest)
    def rot(st_from, st_to):
        d = QBUF[(st_to + 1) % 3] - QBUF[(st_from + 1) % 3]
        ops = []
        for i in range(6):
            ops.append(("v", f"v_add_u32 v{vXR+i}, {d}, v{vXR+i}" if d > 0 else f"v_subrev_u32 v{vXR+i}, {-d}, v{vXR+i}"))
        return ops
    a(f"s_waitcnt vmcnt({vmwait(('q', 0))})")
    a("s_barrier")
    stamp(a)
    for t in qreads(0, 0): a(t)
    for st in range(10):
        a("s_waitcnt lgkmcnt(0)")
        interleave(qmf(st, 0), [("D", t) for t in qreads(st, 1)])
        fill = []
        if st < 9:
            a(f"s_waitcnt vmcnt({vmwait(('q', st+1))}) lgkmcnt(0)")
            a("s_barrier")
            fill += rot(st, st + 1)
            rd = [("D", t) for t in qreads(st + 1, 0)]
            if st + 3 < 10:
                it = qstage_issue(st + 3); log(it, ("q", st + 3))
            elif st == 7:
                it = kv_issue("K", 1); log(it, ("K", 1))
                it2 = kv_issue("K", 2); log(it2, ("K", 2)); it += it2
            else:
                it = []
                for kind, t in (("V", 0), ("V", 1), ("K", 3), ("V", 2)):
                    i2 = kv_issue(kind, t); log(i2, (kind, t)); it += i2
            fill += rd + it
        else:
            a("s_waitcnt lgkmcnt(0)")
            fill += [("D", kread(f, kslot(0), 0)) for f in range(8)] if False else []
        interleave(qmf(st, 1), fill)
    stamp(a)
    for f in range(8): a(kread(f, kslot(0), 0))
    a(f"s_mov_b32 s{sT0}, {CSCALE:#x}")
    a("s_nop 7")
    for q in range(nq):
        for s in range(4):
            b = vO + (q * 8 + 2 * s) * 4
            for j in range(8): a(f"v_mul_f32 v{b+j}, s{sT0}, v{b+j}")
            for j in range(4): a(f"v_cvt_pk_bf16_f32 v{b+j}, v{b+2*j}, v{b+2*j+1}")
            for j in range(4): a(f"v_accvgpr_write_b32 a{aQ+16*q+4*s+j}, v{b+j}")
    a("s_waitcnt lgkmcnt(0)")
    if FORCE_SAFE:
        a("s_barrier")
        a(f"s_branch L_safe{L}")
    zero = [f"v_mov_b32 v{vO+i}, 0" for i in range(nq * 32)] + [f"v_accvgpr_write_b32 a{aL+i}, 0" for i in range(nq * 4)]
    zi = 0
    for kt in range(2):
        for s in range(4):
            for q in range(nq):
                a(qk(0, q, kt, s, czero=True))
                for _ in range(2):
                    a(zero[zi]); zi += 1
    for f in range(8): a(kread(f, kslot(0), 1))
    while zi < len(zero):
        a(zero[zi]); zi += 1
    for q in range(nq):
        b = S(0, q, 0); m = vNM + 4 * q
        a(f"v_max3_f32 v{m}, v{b}, v{b+1}, v{b+2}")
        a(f"v_max3_f32 v{m+1}, v{b+3}, v{b+4}, v{b+5}")
        a(f"v_max3_f32 v{m}, v{m}, v{b+6}, v{b+7}")
        a(f"v_max_f32 v{m}, v{m}, v{m+1}")
    xlane_max(a, [vNM + 4 * q for q in range(nq)])
    for q in range(nq):
        m = vNM + 4 * q
        a(f"v_sub_f32 v{m}, 0, v{m}")
        for j in range(1, 4): a(f"v_mov_b32 v{m+j}, v{m}")
        b = S(0, q, 0)
        for j in range(8): a(f"v_add_f32 v{b+j}, v{b+j}, v{m}")
    a("s_waitcnt lgkmcnt(0)")
    ex0, cv0 = softmax_ops(0, nq)
    ntail = NTAIL[nq]
    work = []
    for i in range(ntail):
        work.append(ex0[i])
        if i % 2 == 1 and i >= 3: work.append(cv0[(i - 3) // 2])
    work.append("s_nop 0"); work.append(cv0[ntail // 2 - 1])
    wi = 0
    for s in range(4):
        for q in range(nq):
            a(qk(1, q, 0, s))
            for _ in range(2):
                if wi < len(work): a(work[wi]); wi += 1
    while wi < len(work):
        a(work[wi]); wi += 1
    a(f"s_mov_b32 s{sCNT}, 8")
    a(f"s_waitcnt vmcnt({vmwait(('V', 0))})")
    assert vmwait(("V", 0)) == 12
    a("s_barrier")
    stamp(a)
    a(".p2align 6")
    a(f"L_loop{L}:")
    gen_body(a, nq, 0)
    gen_body(a, nq, 1)
    gen_body(a, nq, 2, loopctl=(f"s_sub_u32 s{sCNT}, s{sCNT}, 1", f"s_cmp_eq_u32 s{sCNT}, 0"))
    a(f"s_cbranch_scc1 L_last{L}")
    gen_body(a, nq, 3)
    a(f"s_branch L_loop{L}")
    a(f"L_last{L}:")
    gen_body(a, nq, 3, last=True)
    stamp(a)
    a("s_nop 7")
    for q in range(nq): a(f"v_accvgpr_read_b32 v{vNM+4*q}, a{aL+4*q}")
    a(f"s_mov_b32 s{sT0}, 0x5f800000")
    a(f"v_max_f32 v1, v{vNM}, v{vNM+4}")
    a(f"v_cmp_nlt_f32 vcc, v{vNM}, s{sT0}" if False else f"v_cmp_ngt_f32 vcc, s{sT0}, v{vNM}")
    a("s_mov_b64 s[4:5], vcc")
    for q in range(1, nq):
        a(f"v_cmp_ngt_f32 vcc, s{sT0}, v{vNM+4*q}")
        a("s_or_b64 s[4:5], s[4:5], vcc")
    a("s_cmp_lg_u64 s[4:5], 0")
    a(f"s_cbranch_scc1 L_safe{L}")
    a(f"L_epi{L}:")
    for q in range(nq): a(f"v_rcp_f32 v{vNM+4*q}, v{vNM+4*q}")
    a("s_nop 0")
    for q in range(nq):
        for s in range(4):
            b = vO + (q * 8 + 2 * s) * 4
            for j in range(8): a(f"v_mul_f32 v{b+j}, v{vNM+4*q}, v{b+j}")
            for j in range(4): a(f"v_cvt_pk_bf16_f32 v{b+j}, v{b+2*j}, v{b+2*j+1}")
            a(f"buffer_store_dwordx4 {r('v', b)}, v2, s[{sWS}:{sWS+3}], s3 offen offset:{s*1024}{OSTORE}")
        if q < nq - 1: a(f"s_add_u32 s3, s3, {128*1024}")
    if STAMP:
        a("s_waitcnt vmcnt(0)")
        stamp(a)
        a("s_waitcnt lgkmcnt(0)")
        if L == "A":
            stamp_store(a, 2 * nstamp[0], sSTAMP, sST, 4)
    a("s_endpgm")
    gen_safe(a, nq, L)

OSTORE = {"": "", "sc1": " sc0 sc1", "nt": " nt"}[opt("ost", "")]

def xlane_max(a, regs):
    for op in ("v_permlane32_swap_b32", "v_permlane16_swap_b32"):
        for m in regs: a(f"v_mov_b32 v{m+1}, v{m}")
        a("s_nop 1")
        for m in regs: a(f"{op} v{m}, v{m+1}")
        a("s_nop 1")
        for m in regs: a(f"v_max_f32 v{m}, v{m}, v{m+1}")

def gen_safe(a, nq, L):
    a(f"L_safe{L}:")
    a("s_waitcnt vmcnt(0) lgkmcnt(0)")
    for i in range(nq * 32): a(f"v_mov_b32 v{vO+i}, 0")
    for q in range(nq):
        a(f"v_mov_b32 v{vNM+4*q}, 0xff800000")
        a(f"v_mov_b32 v{vNM+4*q+3}, 0")
    a(f"s_lshl_b32 s{sT0}, s{sWAVE}, 12")
    for i in range(6): a(f"v_subrev_u32 v{vKD+i}, s{sT0}, v{vKD+i}")
    a(f"s_lshl_b32 s{sT0}, s{sWAVE}, 13")
    a(f"s_add_u32 s{sKW}, s{sT0}, {SAFEBASE}")
    a(f"s_sub_u32 s{sT0}, s{sKW}, {KBASE}")
    for i in range(4): a(f"v_add_u32 v{vKR+i}, s{sT0}, v{vKR+i}")
    assert VBASE == 0
    for i in range(8): a(f"v_add_u32 v{vVR+i}, s{sKW}, v{vVR+i}")
    a(f"s_mov_b32 s{sKoff}, 0")
    a(f"L_sloop{L}:")
    for hh in range(2):
        a(f"s_add_u32 m0, s{sKW}, {hh*4096}")
        a(f"s_add_u32 s{sVoff}, s{sKoff}, {hh*4096}")
        for n in range(4): a(f"buffer_load_dwordx4 v{vKD+n}, s[{sK}:{sK+3}], s{sVoff} offen offset:{n*1024} lds")
    a("s_waitcnt vmcnt(0)")
    for f in range(8): a(kread(f, 0, 0))
    a("s_waitcnt lgkmcnt(0)")
    for hh in range(2):
        a(f"s_add_u32 m0, s{sKW}, {hh*4096}")
        a(f"s_add_u32 s{sVoff}, s{sKoff}, {hh*4096}")
        for n in range(4): a(f"buffer_load_dwordx4 v{vVD+(n&1)}, s[{sV}:{sV+3}], s{sVoff} offen offset:{n*1024} lds")
    for kt in range(2):
        for s in range(4):
            for q in range(nq): a(qk(0, q, kt, s, czero=True))
    a("s_nop 7")
    T = vS + 32
    for q in range(nq):
        b = S(0, q, 0); m = T + 2 * q
        a(f"v_max3_f32 v{m}, v{b}, v{b+1}, v{b+2}")
        a(f"v_max3_f32 v{m+1}, v{b+3}, v{b+4}, v{b+5}")
        a(f"v_max3_f32 v{m}, v{m}, v{b+6}, v{b+7}")
        a(f"v_max3_f32 v{m}, v{m}, v{m+1}, v{vNM+4*q}")
    xlane_max(a, [T + 2 * q for q in range(nq)])
    for q in range(nq):
        m = vNM + 4 * q; b = S(0, q, 0)
        a(f"v_sub_f32 v{m+2}, v{m}, v{T+2*q}")
        a(f"v_exp_f32 v{m+2}, v{m+2}")
        a(f"v_mov_b32 v{m}, v{T+2*q}")
        for j in range(8): a(f"v_sub_f32 v{b+j}, v{b+j}, v{m}")
        for j in range(8): a(f"v_exp_f32 v{b+j}, v{b+j}")
        a(f"v_mul_f32 v{m+3}, v{m+3}, v{m+2}")
        for i in range(32): a(f"v_mul_f32 v{vO+q*32+i}, v{vO+q*32+i}, v{m+2}")
        for j in range(4): a(f"v_cvt_pk_bf16_f32 v{b+j}, v{b+2*j}, v{b+2*j+1}")
        for j in range(4):
            a(f"v_lshlrev_b32 v{b+4}, 16, v{b+j}")
            a(f"v_and_b32 v{b+5}, 0xffff0000, v{b+j}")
            a(f"v_add_f32 v{m+3}, v{m+3}, v{b+4}")
            a(f"v_add_f32 v{m+3}, v{m+3}, v{b+5}")
    a("s_waitcnt vmcnt(0)")
    for d in range(8):
        for h in range(2): a(vread(d, h, 0, 0))
        if d == 3: a("s_waitcnt lgkmcnt(0)")
    a("s_waitcnt lgkmcnt(0)")
    for d in range(8):
        for q in range(nq): a(pv(0, q, d))
    a("s_nop 7")
    a(f"s_add_u32 s{sKoff}, s{sKoff}, 8192")
    a(f"s_cmp_lt_u32 s{sKoff}, 524288")
    a(f"s_cbranch_scc1 L_sloop{L}")
    for op in ("v_permlane32_swap_b32", "v_permlane16_swap_b32"):
        for q in range(nq): a(f"v_mov_b32 v{vNM+4*q+1}, v{vNM+4*q+3}")
        a("s_nop 1")
        for q in range(nq): a(f"{op} v{vNM+4*q+3}, v{vNM+4*q+1}")
        a("s_nop 1")
        for q in range(nq): a(f"v_add_f32 v{vNM+4*q+3}, v{vNM+4*q+3}, v{vNM+4*q+1}")
    for q in range(nq): a(f"v_mov_b32 v{vNM+4*q}, v{vNM+4*q+3}")
    a(f"s_branch L_epi{L}")

def gen_attn():
    a = Asm()
    a("s_cmp_ge_u32 s2, 256")
    a("s_cbranch_scc1 L_exit1")
    a("s_load_dwordx8 s[72:79], s[0:1], 0")
    a("s_load_dwordx2 s[80:81], s[0:1], 56")
    stamp(a)
    if MAP == "bmajor":
        a(f"s_and_b32 s{sB}, s2, 7\ns_lshr_b32 s{sH}, s2, 3")
    elif MAP == "hmajor":
        a(f"s_and_b32 s{sT0}, s2, 7\ns_lshr_b32 s{sT1}, s2, 3\ns_and_b32 s{sB}, s{sT1}, 7\ns_lshr_b32 s{sT1}, s{sT1}, 3\ns_lshl_b32 s{sH}, s{sT0}, 2\ns_add_u32 s{sH}, s{sH}, s{sT1}")
    else:
        a(f"""s_and_b32 s{sT0}, s2, 1
s_lshl_b32 s{sB}, s{sT0}, 2
s_lshr_b32 s{sT1}, s2, 3
s_and_b32 s{sT0}, s{sT1}, 3
s_add_u32 s{sB}, s{sB}, s{sT0}
s_and_b32 s{sH}, s2, 6
s_lshl_b32 s{sH}, s{sH}, 2
s_lshr_b32 s{sT1}, s{sT1}, 2
s_add_u32 s{sH}, s{sH}, s{sT1}""")
    a(f"""v_lshrrev_b32 v1, 6, v0
v_and_b32 v3, 63, v0
v_lshrrev_b32 v4, 4, v3
v_readfirstlane_b32 s{sWAVE}, v1
v_and_b32 v5, 15, v3
v_lshlrev_b32 v2, 4, v3
v_lshrrev_b32 v6, 3, v3
v_and_b32 v7, 7, v3""")
    a(f"v_lshl_add_u32 v8, v1, 6, v6")
    a(f"v_mul_u32_u24 v8, 1280, v8")
    a(f"v_xor_b32 v9, v7, v4")
    for n in range(8):
        a(f"v_xor_b32 v10, {4*(n&1)}, v9")
        a(f"v_lshl_add_u32 v10, v10, 4, v8")
        a(f"v_add_u32 v{vXD+n}, {n*8*1280 - (n&3)*1024}, v10")
    a(f"v_lshl_add_u32 v8, v1, 4, v4")
    a(f"v_lshlrev_b32 v8, 13, v8")
    a(f"v_lshlrev_b32 v9, 2, v4")
    a(f"v_xor_b32 v9, v9, v5")
    a(f"v_lshl_add_u32 v8, v9, 4, v8")
    for n in range(4): a(f"v_add_u32 v{vWD+n}, {n*4*8192 - n*1024}, v8")
    a("s_waitcnt lgkmcnt(0)")
    a(f"""s_mul_i32 s{sT0}, s{sB}, 307200
s_add_u32 s{sX}, s72, s{sT0}
s_addc_u32 s{sX+1}, s73, 0
s_mov_b32 s{sX+2}, 307200
s_mov_b32 s{sX+3}, 0x20000
s_lshl_b32 s{sT0}, s{sH}, 8
s_add_u32 s{sW}, s78, s{sT0}
s_addc_u32 s{sW+1}, s79, 0
s_sub_u32 s{sW+2}, 5242880, s{sT0}
s_mov_b32 s{sW+3}, 0x20000
s_lshl_b32 s{sT0}, s{sB}, 5
s_add_u32 s{sT0}, s{sT0}, s{sH}
s_lshl_b32 s{sT0}, s{sT0}, 19
s_add_u32 s{sK}, s74, s{sT0}
s_addc_u32 s{sK+1}, s75, 0
s_mov_b32 s{sK+2}, 524288
s_mov_b32 s{sK+3}, 0x20000
s_add_u32 s{sV}, s76, s{sT0}
s_addc_u32 s{sV+1}, s77, 0
s_mov_b32 s{sV+2}, 524288
s_mov_b32 s{sV+3}, 0x20000
s_mov_b32 s{sWS}, s80
s_mov_b32 s{sWS+1}, s81
s_mov_b32 s{sWS+2}, {8*15*128*1024}
s_mov_b32 s{sWS+3}, 0x20000
s_lshl_b32 s{sXW}, s{sWAVE}, 13
s_lshl_b32 s{sWW}, s{sWAVE}, 12
s_add_u32 s{sKW}, s{sWW}, {KBASE}
s_add_u32 s{sVW}, s{sWW}, {VBASE}""")
    if STAMP:
        a(f"s_add_u32 s{sST}, s80, 0x10000000\ns_addc_u32 s{sST+1}, s81, 0\ns_mov_b32 s{sST+2}, 0x100000\ns_mov_b32 s{sST+3}, 0x20000")
    a(f"v_lshlrev_b32 v8, 12, v1")
    a(f"v_lshl_add_u32 v8, v4, 8, v8")
    a(f"v_xor_b32 v9, v5, v4")
    for n in range(4):
        a(f"v_xor_b32 v10, {4*n}, v9")
        a(f"v_lshl_add_u32 v{vKD+n}, v10, 4, v8")
    a(f"v_lshlrev_b32 v9, 1, v4")
    a(f"v_xor_b32 v9, v9, v5")
    for p in range(2):
        a(f"v_xor_b32 v10, {8*p}, v9")
        a(f"v_lshl_add_u32 v{vVD+p}, v10, 4, v8")
    a(f"v_lshlrev_b32 v8, 8, v5")
    a(f"v_add_u32 v8, {KBASE}, v8")
    a(f"v_xor_b32 v9, v4, v5")
    for s in range(4):
        a(f"v_xor_b32 v10, {4*s}, v9")
        a(f"v_lshl_add_u32 v{vKR+s}, v10, 4, v8")
    a(f"v_lshrrev_b32 v8, 2, v3")
    a(f"v_and_b32 v9, 7, v8")
    a(f"v_lshlrev_b32 v8, 8, v8")
    a(f"v_and_b32 v10, 3, v3")
    a(f"v_lshl_add_u32 v8, v10, 3, v8")
    if VBASE: a(f"v_add_u32 v8, {VBASE}, v8")
    for t in range(8):
        a(f"v_xor_b32 v10, {t}, v9")
        a(f"v_lshl_add_u32 v{vVR+t}, v10, 5, v8")
    a(f"v_lshlrev_b32 v8, 13, v1")
    a(f"v_lshl_add_u32 v8, v5, 7, v8")
    a(f"v_add_u32 v8, {QBUF[1]}, v8")
    a(f"v_lshrrev_b32 v9, 1, v5")
    a(f"v_xor_b32 v9, v9, v4")
    for sp in range(2):
        a(f"v_xor_b32 v10, {4*sp}, v9")
        a(f"v_lshl_add_u32 v{vXR+sp}, v10, 4, v8")
    a(f"v_bfe_u32 v9, v3, 2, 2")
    a(f"v_lshl_add_u32 v8, v4, 3, v9")
    a(f"v_lshlrev_b32 v8, 8, v8")
    a(f"v_and_b32 v10, 3, v3")
    a(f"v_lshl_add_u32 v8, v10, 4, v8")
    a(f"v_add_u32 v8, {QBUF[1]}, v8")
    for s in range(4):
        a(f"v_xor_b32 v10, {s}, v9")
        a(f"v_lshl_add_u32 v{vWR+s}, v10, 6, v8")
    a(f"v_and_b32 v8, 3, v3")
    a(f"v_cmp_eq_u32 vcc, 0, v8")
    a(f"v_mov_b32 v9, 0x3f803f80")
    a(f"v_mov_b32 v10, 0")
    a(f"v_cndmask_b32 v9, v10, v9, vcc")
    for j in range(4): a(f"v_accvgpr_write_b32 a{aONE+j}, v9")
    a(f"""s_mul_i32 s3, s{sB}, 15
s_lshl_b32 s{sT0}, s{sWAVE}, 2
s_add_u32 s3, s3, s{sT0}
s_lshl_b32 s3, s3, 5
s_add_u32 s3, s3, s{sH}
s_lshl_b32 s3, s3, 12""")
    a(f"s_cmp_eq_u32 s{sWAVE}, 3")
    a("s_cbranch_scc1 L_waveB")
    base = nstamp[0]
    gen_attn_wave(a, 4, "A")
    a("L_waveB:")
    nstamp[0] = base
    gen_attn_wave(a, 3, "B")
    a("L_exit1:")
    a("s_endpgm")
    t = a.text()
    return t

def gen_proj():
    a = Asm()
    DEPTH = 4
    vAcc = 128
    vB = 48
    vA = 16
    sO, sWo, sOut = 8, 12, 16
    a("s_cmp_ge_u32 s2, 240")
    a("s_cbranch_scc1 L_exit2")
    a("s_load_dwordx4 s[20:23], s[0:1], 32")
    a("s_load_dwordx2 s[24:25], s[0:1], 56")
    a("""s_and_b32 s26, s2, 7
s_lshr_b32 s27, s2, 3
s_mul_i32 s28, s27, 26
s_lshr_b32 s28, s28, 8
s_mul_i32 s29, s28, 10
s_sub_u32 s29, s27, s29
v_lshrrev_b32 v1, 6, v0
v_and_b32 v3, 63, v0
v_lshlrev_b32 v2, 4, v3
v_readfirstlane_b32 s30, v1
v_lshrrev_b32 v4, 3, v3
v_and_b32 v5, 7, v3
v_lshrrev_b32 v6, 4, v3""")
    a("v_lshlrev_b32 v7, 1, v6")
    a("v_xor_b32 v7, v7, v5")
    a("v_mul_u32_u24 v8, 1280, v4")
    a("v_lshl_add_u32 v8, v7, 4, v8")
    for n in range(4): a(f"v_add_u32 v{10+n}, {n*8*1280 - n*1024}, v8")
    a("v_lshrrev_b32 v7, 2, v3")
    a("v_bfe_u32 v8, v3, 3, 2")
    a("v_lshlrev_b32 v7, 7, v7")
    a("v_and_b32 v9, 3, v3")
    a("v_lshl_add_u32 v7, v9, 3, v7")
    a("v_lshl_add_u32 v7, v1, 14, v7")
    vAR = 4
    ar = [4, 5, 6, 9]
    for t in range(4):
        a(f"v_xor_b32 v14, {t}, v8")
        a(f"v_lshl_add_u32 v{ar[t]}, v14, 5, v7")
    a("s_waitcnt lgkmcnt(0)")
    a(f"""s_mul_i32 s31, s26, 15
s_mul_i32 s32, s28, 5
s_add_u32 s31, s31, s32
s_lshl_b32 s31, s31, 3
s_add_u32 s31, s31, s30
s_lshl_b32 s31, s31, 14
s_add_u32 s{sO}, s24, s31
s_addc_u32 s{sO+1}, s25, 0
s_sub_u32 s{sO+2}, {8*15*128*1024}, s31
s_mov_b32 s{sO+3}, 0x20000
s_mul_i32 s31, s30, {512*1280}
s_lshl_b32 s32, s29, 7
s_add_u32 s31, s31, s32
s_add_u32 s{sWo}, s20, s31
s_addc_u32 s{sWo+1}, s21, 0
s_sub_u32 s{sWo+2}, 5242880, s31
s_mov_b32 s{sWo+3}, 0x20000
s_mov_b32 s{sOut}, s22
s_mov_b32 s{sOut+1}, s23
s_mov_b32 s{sOut+2}, {8*240*640*2}
s_mov_b32 s{sOut+3}, 0x20000
s_lshl_b32 s33, s30, 14""")
    for qt in range(5): a(f"s_mov_b32 s{34+qt}, {qt*131072}")
    def issue(ks):
        out = []
        sl = ks % DEPTH
        out.append(f"s_add_u32 m0, s33, {sl*4096}")
        out.append(f"s_mov_b32 s40, {ks*32*1280}")
        for n in range(4): out.append(f"buffer_load_dwordx4 v{10+n}, s[{sWo}:{sWo+3}], s40 offen offset:{n*1024} lds")
        for qt in range(5):
            out.append(f"buffer_load_dwordx4 {r('v', vB+sl*20+4*qt)}, v{2 if ks < 4 else 15 if ks < 8 else 14 if ks < 12 else 3}, s[{sO}:{sO+3}], s{34+qt} offen offset:{(ks&3)*1024}")
        return out
    a("v_add_u32 v15, 4096, v2\nv_add_u32 v14, 8192, v2\nv_add_u32 v3, 12288, v2")
    for ks in range(DEPTH):
        for t in issue(ks): a(t)
    def areads(ks):
        sl = ks % DEPTH; fs = ks & 1
        return [f"ds_read_b64_tr_b16 {r('v', vA+16*fs+4*t+2*h, 2)}, v{ar[t]} offset:{sl*4096 + h*2048}" for t in range(4) for h in range(2)]
    a(f"s_waitcnt vmcnt({9*(DEPTH-1)})")
    for t in areads(0): a(t)
    for ks in range(16):
        sl = ks % DEPTH; fs = ks & 1
        if ks + 1 < 16:
            issued = min(16, ks + DEPTH)
            a(f"s_waitcnt vmcnt({9*(issued-1-(ks+1))}) lgkmcnt(0)")
            fill = areads(ks + 1)
        else:
            a("s_waitcnt lgkmcnt(0)")
            fill = []
        mfs = []
        for qt in range(5):
            for nt in range(4):
                acc = r("v", vAcc + (qt * 4 + nt) * 4)
                mfs.append(f"{MF} {acc}, {r('v', vA+16*fs+4*nt)}, {r('v', vB+sl*20+4*qt)}, {'0' if ks == 0 else acc}")
        nxt = issue(ks + DEPTH) if ks + DEPTH < 16 else []
        fill = fill + nxt[:6]
        late = nxt[6:]
        fi = 0
        for i, m in enumerate(mfs):
            a(m)
            if fi < len(fill): a(fill[fi]); fi += 1
        for t in fill[fi:]: a(t)
        for t in late: a(t)
    a("s_nop 7")
    a("s_barrier")
    a("v_mul_u32_u24 v4, 20480, v1")
    a("v_add_u32 v4, v4, v2")
    for i in range(20): a(f"ds_write_b128 v4, {r('v', vAcc+4*i)} offset:{i*1024}")
    a("s_waitcnt lgkmcnt(0)")
    a("s_barrier")
    a(f"s_mul_i32 s31, s26, 240\ns_mul_i32 s32, s28, 80\ns_add_u32 s31, s31, s32\ns_mul_i32 s31, s31, 1280\ns_lshl_b32 s32, s29, 7\ns_add_u32 s31, s31, s32")
    for rnd in range(2):
        if rnd == 1:
            a("s_cmp_ge_u32 s30, 2")
            a("s_cbranch_scc1 L_exit2")
            a("v_add_u32 v0, 512, v0")
        a("""v_lshrrev_b32 v4, 3, v0
v_and_b32 v5, 7, v0
v_lshrrev_b32 v6, 4, v4
v_lshrrev_b32 v7, 1, v5
v_lshl_add_u32 v6, v6, 2, v7
v_lshlrev_b32 v6, 10, v6
v_and_b32 v7, 15, v4
v_lshl_add_u32 v6, v7, 4, v6
v_and_b32 v7, 1, v5
v_lshl_add_u32 v6, v7, 9, v6
v_mul_u32_u24 v8, 1280, v4
v_lshl_add_u32 v8, v5, 4, v8
v_add_u32 v7, 81920, v6""")
        for w in range(8):
            base = 6 if w < 3 else 7 if False else None
            ad = 6 if w < 4 else 7
            off = (w % 4) * 20480
            a(f"ds_read_b128 {r('v', 16+8*w)}, v{ad} offset:{off}")
            a(f"ds_read_b128 {r('v', 16+8*w+4)}, v{ad} offset:{off+256}")
            if w == 6: a("s_waitcnt lgkmcnt(8)")
        a("s_waitcnt lgkmcnt(0)")
        for st in (4, 2, 1):
            for w in range(st):
                for j in range(8): a(f"v_add_f32 v{16+8*w+j}, v{16+8*w+j}, v{16+8*(w+st)+j}")
        for j in range(4): a(f"v_cvt_pk_bf16_f32 v{80+4*rnd+j}, v{16+2*j}, v{16+2*j+1}")
        a(f"buffer_store_dwordx4 {r('v', 80+4*rnd)}, v8, s[{sOut}:{sOut+3}], s31 offen")
    a("L_exit2:")
    a("s_endpgm")
    return a.text()

k1 = gen_attn()
k2 = gen_proj()
print(wrap([
    dict(name="attn_kernel", grid=256, block=256, lds=163840, body=k1, vgpr=512, sgpr=102, accum=256),
    dict(name="proj_kernel", grid=240, block=512, lds=163840, body=k2, vgpr=208, sgpr=102, accum=208),
]))
```

```python
import sys
from gencommon import *

OPT = dict(kv.split("=") for kv in sys.argv[1:])
def opt(k, d): return type(d)(OPT.get(k, d))
STAMP = opt("stamp", 0)
MAP = opt("map", "mixed")
NT = opt("nt", 0)
FORCE_SAFE = opt("safe", 0)
LEAD = opt("lead", 12)
ROT = opt("rot", 1)

MF = "v_mfma_f32_16x16x32_bf16"
VBASE = 0
KBASE = 96 * 1024
SAFEBASE = 64 * 1024
QBUF = [0, 48 * 1024, 96 * 1024]
XOFF, WOFF = 0, 32768
def kslot(t): return (t + 3) % 4
def vslot(t): return t % 4
vO = 128; vS = 64; vNM = 48
vKR = 16; vVR = 20; vKD = 28; vVD = 32; vXD = 34; vWD = 42
vXR = 64; vWR = 66
aQ = 0; aK = 64; aV = 96; aL = 128; aONE = 144
aQA = [64, 96]; aQB = [148, 164]
sK, sV, sX, sW, sWS = 8, 12, 16, 20, 24
sWAVE, sKW, sVW, sXW, sWW = 28, 29, 30, 31, 32
sKoff, sVoff, sCNT, sB, sH, sT0, sT1 = 33, 34, 35, 36, 37, 38, 39
sST = 40
sROT = 68
sSTAMP = 44
CSCALE = 0x3e029470
import struct, math
CSCALE = struct.unpack("<I", struct.pack("<f", math.log2(math.e) / math.sqrt(128.0)))[0]

def r(pfx, b, n=4): return f"{pfx}[{b}:{b+n-1}]"
def O(q, d): return r("v", vO + (q * 8 + d) * 4)
def S(p, q, kt): return vS + 32 * p + 8 * q + 4 * kt
def ntf(): return " nt" if NT else ""

nstamp = [0]
def stamp(a):
    if STAMP:
        i = nstamp[0]; nstamp[0] += 1
        a(f"s_memtime s[{sSTAMP+4*i}:{sSTAMP+4*i+1}]")
        a(f"s_memrealtime s[{sSTAMP+4*i+2}:{sSTAMP+4*i+3}]")

def dmaK(n): return f"buffer_load_dwordx4 v{vKD+n}, s[{sK}:{sK+3}], s{sKoff} offen offset:{n*1024}{ntf()} lds"
def dmaV(n): return f"buffer_load_dwordx4 v{vVD+(n&1)}, s[{sV}:{sV+3}], s{sVoff} offen offset:{n*1024}{ntf()} lds"
def issueK(a, t):
    a(f"s_add_u32 m0, s{sKW}, {kslot(t)*16384}")
    a(f"s_mov_b32 s{sKoff}, {t*16384}")
    for n in range(4): a(dmaK(n))
def issueV(a, t):
    a(f"s_add_u32 m0, s{sVW}, {vslot(t)*16384}")
    a(f"s_mov_b32 s{sVoff}, {t*16384}")
    for n in range(4): a(dmaV(n))

def kread(f, slot, half):
    kt, s = f >> 2, f & 3
    return f"ds_read_b128 {r('a', aK+4*f)}, v{vKR+s} offset:{slot*16384 + half*8192 + kt*4096}"
def vread(d, second, slot, half):
    return f"ds_read_b64_tr_b16 {r('a', aV+4*d+2*second, 2)}, v{vVR+d} offset:{slot*16384 + half*8192 + second*4096}"
def qk(p, q, kt, s, czero=False):
    b = S(p, q, kt)
    c = r("v", b) if s else ("0" if czero else r("v", vNM + 4 * q))
    return f"{MF} {r('v', b)}, {r('a', aK+4*(kt*4+s))}, {r('a', aQ+16*q+4*s)}, {c}"
def pv(p, q, d): return f"{MF} {O(q,d)}, {r('a', aV+4*d)}, {r('v', S(p,q,0))}, {O(q,d)}"
def sm(p, q): return f"{MF} {r('a', aL+4*q)}, {r('a', aONE)}, {r('v', S(p,q,0))}, {r('a', aL+4*q)}"
def softmax_ops(p, nq):
    ex, cv = [], []
    for kt in range(2):
        for q in range(nq):
            b = S(p, q, kt)
            for j in range(4): ex.append(f"v_exp_f32 v{b+j}, v{b+j}")
            for j in range(2): cv.append(f"v_cvt_pk_bf16_f32 v{S(p,q,0)+2*kt+j}, v{b+2*j}, v{b+2*j+1}")
    return ex, cv

class Body:
    def __init__(self):
        self.mf = []
        self.big = {}
        self.pre = {}
        self.cv = {}
        self.lastcv = 0
    def add(self, text, need=None): self.mf.append((text, need))
    def place_big(self, kind, text, target, tag=None, hi=None):
        n = len(self.mf)
        target = min(target, n - 1)
        hi = min(n - 1, target + 3 if hi is None else max(hi, target))
        g = target
        while g in self.big and g < hi: g += 1
        if g in self.big:
            g = min(range(target, hi + 1), key=lambda x: len(self.big[x]))
            self.big[g] = self.big[g] + [(kind, text, tag)]
        else:
            self.big[g] = [(kind, text, tag)]
        return g
    def place_cvt(self, text, lo, hi):
        n = len(self.mf)
        best = None
        lo = max(lo, self.lastcv)
        for g in range(lo, min(hi, lo + 4, n - 1) + 1):
            kinds = [k for k, _, _ in self.big.get(g, [])]
            cnt = len(self.cv.get(g, []))
            if kinds == ["D"] and cnt == 0: best = g; break
            if kinds == [] and cnt < 2: best = g; break
        if best is None: best = min(lo, n - 1)
        self.cv.setdefault(best, []).append(text)
        self.lastcv = best
        return best
    def place_s(self, text, lo, hi=None):
        n = len(self.mf)
        hi = lo if hi is None else hi
        for g in range(lo, min(hi, n - 1) + 1):
            kinds = [k for k, _, _ in self.big.get(g, [])]
            if not self.pre.get(g) and (kinds == ["E"] or kinds == [] or (kinds == ["D"] and not self.cv.get(g))):
                self.pre.setdefault(g, []).append(text); return g
        self.pre.setdefault(lo, []).append(text); return lo
    def emit(self, a, resident=()):
        q = []
        done = set(resident)
        n = len(self.mf)
        for g in range(n):
            text, need = self.mf[g]
            assert all(t in done for t in (need or [])), (g, text, need)
            a(text)
            nxt = self.mf[g + 1][1] if g + 1 < n else None
            if nxt:
                miss = [t for t in nxt if t not in done]
                if miss:
                    assert all(t in q for t in miss), (g, miss, q)
                    last = max(q.index(t) if q.count(t) == 1 else len(q) - 1 - q[::-1].index(t) for t in miss)
                    N = len(q) - 1 - last
                    a(f"s_waitcnt lgkmcnt({N})")
                    for t in q[:last + 1]: done.add(t)
                    q = q[last + 1:]
                    for t in q: done.discard(t)
            for t in self.pre.get(g, []): a(t)
            for kind, text, tag in self.big.get(g, []):
                a(text)
                if kind == "D":
                    q.append(tag); done.discard(tag)
                    assert len(q) <= 15
            for t in self.cv.get(g, []): a(t)

def gen_body(a, nq, u, last=False, loopctl=None):
    B = Body()
    vs, ks = vslot(u), kslot(u + 1)
    def g_qk(p, kts, gen):
        for kt in kts:
            for s in range(4):
                for q in range(nq): B.add(qk(p, q, kt, s), [("K", kt * 4 + s, gen)] if q == 0 else None)
    def g_pv(p, gen):
        for d in range(8):
            for q in range(nq): B.add(pv(p, q, d), [("V", d, gen)] if q == 0 else None)
        for q in range(nq): B.add(sm(p, q))
    g_qk(1, [1], 0); P0 = len(B.mf)
    g_pv(0, 0); Q1 = len(B.mf)
    if not last: g_qk(0, [0, 1], 1)
    P1 = len(B.mf)
    g_pv(1, 1); Q2 = len(B.mf)
    if not last: g_qk(1, [0], 2)
    n = len(B.mf)
    resident = [("K", f, 0) for f in range(4, 8)]
    sc = nq / 4.0
    for d in range(8):
        for h in range(2):
            B.place_big("D", vread(d, h, vs, 0), int((4 * d + 2 * h) * sc), ("V", d, 0))
    ex0, cv0 = softmax_ops(0, nq); ex1, cv1 = softmax_ops(1, nq)
    ne = len(ex0)
    win = (P1 - P0) if not last else (Q1 - P0)
    full = nq * 17
    ntail = NTAIL[nq]
    if not last:
        for f in range(8):
            B.place_big("D", kread(f, ks, 0), Q1 - int(20 * sc) + int(4 * f * sc), ("K", f, 1))
    for d in range(8):
        for h in range(2):
            lo = max(P1 - int(20 * sc) + int((4 * d + 2 * h) * sc), P0 + nq * d + nq)
            B.place_big("D", vread(d, h, vs, 1), lo, ("V", d, 1))
    if not last:
        for f in range(8):
            B.place_big("D", kread(f, ks, 1), P1 + int(12 * sc) + int(4 * f * sc), ("K", f, 2))
        g0 = Q1 - int(18 * sc)
        gs = [B.place_big("M", dmaV(i), g0 + int(8 * i * sc)) for i in range(4)]
        mV = gs[0]; mVe = gs[-1]
        g0 = P1 + int(14 * sc)
        gs = [B.place_big("M", dmaK(i), g0 + int(8 * i * sc)) for i in range(4)]
        mK = gs[0]; mKe = gs[-1]
    eg0 = {}
    nh = ne - ntail
    for i in range(ntail, ne):
        eg0[i] = B.place_big("E", ex0[i], max(1 + int((i - ntail) * (P0 - 4) / max(nh, 1)), eg0.get(i - 1, 0)))
    eg1 = {}
    for i in range(ne):
        eg1[i] = B.place_big("E", ex1[i], max(P0 + 1 + int(i * (win - 5) / ne), eg1.get(i - 1, 0)), hi=min(P0 + 4 + int(i * (win - 5) / ne), P1 - 4))
    egt = {}
    if not last:
        for i in range(ntail):
            egt[i] = B.place_big("E", ex0[i], max(P1 + 1 + int(i * (full - 5) / ne), egt.get(i - 1, 0)), hi=min(P1 + 4 + int(i * (full - 5) / ne), n - 2))
    for j in range(ntail // 2, ne // 2):
        q = (j // 2) % nq
        g = B.place_cvt(cv0[j], eg0[2 * j + 1] + 1, P0 + q - 2)
        assert g <= P0 + q - 2, ("cvt0 late", j, g, P0)
    for j in range(ne // 2):
        q = (j // 2) % nq
        g = B.place_cvt(cv1[j], eg1[2 * j + 1] + 1, P1 + q - 2)
        if not last: assert g <= P1 + q - 2, ("cvt1 late", j, g, P1)
    if not last:
        for j in range(ntail // 2):
            B.place_cvt(cv0[j], egt[2 * j + 1] + 1, n - 1)
        assert eg1[ne // 2] >= P0 + 5
        assert min(egt.values()) >= Q1 + 4 * nq + 5
        if ntail > ne // 2: assert egt[ne // 2] >= P1 + 5
        B.place_s(f"s_add_u32 m0, s{sVW}, {vslot(u+3)*16384}", mV - 4, mV - 1)
        g = B.place_s(f"s_add_u32 s{sVoff}, s{sVoff}, 16384", mV - 12, mV - 6)
        if ROT:
            B.place_s(f"s_and_b32 s{sVoff}, s{sVoff}, 0x7ffff", g + 1, mV - 1)
            if u == 0: B.place_s(f"s_mov_b32 s{sV+2}, s{sK+2}", mVe + 1, mVe + 6)
        B.place_s(f"s_add_u32 m0, s{sKW}, {kslot(u+4)*16384}", mK - 4, mK - 1)
        g = B.place_s(f"s_add_u32 s{sKoff}, s{sKoff}, 16384", mK - 12, mK - 6)
        if ROT:
            B.place_s(f"s_and_b32 s{sKoff}, s{sKoff}, 0x7ffff", g + 1, mK - 1)
            if u == 3:
                g = B.place_s(f"s_cmp_eq_u32 s{sCNT}, 1", mKe + 1, mKe + 3)
                B.place_s(f"s_cselect_b32 s{sK+2}, 0, s{sK+2}", g + 1, g + 4)
        if loopctl:
            B.place_s(loopctl[0], n - 8, n - 5)
            B.place_s(loopctl[1], n - 4, n - 2)
    if last:
        pass
    if last:
        B2 = B
        moved_e, moved_c = [], []
        for g in sorted(list(B.big.keys())):
            if g >= P1 - 1:
                keep = []
                for it in B.big[g]:
                    (moved_e if it[0] == "E" else keep).append(it)
                B.big[g] = keep
        for g in sorted(list(B.cv.keys())):
            if g >= P1 - 1:
                moved_c += B.cv.pop(g)
        B.big[P1 - 1] = B.big.get(P1 - 1, []) + moved_e
        B.cv[P1 - 1] = ["s_nop 0"] + moved_c + ["s_nop 1"]
    B.emit(a, resident)
    if not last:
        a("s_waitcnt vmcnt(16) lgkmcnt(0)")
        a("s_barrier")

NTAIL = {4: 26, 3: 20}

def gen_attn_wave(a, nq, L):
    nx = 2 * nq
    def qstage_issue(st):
        out = []
        buf = QBUF[(st + 1) % 3]
        out.append(("s", f"s_mov_b32 s{sT0}, {st*128}"))
        out.append(("s", f"s_add_u32 m0, s{sXW}, {buf+XOFF}"))
        for n in range(nx):
            if n == 4: out.append(("s", f"s_add_u32 m0, s{sXW}, {buf+XOFF+4096}"))
            out.append(("M", f"buffer_load_dwordx4 v{vXD+n}, s[{sX}:{sX+3}], s{sT0} offen offset:{(n&3)*1024} lds"))
        out.append(("s", f"s_mov_b32 s{sT1}, {st*524288}"))
        out.append(("s", f"s_add_u32 m0, s{sWW}, {buf+WOFF}"))
        for n in range(4):
            out.append(("M", f"buffer_load_dwordx4 v{vWD+n}, s[{sW}:{sW+3}], s{sT1} offen offset:{n*1024} lds"))
        return out
    def kv_issue(kind, t):
        out = []
        if kind == "K":
            if ROT:
                out.append(("s", f"s_add_u32 s{sKoff}, s{sROT}, {t*16384}"))
                out.append(("s", f"s_and_b32 s{sKoff}, s{sKoff}, 0x7ffff"))
            else:
                out.append(("s", f"s_mov_b32 s{sKoff}, {t*16384}"))
            out.append(("s", f"s_add_u32 m0, s{sKW}, {kslot(t)*16384}"))
            out += [("M", dmaK(n)) for n in range(4)]
        else:
            if ROT:
                out.append(("s", f"s_add_u32 s{sVoff}, s{sROT}, {t*16384}"))
                out.append(("s", f"s_and_b32 s{sVoff}, s{sVoff}, 0x7ffff"))
            else:
                out.append(("s", f"s_mov_b32 s{sVoff}, {t*16384}"))
            out.append(("s", f"s_add_u32 m0, s{sVW}, {vslot(t)*16384}"))
            out += [("M", dmaV(n)) for n in range(4)]
        return out
    def flat(items):
        prev = None
        for k, t in items:
            if k == "M" and prev and "m0" in prev: a("s_nop 0")
            a(t); prev = t
    vm = []
    def log(items, tag):
        for k, t in items:
            if k == "M": vm.append(tag)
    def vmwait(tag):
        last = len(vm) - 1 - vm[::-1].index(tag)
        return len(vm) - 1 - last
    for st in range(3):
        it = qstage_issue(st); flat(it); log(it, ("q", st))
    it = kv_issue("K", 0); flat(it); log(it, ("K", 0))
    def qreads(st, sp):
        fs = sp
        out = []
        for q in range(nq):
            out.append(f"ds_read_b128 {r('a', aQB[fs]+4*q)}, v{vXR+sp} offset:{XOFF + q*2048}")
        for t in range(8):
            s, odd = t >> 1, t & 1
            for h in range(2):
                out.append(f"ds_read_b64_tr_b16 {r('a', aQA[fs]+4*t+2*h, 2)}, v{vWR+s} offset:{WOFF + odd*8 + h*1024 + sp*8192}")
        return out
    def qmf(st, sp):
        out = []
        for t in range(8):
            for q in range(nq):
                c = "0" if (st == 0 and sp == 0) else O(q, t)
                out.append(f"{MF} {O(q,t)}, {r('a', aQA[sp]+4*t)}, {r('a', aQB[sp]+4*q)}, {c}")
        return out
    def interleave(mfs, fill):
        fi = 0
        for m in mfs:
            a(m)
            big = False
            while fi < len(fill):
                k, t = fill[fi]
                if k in "DM":
                    if big: break
                    big = True
                    a(t); fi += 1
                    break
                a(t); fi += 1
                if "m0" in t: break
        rest = fill[fi:]
        flat(rest)
    def rot(st_from, st_to):
        d = QBUF[(st_to + 1) % 3] - QBUF[(st_from + 1) % 3]
        ops = []
        for i in range(6):
            ops.append(("v", f"v_add_u32 v{vXR+i}, {d}, v{vXR+i}" if d > 0 else f"v_subrev_u32 v{vXR+i}, {-d}, v{vXR+i}"))
        return ops
    a(f"s_waitcnt vmcnt({vmwait(('q', 0))})")
    a("s_barrier")
    stamp(a)
    for t in qreads(0, 0): a(t)
    for st in range(10):
        a("s_waitcnt lgkmcnt(0)")
        interleave(qmf(st, 0), [("D", t) for t in qreads(st, 1)])
        fill = []
        if st < 9:
            a(f"s_waitcnt vmcnt({vmwait(('q', st+1))}) lgkmcnt(0)")
            a("s_barrier")
            fill += rot(st, st + 1)
            rd = [("D", t) for t in qreads(st + 1, 0)]
            if st + 3 < 10:
                it = qstage_issue(st + 3); log(it, ("q", st + 3))
            elif st == 7:
                it = kv_issue("K", 1); log(it, ("K", 1))
                it2 = kv_issue("K", 2); log(it2, ("K", 2)); it += it2
            else:
                it = []
                for kind, t in (("V", 0), ("V", 1), ("K", 3), ("V", 2)):
                    i2 = kv_issue(kind, t); log(i2, (kind, t)); it += i2
            fill += rd + it
        else:
            a("s_waitcnt lgkmcnt(0)")
            fill += [("D", kread(f, kslot(0), 0)) for f in range(8)] if False else []
        interleave(qmf(st, 1), fill)
    stamp(a)
    for f in range(8): a(kread(f, kslot(0), 0))
    a(f"s_mov_b32 s{sT0}, {CSCALE:#x}")
    a("s_nop 7")
    for q in range(nq):
        for s in range(4):
            b = vO + (q * 8 + 2 * s) * 4
            for j in range(8): a(f"v_mul_f32 v{b+j}, s{sT0}, v{b+j}")
            for j in range(4): a(f"v_cvt_pk_bf16_f32 v{b+j}, v{b+2*j}, v{b+2*j+1}")
            for j in range(4): a(f"v_accvgpr_write_b32 a{aQ+16*q+4*s+j}, v{b+j}")
    a("s_waitcnt lgkmcnt(0)")
    if FORCE_SAFE:
        a("s_barrier")
        a(f"s_branch L_safe{L}")
    zero = [f"v_mov_b32 v{vO+i}, 0" for i in range(nq * 32)] + [f"v_accvgpr_write_b32 a{aL+i}, 0" for i in range(nq * 4)]
    zi = 0
    for kt in range(2):
        for s in range(4):
            for q in range(nq):
                a(qk(0, q, kt, s, czero=True))
                for _ in range(2):
                    a(zero[zi]); zi += 1
    for f in range(8): a(kread(f, kslot(0), 1))
    while zi < len(zero):
        a(zero[zi]); zi += 1
    for q in range(nq):
        b = S(0, q, 0); m = vNM + 4 * q
        a(f"v_max3_f32 v{m}, v{b}, v{b+1}, v{b+2}")
        a(f"v_max3_f32 v{m+1}, v{b+3}, v{b+4}, v{b+5}")
        a(f"v_max3_f32 v{m}, v{m}, v{b+6}, v{b+7}")
        a(f"v_max_f32 v{m}, v{m}, v{m+1}")
    xlane_max(a, [vNM + 4 * q for q in range(nq)])
    for q in range(nq):
        m = vNM + 4 * q
        a(f"v_sub_f32 v{m}, 0, v{m}")
        for j in range(1, 4): a(f"v_mov_b32 v{m+j}, v{m}")
        b = S(0, q, 0)
        for j in range(8): a(f"v_add_f32 v{b+j}, v{b+j}, v{m}")
    a("s_waitcnt lgkmcnt(0)")
    ex0, cv0 = softmax_ops(0, nq)
    ntail = NTAIL[nq]
    work = []
    for i in range(ntail):
        work.append(ex0[i])
        if i % 2 == 1 and i >= 3: work.append(cv0[(i - 3) // 2])
    work.append("s_nop 0"); work.append(cv0[ntail // 2 - 1])
    wi = 0
    for s in range(4):
        for q in range(nq):
            a(qk(1, q, 0, s))
            for _ in range(2):
                if wi < len(work): a(work[wi]); wi += 1
    while wi < len(work):
        a(work[wi]); wi += 1
    a(f"s_mov_b32 s{sCNT}, 8")
    a(f"s_waitcnt vmcnt({vmwait(('V', 0))})")
    assert vmwait(("V", 0)) == 12
    a("s_barrier")
    stamp(a)
    a(".p2align 6")
    a(f"L_loop{L}:")
    gen_body(a, nq, 0)
    gen_body(a, nq, 1)
    gen_body(a, nq, 2, loopctl=(f"s_sub_u32 s{sCNT}, s{sCNT}, 1", f"s_cmp_eq_u32 s{sCNT}, 0"))
    a(f"s_cbranch_scc1 L_last{L}")
    gen_body(a, nq, 3)
    a(f"s_branch L_loop{L}")
    a(f"L_last{L}:")
    gen_body(a, nq, 3, last=True)
    stamp(a)
    a("s_nop 7")
    for q in range(nq): a(f"v_accvgpr_read_b32 v{vNM+4*q}, a{aL+4*q}")
    a(f"s_mov_b32 s{sT0}, 0x5f800000")
    a(f"v_max_f32 v1, v{vNM}, v{vNM+4}")
    a(f"v_cmp_nlt_f32 vcc, v{vNM}, s{sT0}" if False else f"v_cmp_ngt_f32 vcc, s{sT0}, v{vNM}")
    a("s_mov_b64 s[4:5], vcc")
    for q in range(1, nq):
        a(f"v_cmp_ngt_f32 vcc, s{sT0}, v{vNM+4*q}")
        a("s_or_b64 s[4:5], s[4:5], vcc")
    a("s_cmp_lg_u64 s[4:5], 0")
    a(f"s_cbranch_scc1 L_safe{L}")
    a(f"L_epi{L}:")
    for q in range(nq): a(f"v_rcp_f32 v{vNM+4*q}, v{vNM+4*q}")
    a("s_nop 0")
    for q in range(nq):
        for s in range(4):
            b = vO + (q * 8 + 2 * s) * 4
            for j in range(8): a(f"v_mul_f32 v{b+j}, v{vNM+4*q}, v{b+j}")
            for j in range(4): a(f"v_cvt_pk_bf16_f32 v{b+j}, v{b+2*j}, v{b+2*j+1}")
            a(f"buffer_store_dwordx4 {r('v', b)}, v2, s[{sWS}:{sWS+3}], s3 offen offset:{s*1024}{OSTORE}")
        if q < nq - 1: a(f"s_add_u32 s3, s3, {128*1024}")
    if STAMP:
        a("s_waitcnt vmcnt(0)")
        stamp(a)
        a("s_waitcnt lgkmcnt(0)")
        if L == "A":
            stamp_store(a, 2 * nstamp[0], sSTAMP, sST, 4)
    a("s_endpgm")
    gen_safe(a, nq, L)

OSTORE = {"": "", "sc1": " sc0 sc1", "nt": " nt"}[opt("ost", "")]

def xlane_max(a, regs):
    for op in ("v_permlane32_swap_b32", "v_permlane16_swap_b32"):
        for m in regs: a(f"v_mov_b32 v{m+1}, v{m}")
        a("s_nop 1")
        for m in regs: a(f"{op} v{m}, v{m+1}")
        a("s_nop 1")
        for m in regs: a(f"v_max_f32 v{m}, v{m}, v{m+1}")

def gen_safe(a, nq, L):
    a(f"L_safe{L}:")
    a("s_waitcnt vmcnt(0) lgkmcnt(0)")
    for i in range(nq * 32): a(f"v_mov_b32 v{vO+i}, 0")
    for q in range(nq):
        a(f"v_mov_b32 v{vNM+4*q}, 0xff800000")
        a(f"v_mov_b32 v{vNM+4*q+3}, 0")
    a(f"s_lshl_b32 s{sT0}, s{sWAVE}, 12")
    for i in range(6): a(f"v_subrev_u32 v{vKD+i}, s{sT0}, v{vKD+i}")
    a(f"s_lshl_b32 s{sT0}, s{sWAVE}, 13")
    a(f"s_add_u32 s{sKW}, s{sT0}, {SAFEBASE}")
    a(f"s_sub_u32 s{sT0}, s{sKW}, {KBASE}")
    for i in range(4): a(f"v_add_u32 v{vKR+i}, s{sT0}, v{vKR+i}")
    assert VBASE == 0
    for i in range(8): a(f"v_add_u32 v{vVR+i}, s{sKW}, v{vVR+i}")
    a(f"s_mov_b32 s{sKoff}, 0")
    a(f"s_mov_b32 s{sK+2}, 524288")
    a(f"s_mov_b32 s{sV+2}, 524288")
    a(f"L_sloop{L}:")
    for hh in range(2):
        a(f"s_add_u32 m0, s{sKW}, {hh*4096}")
        a(f"s_add_u32 s{sVoff}, s{sKoff}, {hh*4096}")
        for n in range(4): a(f"buffer_load_dwordx4 v{vKD+n}, s[{sK}:{sK+3}], s{sVoff} offen offset:{n*1024} lds")
    a("s_waitcnt vmcnt(0)")
    for f in range(8): a(kread(f, 0, 0))
    a("s_waitcnt lgkmcnt(0)")
    for hh in range(2):
        a(f"s_add_u32 m0, s{sKW}, {hh*4096}")
        a(f"s_add_u32 s{sVoff}, s{sKoff}, {hh*4096}")
        for n in range(4): a(f"buffer_load_dwordx4 v{vVD+(n&1)}, s[{sV}:{sV+3}], s{sVoff} offen offset:{n*1024} lds")
    for kt in range(2):
        for s in range(4):
            for q in range(nq): a(qk(0, q, kt, s, czero=True))
    a("s_nop 7")
    T = vS + 32
    for q in range(nq):
        b = S(0, q, 0); m = T + 2 * q
        a(f"v_max3_f32 v{m}, v{b}, v{b+1}, v{b+2}")
        a(f"v_max3_f32 v{m+1}, v{b+3}, v{b+4}, v{b+5}")
        a(f"v_max3_f32 v{m}, v{m}, v{b+6}, v{b+7}")
        a(f"v_max3_f32 v{m}, v{m}, v{m+1}, v{vNM+4*q}")
    xlane_max(a, [T + 2 * q for q in range(nq)])
    for q in range(nq):
        m = vNM + 4 * q; b = S(0, q, 0)
        a(f"v_sub_f32 v{m+2}, v{m}, v{T+2*q}")
        a(f"v_exp_f32 v{m+2}, v{m+2}")
        a(f"v_mov_b32 v{m}, v{T+2*q}")
        for j in range(8): a(f"v_sub_f32 v{b+j}, v{b+j}, v{m}")
        for j in range(8): a(f"v_exp_f32 v{b+j}, v{b+j}")
        a(f"v_mul_f32 v{m+3}, v{m+3}, v{m+2}")
        for i in range(32): a(f"v_mul_f32 v{vO+q*32+i}, v{vO+q*32+i}, v{m+2}")
        for j in range(4): a(f"v_cvt_pk_bf16_f32 v{b+j}, v{b+2*j}, v{b+2*j+1}")
        for j in range(4):
            a(f"v_lshlrev_b32 v{b+4}, 16, v{b+j}")
            a(f"v_and_b32 v{b+5}, 0xffff0000, v{b+j}")
            a(f"v_add_f32 v{m+3}, v{m+3}, v{b+4}")
            a(f"v_add_f32 v{m+3}, v{m+3}, v{b+5}")
    a("s_waitcnt vmcnt(0)")
    for d in range(8):
        for h in range(2): a(vread(d, h, 0, 0))
        if d == 3: a("s_waitcnt lgkmcnt(0)")
    a("s_waitcnt lgkmcnt(0)")
    for d in range(8):
        for q in range(nq): a(pv(0, q, d))
    a("s_nop 7")
    a(f"s_add_u32 s{sKoff}, s{sKoff}, 8192")
    a(f"s_cmp_lt_u32 s{sKoff}, 524288")
    a(f"s_cbranch_scc1 L_sloop{L}")
    for op in ("v_permlane32_swap_b32", "v_permlane16_swap_b32"):
        for q in range(nq): a(f"v_mov_b32 v{vNM+4*q+1}, v{vNM+4*q+3}")
        a("s_nop 1")
        for q in range(nq): a(f"{op} v{vNM+4*q+3}, v{vNM+4*q+1}")
        a("s_nop 1")
        for q in range(nq): a(f"v_add_f32 v{vNM+4*q+3}, v{vNM+4*q+3}, v{vNM+4*q+1}")
    for q in range(nq): a(f"v_mov_b32 v{vNM+4*q}, v{vNM+4*q+3}")
    a(f"s_branch L_epi{L}")

def gen_attn():
    a = Asm()
    a("s_cmp_ge_u32 s2, 256")
    a("s_cbranch_scc1 L_exit1")
    a("s_load_dwordx8 s[72:79], s[0:1], 0")
    a("s_load_dwordx2 s[80:81], s[0:1], 56")
    stamp(a)
    if MAP == "bmajor":
        a(f"s_and_b32 s{sB}, s2, 7\ns_lshr_b32 s{sH}, s2, 3")
    elif MAP == "hmajor":
        a(f"s_and_b32 s{sT0}, s2, 7\ns_lshr_b32 s{sT1}, s2, 3\ns_and_b32 s{sB}, s{sT1}, 7\ns_lshr_b32 s{sT1}, s{sT1}, 3\ns_lshl_b32 s{sH}, s{sT0}, 2\ns_add_u32 s{sH}, s{sH}, s{sT1}")
    else:
        a(f"""s_and_b32 s{sT0}, s2, 1
s_lshl_b32 s{sB}, s{sT0}, 2
s_lshr_b32 s{sT1}, s2, 3
s_and_b32 s{sT0}, s{sT1}, 3
s_add_u32 s{sB}, s{sB}, s{sT0}
s_and_b32 s{sH}, s2, 6
s_lshl_b32 s{sH}, s{sH}, 2
s_lshr_b32 s{sT1}, s{sT1}, 2
s_add_u32 s{sH}, s{sH}, s{sT1}""")
    a(f"""v_lshrrev_b32 v1, 6, v0
v_and_b32 v3, 63, v0
v_lshrrev_b32 v4, 4, v3
v_readfirstlane_b32 s{sWAVE}, v1
v_and_b32 v5, 15, v3
v_lshlrev_b32 v2, 4, v3
v_lshrrev_b32 v6, 3, v3
v_and_b32 v7, 7, v3""")
    a(f"v_lshl_add_u32 v8, v1, 6, v6")
    a(f"v_mul_u32_u24 v8, 1280, v8")
    a(f"v_xor_b32 v9, v7, v4")
    for n in range(8):
        a(f"v_xor_b32 v10, {4*(n&1)}, v9")
        a(f"v_lshl_add_u32 v10, v10, 4, v8")
        a(f"v_add_u32 v{vXD+n}, {n*8*1280 - (n&3)*1024}, v10")
    a(f"v_lshl_add_u32 v8, v1, 4, v4")
    a(f"v_lshlrev_b32 v8, 13, v8")
    a(f"v_lshlrev_b32 v9, 2, v4")
    a(f"v_xor_b32 v9, v9, v5")
    a(f"v_lshl_add_u32 v8, v9, 4, v8")
    for n in range(4): a(f"v_add_u32 v{vWD+n}, {n*4*8192 - n*1024}, v8")
    a("s_waitcnt lgkmcnt(0)")
    a(f"""s_mul_i32 s{sT0}, s{sB}, 307200
s_add_u32 s{sX}, s72, s{sT0}
s_addc_u32 s{sX+1}, s73, 0
s_mov_b32 s{sX+2}, 307200
s_mov_b32 s{sX+3}, 0x20000
s_lshl_b32 s{sT0}, s{sH}, 8
s_add_u32 s{sW}, s78, s{sT0}
s_addc_u32 s{sW+1}, s79, 0
s_sub_u32 s{sW+2}, 5242880, s{sT0}
s_mov_b32 s{sW+3}, 0x20000
s_lshl_b32 s{sT0}, s{sB}, 5
s_add_u32 s{sT0}, s{sT0}, s{sH}
s_lshl_b32 s{sT0}, s{sT0}, 19
s_add_u32 s{sK}, s74, s{sT0}
s_addc_u32 s{sK+1}, s75, 0
s_mov_b32 s{sK+2}, 524288
s_mov_b32 s{sK+3}, 0x20000
s_add_u32 s{sV}, s76, s{sT0}
s_addc_u32 s{sV+1}, s77, 0
s_mov_b32 s{sV+2}, 524288
s_mov_b32 s{sV+3}, 0x20000
s_mov_b32 s{sWS}, s80
s_mov_b32 s{sWS+1}, s81
s_mov_b32 s{sWS+2}, {8*15*128*1024}
s_mov_b32 s{sWS+3}, 0x20000
s_lshl_b32 s{sXW}, s{sWAVE}, 13
s_lshl_b32 s{sWW}, s{sWAVE}, 12
s_add_u32 s{sKW}, s{sWW}, {KBASE}
s_add_u32 s{sVW}, s{sWW}, {VBASE}""")
    if STAMP:
        a(f"s_add_u32 s{sST}, s80, 0x10000000\ns_addc_u32 s{sST+1}, s81, 0\ns_mov_b32 s{sST+2}, 0x100000\ns_mov_b32 s{sST+3}, 0x20000")
    a(f"v_lshlrev_b32 v8, 12, v1")
    a(f"v_lshl_add_u32 v8, v4, 8, v8")
    a(f"v_xor_b32 v9, v5, v4")
    for n in range(4):
        a(f"v_xor_b32 v10, {4*n}, v9")
        a(f"v_lshl_add_u32 v{vKD+n}, v10, 4, v8")
    a(f"v_lshlrev_b32 v9, 1, v4")
    a(f"v_xor_b32 v9, v9, v5")
    for p in range(2):
        a(f"v_xor_b32 v10, {8*p}, v9")
        a(f"v_lshl_add_u32 v{vVD+p}, v10, 4, v8")
    a(f"v_lshlrev_b32 v8, 8, v5")
    a(f"v_add_u32 v8, {KBASE}, v8")
    a(f"v_xor_b32 v9, v4, v5")
    for s in range(4):
        a(f"v_xor_b32 v10, {4*s}, v9")
        a(f"v_lshl_add_u32 v{vKR+s}, v10, 4, v8")
    a(f"v_lshrrev_b32 v8, 2, v3")
    a(f"v_and_b32 v9, 7, v8")
    a(f"v_lshlrev_b32 v8, 8, v8")
    a(f"v_and_b32 v10, 3, v3")
    a(f"v_lshl_add_u32 v8, v10, 3, v8")
    if VBASE: a(f"v_add_u32 v8, {VBASE}, v8")
    for t in range(8):
        a(f"v_xor_b32 v10, {t}, v9")
        a(f"v_lshl_add_u32 v{vVR+t}, v10, 5, v8")
    a(f"v_lshlrev_b32 v8, 13, v1")
    a(f"v_lshl_add_u32 v8, v5, 7, v8")
    a(f"v_add_u32 v8, {QBUF[1]}, v8")
    a(f"v_lshrrev_b32 v9, 1, v5")
    a(f"v_xor_b32 v9, v9, v4")
    for sp in range(2):
        a(f"v_xor_b32 v10, {4*sp}, v9")
        a(f"v_lshl_add_u32 v{vXR+sp}, v10, 4, v8")
    a(f"v_bfe_u32 v9, v3, 2, 2")
    a(f"v_lshl_add_u32 v8, v4, 3, v9")
    a(f"v_lshlrev_b32 v8, 8, v8")
    a(f"v_and_b32 v10, 3, v3")
    a(f"v_lshl_add_u32 v8, v10, 4, v8")
    a(f"v_add_u32 v8, {QBUF[1]}, v8")
    for s in range(4):
        a(f"v_xor_b32 v10, {s}, v9")
        a(f"v_lshl_add_u32 v{vWR+s}, v10, 6, v8")
    a(f"v_and_b32 v8, 3, v3")
    a(f"v_cmp_eq_u32 vcc, 0, v8")
    a(f"v_mov_b32 v9, 0x3f803f80")
    a(f"v_mov_b32 v10, 0")
    a(f"v_cndmask_b32 v9, v10, v9, vcc")
    for j in range(4): a(f"v_accvgpr_write_b32 a{aONE+j}, v9")
    a(f"""s_mul_i32 s3, s{sB}, 15
s_lshl_b32 s{sT0}, s{sWAVE}, 2
s_add_u32 s3, s3, s{sT0}
s_lshl_b32 s3, s3, 5
s_add_u32 s3, s3, s{sH}
s_lshl_b32 s3, s3, 12""")
    if ROT == 1:
        a(f"s_lshr_b32 s{sROT}, s2, 3\ns_lshl_b32 s{sROT}, s{sROT}, 14")
    elif ROT == 2:
        a(f"s_and_b32 s{sROT}, s2, 31\ns_lshl_b32 s{sROT}, s{sROT}, 14")
    elif ROT == 3:
        a(f"s_lshr_b32 s{sROT}, s2, 3\ns_lshl_b32 s{sT0}, s2, 2\ns_add_u32 s{sROT}, s{sROT}, s{sT0}\ns_and_b32 s{sROT}, s{sROT}, 31\ns_lshl_b32 s{sROT}, s{sROT}, 14")
    a(f"s_cmp_eq_u32 s{sWAVE}, 3")
    a("s_cbranch_scc1 L_waveB")
    base = nstamp[0]
    gen_attn_wave(a, 4, "A")
    a("L_waveB:")
    nstamp[0] = base
    gen_attn_wave(a, 3, "B")
    a("L_exit1:")
    a("s_endpgm")
    t = a.text()
    return t

def gen_proj():
    a = Asm()
    DEPTH = 4
    vAcc = 128
    vB = 48
    vA = 16
    sO, sWo, sOut = 8, 12, 16
    a("s_cmp_ge_u32 s2, 240")
    a("s_cbranch_scc1 L_exit2")
    a("s_load_dwordx4 s[20:23], s[0:1], 32")
    a("s_load_dwordx2 s[24:25], s[0:1], 56")
    a("""s_and_b32 s26, s2, 7
s_lshr_b32 s27, s2, 3
s_mul_i32 s28, s27, 26
s_lshr_b32 s28, s28, 8
s_mul_i32 s29, s28, 10
s_sub_u32 s29, s27, s29
v_lshrrev_b32 v1, 6, v0
v_and_b32 v3, 63, v0
v_lshlrev_b32 v2, 4, v3
v_readfirstlane_b32 s30, v1
v_lshrrev_b32 v4, 3, v3
v_and_b32 v5, 7, v3
v_lshrrev_b32 v6, 4, v3""")
    a("v_lshlrev_b32 v7, 1, v6")
    a("v_xor_b32 v7, v7, v5")
    a("v_mul_u32_u24 v8, 1280, v4")
    a("v_lshl_add_u32 v8, v7, 4, v8")
    for n in range(4): a(f"v_add_u32 v{10+n}, {n*8*1280 - n*1024}, v8")
    a("v_lshrrev_b32 v7, 2, v3")
    a("v_bfe_u32 v8, v3, 3, 2")
    a("v_lshlrev_b32 v7, 7, v7")
    a("v_and_b32 v9, 3, v3")
    a("v_lshl_add_u32 v7, v9, 3, v7")
    a("v_lshl_add_u32 v7, v1, 14, v7")
    vAR = 4
    ar = [4, 5, 6, 9]
    for t in range(4):
        a(f"v_xor_b32 v14, {t}, v8")
        a(f"v_lshl_add_u32 v{ar[t]}, v14, 5, v7")
    a("s_waitcnt lgkmcnt(0)")
    a(f"""s_mul_i32 s31, s26, 15
s_mul_i32 s32, s28, 5
s_add_u32 s31, s31, s32
s_lshl_b32 s31, s31, 3
s_add_u32 s31, s31, s30
s_lshl_b32 s31, s31, 14
s_add_u32 s{sO}, s24, s31
s_addc_u32 s{sO+1}, s25, 0
s_sub_u32 s{sO+2}, {8*15*128*1024}, s31
s_mov_b32 s{sO+3}, 0x20000
s_mul_i32 s31, s30, {512*1280}
s_lshl_b32 s32, s29, 7
s_add_u32 s31, s31, s32
s_add_u32 s{sWo}, s20, s31
s_addc_u32 s{sWo+1}, s21, 0
s_sub_u32 s{sWo+2}, 5242880, s31
s_mov_b32 s{sWo+3}, 0x20000
s_mov_b32 s{sOut}, s22
s_mov_b32 s{sOut+1}, s23
s_mov_b32 s{sOut+2}, {8*240*640*2}
s_mov_b32 s{sOut+3}, 0x20000
s_lshl_b32 s33, s30, 14""")
    for qt in range(5): a(f"s_mov_b32 s{34+qt}, {qt*131072}")
    def issue(ks):
        out = []
        sl = ks % DEPTH
        out.append(f"s_add_u32 m0, s33, {sl*4096}")
        out.append(f"s_mov_b32 s40, {ks*32*1280}")
        for n in range(4): out.append(f"buffer_load_dwordx4 v{10+n}, s[{sWo}:{sWo+3}], s40 offen offset:{n*1024} lds")
        for qt in range(5):
            out.append(f"buffer_load_dwordx4 {r('v', vB+sl*20+4*qt)}, v{2 if ks < 4 else 15 if ks < 8 else 14 if ks < 12 else 3}, s[{sO}:{sO+3}], s{34+qt} offen offset:{(ks&3)*1024}")
        return out
    a("v_add_u32 v15, 4096, v2\nv_add_u32 v14, 8192, v2\nv_add_u32 v3, 12288, v2")
    for ks in range(DEPTH):
        for t in issue(ks): a(t)
    def areads(ks):
        sl = ks % DEPTH; fs = ks & 1
        return [f"ds_read_b64_tr_b16 {r('v', vA+16*fs+4*t+2*h, 2)}, v{ar[t]} offset:{sl*4096 + h*2048}" for t in range(4) for h in range(2)]
    a(f"s_waitcnt vmcnt({9*(DEPTH-1)})")
    for t in areads(0): a(t)
    for ks in range(16):
        sl = ks % DEPTH; fs = ks & 1
        if ks + 1 < 16:
            issued = min(16, ks + DEPTH)
            a(f"s_waitcnt vmcnt({9*(issued-1-(ks+1))}) lgkmcnt(0)")
            fill = areads(ks + 1)
        else:
            a("s_waitcnt lgkmcnt(0)")
            fill = []
        mfs = []
        for qt in range(5):
            for nt in range(4):
                acc = r("v", vAcc + (qt * 4 + nt) * 4)
                mfs.append(f"{MF} {acc}, {r('v', vA+16*fs+4*nt)}, {r('v', vB+sl*20+4*qt)}, {'0' if ks == 0 else acc}")
        nxt = issue(ks + DEPTH) if ks + DEPTH < 16 else []
        fill = fill + nxt[:6]
        late = nxt[6:]
        fi = 0
        for i, m in enumerate(mfs):
            a(m)
            if fi < len(fill): a(fill[fi]); fi += 1
        for t in fill[fi:]: a(t)
        for t in late: a(t)
    a("s_nop 7")
    a("s_barrier")
    a("v_mul_u32_u24 v4, 20480, v1")
    a("v_add_u32 v4, v4, v2")
    for i in range(20): a(f"ds_write_b128 v4, {r('v', vAcc+4*i)} offset:{i*1024}")
    a("s_waitcnt lgkmcnt(0)")
    a("s_barrier")
    a(f"s_mul_i32 s31, s26, 240\ns_mul_i32 s32, s28, 80\ns_add_u32 s31, s31, s32\ns_mul_i32 s31, s31, 1280\ns_lshl_b32 s32, s29, 7\ns_add_u32 s31, s31, s32")
    for rnd in range(2):
        if rnd == 1:
            a("s_cmp_ge_u32 s30, 2")
            a("s_cbranch_scc1 L_exit2")
            a("v_add_u32 v0, 512, v0")
        a("""v_lshrrev_b32 v4, 3, v0
v_and_b32 v5, 7, v0
v_lshrrev_b32 v6, 4, v4
v_lshrrev_b32 v7, 1, v5
v_lshl_add_u32 v6, v6, 2, v7
v_lshlrev_b32 v6, 10, v6
v_and_b32 v7, 15, v4
v_lshl_add_u32 v6, v7, 4, v6
v_and_b32 v7, 1, v5
v_lshl_add_u32 v6, v7, 9, v6
v_mul_u32_u24 v8, 1280, v4
v_lshl_add_u32 v8, v5, 4, v8
v_add_u32 v7, 81920, v6""")
        for w in range(8):
            base = 6 if w < 3 else 7 if False else None
            ad = 6 if w < 4 else 7
            off = (w % 4) * 20480
            a(f"ds_read_b128 {r('v', 16+8*w)}, v{ad} offset:{off}")
            a(f"ds_read_b128 {r('v', 16+8*w+4)}, v{ad} offset:{off+256}")
            if w == 6: a("s_waitcnt lgkmcnt(8)")
        a("s_waitcnt lgkmcnt(0)")
        for st in (4, 2, 1):
            for w in range(st):
                for j in range(8): a(f"v_add_f32 v{16+8*w+j}, v{16+8*w+j}, v{16+8*(w+st)+j}")
        for j in range(4): a(f"v_cvt_pk_bf16_f32 v{80+4*rnd+j}, v{16+2*j}, v{16+2*j+1}")
        a(f"buffer_store_dwordx4 {r('v', 80+4*rnd)}, v8, s[{sOut}:{sOut+3}], s31 offen")
    a("L_exit2:")
    a("s_endpgm")
    return a.text()

k1 = gen_attn()
k2 = gen_proj()
print(wrap([
    dict(name="attn_kernel", grid=256, block=256, lds=163840, body=k1, vgpr=512, sgpr=102, accum=256),
    dict(name="proj_kernel", grid=240, block=512, lds=163840, body=k2, vgpr=208, sgpr=102, accum=208),
]))
```

```python
import sys
from gencommon import *

OPT = dict(kv.split("=") for kv in sys.argv[1:])
def opt(k, d): return type(d)(OPT.get(k, d))
STAMP = opt("stamp", 0)
MAP = opt("map", "mixed")
NT = opt("nt", 0)
FORCE_SAFE = opt("safe", 0)
LEAD = opt("lead", 12)
ROT = opt("rot", 1)
QROT = opt("qrot", 1)
PROT = opt("prot", 1)
sQS = 69
PF = [int(t) for t in opt("pf", "").split(",") if t]
PFF = {"": "", "nt": " nt", "sc1": " sc1"}[opt("pff", "")]
sPF = 84

MF = "v_mfma_f32_16x16x32_bf16"
VBASE = 0
KBASE = 96 * 1024
SAFEBASE = 64 * 1024
QBUF = [0, 48 * 1024, 96 * 1024]
XOFF, WOFF = 0, 32768
def kslot(t): return (t + 3) % 4
def vslot(t): return t % 4
vO = 128; vS = 64; vNM = 48
vKR = 16; vVR = 20; vKD = 28; vVD = 32; vXD = 34; vWD = 42
vXR = 64; vWR = 66
aQ = 0; aK = 64; aV = 96; aL = 128; aONE = 144
aQA = [64, 96]; aQB = [148, 164]
sK, sV, sX, sW, sWS = 8, 12, 16, 20, 24
sWAVE, sKW, sVW, sXW, sWW = 28, 29, 30, 31, 32
sKoff, sVoff, sCNT, sB, sH, sT0, sT1 = 33, 34, 35, 36, 37, 38, 39
sST = 40
sROT = 68
sSTAMP = 44
CSCALE = 0x3e029470
import struct, math
CSCALE = struct.unpack("<I", struct.pack("<f", math.log2(math.e) / math.sqrt(128.0)))[0]

def r(pfx, b, n=4): return f"{pfx}[{b}:{b+n-1}]"
def O(q, d): return r("v", vO + (q * 8 + d) * 4)
def S(p, q, kt): return vS + 32 * p + 8 * q + 4 * kt
def ntf(): return {0: "", 1: " nt", 2: " sc1 nt", 3: " sc0 sc1 nt", 4: " sc1"}[NT]

nstamp = [0]
def stamp(a):
    if STAMP:
        i = nstamp[0]; nstamp[0] += 1
        a(f"s_memtime s[{sSTAMP+4*i}:{sSTAMP+4*i+1}]")
        a(f"s_memrealtime s[{sSTAMP+4*i+2}:{sSTAMP+4*i+3}]")

def dmaK(n): return f"buffer_load_dwordx4 v{vKD+n}, s[{sK}:{sK+3}], s{sKoff} offen offset:{n*1024}{ntf()} lds"
def dmaV(n): return f"buffer_load_dwordx4 v{vVD+(n&1)}, s[{sV}:{sV+3}], s{sVoff} offen offset:{n*1024}{ntf()} lds"
def issueK(a, t):
    a(f"s_add_u32 m0, s{sKW}, {kslot(t)*16384}")
    a(f"s_mov_b32 s{sKoff}, {t*16384}")
    for n in range(4): a(dmaK(n))
def issueV(a, t):
    a(f"s_add_u32 m0, s{sVW}, {vslot(t)*16384}")
    a(f"s_mov_b32 s{sVoff}, {t*16384}")
    for n in range(4): a(dmaV(n))

def kread(f, slot, half):
    kt, s = f >> 2, f & 3
    return f"ds_read_b128 {r('a', aK+4*f)}, v{vKR+s} offset:{slot*16384 + half*8192 + kt*4096}"
def vread(d, second, slot, half):
    return f"ds_read_b64_tr_b16 {r('a', aV+4*d+2*second, 2)}, v{vVR+d} offset:{slot*16384 + half*8192 + second*4096}"
def qk(p, q, kt, s, czero=False):
    b = S(p, q, kt)
    c = r("v", b) if s else ("0" if czero else r("v", vNM + 4 * q))
    return f"{MF} {r('v', b)}, {r('a', aK+4*(kt*4+s))}, {r('a', aQ+16*q+4*s)}, {c}"
def pv(p, q, d): return f"{MF} {O(q,d)}, {r('a', aV+4*d)}, {r('v', S(p,q,0))}, {O(q,d)}"
def sm(p, q): return f"{MF} {r('a', aL+4*q)}, {r('a', aONE)}, {r('v', S(p,q,0))}, {r('a', aL+4*q)}"
def softmax_ops(p, nq):
    ex, cv = [], []
    for kt in range(2):
        for q in range(nq):
            b = S(p, q, kt)
            for j in range(4): ex.append(f"v_exp_f32 v{b+j}, v{b+j}")
            for j in range(2): cv.append(f"v_cvt_pk_bf16_f32 v{S(p,q,0)+2*kt+j}, v{b+2*j}, v{b+2*j+1}")
    return ex, cv

class Body:
    def __init__(self):
        self.mf = []
        self.big = {}
        self.pre = {}
        self.cv = {}
        self.lastcv = 0
    def add(self, text, need=None): self.mf.append((text, need))
    def place_big(self, kind, text, target, tag=None, hi=None):
        n = len(self.mf)
        target = min(target, n - 1)
        hi = min(n - 1, target + 3 if hi is None else max(hi, target))
        g = target
        while g in self.big and g < hi: g += 1
        if g in self.big:
            g = min(range(target, hi + 1), key=lambda x: len(self.big[x]))
            self.big[g] = self.big[g] + [(kind, text, tag)]
        else:
            self.big[g] = [(kind, text, tag)]
        return g
    def place_cvt(self, text, lo, hi):
        n = len(self.mf)
        best = None
        lo = max(lo, self.lastcv)
        for g in range(lo, min(hi, lo + 4, n - 1) + 1):
            kinds = [k for k, _, _ in self.big.get(g, [])]
            cnt = len(self.cv.get(g, []))
            if kinds == ["D"] and cnt == 0: best = g; break
            if kinds == [] and cnt < 2: best = g; break
        if best is None: best = min(lo, n - 1)
        self.cv.setdefault(best, []).append(text)
        self.lastcv = best
        return best
    def place_s(self, text, lo, hi=None):
        n = len(self.mf)
        hi = lo if hi is None else hi
        for g in range(lo, min(hi, n - 1) + 1):
            kinds = [k for k, _, _ in self.big.get(g, [])]
            if not self.pre.get(g) and (kinds == ["E"] or kinds == [] or (kinds == ["D"] and not self.cv.get(g))):
                self.pre.setdefault(g, []).append(text); return g
        self.pre.setdefault(lo, []).append(text); return lo
    def emit(self, a, resident=()):
        q = []
        done = set(resident)
        n = len(self.mf)
        for g in range(n):
            text, need = self.mf[g]
            assert all(t in done for t in (need or [])), (g, text, need)
            a(text)
            nxt = self.mf[g + 1][1] if g + 1 < n else None
            if nxt:
                miss = [t for t in nxt if t not in done]
                if miss:
                    assert all(t in q for t in miss), (g, miss, q)
                    last = max(q.index(t) if q.count(t) == 1 else len(q) - 1 - q[::-1].index(t) for t in miss)
                    N = len(q) - 1 - last
                    a(f"s_waitcnt lgkmcnt({N})")
                    for t in q[:last + 1]: done.add(t)
                    q = q[last + 1:]
                    for t in q: done.discard(t)
            for t in self.pre.get(g, []): a(t)
            for kind, text, tag in self.big.get(g, []):
                a(text)
                if kind == "D":
                    q.append(tag); done.discard(tag)
                    assert len(q) <= 15
            for t in self.cv.get(g, []): a(t)

def gen_body(a, nq, u, last=False, loopctl=None):
    B = Body()
    vs, ks = vslot(u), kslot(u + 1)
    def g_qk(p, kts, gen):
        for kt in kts:
            for s in range(4):
                for q in range(nq): B.add(qk(p, q, kt, s), [("K", kt * 4 + s, gen)] if q == 0 else None)
    def g_pv(p, gen):
        for d in range(8):
            for q in range(nq): B.add(pv(p, q, d), [("V", d, gen)] if q == 0 else None)
        for q in range(nq): B.add(sm(p, q))
    g_qk(1, [1], 0); P0 = len(B.mf)
    g_pv(0, 0); Q1 = len(B.mf)
    if not last: g_qk(0, [0, 1], 1)
    P1 = len(B.mf)
    g_pv(1, 1); Q2 = len(B.mf)
    if not last: g_qk(1, [0], 2)
    n = len(B.mf)
    resident = [("K", f, 0) for f in range(4, 8)]
    sc = nq / 4.0
    for d in range(8):
        for h in range(2):
            B.place_big("D", vread(d, h, vs, 0), int((4 * d + 2 * h) * sc), ("V", d, 0))
    ex0, cv0 = softmax_ops(0, nq); ex1, cv1 = softmax_ops(1, nq)
    ne = len(ex0)
    win = (P1 - P0) if not last else (Q1 - P0)
    full = nq * 17
    ntail = NTAIL[nq]
    if not last:
        for f in range(8):
            B.place_big("D", kread(f, ks, 0), Q1 - int(20 * sc) + int(4 * f * sc), ("K", f, 1))
    for d in range(8):
        for h in range(2):
            lo = max(P1 - int(20 * sc) + int((4 * d + 2 * h) * sc), P0 + nq * d + nq)
            B.place_big("D", vread(d, h, vs, 1), lo, ("V", d, 1))
    if not last:
        for f in range(8):
            B.place_big("D", kread(f, ks, 1), P1 + int(12 * sc) + int(4 * f * sc), ("K", f, 2))
        g0 = Q1 - int(18 * sc)
        gs = [B.place_big("M", dmaV(i), g0 + int(8 * i * sc)) for i in range(4)]
        mV = gs[0]; mVe = gs[-1]
        g0 = P1 + int(14 * sc)
        gs = [B.place_big("M", dmaK(i), g0 + int(8 * i * sc)) for i in range(4)]
        mK = gs[0]; mKe = gs[-1]
    eg0 = {}
    nh = ne - ntail
    for i in range(ntail, ne):
        eg0[i] = B.place_big("E", ex0[i], max(1 + int((i - ntail) * (P0 - 4) / max(nh, 1)), eg0.get(i - 1, 0)))
    eg1 = {}
    for i in range(ne):
        eg1[i] = B.place_big("E", ex1[i], max(P0 + 1 + int(i * (win - 5) / ne), eg1.get(i - 1, 0)), hi=min(P0 + 4 + int(i * (win - 5) / ne), P1 - 4))
    egt = {}
    if not last:
        for i in range(ntail):
            egt[i] = B.place_big("E", ex0[i], max(P1 + 1 + int(i * (full - 5) / ne), egt.get(i - 1, 0)), hi=min(P1 + 4 + int(i * (full - 5) / ne), n - 2))
    for j in range(ntail // 2, ne // 2):
        q = (j // 2) % nq
        g = B.place_cvt(cv0[j], eg0[2 * j + 1] + 1, P0 + q - 2)
        assert g <= P0 + q - 2, ("cvt0 late", j, g, P0)
    for j in range(ne // 2):
        q = (j // 2) % nq
        g = B.place_cvt(cv1[j], eg1[2 * j + 1] + 1, P1 + q - 2)
        if not last: assert g <= P1 + q - 2, ("cvt1 late", j, g, P1)
    if not last:
        for j in range(ntail // 2):
            B.place_cvt(cv0[j], egt[2 * j + 1] + 1, n - 1)
        assert eg1[ne // 2] >= P0 + 5
        assert min(egt.values()) >= Q1 + 4 * nq + 5
        if ntail > ne // 2: assert egt[ne // 2] >= P1 + 5
        B.place_s(f"s_add_u32 m0, s{sVW}, {vslot(u+3)*16384}", mV - 4, mV - 1)
        g = B.place_s(f"s_add_u32 s{sVoff}, s{sVoff}, 16384", mV - 12, mV - 6)
        if ROT:
            B.place_s(f"s_and_b32 s{sVoff}, s{sVoff}, 0x7ffff", g + 1, mV - 1)
            if u == 0: B.place_s(f"s_mov_b32 s{sV+2}, s{sK+2}", mVe + 1, mVe + 6)
        B.place_s(f"s_add_u32 m0, s{sKW}, {kslot(u+4)*16384}", mK - 4, mK - 1)
        g = B.place_s(f"s_add_u32 s{sKoff}, s{sKoff}, 16384", mK - 12, mK - 6)
        if ROT:
            B.place_s(f"s_and_b32 s{sKoff}, s{sKoff}, 0x7ffff", g + 1, mK - 1)
            if u == 3:
                g = B.place_s(f"s_cmp_eq_u32 s{sCNT}, 1", mKe + 1, mKe + 3)
                B.place_s(f"s_cselect_b32 s{sK+2}, 0, s{sK+2}", g + 1, g + 4)
        if loopctl:
            B.place_s(loopctl[0], n - 8, n - 5)
            B.place_s(loopctl[1], n - 4, n - 2)
    if last:
        pass
    if last:
        B2 = B
        moved_e, moved_c = [], []
        for g in sorted(list(B.big.keys())):
            if g >= P1 - 1:
                keep = []
                for it in B.big[g]:
                    (moved_e if it[0] == "E" else keep).append(it)
                B.big[g] = keep
        for g in sorted(list(B.cv.keys())):
            if g >= P1 - 1:
                moved_c += B.cv.pop(g)
        B.big[P1 - 1] = B.big.get(P1 - 1, []) + moved_e
        B.cv[P1 - 1] = ["s_nop 0"] + moved_c + ["s_nop 1"]
    B.emit(a, resident)
    if not last:
        if STAMP >= 2: a("s_memrealtime s[70:71]")
        a("s_waitcnt vmcnt(16) lgkmcnt(0)")
        a("s_barrier")
        if STAMP >= 2:
            a("v_cmp_eq_u32 vcc, v13, v3")
            a("v_mov_b32 v15, s70")
            a("v_add_u32 v13, 1, v13")
            a("v_cndmask_b32 v14, v14, v15, vcc")

NTAIL = {4: 26, 3: 20}

def gen_attn_wave(a, nq, L):
    nx = 2 * nq
    def qstage_issue(st):
        out = []
        buf = QBUF[(st + 1) % 3]
        if QROT:
            out.append(("s", f"s_lshl_b32 s{sT0}, s{sQS}, 7"))
            out.append(("s", f"s_lshl_b32 s{sT1}, s{sQS}, 19"))
            out.append(("s", f"s_add_u32 s{sQS}, s{sQS}, 1"))
            out.append(("s", f"s_cmp_eq_u32 s{sQS}, 10"))
            out.append(("s", f"s_cselect_b32 s{sQS}, 0, s{sQS}"))
        else:
            out.append(("s", f"s_mov_b32 s{sT0}, {st*128}"))
        out.append(("s", f"s_add_u32 m0, s{sXW}, {buf+XOFF}"))
        for n in range(nx):
            if n == 4: out.append(("s", f"s_add_u32 m0, s{sXW}, {buf+XOFF+4096}"))
            out.append(("M", f"buffer_load_dwordx4 v{vXD+n}, s[{sX}:{sX+3}], s{sT0} offen offset:{(n&3)*1024} lds"))
        if not QROT: out.append(("s", f"s_mov_b32 s{sT1}, {st*524288}"))
        out.append(("s", f"s_add_u32 m0, s{sWW}, {buf+WOFF}"))
        for n in range(4):
            out.append(("M", f"buffer_load_dwordx4 v{vWD+n}, s[{sW}:{sW+3}], s{sT1} offen offset:{n*1024} lds"))
        return out
    def kv_issue(kind, t):
        out = []
        if kind == "K":
            if ROT:
                out.append(("s", f"s_add_u32 s{sKoff}, s{sROT}, {t*16384}"))
                out.append(("s", f"s_and_b32 s{sKoff}, s{sKoff}, 0x7ffff"))
            else:
                out.append(("s", f"s_mov_b32 s{sKoff}, {t*16384}"))
            out.append(("s", f"s_add_u32 m0, s{sKW}, {kslot(t)*16384}"))
            out += [("M", dmaK(n)) for n in range(4)]
        else:
            if ROT:
                out.append(("s", f"s_add_u32 s{sVoff}, s{sROT}, {t*16384}"))
                out.append(("s", f"s_and_b32 s{sVoff}, s{sVoff}, 0x7ffff"))
            else:
                out.append(("s", f"s_mov_b32 s{sVoff}, {t*16384}"))
            out.append(("s", f"s_add_u32 m0, s{sVW}, {vslot(t)*16384}"))
            out += [("M", dmaV(n)) for n in range(4)]
        return out
    def flat(items):
        prev = None
        for k, t in items:
            if k == "M" and prev and "m0" in prev: a("s_nop 0")
            a(t); prev = t
    vm = []
    def log(items, tag):
        for k, t in items:
            if k == "M": vm.append(tag)
    def vmwait(tag):
        last = len(vm) - 1 - vm[::-1].index(tag)
        return len(vm) - 1 - last
    for st in range(3):
        it = qstage_issue(st); flat(it); log(it, ("q", st))
    it = kv_issue("K", 0); flat(it); log(it, ("K", 0))
    for t in PF:
        a(f"s_add_u32 s{sT0}, s{sROT}, {t*16384}")
        a(f"s_and_b32 s{sT0}, s{sT0}, 0x7ffff")
        a(f"buffer_load_dword v12, v11, s[{sPF}:{sPF+3}], s{sT0} offen{PFF}")
        vm.append(("pf", t))
    def qreads(st, sp):
        fs = sp
        out = []
        for q in range(nq):
            out.append(f"ds_read_b128 {r('a', aQB[fs]+4*q)}, v{vXR+sp} offset:{XOFF + q*2048}")
        for t in range(8):
            s, odd = t >> 1, t & 1
            for h in range(2):
                out.append(f"ds_read_b64_tr_b16 {r('a', aQA[fs]+4*t+2*h, 2)}, v{vWR+s} offset:{WOFF + odd*8 + h*1024 + sp*8192}")
        return out
    def qmf(st, sp):
        out = []
        for t in range(8):
            for q in range(nq):
                c = "0" if (st == 0 and sp == 0) else O(q, t)
                out.append(f"{MF} {O(q,t)}, {r('a', aQA[sp]+4*t)}, {r('a', aQB[sp]+4*q)}, {c}")
        return out
    def interleave(mfs, fill):
        fi = 0
        for m in mfs:
            a(m)
            big = False
            while fi < len(fill):
                k, t = fill[fi]
                if k in "DM":
                    if big: break
                    big = True
                    a(t); fi += 1
                    break
                a(t); fi += 1
                if "m0" in t: break
        rest = fill[fi:]
        flat(rest)
    def rot(st_from, st_to):
        d = QBUF[(st_to + 1) % 3] - QBUF[(st_from + 1) % 3]
        ops = []
        for i in range(6):
            ops.append(("v", f"v_add_u32 v{vXR+i}, {d}, v{vXR+i}" if d > 0 else f"v_subrev_u32 v{vXR+i}, {-d}, v{vXR+i}"))
        return ops
    a(f"s_waitcnt vmcnt({vmwait(('q', 0))})")
    a("s_barrier")
    stamp(a)
    for t in qreads(0, 0): a(t)
    for st in range(10):
        a("s_waitcnt lgkmcnt(0)")
        interleave(qmf(st, 0), [("D", t) for t in qreads(st, 1)])
        fill = []
        if st < 9:
            a(f"s_waitcnt vmcnt({vmwait(('q', st+1))}) lgkmcnt(0)")
            a("s_barrier")
            fill += rot(st, st + 1)
            rd = [("D", t) for t in qreads(st + 1, 0)]
            if st + 3 < 10:
                it = qstage_issue(st + 3); log(it, ("q", st + 3))
            elif st == 7:
                it = kv_issue("K", 1); log(it, ("K", 1))
                it2 = kv_issue("K", 2); log(it2, ("K", 2)); it += it2
            else:
                it = []
                for kind, t in (("V", 0), ("V", 1), ("K", 3), ("V", 2)):
                    i2 = kv_issue(kind, t); log(i2, (kind, t)); it += i2
            fill += rd + it
        else:
            a("s_waitcnt lgkmcnt(0)")
            fill += [("D", kread(f, kslot(0), 0)) for f in range(8)] if False else []
        interleave(qmf(st, 1), fill)
    stamp(a)
    for f in range(8): a(kread(f, kslot(0), 0))
    a(f"s_mov_b32 s{sT0}, {CSCALE:#x}")
    a("s_nop 7")
    for q in range(nq):
        for s in range(4):
            b = vO + (q * 8 + 2 * s) * 4
            for j in range(8): a(f"v_mul_f32 v{b+j}, s{sT0}, v{b+j}")
            for j in range(4): a(f"v_cvt_pk_bf16_f32 v{b+j}, v{b+2*j}, v{b+2*j+1}")
            for j in range(4): a(f"v_accvgpr_write_b32 a{aQ+16*q+4*s+j}, v{b+j}")
    a("s_waitcnt lgkmcnt(0)")
    if FORCE_SAFE:
        a("s_barrier")
        a(f"s_branch L_safe{L}")
    zero = [f"v_mov_b32 v{vO+i}, 0" for i in range(nq * 32)] + [f"v_accvgpr_write_b32 a{aL+i}, 0" for i in range(nq * 4)]
    zi = 0
    for kt in range(2):
        for s in range(4):
            for q in range(nq):
                a(qk(0, q, kt, s, czero=True))
                for _ in range(2):
                    a(zero[zi]); zi += 1
    for f in range(8): a(kread(f, kslot(0), 1))
    while zi < len(zero):
        a(zero[zi]); zi += 1
    for q in range(nq):
        b = S(0, q, 0); m = vNM + 4 * q
        a(f"v_max3_f32 v{m}, v{b}, v{b+1}, v{b+2}")
        a(f"v_max3_f32 v{m+1}, v{b+3}, v{b+4}, v{b+5}")
        a(f"v_max3_f32 v{m}, v{m}, v{b+6}, v{b+7}")
        a(f"v_max_f32 v{m}, v{m}, v{m+1}")
    xlane_max(a, [vNM + 4 * q for q in range(nq)])
    for q in range(nq):
        m = vNM + 4 * q
        a(f"v_sub_f32 v{m}, 0, v{m}")
        for j in range(1, 4): a(f"v_mov_b32 v{m+j}, v{m}")
        b = S(0, q, 0)
        for j in range(8): a(f"v_add_f32 v{b+j}, v{b+j}, v{m}")
    a("s_waitcnt lgkmcnt(0)")
    ex0, cv0 = softmax_ops(0, nq)
    ntail = NTAIL[nq]
    work = []
    for i in range(ntail):
        work.append(ex0[i])
        if i % 2 == 1 and i >= 3: work.append(cv0[(i - 3) // 2])
    work.append("s_nop 0"); work.append(cv0[ntail // 2 - 1])
    wi = 0
    for s in range(4):
        for q in range(nq):
            a(qk(1, q, 0, s))
            for _ in range(2):
                if wi < len(work): a(work[wi]); wi += 1
    while wi < len(work):
        a(work[wi]); wi += 1
    a(f"s_mov_b32 s{sCNT}, 8")
    if STAMP >= 2: a("v_mov_b32 v13, 0\nv_mov_b32 v14, 0")
    a(f"s_waitcnt vmcnt({vmwait(('V', 0))})")
    assert vmwait(("V", 0)) == 12
    a("s_barrier")
    stamp(a)
    a(".p2align 6")
    a(f"L_loop{L}:")
    gen_body(a, nq, 0)
    gen_body(a, nq, 1)
    gen_body(a, nq, 2, loopctl=(f"s_sub_u32 s{sCNT}, s{sCNT}, 1", f"s_cmp_eq_u32 s{sCNT}, 0"))
    a(f"s_cbranch_scc1 L_last{L}")
    gen_body(a, nq, 3)
    a(f"s_branch L_loop{L}")
    a(f"L_last{L}:")
    gen_body(a, nq, 3, last=True)
    stamp(a)
    a("s_nop 7")
    for q in range(nq): a(f"v_accvgpr_read_b32 v{vNM+4*q}, a{aL+4*q}")
    a(f"s_mov_b32 s{sT0}, 0x5f800000")
    a(f"v_max_f32 v1, v{vNM}, v{vNM+4}")
    a(f"v_cmp_nlt_f32 vcc, v{vNM}, s{sT0}" if False else f"v_cmp_ngt_f32 vcc, s{sT0}, v{vNM}")
    a("s_mov_b64 s[4:5], vcc")
    for q in range(1, nq):
        a(f"v_cmp_ngt_f32 vcc, s{sT0}, v{vNM+4*q}")
        a("s_or_b64 s[4:5], s[4:5], vcc")
    a("s_cmp_lg_u64 s[4:5], 0")
    a(f"s_cbranch_scc1 L_safe{L}")
    a(f"L_epi{L}:")
    for q in range(nq): a(f"v_rcp_f32 v{vNM+4*q}, v{vNM+4*q}")
    a("s_nop 0")
    for q in range(nq):
        for s in range(4):
            b = vO + (q * 8 + 2 * s) * 4
            for j in range(8): a(f"v_mul_f32 v{b+j}, v{vNM+4*q}, v{b+j}")
            for j in range(4): a(f"v_cvt_pk_bf16_f32 v{b+j}, v{b+2*j}, v{b+2*j+1}")
            a(f"buffer_store_dwordx4 {r('v', b)}, v2, s[{sWS}:{sWS+3}], s3 offen offset:{s*1024}{OSTORE}")
        if q < nq - 1: a(f"s_add_u32 s3, s3, {128*1024}")
    if STAMP:
        a("s_waitcnt vmcnt(0)")
        stamp(a)
        a("s_waitcnt lgkmcnt(0)")
        if L == "A":
            if STAMP >= 2:
                a(f"s_lshl_b32 s{sT0}, s2, 10\ns_add_u32 s{sT0}, s{sT0}, 0x80000\nv_lshlrev_b32 v15, 2, v0")
                a(f"buffer_store_dword v14, v15, s[{sST}:{sST+3}], s{sT0} offen")
            stamp_store(a, 2 * nstamp[0], sSTAMP, sST, 4)
    a("s_endpgm")
    gen_safe(a, nq, L)

OSTORE = {"": "", "sc1": " sc0 sc1", "nt": " nt"}[opt("ost", "")]

def xlane_max(a, regs):
    for op in ("v_permlane32_swap_b32", "v_permlane16_swap_b32"):
        for m in regs: a(f"v_mov_b32 v{m+1}, v{m}")
        a("s_nop 1")
        for m in regs: a(f"{op} v{m}, v{m+1}")
        a("s_nop 1")
        for m in regs: a(f"v_max_f32 v{m}, v{m}, v{m+1}")

def gen_safe(a, nq, L):
    a(f"L_safe{L}:")
    a("s_waitcnt vmcnt(0) lgkmcnt(0)")
    for i in range(nq * 32): a(f"v_mov_b32 v{vO+i}, 0")
    for q in range(nq):
        a(f"v_mov_b32 v{vNM+4*q}, 0xff800000")
        a(f"v_mov_b32 v{vNM+4*q+3}, 0")
    a(f"s_lshl_b32 s{sT0}, s{sWAVE}, 12")
    for i in range(6): a(f"v_subrev_u32 v{vKD+i}, s{sT0}, v{vKD+i}")
    a(f"s_lshl_b32 s{sT0}, s{sWAVE}, 13")
    a(f"s_add_u32 s{sKW}, s{sT0}, {SAFEBASE}")
    a(f"s_sub_u32 s{sT0}, s{sKW}, {KBASE}")
    for i in range(4): a(f"v_add_u32 v{vKR+i}, s{sT0}, v{vKR+i}")
    assert VBASE == 0
    for i in range(8): a(f"v_add_u32 v{vVR+i}, s{sKW}, v{vVR+i}")
    a(f"s_mov_b32 s{sKoff}, 0")
    a(f"s_mov_b32 s{sK+2}, 524288")
    a(f"s_mov_b32 s{sV+2}, 524288")
    a(f"L_sloop{L}:")
    for hh in range(2):
        a(f"s_add_u32 m0, s{sKW}, {hh*4096}")
        a(f"s_add_u32 s{sVoff}, s{sKoff}, {hh*4096}")
        for n in range(4): a(f"buffer_load_dwordx4 v{vKD+n}, s[{sK}:{sK+3}], s{sVoff} offen offset:{n*1024} lds")
    a("s_waitcnt vmcnt(0)")
    for f in range(8): a(kread(f, 0, 0))
    a("s_waitcnt lgkmcnt(0)")
    for hh in range(2):
        a(f"s_add_u32 m0, s{sKW}, {hh*4096}")
        a(f"s_add_u32 s{sVoff}, s{sKoff}, {hh*4096}")
        for n in range(4): a(f"buffer_load_dwordx4 v{vVD+(n&1)}, s[{sV}:{sV+3}], s{sVoff} offen offset:{n*1024} lds")
    for kt in range(2):
        for s in range(4):
            for q in range(nq): a(qk(0, q, kt, s, czero=True))
    a("s_nop 7")
    T = vS + 32
    for q in range(nq):
        b = S(0, q, 0); m = T + 2 * q
        a(f"v_max3_f32 v{m}, v{b}, v{b+1}, v{b+2}")
        a(f"v_max3_f32 v{m+1}, v{b+3}, v{b+4}, v{b+5}")
        a(f"v_max3_f32 v{m}, v{m}, v{b+6}, v{b+7}")
        a(f"v_max3_f32 v{m}, v{m}, v{m+1}, v{vNM+4*q}")
    xlane_max(a, [T + 2 * q for q in range(nq)])
    for q in range(nq):
        m = vNM + 4 * q; b = S(0, q, 0)
        a(f"v_sub_f32 v{m+2}, v{m}, v{T+2*q}")
        a(f"v_exp_f32 v{m+2}, v{m+2}")
        a(f"v_mov_b32 v{m}, v{T+2*q}")
        for j in range(8): a(f"v_sub_f32 v{b+j}, v{b+j}, v{m}")
        for j in range(8): a(f"v_exp_f32 v{b+j}, v{b+j}")
        a(f"v_mul_f32 v{m+3}, v{m+3}, v{m+2}")
        for i in range(32): a(f"v_mul_f32 v{vO+q*32+i}, v{vO+q*32+i}, v{m+2}")
        for j in range(4): a(f"v_cvt_pk_bf16_f32 v{b+j}, v{b+2*j}, v{b+2*j+1}")
        for j in range(4):
            a(f"v_lshlrev_b32 v{b+4}, 16, v{b+j}")
            a(f"v_and_b32 v{b+5}, 0xffff0000, v{b+j}")
            a(f"v_add_f32 v{m+3}, v{m+3}, v{b+4}")
            a(f"v_add_f32 v{m+3}, v{m+3}, v{b+5}")
    a("s_waitcnt vmcnt(0)")
    for d in range(8):
        for h in range(2): a(vread(d, h, 0, 0))
        if d == 3: a("s_waitcnt lgkmcnt(0)")
    a("s_waitcnt lgkmcnt(0)")
    for d in range(8):
        for q in range(nq): a(pv(0, q, d))
    a("s_nop 7")
    a(f"s_add_u32 s{sKoff}, s{sKoff}, 8192")
    a(f"s_cmp_lt_u32 s{sKoff}, 524288")
    a(f"s_cbranch_scc1 L_sloop{L}")
    for op in ("v_permlane32_swap_b32", "v_permlane16_swap_b32"):
        for q in range(nq): a(f"v_mov_b32 v{vNM+4*q+1}, v{vNM+4*q+3}")
        a("s_nop 1")
        for q in range(nq): a(f"{op} v{vNM+4*q+3}, v{vNM+4*q+1}")
        a("s_nop 1")
        for q in range(nq): a(f"v_add_f32 v{vNM+4*q+3}, v{vNM+4*q+3}, v{vNM+4*q+1}")
    for q in range(nq): a(f"v_mov_b32 v{vNM+4*q}, v{vNM+4*q+3}")
    a(f"s_branch L_epi{L}")

def gen_attn():
    a = Asm()
    a("s_cmp_ge_u32 s2, 256")
    a("s_cbranch_scc1 L_exit1")
    a("s_load_dwordx8 s[72:79], s[0:1], 0")
    a("s_load_dwordx2 s[80:81], s[0:1], 56")
    stamp(a)
    if MAP == "bmajor":
        a(f"s_and_b32 s{sB}, s2, 7\ns_lshr_b32 s{sH}, s2, 3")
    elif MAP == "hmajor":
        a(f"s_and_b32 s{sT0}, s2, 7\ns_lshr_b32 s{sT1}, s2, 3\ns_and_b32 s{sB}, s{sT1}, 7\ns_lshr_b32 s{sT1}, s{sT1}, 3\ns_lshl_b32 s{sH}, s{sT0}, 2\ns_add_u32 s{sH}, s{sH}, s{sT1}")
    else:
        a(f"""s_and_b32 s{sT0}, s2, 1
s_lshl_b32 s{sB}, s{sT0}, 2
s_lshr_b32 s{sT1}, s2, 3
s_and_b32 s{sT0}, s{sT1}, 3
s_add_u32 s{sB}, s{sB}, s{sT0}
s_and_b32 s{sH}, s2, 6
s_lshl_b32 s{sH}, s{sH}, 2
s_lshr_b32 s{sT1}, s{sT1}, 2
s_add_u32 s{sH}, s{sH}, s{sT1}""")
    a(f"""v_lshrrev_b32 v1, 6, v0
v_and_b32 v3, 63, v0
v_lshrrev_b32 v4, 4, v3
v_readfirstlane_b32 s{sWAVE}, v1
v_and_b32 v5, 15, v3
v_lshlrev_b32 v2, 4, v3
v_lshrrev_b32 v6, 3, v3
v_and_b32 v7, 7, v3""")
    a(f"v_lshl_add_u32 v8, v1, 6, v6")
    a(f"v_mul_u32_u24 v8, 1280, v8")
    a(f"v_xor_b32 v9, v7, v4")
    for n in range(8):
        a(f"v_xor_b32 v10, {4*(n&1)}, v9")
        a(f"v_lshl_add_u32 v10, v10, 4, v8")
        a(f"v_add_u32 v{vXD+n}, {n*8*1280 - (n&3)*1024}, v10")
    a(f"v_lshl_add_u32 v8, v1, 4, v4")
    a(f"v_lshlrev_b32 v8, 13, v8")
    a(f"v_lshlrev_b32 v9, 2, v4")
    a(f"v_xor_b32 v9, v9, v5")
    a(f"v_lshl_add_u32 v8, v9, 4, v8")
    for n in range(4): a(f"v_add_u32 v{vWD+n}, {n*4*8192 - n*1024}, v8")
    a("s_waitcnt lgkmcnt(0)")
    a(f"""s_mul_i32 s{sT0}, s{sB}, 307200
s_add_u32 s{sX}, s72, s{sT0}
s_addc_u32 s{sX+1}, s73, 0
s_mov_b32 s{sX+2}, 307200
s_mov_b32 s{sX+3}, 0x20000
s_lshl_b32 s{sT0}, s{sH}, 8
s_add_u32 s{sW}, s78, s{sT0}
s_addc_u32 s{sW+1}, s79, 0
s_sub_u32 s{sW+2}, 5242880, s{sT0}
s_mov_b32 s{sW+3}, 0x20000
s_lshl_b32 s{sT0}, s{sB}, 5
s_add_u32 s{sT0}, s{sT0}, s{sH}
s_lshl_b32 s{sT0}, s{sT0}, 19
s_add_u32 s{sK}, s74, s{sT0}
s_addc_u32 s{sK+1}, s75, 0
s_mov_b32 s{sK+2}, 524288
s_mov_b32 s{sK+3}, 0x20000
s_add_u32 s{sV}, s76, s{sT0}
s_addc_u32 s{sV+1}, s77, 0
s_mov_b32 s{sV+2}, 524288
s_mov_b32 s{sV+3}, 0x20000
s_mov_b32 s{sWS}, s80
s_mov_b32 s{sWS+1}, s81
s_mov_b32 s{sWS+2}, {8*15*128*1024}
s_mov_b32 s{sWS+3}, 0x20000
s_lshl_b32 s{sXW}, s{sWAVE}, 13
s_lshl_b32 s{sWW}, s{sWAVE}, 12
s_add_u32 s{sKW}, s{sWW}, {KBASE}
s_add_u32 s{sVW}, s{sWW}, {VBASE}""")
    if STAMP:
        a(f"s_add_u32 s{sST}, s80, 0x10000000\ns_addc_u32 s{sST+1}, s81, 0\ns_mov_b32 s{sST+2}, 0x100000\ns_mov_b32 s{sST+3}, 0x20000")
    a(f"v_lshlrev_b32 v8, 12, v1")
    a(f"v_lshl_add_u32 v8, v4, 8, v8")
    a(f"v_xor_b32 v9, v5, v4")
    for n in range(4):
        a(f"v_xor_b32 v10, {4*n}, v9")
        a(f"v_lshl_add_u32 v{vKD+n}, v10, 4, v8")
    a(f"v_lshlrev_b32 v9, 1, v4")
    a(f"v_xor_b32 v9, v9, v5")
    for p in range(2):
        a(f"v_xor_b32 v10, {8*p}, v9")
        a(f"v_lshl_add_u32 v{vVD+p}, v10, 4, v8")
    a(f"v_lshlrev_b32 v8, 8, v5")
    a(f"v_add_u32 v8, {KBASE}, v8")
    a(f"v_xor_b32 v9, v4, v5")
    for s in range(4):
        a(f"v_xor_b32 v10, {4*s}, v9")
        a(f"v_lshl_add_u32 v{vKR+s}, v10, 4, v8")
    a(f"v_lshrrev_b32 v8, 2, v3")
    a(f"v_and_b32 v9, 7, v8")
    a(f"v_lshlrev_b32 v8, 8, v8")
    a(f"v_and_b32 v10, 3, v3")
    a(f"v_lshl_add_u32 v8, v10, 3, v8")
    if VBASE: a(f"v_add_u32 v8, {VBASE}, v8")
    for t in range(8):
        a(f"v_xor_b32 v10, {t}, v9")
        a(f"v_lshl_add_u32 v{vVR+t}, v10, 5, v8")
    a(f"v_lshlrev_b32 v8, 13, v1")
    a(f"v_lshl_add_u32 v8, v5, 7, v8")
    a(f"v_add_u32 v8, {QBUF[1]}, v8")
    a(f"v_lshrrev_b32 v9, 1, v5")
    a(f"v_xor_b32 v9, v9, v4")
    for sp in range(2):
        a(f"v_xor_b32 v10, {4*sp}, v9")
        a(f"v_lshl_add_u32 v{vXR+sp}, v10, 4, v8")
    a(f"v_bfe_u32 v9, v3, 2, 2")
    a(f"v_lshl_add_u32 v8, v4, 3, v9")
    a(f"v_lshlrev_b32 v8, 8, v8")
    a(f"v_and_b32 v10, 3, v3")
    a(f"v_lshl_add_u32 v8, v10, 4, v8")
    a(f"v_add_u32 v8, {QBUF[1]}, v8")
    for s in range(4):
        a(f"v_xor_b32 v10, {s}, v9")
        a(f"v_lshl_add_u32 v{vWR+s}, v10, 6, v8")
    a(f"v_and_b32 v8, 3, v3")
    a(f"v_cmp_eq_u32 vcc, 0, v8")
    a(f"v_mov_b32 v9, 0x3f803f80")
    a(f"v_mov_b32 v10, 0")
    a(f"v_cndmask_b32 v9, v10, v9, vcc")
    for j in range(4): a(f"v_accvgpr_write_b32 a{aONE+j}, v9")
    a(f"""s_mul_i32 s3, s{sB}, 15
s_lshl_b32 s{sT0}, s{sWAVE}, 2
s_add_u32 s3, s3, s{sT0}
s_lshl_b32 s3, s3, 5
s_add_u32 s3, s3, s{sH}
s_lshl_b32 s3, s3, 12""")
    if PF:
        a(f"""s_cmp_lt_u32 s{sWAVE}, 2
s_cselect_b32 s{sPF}, s{sK}, s{sV}
s_cselect_b32 s{sPF+1}, s{sK+1}, s{sV+1}
s_mov_b32 s{sPF+2}, 524288
s_mov_b32 s{sPF+3}, 0x20000
v_and_b32 v11, 127, v0
v_lshlrev_b32 v11, 7, v11""")
    if QROT:
        if MAP == "mixed":
            a(f"""s_and_b32 s{sT0}, s{sH}, 7
s_mul_i32 s{sT0}, s{sT0}, 5
s_and_b32 s{sT1}, s{sB}, 3
s_mul_i32 s{sT1}, s{sT1}, 10
s_add_u32 s{sQS}, s{sT0}, s{sT1}
s_lshr_b32 s{sQS}, s{sQS}, 2""")
        elif MAP == "bmajor":
            a(f"s_mul_i32 s{sQS}, s{sH}, 5\ns_lshr_b32 s{sQS}, s{sQS}, 4")
        else:
            a(f"""s_mul_i32 s{sT0}, s{sB}, 5
s_and_b32 s{sT1}, s{sH}, 3
s_mul_i32 s{sT1}, s{sT1}, 10
s_add_u32 s{sQS}, s{sT0}, s{sT1}
s_lshr_b32 s{sQS}, s{sQS}, 2""")
        a(f"s_sub_u32 s{sT0}, s{sQS}, 10\ns_cmp_ge_u32 s{sQS}, 10\ns_cselect_b32 s{sQS}, s{sT0}, s{sQS}")
    if ROT == 1:
        a(f"s_lshr_b32 s{sROT}, s2, 3\ns_lshl_b32 s{sROT}, s{sROT}, 14")
    elif ROT == 2:
        a(f"s_and_b32 s{sROT}, s2, 31\ns_lshl_b32 s{sROT}, s{sROT}, 14")
    elif ROT == 3:
        a(f"s_lshr_b32 s{sROT}, s2, 3\ns_lshl_b32 s{sT0}, s2, 2\ns_add_u32 s{sROT}, s{sROT}, s{sT0}\ns_and_b32 s{sROT}, s{sROT}, 31\ns_lshl_b32 s{sROT}, s{sROT}, 14")
    a(f"s_cmp_eq_u32 s{sWAVE}, 3")
    a("s_cbranch_scc1 L_waveB")
    base = nstamp[0]
    gen_attn_wave(a, 4, "A")
    a("L_waveB:")
    nstamp[0] = base
    gen_attn_wave(a, 3, "B")
    a("L_exit1:")
    a("s_endpgm")
    t = a.text()
    return t

def gen_proj():
    a = Asm()
    DEPTH = 4
    vAcc = 128
    vB = 48
    vA = 16
    sO, sWo, sOut = 8, 12, 16
    a("s_cmp_ge_u32 s2, 240")
    a("s_cbranch_scc1 L_exit2")
    a("s_load_dwordx4 s[20:23], s[0:1], 32")
    a("s_load_dwordx2 s[24:25], s[0:1], 56")
    k2s = [0]
    def stamp2():
        if STAMP:
            i = k2s[0]; k2s[0] += 1
            a(f"s_memtime s[{64+4*i}:{64+4*i+1}]")
            a(f"s_memrealtime s[{64+4*i+2}:{64+4*i+3}]")
    stamp2()
    a("""s_and_b32 s26, s2, 7
s_lshr_b32 s27, s2, 3
s_mul_i32 s28, s27, 26
s_lshr_b32 s28, s28, 8
s_mul_i32 s29, s28, 10
s_sub_u32 s29, s27, s29
v_lshrrev_b32 v1, 6, v0
v_and_b32 v3, 63, v0
v_lshlrev_b32 v2, 4, v3
v_readfirstlane_b32 s30, v1
v_lshrrev_b32 v4, 3, v3
v_and_b32 v5, 7, v3
v_lshrrev_b32 v6, 4, v3""")
    a("v_lshlrev_b32 v7, 1, v6")
    a("v_xor_b32 v7, v7, v5")
    a("v_mul_u32_u24 v8, 1280, v4")
    a("v_lshl_add_u32 v8, v7, 4, v8")
    for n in range(4): a(f"v_add_u32 v{10+n}, {n*8*1280 - n*1024}, v8")
    a("v_lshrrev_b32 v7, 2, v3")
    a("v_bfe_u32 v8, v3, 3, 2")
    a("v_lshlrev_b32 v7, 7, v7")
    a("v_and_b32 v9, 3, v3")
    a("v_lshl_add_u32 v7, v9, 3, v7")
    a("v_lshl_add_u32 v7, v1, 14, v7")
    vAR = 4
    ar = [4, 5, 6, 9]
    for t in range(4):
        a(f"v_xor_b32 v14, {t}, v8")
        a(f"v_lshl_add_u32 v{ar[t]}, v14, 5, v7")
    a("s_waitcnt lgkmcnt(0)")
    a(f"""s_mul_i32 s31, s26, 15
s_mul_i32 s32, s28, 5
s_add_u32 s31, s31, s32
s_lshl_b32 s31, s31, 3
s_add_u32 s31, s31, s30
s_lshl_b32 s31, s31, 14
s_add_u32 s{sO}, s24, s31
s_addc_u32 s{sO+1}, s25, 0
s_sub_u32 s{sO+2}, {8*15*128*1024}, s31
s_mov_b32 s{sO+3}, 0x20000
s_mul_i32 s31, s30, {512*1280}
s_lshl_b32 s32, s29, 7
s_add_u32 s31, s31, s32
s_add_u32 s{sWo}, s20, s31
s_addc_u32 s{sWo+1}, s21, 0
s_sub_u32 s{sWo+2}, 5242880, s31
s_mov_b32 s{sWo+3}, 0x20000
s_mov_b32 s{sOut}, s22
s_mov_b32 s{sOut+1}, s23
s_mov_b32 s{sOut+2}, {8*240*640*2}
s_mov_b32 s{sOut+3}, 0x20000
s_lshl_b32 s33, s30, 14""")
    for qt in range(5): a(f"s_mov_b32 s{34+qt}, {qt*131072}")
    def issue(ks):
        out = []
        sl = ks % DEPTH
        out.append(f"s_add_u32 m0, s33, {sl*4096}")
        out.append(f"s_mul_i32 s40, s41, {32*1280}")
        for n in range(4): out.append(f"buffer_load_dwordx4 v{10+n}, s[{sWo}:{sWo+3}], s40 offen offset:{n*1024} lds")
        out.append(f"v_lshl_add_u32 v15, s41, 10, v2")
        out.append(f"s_add_u32 s41, s41, 1")
        out.append(f"s_and_b32 s41, s41, 15")
        for qt in range(5):
            out.append(f"buffer_load_dwordx4 {r('v', vB+sl*20+4*qt)}, v15, s[{sO}:{sO+3}], s{34+qt} offen")
        return out
    if PROT:
        a("s_mul_i32 s41, s29, 26\ns_mul_i32 s42, s28, 86\ns_add_u32 s41, s41, s42\ns_lshr_b32 s41, s41, 4\ns_and_b32 s41, s41, 15")
    else:
        a("s_mov_b32 s41, 0")
    for ks in range(DEPTH):
        for t in issue(ks): a(t)
    def areads(ks):
        sl = ks % DEPTH; fs = ks & 1
        return [f"ds_read_b64_tr_b16 {r('v', vA+16*fs+4*t+2*h, 2)}, v{ar[t]} offset:{sl*4096 + h*2048}" for t in range(4) for h in range(2)]
    a(f"s_waitcnt vmcnt({9*(DEPTH-1)})")
    stamp2()
    for t in areads(0): a(t)
    for ks in range(16):
        sl = ks % DEPTH; fs = ks & 1
        if ks + 1 < 16:
            issued = min(16, ks + DEPTH)
            a(f"s_waitcnt vmcnt({9*(issued-1-(ks+1))}) lgkmcnt(0)")
            fill = areads(ks + 1)
        else:
            a("s_waitcnt lgkmcnt(0)")
            fill = []
        mfs = []
        for qt in range(5):
            for nt in range(4):
                acc = r("v", vAcc + (qt * 4 + nt) * 4)
                mfs.append(f"{MF} {acc}, {r('v', vA+16*fs+4*nt)}, {r('v', vB+sl*20+4*qt)}, {'0' if ks == 0 else acc}")
        nxt = issue(ks + DEPTH) if ks + DEPTH < 16 else []
        fill = fill + nxt[:9]
        late = nxt[9:]
        fi = 0
        for i, m in enumerate(mfs):
            a(m)
            if fi < len(fill): a(fill[fi]); fi += 1
        for t in fill[fi:]: a(t)
        for t in late: a(t)
    stamp2()
    a("s_nop 7")
    a("s_barrier")
    a("v_mul_u32_u24 v4, 20480, v1")
    a("v_add_u32 v4, v4, v2")
    for i in range(20): a(f"ds_write_b128 v4, {r('v', vAcc+4*i)} offset:{i*1024}")
    a("s_waitcnt lgkmcnt(0)")
    a("s_barrier")
    a(f"s_mul_i32 s31, s26, 240\ns_mul_i32 s32, s28, 80\ns_add_u32 s31, s31, s32\ns_mul_i32 s31, s31, 1280\ns_lshl_b32 s32, s29, 7\ns_add_u32 s31, s31, s32")
    for rnd in range(2):
        if rnd == 1:
            a("s_cmp_ge_u32 s30, 2")
            a("s_cbranch_scc1 L_exit2")
            a("v_add_u32 v0, 512, v0")
        a("""v_lshrrev_b32 v4, 3, v0
v_and_b32 v5, 7, v0
v_lshrrev_b32 v6, 4, v4
v_lshrrev_b32 v7, 1, v5
v_lshl_add_u32 v6, v6, 2, v7
v_lshlrev_b32 v6, 10, v6
v_and_b32 v7, 15, v4
v_lshl_add_u32 v6, v7, 4, v6
v_and_b32 v7, 1, v5
v_lshl_add_u32 v6, v7, 9, v6
v_mul_u32_u24 v8, 1280, v4
v_lshl_add_u32 v8, v5, 4, v8
v_add_u32 v7, 81920, v6""")
        for w in range(8):
            base = 6 if w < 3 else 7 if False else None
            ad = 6 if w < 4 else 7
            off = (w % 4) * 20480
            a(f"ds_read_b128 {r('v', 16+8*w)}, v{ad} offset:{off}")
            a(f"ds_read_b128 {r('v', 16+8*w+4)}, v{ad} offset:{off+256}")
            if w == 6: a("s_waitcnt lgkmcnt(8)")
        a("s_waitcnt lgkmcnt(0)")
        for st in (4, 2, 1):
            for w in range(st):
                for j in range(8): a(f"v_add_f32 v{16+8*w+j}, v{16+8*w+j}, v{16+8*(w+st)+j}")
        for j in range(4): a(f"v_cvt_pk_bf16_f32 v{80+4*rnd+j}, v{16+2*j}, v{16+2*j+1}")
        a(f"buffer_store_dwordx4 {r('v', 80+4*rnd)}, v8, s[{sOut}:{sOut+3}], s31 offen")
    if STAMP:
        a("s_waitcnt vmcnt(0)")
        stamp2()
        a("s_add_u32 s60, s24, 0x10100000\ns_addc_u32 s61, s25, 0\ns_mov_b32 s62, 0x100000\ns_mov_b32 s63, 0x20000\ns_waitcnt lgkmcnt(0)\nv_subrev_u32 v0, 512, v0")
        stamp_store(a, 2 * k2s[0], 64, 60, 4, label="L_nostamp2")
    a("L_exit2:")
    a("s_endpgm")
    return a.text()

k1 = gen_attn()
k2 = gen_proj()
print(wrap([
    dict(name="attn_kernel", grid=256, block=256, lds=163840, body=k1, vgpr=512, sgpr=102, accum=256),
    dict(name="proj_kernel", grid=240, block=512, lds=163840, body=k2, vgpr=208, sgpr=102, accum=208),
]))
```

```python
import sys, struct, math
from gencommon import *

OPT = dict(kv.split("=") for kv in sys.argv[1:])
def opt(k, d): return type(d)(OPT.get(k, d))
STAMP = opt("stamp", 0)
MAP = opt("map", "mixed")
NT = opt("nt", 1)
FORCE_SAFE = opt("safe", 0)
QLEAD = opt("qlead", 28)
K0AT = opt("k0at", 2)
WARM = opt("warm", 1)
OD = opt("od", 5)
OLD = {"": "", "plain": "", "nt": " nt", "sc1": " sc1", "sc01": " sc0 sc1"}[opt("old", "sc1")]
OST = {"": "", "plain": "", "sc1": " sc1", "sc01": " sc0 sc1"}[opt("ost", "sc01")]
SPIN = opt("spin", 1 << 16)

MF = "v_mfma_f32_16x16x32_bf16"
VBASE, SBASE, KBASE = 0, 64 * 1024, 96 * 1024
QBUF = [0, 48 * 1024, 96 * 1024]
XOFF, WOFF = 0, 31744
def kslot(t): return (t + 3) % 4
def vslot(t): return t % 4
vO = 128; vS = 64; vNM = 48
vKR = 16; vVR = 20; vKD = 28; vVD = 32; vXD = 36; vWD = 44
vXR = 64; vWR = 66
vWO = 36
vAR = [40, 44, 8]
aQ = 0; aK = 64; aV = 96; aL = 128; aONE = 144
aQA = [64, 96]; aQB = [148, 164]
sK, sV, sX, sW, sWS = 8, 12, 16, 20, 24
sO, sOUT = 16, 20
sWAVE, sKW, sVW, sXW, sWW = 28, 29, 30, 31, 32
sKoff, sVoff, sCNT, sB, sH, sT0, sT1 = 33, 34, 35, 36, 37, 38, 39
sKinc, sKmask, sVinc, sVmask = 6, 7, 31, 32
sST, sSTAMP = 40, 44
sWO = 76
sROT, sQS, sR, sOB = 80, 81, 82, 83
sARG = 84
pX, pK, pV, pWQ, pWO, pOUT, pDBG, pWS = [sARG + 2 * i for i in range(8)]
CSCALE = struct.unpack("<I", struct.pack("<f", math.log2(math.e) / math.sqrt(128.0)))[0]
WCONT = opt('wcont', 0)
WSTEP = 4096 if WCONT else 32 * 1280

def r(pfx, b, n=4): return f"{pfx}[{b}:{b+n-1}]"
def O(q, d): return r("v", vO + (q * 8 + d) * 4)
def S(p, q, kt): return vS + 32 * p + 8 * q + 4 * kt
def ntf(): return {0: "", 1: " nt", 2: " sc1 nt"}[NT]

nstamp = [0]
def stamp(a):
    if STAMP:
        i = nstamp[0]; nstamp[0] += 1
        assert i < 8
        a(f"s_memtime s[{sSTAMP+4*i}:{sSTAMP+4*i+1}]")
        a(f"s_memrealtime s[{sSTAMP+4*i+2}:{sSTAMP+4*i+3}]")
def rec(a):
    a("v_cmp_eq_u32 vcc, v13, v3\nv_mov_b32 v15, s100\nv_add_u32 v13, 1, v13\nv_cndmask_b32 v14, v14, v15, vcc")

def dmaK(n): return f"buffer_load_dwordx4 v{vKD+n}, s[{sK}:{sK+3}], s{sKoff} offen offset:{n*1024}{ntf()} lds"
def dmaV(n): return f"buffer_load_dwordx4 v{vVD+n}, s[{sV}:{sV+3}], s{sVoff} offen offset:{n*1024}{ntf()} lds"
def kread(f, off, ktoff=4096):
    kt, s = f >> 2, f & 3
    return f"ds_read_b128 {r('a', aK+4*f)}, v{vKR+s} offset:{off + kt*ktoff}"
def vread(d, second, off, soff=4096):
    return f"ds_read_b64_tr_b16 {r('a', aV+4*d+2*second, 2)}, v{vVR+d} offset:{off + second*soff}"
def qk(p, q, kt, s, czero=False):
    b = S(p, q, kt)
    c = r("v", b) if s else ("0" if czero else r("v", vNM + 4 * q))
    return f"{MF} {r('v', b)}, {r('a', aK+4*(kt*4+s))}, {r('a', aQ+16*q+4*s)}, {c}"
def pv(p, q, d): return f"{MF} {O(q,d)}, {r('a', aV+4*d)}, {r('v', S(p,q,0))}, {O(q,d)}"
def sm(p, q): return f"{MF} {r('a', aL+4*q)}, {r('a', aONE)}, {r('v', S(p,q,0))}, {r('a', aL+4*q)}"
def softmax_ops(p, nq):
    ex, cv = [], []
    for kt in range(2):
        for q in range(nq):
            b = S(p, q, kt)
            for j in range(4): ex.append(f"v_exp_f32 v{b+j}, v{b+j}")
            for j in range(2): cv.append(f"v_cvt_pk_bf16_f32 v{S(p,q,0)+2*kt+j}, v{b+2*j}, v{b+2*j+1}")
    return ex, cv

PIECE = {0: 9, 1: 6, 2: 7, 3: 0, 4: 1, 5: 8, 6: 2, 7: 4, 8: 5}
def wo_issue(n, piece):
    out = [("s", f"s_add_u32 s{sT0}, s{sR}, {n}"), ("s", f"s_and_b32 s{sT0}, s{sT0}, 31"),
           ("s", f"s_mul_i32 s{sT0}, s{sT0}, {WSTEP}"), ("s", f"s_add_u32 m0, s{sVW}, {piece*16384}")]
    out += [("M", f"buffer_load_dwordx4 v{vWO+i}, s[{sWO}:{sWO+3}], s{sT0} offen offset:{i*1024} lds") for i in range(4)]
    return out
def wo_reads(n, piece):
    bank = (n % 16) * 16
    return [f"ds_read_b64_tr_b16 {r('a', bank+4*t+2*h, 2)}, v{vAR[piece >> 2]+t} offset:{(piece & 3)*16384 + h*2048}" for t in range(4) for h in range(2)]
def flat(a, items):
    prev = None
    for it in items:
        k, t = it[0], it[1]
        if k == "M" and prev and "m0" in prev: a("s_nop 0")
        a(t); prev = t

class Body:
    def __init__(self):
        self.mf = []; self.big = {}; self.pre = {}; self.cv = {}; self.lastcv = 0
    def add(self, text, need=None): self.mf.append((text, need))
    def place_big(self, kind, text, target, tag=None, hi=None, req=None):
        n = len(self.mf)
        target = min(target, n - 1)
        hi = min(n - 1, target + 3 if hi is None else max(hi, target))
        g = target
        while g in self.big and g < hi: g += 1
        if g in self.big: g = min(range(target, hi + 1), key=lambda x: len(self.big[x]))
        self.big.setdefault(g, []).append((kind, text, tag, req))
        return g
    def place_d(self, text, lo, tag, cap, req=None):
        g = lo
        while True:
            kinds = [x[0] for x in self.big.get(g, [])]
            if all(k == "D" for k in kinds) and len(kinds) < cap: break
            g += 1
        assert g < len(self.mf)
        self.big.setdefault(g, []).append(("D", text, tag, req))
        return g
    def place_cvt(self, text, lo, hi):
        n = len(self.mf); best = None
        lo = max(lo, self.lastcv)
        for g in range(lo, min(hi, lo + 4, n - 1) + 1):
            kinds = [x[0] for x in self.big.get(g, [])]
            cnt = len(self.cv.get(g, []))
            if (kinds == ["D"] and cnt == 0) or (kinds == [] and cnt < 2): best = g; break
        if best is None: best = min(lo, n - 1)
        self.cv.setdefault(best, []).append(text)
        self.lastcv = best
        return best
    def place_s(self, text, lo, hi=None):
        n = len(self.mf)
        hi = lo if hi is None else hi
        for g in range(lo, min(hi, n - 1) + 1):
            kinds = [x[0] for x in self.big.get(g, [])]
            if not self.pre.get(g) and (kinds == ["E"] or kinds == [] or (kinds == ["D"] and not self.cv.get(g))):
                self.pre.setdefault(g, []).append(text); return g
        self.pre.setdefault(lo, []).append(text); return lo
    def spread(self, it, start, span, req=None):
        nm = sum(1 for x in it if x[0] == "M")
        i = 0; pend = []; lastg = start
        for k, t, tag in it:
            if k != "M": pend.append(t); continue
            g = self.place_big("M", t, max(start + 2 + int(i * span / nm), lastg + 1 + (len(pend) + 1) // 2), tag, req=req if i == 0 else None)
            for j, pt in enumerate(pend):
                self.pre.setdefault(max(lastg + 1, g - (len(pend) - j + 1) // 2), []).append(pt)
            pend = []; lastg = g; i += 1
        return lastg
    def emit(self, a, resident=(), vm=None, vmdone=None):
        total = {}
        for items in self.big.values():
            for k, t, tag, req in items:
                if k in "DM": total[(k, tag)] = total.get((k, tag), 0) + 1
        st = dict(q=[], issued={})
        done = set(resident)
        vmdone = vmdone if vmdone is not None else set()
        def wait(tags):
            lds = [t for t in tags if t[0] != "vm" and t not in done]
            vms = [t[1] for t in tags if t[0] == "vm" and t[1] not in vmdone]
            parts = []
            if vms:
                for t in vms: assert st["issued"].get(("M", t), 0) == total.get(("M", t), 0) and t in vm, ("vm not issued", t)
                N = min(vm[::-1].index(t) for t in vms)
                assert N <= 63
                parts.append(f"vmcnt({N})")
                for t in vm[:len(vm) - N]: vmdone.add(t)
                for t in vm[len(vm) - N:]: vmdone.discard(t)
            if lds:
                q = st["q"]
                for t in lds: assert st["issued"].get(("D", t), 0) == total[("D", t)] and t in q, ("lds not issued", t)
                N = min(min(q[::-1].index(t) for t in lds), 10)
                parts.append(f"lgkmcnt({N})")
                for t in q[:len(q) - N]: done.add(t)
                st["q"] = q[len(q) - N:]
                for t in st["q"]: done.discard(t)
            if parts: a("s_waitcnt " + " ".join(parts))
        n = len(self.mf)
        if self.mf[0][1]: wait(self.mf[0][1])
        for g in range(n):
            a(self.mf[g][0])
            late = None
            nxt = self.mf[g + 1][1] if g + 1 < n else None
            if nxt: wait(nxt)
            for t in self.pre.get(g, []): a(t)
            for kind, text, tag, req in self.big.get(g, []):
                if req: wait(req)
                if kind == "B":
                    nv = vm[::-1].index(tag)
                    a(f"s_waitcnt vmcnt({nv}) lgkmcnt(0)")
                    for t in st["q"]: done.add(t)
                    st["q"] = []
                a(text)
                if kind in "DM": st["issued"][(kind, tag)] = st["issued"].get((kind, tag), 0) + 1
                if kind == "M" and vm is not None: vm.append(tag); vmdone.discard(tag)
                if kind == "D": st["q"].append(tag); done.discard(tag)
            for t in self.cv.get(g, []): a(t)

NTAIL = {4: 26, 3: 20}

def gen_body(a, nq, u, L, last=False, loopctl=None):
    B = Body()
    vo, ko = vslot(u) * 16384, kslot(u + 1) * 16384
    def g_qk(p, kts, gen):
        for kt in kts:
            for s in range(4):
                for q in range(nq): B.add(qk(p, q, kt, s), [("K", kt * 4 + s, gen)] if q == 0 else None)
    def g_pv(p, gen):
        for d in range(8):
            for q in range(nq): B.add(pv(p, q, d), [("V", d, gen)] if q == 0 else None)
        for q in range(nq): B.add(sm(p, q))
    g_qk(1, [1], 0); P0 = len(B.mf)
    g_pv(0, 0); Q1 = len(B.mf)
    if not last: g_qk(0, [0, 1], 1)
    P1 = len(B.mf)
    g_pv(1, 1)
    if not last: g_qk(1, [0], 2)
    n = len(B.mf)
    resident = [("K", f, 0) for f in range(4, 8)]
    sc = nq / 4.0
    for d in range(8):
        for h in range(2): B.place_big("D", vread(d, h, vo), int((4 * d + 2 * h) * sc), ("V", d, 0))
    ex0, cv0 = softmax_ops(0, nq); ex1, cv1 = softmax_ops(1, nq)
    ne = len(ex0)
    win = P1 - P0
    full = nq * 17
    ntail = NTAIL[nq]
    if not last:
        for f in range(8): B.place_big("D", kread(f, ko), Q1 - int(20 * sc) + int(4 * f * sc), ("K", f, 1))
    for d in range(8):
        for h in range(2):
            lo = max(P1 - int(20 * sc) + int((4 * d + 2 * h) * sc), P0 + nq * d + nq)
            B.place_big("D", vread(d, h, vo + 8192), lo, ("V", d, 1))
    if not last:
        for f in range(8): B.place_big("D", kread(f, ko + 8192), P1 + int(12 * sc) + int(4 * f * sc), ("K", f, 2))
        g0 = Q1 - int(18 * sc)
        gs = [B.place_big("M", dmaV(i), g0 + int(8 * i * sc)) for i in range(4)]
        mV, mVe = gs[0], gs[-1]
        g0 = P1 + int(14 * sc)
        gs = [B.place_big("M", dmaK(i), g0 + int(8 * i * sc)) for i in range(4)]
        mK, mKe = gs[0], gs[-1]
    eg0, eg1, egt = {}, {}, {}
    nh = ne - ntail
    for i in range(ntail, ne):
        eg0[i] = B.place_big("E", ex0[i], max(1 + int((i - ntail) * (P0 - 4) / max(nh, 1)), eg0.get(i - 1, 0)))
    for i in range(ne):
        t = P0 + 1 + int(i * (win - 5) / ne)
        if i >= ne // 2: t = max(t, P0 + 5)
        eg1[i] = B.place_big("E", ex1[i], max(t, eg1.get(i - 1, 0)), hi=min(t + 3, P1 - 4))
    if not last:
        for i in range(ntail):
            t = P1 + 1 + int(i * (full - 5) / ne)
            egt[i] = B.place_big("E", ex0[i], max(t, egt.get(i - 1, 0)), hi=min(t + 3, n - 2))
    for j in range(ntail // 2, ne // 2):
        q = (j // 2) % nq
        g = B.place_cvt(cv0[j], eg0[2 * j + 1] + 1, P0 + q - 2)
        assert g <= P0 + q - 2
    for j in range(ne // 2):
        q = (j // 2) % nq
        g = B.place_cvt(cv1[j], eg1[2 * j + 1] + 1, P1 + q - 3)
        assert g <= P1 + q - 3, (j, g, P1)
    assert eg1[ne // 2] >= P0 + 5
    if not last:
        for j in range(ntail // 2): B.place_cvt(cv0[j], egt[2 * j + 1] + 1, n - 1)
        assert min(egt.values()) >= Q1 + 4 * nq + 5
        if ntail > ne // 2: assert egt[ne // 2] >= P1 + 5
        B.place_s(f"s_add_u32 m0, s{sVW}, {VBASE + vslot(u+3)*16384}", mV - 4, mV - 1)
        g = B.place_s(f"s_add_u32 s{sVoff}, s{sVoff}, s{sVinc}", mV - 12, mV - 6)
        B.place_s(f"s_and_b32 s{sVoff}, s{sVoff}, s{sVmask}", g + 1, mV - 1)
        B.place_s(f"s_add_u32 m0, s{sKW}, {kslot(u+4)*16384}", mK - 4, mK - 1)
        g = B.place_s(f"s_add_u32 s{sKoff}, s{sKoff}, s{sKinc}", mK - 12, mK - 6)
        B.place_s(f"s_and_b32 s{sKoff}, s{sKoff}, s{sKmask}", g + 1, mK - 1)
        for uu, e, nm in ((0, mVe, "V"), (3, mKe, "K")):
            if u == uu:
                g = B.place_s(f"s_cmp_eq_u32 s{sCNT}, 1", e + 1, e + 3)
                g2 = B.place_s(f"s_cbranch_scc1 L_sw{nm}{L}\nL_sw{nm}r{L}:", g + 1, g + 3)
                assert all(not B.pre.get(x) or x in (g, g2) for x in range(g, g2 + 1)) and len(B.pre[g]) == 1 and len(B.pre[g2]) == 1
        if loopctl:
            B.place_s(loopctl[0], n - 8, n - 5)
            B.place_s(loopctl[1], n - 4, n - 2)
    else:
        it = [(k, t, None) for j in (5, 6, 7, 8) for k, t in wo_issue(j, PIECE[j])]
        if opt("early58", 1): B.spread(it, 0, P1 - 8)
        else: B.spread(it, P1 - 1, n - P1 - 4)
    B.emit(a, resident)
    if not last:
        if STAMP == 2: a("s_memrealtime s[100:101]")
        a("s_waitcnt vmcnt(16) lgkmcnt(0)")
        a("s_barrier")
        if STAMP == 2: rec(a)

def kv_voffsets(a, wave):
    if wave:
        a("v_lshlrev_b32 v8, 12, v1")
        a("v_lshl_add_u32 v8, v4, 8, v8")
    else:
        a("v_lshlrev_b32 v8, 8, v4")
    a("v_xor_b32 v9, v5, v4")
    for n in range(4):
        a(f"v_xor_b32 v10, {4*n}, v9")
        a(f"v_lshl_add_u32 v{vKD+n}, v10, 4, v8")
    a("v_lshlrev_b32 v9, 1, v4")
    a("v_xor_b32 v9, v9, v5")
    for p in range(2):
        a(f"v_xor_b32 v10, {8*p}, v9")
        a(f"v_lshl_add_u32 v{vVD+p}, v10, 4, v8")
        a(f"v_mov_b32 v{vVD+p+2}, v{vVD+p}")
def kv_srds(a):
    a(f"""s_lshl_b32 s{sT0}, s{sB}, 5
s_add_u32 s{sT0}, s{sT0}, s{sH}
s_lshl_b32 s{sT0}, s{sT0}, 19
s_add_u32 s{sK}, s{pK}, s{sT0}
s_addc_u32 s{sK+1}, s{pK+1}, 0
s_mov_b32 s{sK+2}, 524288
s_mov_b32 s{sK+3}, 0x20000
s_add_u32 s{sV}, s{pV}, s{sT0}
s_addc_u32 s{sV+1}, s{pV+1}, 0
s_mov_b32 s{sV+2}, 524288
s_mov_b32 s{sV+3}, 0x20000""")
def ar_setup(a):
    a("v_lshrrev_b32 v12, 2, v3\nv_lshlrev_b32 v12, 7, v12\nv_and_b32 v15, 3, v3\nv_lshl_add_u32 v12, v15, 3, v12")
    a(f"v_add_u32 v12, s{sVW}, v12\nv_bfe_u32 v15, v3, 3, 2")
    for t in range(4):
        a(f"v_xor_b32 v{vAR[0]+t}, {t}, v15")
        a(f"v_lshl_add_u32 v{vAR[0]+t}, v{vAR[0]+t}, 5, v12")
        a(f"v_add_u32 v{vAR[1]+t}, 0x10000, v{vAR[0]+t}")
        a(f"v_add_u32 v{vAR[2]+t}, 0x20000, v{vAR[0]+t}")

def xlane(a, regs, op2, tmp=1):
    for op in ("v_permlane32_swap_b32", "v_permlane16_swap_b32"):
        for m in regs: a(f"v_mov_b32 v{m+tmp}, v{m}")
        a("s_nop 1")
        for m in regs: a(f"{op} v{m}, v{m+tmp}")
        a("s_nop 1")
        for m in regs: a(f"{op2} v{m}, v{m}, v{m+tmp}")

def gen_wave(a, nq, L):
    nx = 2 * nq
    def qstage_issue(st):
        buf = QBUF[(st + 1) % 3]
        out = [("s", f"s_lshl_b32 s{sT0}, s{sQS}, 7"), ("s", f"s_lshl_b32 s{sT1}, s{sQS}, 19"), ("s", f"s_add_u32 s{sQS}, s{sQS}, 1"),
               ("s", f"s_cmp_eq_u32 s{sQS}, 10"), ("s", f"s_cselect_b32 s{sQS}, 0, s{sQS}"), ("s", f"s_add_u32 m0, s{sXW}, {buf+XOFF}")]
        for n in range(nx):
            if n == 4: out.append(("s", f"s_add_u32 m0, s{sXW}, {buf+XOFF+4096}"))
            out.append(("M", f"buffer_load_dwordx4 v{vXD+n}, s[{sX}:{sX+3}], s{sT0} offen offset:{(n&3)*1024} lds"))
        out.append(("s", f"s_add_u32 m0, s{sWW}, {buf+WOFF}"))
        for n in range(4):
            out.append(("M", f"buffer_load_dwordx4 v{vWD+n}, s[{sW}:{sW+3}], s{sT1} offen offset:{n*1024 + 8*(n>>1)} lds"))
        return [(k, t, ("q", st)) for k, t in out]
    def kv_issue(kind, t):
        so, sw, off, f = (sKoff, sKW, kslot(t) * 16384, dmaK) if kind == "K" else (sVoff, sVW, VBASE + vslot(t) * 16384, dmaV)
        out = [("s", f"s_add_u32 s{so}, s{sROT}, {t*16384}"), ("s", f"s_and_b32 s{so}, s{so}, 0x7ffff"), ("s", f"s_add_u32 m0, s{sw}, {off}")]
        out += [("M", f(n)) for n in range(4)]
        return [(k, x, (kind, t)) for k, x in out]
    vm = []
    def now(it):
        flat(a, it)
        for x in it:
            if x[0] == "M": vm.append(x[2])
    def vmwait(tag): return vm[::-1].index(tag)
    for st in range(2): now(qstage_issue(st))
    def qreads(st, sp):
        out = [(f"ds_read_b128 {r('a', aQB[sp]+4*q)}, v{vXR+sp} offset:{XOFF + q*2048}", ("B", st, sp)) for q in range(nq)]
        for t in range(8):
            s, odd = t >> 1, t & 1
            for h in range(2):
                out.append((f"ds_read_b64_tr_b16 {r('a', aQA[sp]+4*t+2*h, 2)}, v{vWR+s} offset:{WOFF + odd*8 + h*1024 + sp*8224}", ("A", st, sp, t)))
        return out
    def rot(st):
        d = QBUF[(st + 2) % 3] - QBUF[(st + 1) % 3]
        return [f"v_add_u32 v{vXR+i}, {d}, v{vXR+i}" if d > 0 else f"v_subrev_u32 v{vXR+i}, {-d}, v{vXR+i}" for i in range(6)]
    a(f"s_waitcnt vmcnt({vmwait(('q', 0))})")
    a("s_barrier")
    stamp(a)
    B = Body()
    PH = 8 * nq
    for st in range(10):
        for sp in range(2):
            for t in range(8):
                for q in range(nq):
                    c = "0" if (st == 0 and sp == 0) else O(q, t)
                    B.add(f"{MF} {O(q,t)}, {r('a', aQA[sp]+4*t)}, {r('a', aQB[sp]+4*q)}, {c}",
                          ([("A", st, sp, t)] + ([("B", st, sp)] if t == 0 else [])) if q == 0 else None)
    first = qreads(0, 0)
    for t, _ in first: a(t)
    a("s_waitcnt lgkmcnt(0)")
    LQ = int(QLEAD * nq / 4)
    g = B.spread(qstage_issue(2), -1, 2 * PH - LQ - 6)
    assert g < 2 * PH - LQ
    for st in range(9):
        bar = 2 * PH * (st + 1) - LQ
        B.place_big("B", "s_barrier", bar, ("q", st + 1), hi=bar)
        for i, t in enumerate(rot(st)): B.cv.setdefault(bar - 3 + i // 2, []).append(t)
        if st + 3 < 10: it = qstage_issue(st + 3)
        elif st == 7: it = kv_issue("K", 1) + kv_issue("K", 2)
        else: it = kv_issue("V", 0) + kv_issue("V", 1)
        if st == K0AT: it = it + kv_issue("K", 0)
        g = B.spread(it, bar, 2 * PH - 5)
        assert g < bar + 2 * PH
    for st in range(10):
        base = 2 * PH * st
        g = base - LQ + 1
        if st > 0:
            for t, tag in qreads(st, 0): g = B.place_d(t, g, tag, 5 - nq)
        g = max(g, 0)
        rd = qreads(st, 1)
        order = rd[nq:nq + 4] + rd[:nq] + rd[nq + 4:] if st > 0 else rd
        for t, tag in order:
            lo = base if tag[0] == "B" else base - PH + nq * tag[3] + nq
            g = B.place_d(t, max(g, lo), tag, 5 - nq)
        if st < 9: assert g < base + 2 * PH - LQ - 3, (st, g)
    g = 2 * PH * 9 + PH
    for f in range(8): g = B.place_big("D", kread(f, kslot(0) * 16384), g + 1, ("K0", f))
    B.emit(a, resident=[tag for _, tag in first], vm=vm)
    stamp(a)
    a(f"s_mov_b32 s{sQS}, s5")
    a(f"s_mov_b32 s{sKinc}, 16384\ns_mov_b32 s{sKmask}, 0x7ffff\ns_mov_b32 s{sVinc}, 16384\ns_mov_b32 s{sVmask}, 0x7ffff")
    a("v_lshlrev_b32 v8, 1, v4\nv_xor_b32 v8, v8, v7\nv_mul_u32_u24 v9, 1280, v6\nv_lshl_add_u32 v8, v8, 4, v9")
    for n in range(4): a(f"v_add_u32 v{vWO+n}, {n*8*1280 - n*1024}, v8" if not WCONT else f"v_mov_b32 v{vWO+n}, v2")
    ar_setup(a)
    a(f"s_mov_b32 s{sT0}, {CSCALE:#x}")
    for q in range(nq):
        for s in range(4):
            b = vO + (q * 8 + 2 * s) * 4
            for j in range(8): a(f"v_mul_f32 v{b+j}, s{sT0}, v{b+j}")
            for j in range(4): a(f"v_cvt_pk_bf16_f32 v{b+j}, v{b+2*j}, v{b+2*j+1}")
            for j in range(4): a(f"v_accvgpr_write_b32 a{aQ+16*q+4*s+j}, v{b+j}")
    now(kv_issue("K", 3))
    a("s_waitcnt lgkmcnt(0)")
    zero = [f"v_mov_b32 v{vO+i}, 0" for i in range(nq * 32)] + [f"v_accvgpr_write_b32 a{aL+i}, 0" for i in range(nq * 4)]
    zi = 0
    for kt in range(2):
        for s in range(4):
            for q in range(nq):
                a(qk(0, q, kt, s, czero=True))
                for _ in range(2):
                    a(zero[zi]); zi += 1
    for f in range(8): a(kread(f, kslot(0) * 16384 + 8192))
    for t in zero[zi:]: a(t)
    for q in range(nq):
        b = S(0, q, 0); m = vNM + 4 * q
        a(f"v_max3_f32 v{m}, v{b}, v{b+1}, v{b+2}")
        a(f"v_max3_f32 v{m+1}, v{b+3}, v{b+4}, v{b+5}")
        a(f"v_max3_f32 v{m}, v{m}, v{b+6}, v{b+7}")
        a(f"v_max_f32 v{m}, v{m}, v{m+1}")
    xlane(a, [vNM + 4 * q for q in range(nq)], "v_max_f32")
    for q in range(nq):
        m = vNM + 4 * q; b = S(0, q, 0)
        a(f"v_sub_f32 v{m}, 0, v{m}")
        for j in range(1, 4): a(f"v_mov_b32 v{m+j}, v{m}")
        for j in range(8): a(f"v_add_f32 v{b+j}, v{b+j}, v{m}")
    a("s_waitcnt lgkmcnt(0)")
    ex0, cv0 = softmax_ops(0, nq)
    ntail = NTAIL[nq]
    work = []
    for i in range(ntail):
        work.append(ex0[i])
        if i % 2 == 1 and i >= 3: work.append(cv0[(i - 3) // 2])
    work += ["s_nop 0", cv0[ntail // 2 - 1]]
    wi = 0
    for s in range(4):
        for q in range(nq):
            a(qk(1, q, 0, s))
            for t in work[wi:wi + 2]: a(t)
            wi += 2
    for t in work[wi:]: a(t)
    if WARM:
        a(f"s_mul_i32 s{sT0}, s2, 20480\ns_add_u32 s{sX}, s{pWO}, s{sT0}\ns_addc_u32 s{sX+1}, s{pWO+1}, 0\ns_mov_b32 s{sX+2}, 20480")
        a(f"v_lshlrev_b32 v12, 7, v0")
        a(f"buffer_load_dword v12, v12, s[{sX}:{sX+3}], 0 offen")
        vm.append(("warm", 0))
    now(kv_issue("V", 2))
    a(f"s_mov_b32 s{sCNT}, 8")
    if STAMP == 2: a("v_mov_b32 v13, 0\nv_mov_b32 v14, 0")
    a(f"s_waitcnt vmcnt({vmwait(('V', 0))})")
    assert vmwait(("V", 1)) >= 8 and vmwait(("K", 2)) >= 8
    a("s_barrier")
    stamp(a)
    a(".p2align 6")
    a(f"L_loop{L}:")
    gen_body(a, nq, 0, L)
    gen_body(a, nq, 1, L)
    gen_body(a, nq, 2, L, loopctl=(f"s_sub_u32 s{sCNT}, s{sCNT}, 1", f"s_cmp_eq_u32 s{sCNT}, 0"))
    a(f"s_cbranch_scc1 L_last{L}")
    gen_body(a, nq, 3, L)
    a(f"s_branch L_loop{L}")
    for nm, srd, vd, so, si, sk, first in (("K", sK, vKD, sKoff, sKinc, sKmask, 0), ("V", sV, vVD, sVoff, sVinc, sVmask, 3)):
        a(f"L_sw{nm}{L}:")
        for i in range(3): a(f"s_mov_b32 s{srd+i}, s{sWO+i}")
        for i in range(4): a(f"v_mov_b32 v{vd+i}, v{vWO+i}")
        a(f"s_add_u32 s{so}, s{sR}, {first - 1}\ns_mul_i32 s{so}, s{so}, {WSTEP}\ns_mov_b32 s{si}, {WSTEP}\ns_mov_b32 s{sk}, -1")
        a(f"s_branch L_sw{nm}r{L}")
    a(f"L_last{L}:")
    gen_body(a, nq, 3, L, last=True)
    stamp(a)
    a("s_nop 7")
    for q in range(nq): a(f"v_accvgpr_read_b32 v{vNM+4*q}, a{aL+4*q}")
    a(f"s_mov_b32 s{sT0}, 0x5f800000")
    a("s_mov_b64 s[4:5], 0")
    for q in range(nq):
        a(f"v_cmp_ngt_f32 vcc, s{sT0}, v{vNM+4*q}")
        a("s_or_b64 s[4:5], s[4:5], vcc")
    if FORCE_SAFE: a(f"s_branch L_safe{L}")
    a(f"s_cbranch_scc1 L_safe{L}")
    a(f"L_epi{L}:")
    for q in range(nq): a(f"v_rcp_f32 v{vNM+4*q}, v{vNM+4*q}")
    a("s_waitcnt vmcnt(16)")
    rds = [t for j in range(5) for t in wo_reads(j, PIECE[j])]
    per = -(-len(rds) // (4 * nq))
    for q in range(nq):
        for s in range(4):
            b = vO + (q * 8 + 2 * s) * 4
            for t in rds[:per]: a(t)
            rds = rds[per:]
            for j in range(8): a(f"v_mul_f32 v{b+j}, v{vNM+4*q}, v{b+j}")
            for j in range(4): a(f"v_cvt_pk_bf16_f32 v{b+j}, v{b+2*j}, v{b+2*j+1}")
            if s == 0:
                a(f"s_lshl_b32 s{sT0}, s{sWAVE}, 2\ns_add_u32 s{sT0}, s{sT0}, {q}\ns_mul_i32 s{sT1}, s{sT0}, 52\ns_lshr_b32 s{sT1}, s{sT1}, 8")
                a(f"s_mul_i32 s{sT1}, s{sT1}, {128*5120 - 5*1024}\ns_lshl_b32 s{sT0}, s{sT0}, 10\ns_add_u32 s{sT0}, s{sT0}, s{sT1}\ns_add_u32 s{sT0}, s{sT0}, s3")
            else:
                a(f"s_add_u32 s{sT0}, s{sT0}, 5120")
            a(f"buffer_store_dwordx4 {r('v', b)}, v2, s[{sWS}:{sWS+3}], s{sT0} offen{OST}")
    a("s_branch L_common")
    gen_safe(a, nq, L)

def gen_safe(a, nq, L):
    a(f"L_safe{L}:")
    a("s_waitcnt vmcnt(0) lgkmcnt(0)")
    for i in range(nq * 32): a(f"v_mov_b32 v{vO+i}, 0")
    for q in range(nq):
        a(f"v_mov_b32 v{vNM+4*q}, 0xff800000")
        a(f"v_mov_b32 v{vNM+4*q+3}, 0")
    kv_voffsets(a, False)
    kv_srds(a)
    a(f"s_add_u32 s{sKW}, s{sVW}, {SBASE}")
    a(f"s_sub_u32 s{sT0}, s{sKW}, {KBASE}")
    for i in range(4): a(f"v_add_u32 v{vKR+i}, s{sT0}, v{vKR+i}")
    for i in range(8): a(f"v_add_u32 v{vVR+i}, s{sKW}, v{vVR+i}")
    a(f"s_mov_b32 s{sKoff}, 0")
    a(f"L_sloop{L}:")
    def tile(vd, srd):
        for hh in range(2):
            a(f"s_add_u32 m0, s{sKW}, {hh*16384}")
            a(f"s_add_u32 s{sVoff}, s{sKoff}, {hh*4096}")
            for n in range(4): a(f"buffer_load_dwordx4 v{vd+n}, s[{srd}:{srd+3}], s{sVoff} offen offset:{n*1024} lds")
    tile(vKD, sK)
    a("s_waitcnt vmcnt(0)")
    for f in range(8): a(kread(f, 0, 16384))
    a("s_waitcnt lgkmcnt(0)")
    tile(vVD, sV)
    for kt in range(2):
        for s in range(4):
            for q in range(nq): a(qk(0, q, kt, s, czero=True))
    a("s_nop 7")
    T = vS + 32
    for q in range(nq):
        b = S(0, q, 0); m = T + 2 * q
        a(f"v_max3_f32 v{m}, v{b}, v{b+1}, v{b+2}")
        a(f"v_max3_f32 v{m+1}, v{b+3}, v{b+4}, v{b+5}")
        a(f"v_max3_f32 v{m}, v{m}, v{b+6}, v{b+7}")
        a(f"v_max3_f32 v{m}, v{m}, v{m+1}, v{vNM+4*q}")
    xlane(a, [T + 2 * q for q in range(nq)], "v_max_f32")
    for q in range(nq):
        m = vNM + 4 * q; b = S(0, q, 0)
        a(f"v_sub_f32 v{m+2}, v{m}, v{T+2*q}")
        a(f"v_exp_f32 v{m+2}, v{m+2}")
        a(f"v_mov_b32 v{m}, v{T+2*q}")
        for j in range(8): a(f"v_sub_f32 v{b+j}, v{b+j}, v{m}")
        for j in range(8): a(f"v_exp_f32 v{b+j}, v{b+j}")
        a(f"v_mul_f32 v{m+3}, v{m+3}, v{m+2}")
        for i in range(32): a(f"v_mul_f32 v{vO+q*32+i}, v{vO+q*32+i}, v{m+2}")
        for j in range(4): a(f"v_cvt_pk_bf16_f32 v{b+j}, v{b+2*j}, v{b+2*j+1}")
        for j in range(4):
            a(f"v_lshlrev_b32 v{b+4}, 16, v{b+j}")
            a(f"v_and_b32 v{b+5}, 0xffff0000, v{b+j}")
            a(f"v_add_f32 v{m+3}, v{m+3}, v{b+4}")
            a(f"v_add_f32 v{m+3}, v{m+3}, v{b+5}")
    a("s_waitcnt vmcnt(0)")
    for d in range(8):
        for h in range(2): a(vread(d, h, 0, 16384))
        if d == 3: a("s_waitcnt lgkmcnt(0)")
    a("s_waitcnt lgkmcnt(0)")
    for d in range(8):
        for q in range(nq): a(pv(0, q, d))
    a("s_nop 7")
    a(f"s_add_u32 s{sKoff}, s{sKoff}, 8192")
    a(f"s_cmp_lt_u32 s{sKoff}, 524288")
    a(f"s_cbranch_scc1 L_sloop{L}")
    xlane(a, [vNM + 4 * q + 3 for q in range(nq)], "v_add_f32", tmp=-2)
    for q in range(nq): a(f"v_mov_b32 v{vNM+4*q}, v{vNM+4*q+3}")
    ar_setup(a)
    for j in (7, 8): flat(a, wo_issue(j, PIECE[j]))
    a(f"s_branch L_epi{L}")

def gen_common(a):
    a("L_common:")
    piece = dict(PIECE)
    vm = [("w", j) for j in range(9)] + [("st", 0)]
    def issue(n, p):
        piece[n] = p
        flat(a, wo_issue(n, p)); vm.extend([("w", n)] * 4)
    def vw(tag): return vm[::-1].index(tag)
    a("s_waitcnt lgkmcnt(0)")
    for n, src in ((9, 0), (10, 1), (11, 2)): issue(n, piece[src])
    a(f"""s_lshl_b32 s{sT0}, s{sOB}, 2
s_add_u32 s{sT0}, s{sT0}, s{sWAVE}
s_mul_i32 s{sT0}, s{sT0}, {32*5120}
s_add_u32 s{sO}, s{pWS}, s{sT0}
s_addc_u32 s{sO+1}, s{pWS+1}, 0
s_mov_b32 s{sO+2}, {0 if opt("oskip", 0) else 32*5120}
s_mov_b32 s{sOUT}, s{pDBG}
s_mov_b32 s{sOUT+1}, s{pDBG+1}
s_mov_b32 s{sOUT+2}, 256
v_mov_b32 v12, 1
v_mov_b32 v15, 0
v_add_u32 v16, 4096, v2""")
    a(f"s_waitcnt vmcnt({vw(('st', 0))})")
    a("s_barrier")
    a(f"s_cmp_lg_u32 s{sWAVE}, 0")
    a("s_cbranch_scc1 L_nosig")
    a(f"s_lshl_b32 s{sT0}, s{sB}, 5")
    a("s_mov_b64 exec, 1")
    a(f"buffer_atomic_add v12, v15, s[{sOUT}:{sOUT+3}], s{sT0} offen sc1")
    a("s_mov_b64 exec, -1")
    a("L_nosig:")
    stamp(a)
    a("s_cmp_ge_u32 s2, 240")
    a("s_cbranch_scc1 L_exit")
    for j in range(5, 9):
        for t in wo_reads(j, piece[j]): a(t)
    for n, p in ((12, 3), (13, piece[3]), (14, piece[4])): issue(n, p)
    a("s_waitcnt lgkmcnt(0)")
    for n, src in ((15, 5), (16, 6), (17, 7), (18, 8)): issue(n, piece[src])
    nxt = 19
    pend = None
    for j in range(9, 16):
        a(f"s_waitcnt vmcnt({vw(('w', j))})" + (" lgkmcnt(0)" if pend is not None else ""))
        for t in wo_reads(j, piece[j]): a(t)
        if j == 13:
            a(f"s_and_b32 s{sT1}, s2, 7\ns_lshl_b32 s{sT1}, s{sT1}, 5")
            a(f"buffer_load_dword v12, v15, s[{sOUT}:{sOUT+3}], s{sT1} offen sc0 sc1")
            vm.append(("poll", 0))
        if pend is not None: issue(nxt, piece[pend]); nxt += 1
        pend = j
    a("s_waitcnt lgkmcnt(0)")
    issue(nxt, piece[pend]); nxt += 1
    assert nxt == 26
    a(f"s_cmp_lg_u32 s{sWAVE}, 0")
    a("s_cbranch_scc1 L_go")
    a(f"s_waitcnt vmcnt({vw(('poll', 0))})")
    a(f"s_mov_b32 s{sCNT}, {SPIN}")
    a("L_poll:")
    a(f"v_readfirstlane_b32 s{sT0}, v12")
    a(f"s_sub_u32 s{sCNT}, s{sCNT}, 1")
    a(f"s_cbranch_scc1 L_go")
    a(f"s_cmp_ge_u32 s{sT0}, 32")
    a("s_cbranch_scc1 L_go")
    a(f"buffer_load_dword v12, v15, s[{sOUT}:{sOUT+3}], s{sT1} offen sc0 sc1")
    a("s_waitcnt vmcnt(0)")
    a("s_branch L_poll")
    a("L_go:")
    a("s_barrier")
    stamp(a)
    vAcc = 128
    ring = [48, 68, 88, 108, 208, 228][:OD]
    def o_issue(n):
        b = ring[n % OD]
        out = [("s", f"s_add_u32 s{sT1}, s{sR}, {n}", None), ("s", f"s_and_b32 s{sT1}, s{sT1}, 31", None), ("s", f"s_mul_i32 s{sT1}, s{sT1}, 5120", None)]
        out += [("M", f"buffer_load_dwordx4 {r('v', b+4*qt)}, v{2 if qt < 4 else 16}, s[{sO}:{sO+3}], s{sT1} offen offset:{(qt&3)*1024}{OLD}", ("o", n, qt)) for qt in range(5)]
        return out
    for n in range(OD):
        it = o_issue(n); flat(a, it); vm.extend(x[2] for x in it if x[0] == "M")
    B = Body()
    for n in range(32):
        for qt in range(5):
            for nt in range(4):
                acc = r("v", vAcc + (qt * 4 + nt) * 4)
                need = None
                if nt == 0:
                    need = [("vm", ("o", n, qt))] + ([("W", n)] if (qt == 0 and n >= 16) else [])
                B.add(f"{MF} {acc}, {r('a', (n%16)*16+4*nt)}, {r('v', ring[n%OD]+4*qt)}, {'0' if n == 0 else acc}", need)
    for n in range(32):
        base = 20 * n
        if n + OD < 32:
            it = o_issue(n + OD)
            for i, x in enumerate(it[:3]): B.pre.setdefault(base + i, []).append(x[1])
            for qt, x in enumerate(it[3:]): B.place_big("M", x[1], base + 4 * qt + 3, x[2], hi=base + 4 * qt + 3)
    for n in range(16):
        j = n + 16
        if j >= 26: piece[j] = piece[j - 10]
        g = 20 * (n + 1)
        for i, t in enumerate(wo_reads(j, piece[j])):
            g = B.place_d(t, g, ("W", j), 1, req=[("vm", ("w", j))] if i == 0 else None) + 1
        if j + 10 < 32:
            it = wo_issue(j + 10, piece[j])
            g0 = 20 * (n + 2) + 12
            for i, (k, t) in enumerate(it[:4]): B.pre.setdefault(g0 - 8 + i, []).append(t)
            gg = [g0, g0 + 2, g0 + 4, g0 + 6]
            for i, (k, t) in enumerate(it[4:]): B.place_big("M", t, gg[i], ("w", j + 10), hi=gg[i], req=[("W", j)] if i == 0 else None)
    B.emit(a, vm=vm)
    stamp(a)
    vB = 48
    a(f"s_mov_b32 s{sOUT}, s{pOUT}\ns_mov_b32 s{sOUT+1}, s{pOUT+1}\ns_mov_b32 s{sOUT+2}, {8*240*640*2}")
    a(f"s_mul_i32 s{sT0}, s{sWAVE}, 5120")
    a(f"v_add_u32 v8, s{sT0}, v2")
    a("v_add_u32 v9, 40960, v8")
    a("s_nop 4")
    a("s_barrier")
    for nt in range(4):
        a(f"s_cmp_eq_u32 s{sWAVE}, {nt}")
        a(f"s_cbranch_scc1 L_skipw{nt}")
        for qt in range(5): a(f"ds_write_b128 v{8 + (nt >> 1)}, {r('v', vAcc+(qt*4+nt)*4)} offset:{(nt&1)*20480 + qt*1024}")
        a(f"s_branch L_nextw{nt}")
        a(f"L_skipw{nt}:")
        for qt in range(5):
            for j in range(4): a(f"v_mov_b32 v{vB+qt*4+j}, v{vAcc+(qt*4+nt)*4+j}")
        a(f"L_nextw{nt}:")
    a(f"s_mul_i32 s{sT0}, s{sWAVE}, 20480")
    a(f"v_add_u32 v12, s{sT0}, v2")
    for i in range(1, 4):
        a(f"s_add_u32 s{sT1}, s{sWAVE}, {i}\ns_and_b32 s{sT1}, s{sT1}, 3\ns_mul_i32 s{sT1}, s{sT1}, 5120\nv_add_u32 v{16+i}, s{sT1}, v12")
    a(f"s_mul_i32 s{sT0}, s{sOB}, {80*1280}\ns_lshl_b32 s{sT1}, s{sQS}, 7\ns_add_u32 s{sT0}, s{sT0}, s{sT1}\ns_lshl_b32 s{sT1}, s{sWAVE}, 5\ns_add_u32 s{sT0}, s{sT0}, s{sT1}")
    a("v_mul_u32_u24 v10, 1280, v5\nv_lshl_add_u32 v10, v4, 3, v10")
    a("s_waitcnt lgkmcnt(0)")
    a("s_barrier")
    for qt in range(5):
        for i in range(1, 4): a(f"ds_read_b128 {r('v', vAcc+(qt*3+i-1)*4)}, v{16+i} offset:{qt*1024}")
    for qt in range(5):
        a(f"s_waitcnt lgkmcnt({12-3*qt})")
        b0 = vAcc + qt * 12
        for j in range(4): a(f"v_add_f32 v{vB+qt*4+j}, v{vB+qt*4+j}, v{b0+j}")
        for j in range(4): a(f"v_add_f32 v{b0+4+j}, v{b0+4+j}, v{b0+8+j}")
        for j in range(4): a(f"v_add_f32 v{vB+qt*4+j}, v{vB+qt*4+j}, v{b0+4+j}")
        for j in range(2): a(f"v_cvt_pk_bf16_f32 v{vB+qt*4+j}, v{vB+qt*4+2*j}, v{vB+qt*4+2*j+1}")
        a(f"buffer_store_dwordx2 {r('v', vB+qt*4, 2)}, v10, s[{sOUT}:{sOUT+3}], s{sT0} offen")
        if qt < 4: a(f"s_add_u32 s{sT0}, s{sT0}, {16*1280}")
    if STAMP:
        a("s_waitcnt vmcnt(0)")
        a("s_waitcnt lgkmcnt(0)")
        if STAMP == 2:
            a(f"s_lshl_b32 s{sT0}, s2, 10\ns_add_u32 s{sT0}, s{sT0}, 0x80000\nv_lshlrev_b32 v15, 2, v0")
            a(f"buffer_store_dword v14, v15, s[{sST}:{sST+3}], s{sT0} offen")
        a("s_memtime s[76:77]\ns_memrealtime s[78:79]\ns_waitcnt lgkmcnt(0)")
        stamp_store(a, 18, sSTAMP, sST, 4)

def gen():
    a = Asm()
    a("s_cmp_ge_u32 s2, 256")
    a("s_cbranch_scc1 L_exit")
    a("s_getpc_b64 s[8:9]")
    a(f"s_load_dwordx16 s[{sARG}:{sARG+15}], s[0:1], 0")
    a(f"s_mov_b32 s10, L_exit-{KN}-16\ns_mov_b32 s11, 0x20000\nv_lshlrev_b32 v11, 7, v0")
    a("buffer_load_dword v12, v11, s[8:11], 0 offen")
    a("s_mov_b32 s4, 32768\ns_mov_b32 s5, 65536")
    a("buffer_load_dword v12, v11, s[8:11], s4 offen")
    a("buffer_load_dword v12, v11, s[8:11], s5 offen")
    stamp(a)
    if MAP == "bmajor":
        a(f"s_and_b32 s{sB}, s2, 7\ns_lshr_b32 s{sH}, s2, 3")
        a(f"s_mul_i32 s{sQS}, s{sH}, 5\ns_lshr_b32 s{sQS}, s{sQS}, 4")
    else:
        a(f"""s_and_b32 s{sT0}, s2, 1
s_lshl_b32 s{sB}, s{sT0}, 2
s_lshr_b32 s{sT1}, s2, 3
s_and_b32 s{sT0}, s{sT1}, 3
s_add_u32 s{sB}, s{sB}, s{sT0}
s_mul_i32 s{sQS}, s{sT0}, 10
s_and_b32 s{sH}, s2, 6
s_lshl_b32 s{sH}, s{sH}, 2
s_lshr_b32 s{sT1}, s{sT1}, 2
s_add_u32 s{sH}, s{sH}, s{sT1}
s_mul_i32 s{sT1}, s{sT1}, 5
s_add_u32 s{sQS}, s{sQS}, s{sT1}
s_lshr_b32 s{sQS}, s{sQS}, 2
s_sub_u32 s{sT0}, s{sQS}, 10
s_cmp_ge_u32 s{sQS}, 10
s_cselect_b32 s{sQS}, s{sT0}, s{sQS}""")
    a(f"""v_lshrrev_b32 v1, 6, v0
v_and_b32 v3, 63, v0
v_lshrrev_b32 v4, 4, v3
v_readfirstlane_b32 s{sWAVE}, v1
v_and_b32 v5, 15, v3
v_lshlrev_b32 v2, 4, v3
v_lshrrev_b32 v6, 3, v3
v_and_b32 v7, 7, v3""")
    a("v_lshl_add_u32 v8, v1, 6, v6\nv_mul_u32_u24 v8, 1280, v8\nv_xor_b32 v9, v7, v4")
    for n in range(8):
        a(f"v_xor_b32 v10, {4*(n&1)}, v9")
        a(f"v_lshl_add_u32 v10, v10, 4, v8")
        a(f"v_add_u32 v{vXD+n}, {n*8*1280 - (n&3)*1024}, v10")
    a("v_lshl_add_u32 v8, v1, 4, v4\nv_lshlrev_b32 v8, 13, v8\nv_lshlrev_b32 v9, 2, v4\nv_xor_b32 v9, v9, v5\nv_lshl_add_u32 v8, v9, 4, v8")
    for n in range(4): a(f"v_add_u32 v{vWD+n}, {n*4*8192 - n*1024 - 8*(n>>1)}, v8")
    a(f"""s_lshl_b32 s{sXW}, s{sWAVE}, 13
s_lshl_b32 s{sVW}, s{sWAVE}, 12
s_add_u32 s{sKW}, s{sVW}, {KBASE}
s_mul_i32 s{sWW}, s{sWAVE}, 4112
s_mov_b32 s{sX+2}, 307200
s_mov_b32 s{sX+3}, 0x20000
s_mov_b32 s{sW+3}, 0x20000
s_mul_i32 s{sT0}, s{sB}, 307200
s_lshl_b32 s{sT1}, s{sH}, 8
s_sub_u32 s{sW+2}, 5242880, s{sT1}
s_waitcnt lgkmcnt(0)
s_add_u32 s{sX}, s{pX}, s{sT0}
s_addc_u32 s{sX+1}, s{pX+1}, 0
s_add_u32 s{sW}, s{pWQ}, s{sT1}
s_addc_u32 s{sW+1}, s{pWQ+1}, 0""")
    a(f"s_cmp_eq_u32 s{sWAVE}, 3")
    a("s_cbranch_scc1 L_waveB")
    def rest(a):
        kv_srds(a)
        a(f"""s_mov_b32 s{sWS}, s{pWS}
s_mov_b32 s{sWS+1}, s{pWS+1}
s_mov_b32 s{sWS+2}, {8*15*128*1024}
s_mov_b32 s{sWS+3}, 0x20000""")
        if STAMP:
            a(f"s_add_u32 s{sST}, s{pWS}, 0x10000000\ns_addc_u32 s{sST+1}, s{pWS+1}, 0\ns_mov_b32 s{sST+2}, 0x100000\ns_mov_b32 s{sST+3}, 0x20000")
        kv_voffsets(a, True)
        a(f"v_lshlrev_b32 v8, 8, v5\nv_add_u32 v8, {KBASE}, v8\nv_xor_b32 v9, v4, v5")
        for s in range(4):
            a(f"v_xor_b32 v10, {4*s}, v9")
            a(f"v_lshl_add_u32 v{vKR+s}, v10, 4, v8")
        a("v_lshrrev_b32 v8, 2, v3\nv_and_b32 v9, 7, v8\nv_lshlrev_b32 v8, 8, v8\nv_and_b32 v10, 3, v3\nv_lshl_add_u32 v8, v10, 3, v8")
        for t in range(8):
            a(f"v_xor_b32 v10, {t}, v9")
            a(f"v_lshl_add_u32 v{vVR+t}, v10, 5, v8")
        a(f"v_lshlrev_b32 v8, 13, v1\nv_lshl_add_u32 v8, v5, 7, v8\nv_add_u32 v8, {QBUF[1]}, v8\nv_lshrrev_b32 v9, 1, v5\nv_xor_b32 v9, v9, v4")
        for sp in range(2):
            a(f"v_xor_b32 v10, {4*sp}, v9")
            a(f"v_lshl_add_u32 v{vXR+sp}, v10, 4, v8")
        a(f"v_bfe_u32 v9, v3, 2, 2\nv_lshl_add_u32 v8, v4, 3, v9\nv_lshlrev_b32 v8, 8, v8\nv_and_b32 v10, 3, v3\nv_lshl_add_u32 v8, v10, 4, v8")
        a(f"v_add_u32 v8, {QBUF[1]}, v8\nv_lshl_add_u32 v8, v4, 3, v8")
        for s in range(4):
            a(f"v_xor_b32 v10, {s}, v9")
            a(f"v_lshl_add_u32 v{vWR+s}, v10, 6, v8")
        a("v_and_b32 v8, 3, v3\nv_cmp_eq_u32 vcc, 0, v8\nv_mov_b32 v9, 0x3f803f80\nv_mov_b32 v10, 0\nv_cndmask_b32 v9, v10, v9, vcc")
        for j in range(4): a(f"v_accvgpr_write_b32 a{aONE+j}, v9")
        a(f"s_mul_i32 s3, s{sB}, 96\ns_add_u32 s3, s3, s{sH}\ns_mul_i32 s3, s3, 20480")
        a(f"s_lshr_b32 s{sROT}, s2, 3\ns_lshl_b32 s{sROT}, s{sROT}, 14")
        a(f"""s_lshr_b32 s4, s2, 3
s_mul_i32 s6, s4, 26
s_lshr_b32 s6, s6, 8
s_mul_i32 s5, s6, 10
s_sub_u32 s5, s4, s5
s_and_b32 s{sOB}, s2, 7
s_mul_i32 s{sOB}, s{sOB}, 3
s_add_u32 s{sOB}, s{sOB}, s6
s_mul_i32 s6, s6, {opt("rq", 0)}
s_add_u32 s6, s6, s5
s_sub_u32 s7, s6, 10
s_cmp_ge_u32 s6, 10
s_cselect_b32 s6, s7, s6
s_mul_i32 s{sR}, s6, 3
s_mul_i32 s6, s{sWAVE}, {131072 if WCONT else 1024*1280}
s_lshl_b32 s7, s5, {19 if WCONT else 7}
s_add_u32 s6, s6, s7
s_add_u32 s{sWO}, s{pWO}, s6
s_addc_u32 s{sWO+1}, s{pWO+1}, 0
s_sub_u32 s{sWO+2}, 5242880, s6
s_cmp_ge_u32 s2, 240
s_cselect_b32 s{sWO+2}, 0, s{sWO+2}
{"s_mov_b32 s%d, 0" % (sWO+2) if opt("wskip", 0) else ""}
s_mov_b32 s{sWO+3}, 0x20000""")
    global REST
    REST = rest
    base = nstamp[0]
    gen_wave2(a, 4, "A")
    a("L_waveB:")
    nstamp[0] = base
    gen_wave2(a, 3, "B")
    gen_common(a)
    a("L_exit:")
    a("s_endpgm")
    return a.text()

def gen_wave2(a, nq, L):
    b = Asm()
    gen_wave(b, nq, L)
    i = next(k for k, l in enumerate(b.l) if "s_waitcnt vmcnt" in l)
    c = Asm(); REST(c)
    a.l += b.l[:i] + c.l + b.l[i:]

body = gen()
print(wrap([dict(name=KN, grid=256, block=256, lds=163840, body=body, vgpr=512, sgpr=102, accum=256)]))
```

```python
import sys, struct, math
from gencommon import *

OPT = dict(kv.split("=") for kv in sys.argv[1:])
def opt(k, d): return type(d)(OPT.get(k, d))
STAMP = opt("stamp", 0)
MAP = opt("map", "mixed")
NT = opt("nt", 1)
FORCE_SAFE = opt("safe", 0)
QLEAD = opt("qlead", 28)
K0AT = opt("k0at", 2)
WARM = opt("warm", 1)
OD = opt("od", 5)
OLD = {"": "", "plain": "", "nt": " nt", "sc1": " sc1", "sc01": " sc0 sc1"}[opt("old", "sc1")]
OST = {"": "", "plain": "", "sc1": " sc1", "sc01": " sc0 sc1"}[opt("ost", "sc01")]
SPIN = opt("spin", 1 << 16)
CHAIN = opt("chain", 1)
PMAP = opt("pmap", 1)
PF = [int(t) for t in opt("pf", "").split(",") if t]
PF0 = opt("pf0", 0)
sPF = 72
W6 = [tuple(int(y) for y in x.split(":")) for x in opt("w6", "29:56,30:56").split(",") if x]
sPFW = 6
PFD, PFA = (13, 14) if STAMP < 2 else (12, 1)
SNAKE = opt("snake", 1)

MF = "v_mfma_f32_16x16x32_bf16"
VBASE, SBASE, KBASE = 0, 64 * 1024, 96 * 1024
QBUF = [0, 48 * 1024, 96 * 1024]
XOFF, WOFF = 0, 31744
def kslot(t): return (t + 3) % 4
def vslot(t): return t % 4
vO = 128; vS = 64; vNM = 48
vKR = 16; vVR = 20; vKD = 28; vVD = 32; vXD = 36; vWD = 44
vXR = 64; vWR = 66
vWO = 36
vAR = [40, 44, 8]
aQ = 0; aK = 64; aV = 96; aL = 128; aONE = 144
aQA = [64, 96]; aQB = [148, 164]
sK, sV, sX, sW, sWS = 8, 12, 16, 20, 24
sO, sOUT = 16, 20
sWAVE, sKW, sVW, sXW, sWW = 28, 29, 30, 31, 32
sKoff, sVoff, sCNT, sB, sH, sT0, sT1 = 33, 34, 35, 36, 37, 38, 39
sKinc, sKmask, sVinc, sVmask = 6, 7, 31, 32
sST, sSTAMP = 40, 44
sWO = 76
sROT, sQS, sR, sOB = 80, 81, 82, 83
sARG = 84
pX, pK, pV, pWQ, pWO, pOUT, pDBG, pWS = [sARG + 2 * i for i in range(8)]
CSCALE = struct.unpack("<I", struct.pack("<f", math.log2(math.e) / math.sqrt(128.0)))[0]
WCONT = opt('wcont', 0)
WSTEP = 4096 if WCONT else 32 * 1280

def r(pfx, b, n=4): return f"{pfx}[{b}:{b+n-1}]"
def O(q, d): return r("v", vO + (q * 8 + d) * 4)
def S(p, q, kt): return vS + 32 * p + 8 * q + 4 * kt
def ntf(): return {0: "", 1: " nt", 2: " sc1 nt"}[NT]

nstamp = [0]
def stamp(a):
    if STAMP:
        i = nstamp[0]; nstamp[0] += 1
        assert i < 8
        a(f"s_memtime s[{sSTAMP+4*i}:{sSTAMP+4*i+1}]")
        a(f"s_memrealtime s[{sSTAMP+4*i+2}:{sSTAMP+4*i+3}]")
def rec(a):
    a("v_cmp_eq_u32 vcc, v13, v3\nv_mov_b32 v15, s100\nv_add_u32 v13, 1, v13\nv_cndmask_b32 v14, v14, v15, vcc")

def dmaK(n): return f"buffer_load_dwordx4 v{vKD+n}, s[{sK}:{sK+3}], s{sKoff} offen offset:{n*1024}{ntf()} lds"
def dmaV(n): return f"buffer_load_dwordx4 v{vVD+n}, s[{sV}:{sV+3}], s{sVoff} offen offset:{n*1024}{ntf()} lds"
def kread(f, off, ktoff=4096):
    kt, s = f >> 2, f & 3
    return f"ds_read_b128 {r('a', aK+4*f)}, v{vKR+s} offset:{off + kt*ktoff}"
def vread(d, second, off, soff=4096):
    return f"ds_read_b64_tr_b16 {r('a', aV+4*d+2*second, 2)}, v{vVR+d} offset:{off + second*soff}"
def qk(p, q, kt, s, czero=False):
    b = S(p, q, kt)
    c = r("v", b) if s else ("0" if czero else r("v", vNM + 4 * q))
    return f"{MF} {r('v', b)}, {r('a', aK+4*(kt*4+s))}, {r('a', aQ+16*q+4*s)}, {c}"
def pv(p, q, d): return f"{MF} {O(q,d)}, {r('a', aV+4*d)}, {r('v', S(p,q,0))}, {O(q,d)}"
def sm(p, q): return f"{MF} {r('a', aL+4*q)}, {r('a', aONE)}, {r('v', S(p,q,0))}, {r('a', aL+4*q)}"
def softmax_ops(p, nq):
    ex, cv = [], []
    for kt in range(2):
        for q in range(nq):
            b = S(p, q, kt)
            for j in range(4): ex.append(f"v_exp_f32 v{b+j}, v{b+j}")
            for j in range(2): cv.append(f"v_cvt_pk_bf16_f32 v{S(p,q,0)+2*kt+j}, v{b+2*j}, v{b+2*j+1}")
    return ex, cv

PRE = [(0, 4), (1, 5)]
PLAN = {28: ([0, 1], [(2, 9), (3, 4), (4, 5)]),
        29: ([2, 3], [(5, 6), (6, 0), (7, 9), (8, 4)]),
        30: ([4, 5], [(9, 7), (10, 1), (11, 5), (12, 6)]),
        31: ([], [(13, 8), (14, 2)])}
PIECE = dict(PRE)
for _b in PLAN.values(): PIECE.update(dict(_b[1]))
VBANK = [20, 48, 64, 80, 96, 112]
def bank_of(n):
    if n < 16: return "a", ((n + 10) % 16) * 16
    if n < 22: return "v", VBANK[n - 16]
    return bank_of(n - 22)
def wo_issue(n, piece):
    out = [("s", f"s_add_u32 s{sT0}, s{sR}, {n}"), ("s", f"s_and_b32 s{sT0}, s{sT0}, 31"),
           ("s", f"s_mul_i32 s{sT0}, s{sT0}, {WSTEP}"), ("s", f"s_add_u32 m0, s{sVW}, {piece*16384}")]
    out += [("M", f"buffer_load_dwordx4 v{vWO+i}, s[{sWO}:{sWO+3}], s{sT0} offen offset:{i*1024} lds") for i in range(4)]
    return out
def wo_reads(n, piece):
    rf, bank = bank_of(n)
    return [f"ds_read_b64_tr_b16 {r(rf, bank+4*t+2*h, 2)}, v{vAR[piece >> 2]+t} offset:{(piece & 3)*16384 + h*2048}" for t in range(4) for h in range(2)]
def flat(a, items):
    prev = None
    for it in items:
        k, t = it[0], it[1]
        if k == "M" and prev and "m0" in prev: a("s_nop 0")
        a(t); prev = t

class Body:
    def __init__(self):
        self.mf = []; self.big = {}; self.pre = {}; self.cv = {}; self.lastcv = 0
    def add(self, text, need=None): self.mf.append((text, need))
    def place_big(self, kind, text, target, tag=None, hi=None, req=None):
        n = len(self.mf)
        target = min(target, n - 1)
        hi = min(n - 1, target + 3 if hi is None else max(hi, target))
        g = target
        while g in self.big and g < hi: g += 1
        if g in self.big: g = min(range(target, hi + 1), key=lambda x: len(self.big[x]))
        self.big.setdefault(g, []).append((kind, text, tag, req))
        return g
    def place_d(self, text, lo, tag, cap, req=None):
        g = lo
        while True:
            kinds = [x[0] for x in self.big.get(g, [])]
            if all(k == "D" for k in kinds) and len(kinds) < cap: break
            g += 1
        assert g < len(self.mf)
        self.big.setdefault(g, []).append(("D", text, tag, req))
        return g
    def place_cvt(self, text, lo, hi):
        n = len(self.mf); best = None
        lo = max(lo, self.lastcv)
        for g in range(lo, min(hi, lo + 4, n - 1) + 1):
            kinds = [x[0] for x in self.big.get(g, [])]
            cnt = len(self.cv.get(g, []))
            if (kinds == ["D"] and cnt == 0) or (kinds == [] and cnt < 2): best = g; break
        if best is None: best = min(lo, n - 1)
        self.cv.setdefault(best, []).append(text)
        self.lastcv = best
        return best
    def place_s(self, text, lo, hi=None):
        n = len(self.mf)
        hi = lo if hi is None else hi
        for g in range(lo, min(hi, n - 1) + 1):
            kinds = [x[0] for x in self.big.get(g, [])]
            if not self.pre.get(g) and (kinds == ["E"] or kinds == [] or (kinds == ["D"] and not self.cv.get(g))):
                self.pre.setdefault(g, []).append(text); return g
        self.pre.setdefault(lo, []).append(text); return lo
    def spread(self, it, start, span, req=None):
        nm = sum(1 for x in it if x[0] == "M")
        i = 0; pend = []; lastg = start
        for k, t, tag in it:
            if k != "M": pend.append(t); continue
            g = self.place_big("M", t, max(start + 2 + int(i * span / nm), lastg + 1 + (len(pend) + 1) // 2), tag, req=req if i == 0 else None)
            for j, pt in enumerate(pend):
                self.pre.setdefault(max(lastg + 1, g - (len(pend) - j + 1) // 2), []).append(pt)
            pend = []; lastg = g; i += 1
        return lastg
    def emit(self, a, resident=(), vm=None, vmdone=None):
        total = {}
        for items in self.big.values():
            for k, t, tag, req in items:
                if k in "DM": total[(k, tag)] = total.get((k, tag), 0) + 1
        st = dict(q=[], issued={})
        done = set(resident)
        vmdone = vmdone if vmdone is not None else set()
        def wait(tags):
            lds = [t for t in tags if t[0] != "vm" and t not in done]
            vms = [t[1] for t in tags if t[0] == "vm" and t[1] not in vmdone]
            parts = []
            if vms:
                for t in vms: assert st["issued"].get(("M", t), 0) == total.get(("M", t), 0) and t in vm, ("vm not issued", t)
                N = min(vm[::-1].index(t) for t in vms)
                assert N <= 63
                parts.append(f"vmcnt({N})")
                for t in vm[:len(vm) - N]: vmdone.add(t)
                for t in vm[len(vm) - N:]: vmdone.discard(t)
            if lds:
                q = st["q"]
                for t in lds: assert st["issued"].get(("D", t), 0) == total[("D", t)] and t in q, ("lds not issued", t)
                N = min(min(q[::-1].index(t) for t in lds), 10)
                parts.append(f"lgkmcnt({N})")
                for t in q[:len(q) - N]: done.add(t)
                st["q"] = q[len(q) - N:]
                for t in st["q"]: done.discard(t)
            if parts: a("s_waitcnt " + " ".join(parts))
        n = len(self.mf)
        if self.mf[0][1]: wait(self.mf[0][1])
        for g in range(n):
            a(self.mf[g][0])
            late = None
            nxt = self.mf[g + 1][1] if g + 1 < n else None
            if nxt: wait(nxt)
            for t in self.pre.get(g, []): a(t)
            for kind, text, tag, req in self.big.get(g, []):
                if req: wait(req)
                if kind == "B":
                    nv = vm[::-1].index(tag)
                    a(f"s_waitcnt vmcnt({nv}) lgkmcnt(0)")
                    for t in st["q"]: done.add(t)
                    st["q"] = []
                if not (kind in opt("drop", "") and getattr(self, "loop", False)): a(text)
                if kind in "DM": st["issued"][(kind, tag)] = st["issued"].get((kind, tag), 0) + 1
                if kind == "M" and vm is not None: vm.append(tag); vmdone.discard(tag)
                if kind == "D": st["q"].append(tag); done.discard(tag)
            for t in self.cv.get(g, []): a(t)

NTAIL = {4: 26, 3: 20}
VMDONE = set()

def gen_body(a, nq, u, L, last=False, loopctl=None, idx=None, vm=None):
    B = Body()
    B.loop = idx is None
    vo, ko = vslot(u) * 16384, kslot(u + 1) * 16384
    def g_qk(p, kts, gen):
        for kt in kts:
            if CHAIN:
                for q in range(nq):
                    for s in range(4): B.add(qk(p, q, kt, s), ([("K", kt * 4 + x, gen) for x in range(4)] if s == 0 else None) if q == 0 else None)
            else:
                for s in range(4):
                    for q in range(nq): B.add(qk(p, q, kt, s), [("K", kt * 4 + s, gen)] if q == 0 else None)
    def g_pv(p, gen):
        for d in range(8):
            qs = list(range(nq)) if (d % 2 == 0 or not SNAKE) else list(range(nq - 1, -1, -1))
            for i, q in enumerate(qs): B.add(pv(p, q, d), [("V", d, gen)] if i == 0 else None)
        for q in range(nq): B.add(sm(p, q))
    g_qk(1, [1], 0); P0 = len(B.mf)
    g_pv(0, 0); Q1 = len(B.mf)
    if not last: g_qk(0, [0, 1], 1)
    P1 = len(B.mf)
    g_pv(1, 1)
    if not last: g_qk(1, [0], 2)
    n = len(B.mf)
    resident = [("K", f, 0) for f in range(4, 8)]
    sc = nq / 4.0
    for d in range(8):
        for h in range(2): B.place_big("D", vread(d, h, vo), int((4 * d + 2 * h) * sc), ("V", d, 0))
    ex0, cv0 = softmax_ops(0, nq); ex1, cv1 = softmax_ops(1, nq)
    ne = len(ex0)
    win = P1 - P0
    full = nq * 17
    ntail = NTAIL[nq]
    if not last:
        for f in range(8): B.place_big("D", kread(f, ko), Q1 - int((22 if CHAIN else 20) * sc) + int(4 * f * sc), ("K", f, 1))
    for d in range(8):
        for h in range(2):
            lo = max(P1 - int(20 * sc) + int((4 * d + 2 * h) * sc), P0 + nq * d + nq)
            B.place_big("D", vread(d, h, vo + 8192), lo, ("V", d, 1))
    if not last:
        for f in range(8): B.place_big("D", kread(f, ko + 8192), P1 + int(12 * sc) + int(4 * f * sc), ("K", f, 2))
        if idx is None or idx == 28:
            g0 = Q1 - int(18 * sc) if idx is None else 3
            gs = [B.place_big("M", dmaV(i), g0 + int((8 if idx is None else 4) * i * sc), ("V", 31)) for i in range(4)]
            mV, mVe = gs[0], gs[-1]
        if idx is None:
            g0 = P1 + int(14 * sc)
            gs = [B.place_big("M", dmaK(i), g0 + int(8 * i * sc)) for i in range(4)]
            mK, mKe = gs[0], gs[-1]
    if idx is not None:
        rd, iss = PLAN[idx]
        g = int(30 * sc)
        for j in rd:
            for i, t in enumerate(wo_reads(j, PIECE[j])):
                g = B.place_big("D", t, g, ("W", j), req=[("vm", ("w", j))] if i == 0 else None) + 2
        g = mVe + 1 if idx == 28 else 0
        span = ((n - 6 - g) // len(iss)) if not last else int(16 * sc)
        for j, pc in iss:
            src = [x for x in rd if PIECE[x] == pc]
            if src: g = max(g, int(74 * sc))
            it = [(k, t, ("w", j)) for k, t in wo_issue(j, pc)]
            g = B.spread(it, g, min(span, int(24 * sc)), req=[("W", src[0])] if src else None) + 1
            assert g < n
        for k, (bi, gp) in enumerate(W6):
            if bi == idx:
                g = int(gp * sc)
                B.place_big("M", f"buffer_load_dword v{PFD}, v{PFA}, s[{sWO}:{sWO+3}], s{sPFW+k} offen", g, ("pfw", k))
    eg0, eg1, egt = {}, {}, {}
    nh = ne - ntail
    for i in range(ntail, ne):
        eg0[i] = B.place_big("E", ex0[i], max(1 + int((i - ntail) * (P0 - 4) / max(nh, 1)), eg0.get(i - 1, 0)))
    for i in range(ne):
        t = P0 + 1 + int(i * (win - 5) / ne)
        if i >= ne // 2: t = max(t, P0 + 5)
        eg1[i] = B.place_big("E", ex1[i], max(t, eg1.get(i - 1, 0)), hi=min(t + 3, P1 - 4))
    if not last:
        for i in range(ntail):
            t = P1 + 1 + int(i * (full - 5) / ne)
            egt[i] = B.place_big("E", ex0[i], max(t, egt.get(i - 1, 0)), hi=min(t + 3, n - 2))
    for j in range(ntail // 2, ne // 2):
        q = (j // 2) % nq
        g = B.place_cvt(cv0[j], eg0[2 * j + 1] + 1, P0 + q - 2)
        assert g <= P0 + q - 2
    for j in range(ne // 2):
        q = (j // 2) % nq
        g = B.place_cvt(cv1[j], eg1[2 * j + 1] + 1, P1 + q - 3)
        assert g <= P1 + q - 3, (j, g, P1)
    assert eg1[ne // 2] >= P0 + 5
    if not last:
        for j in range(ntail // 2): B.place_cvt(cv0[j], egt[2 * j + 1] + 1, n - 1)
        assert min(egt.values()) >= Q1 + 4 * nq + 5
        if ntail > ne // 2: assert egt[ne // 2] >= P1 + 5
        if idx is None:
            B.place_s(f"s_add_u32 m0, s{sVW}, {VBASE + vslot(u+3)*16384}", mV - 4, mV - 1)
            g = B.place_s(f"s_add_u32 s{sVoff}, s{sVoff}, 16384", mV - 12, mV - 6)
            B.place_s(f"s_and_b32 s{sVoff}, s{sVoff}, 0x7ffff", g + 1, mV - 1)
            B.place_s(f"s_add_u32 m0, s{sKW}, {kslot(u+4)*16384}", mK - 4, mK - 1)
            g = B.place_s(f"s_add_u32 s{sKoff}, s{sKoff}, 16384", mK - 12, mK - 6)
            B.place_s(f"s_and_b32 s{sKoff}, s{sKoff}, 0x7ffff", g + 1, mK - 1)
        elif idx == 28:
            B.pre.setdefault(0, []).extend([f"s_add_u32 s{sVoff}, s{sVoff}, 16384", f"s_and_b32 s{sVoff}, s{sVoff}, 0x7ffff"])
            B.pre.setdefault(1, []).append(f"s_add_u32 m0, s{sVW}, {VBASE + vslot(u+3)*16384}")
        if loopctl:
            B.place_s(loopctl[0], n - 8, n - 5)
            B.place_s(loopctl[1], n - 4, n - 2)
    B.emit(a, resident, vm=vm, vmdone=VMDONE if vm is not None else None)
    if idx is not None and not last:
        need = [("V", idx + 1)] + ([("K", idx + 2)] if idx + 2 < 32 else [])
        N = min(vm[::-1].index(t) for t in need)
        if STAMP == 2: a("s_memtime s[100:101]")
        a(f"s_waitcnt vmcnt({N}) lgkmcnt(0)")
        for t in vm[:len(vm) - N]: VMDONE.add(t)
        for t in vm[len(vm) - N:]: VMDONE.discard(t)
        a("s_barrier")
        if STAMP == 2: rec(a)
    elif last:
        if STAMP == 2: a("s_memtime s[100:101]\ns_waitcnt lgkmcnt(0)"); rec(a)
    else:
        if STAMP == 2: a("s_memtime s[100:101]")
        for _ in range(opt("idle", 0)): a("s_nop 15")
        a(f"s_waitcnt vmcnt({opt('vmc', 16)}) lgkmcnt(0)")
        if not opt("nobar", 0): a("s_barrier")
        if STAMP == 2: rec(a)

def kv_voffsets(a, wave):
    if wave:
        a("v_lshlrev_b32 v8, 12, v1")
        a("v_lshl_add_u32 v8, v4, 8, v8")
    else:
        a("v_lshlrev_b32 v8, 8, v4")
    a("v_xor_b32 v9, v5, v4")
    for n in range(4):
        a(f"v_xor_b32 v10, {4*n}, v9")
        a(f"v_lshl_add_u32 v{vKD+n}, v10, 4, v8")
    a("v_lshlrev_b32 v9, 1, v4")
    a("v_xor_b32 v9, v9, v5")
    for p in range(2):
        a(f"v_xor_b32 v10, {8*p}, v9")
        a(f"v_lshl_add_u32 v{vVD+p}, v10, 4, v8")
        a(f"v_mov_b32 v{vVD+p+2}, v{vVD+p}")
def kv_srds(a):
    a(f"""s_lshl_b32 s{sT0}, s{sB}, 5
s_add_u32 s{sT0}, s{sT0}, s{sH}
s_lshl_b32 s{sT0}, s{sT0}, 19
s_add_u32 s{sK}, s{pK}, s{sT0}
s_addc_u32 s{sK+1}, s{pK+1}, 0
s_mov_b32 s{sK+2}, 524288
s_mov_b32 s{sK+3}, 0x20000
s_add_u32 s{sV}, s{pV}, s{sT0}
s_addc_u32 s{sV+1}, s{pV+1}, 0
s_mov_b32 s{sV+2}, 524288
s_mov_b32 s{sV+3}, 0x20000""")
def ar_setup(a):
    a("v_lshrrev_b32 v12, 2, v3\nv_lshlrev_b32 v12, 7, v12\nv_and_b32 v15, 3, v3\nv_lshl_add_u32 v12, v15, 3, v12")
    a(f"v_add_u32 v12, s{sVW}, v12\nv_bfe_u32 v15, v3, 3, 2")
    for t in range(4):
        a(f"v_xor_b32 v{vAR[0]+t}, {t}, v15")
        a(f"v_lshl_add_u32 v{vAR[0]+t}, v{vAR[0]+t}, 5, v12")
        a(f"v_add_u32 v{vAR[1]+t}, 0x10000, v{vAR[0]+t}")
        a(f"v_add_u32 v{vAR[2]+t}, 0x20000, v{vAR[0]+t}")

def xlane(a, regs, op2, tmp=1):
    for op in ("v_permlane32_swap_b32", "v_permlane16_swap_b32"):
        for m in regs: a(f"v_mov_b32 v{m+tmp}, v{m}")
        a("s_nop 1")
        for m in regs: a(f"{op} v{m}, v{m+tmp}")
        a("s_nop 1")
        for m in regs: a(f"{op2} v{m}, v{m}, v{m+tmp}")

def gen_wave(a, nq, L):
    nx = 2 * nq
    def qstage_issue(st):
        buf = QBUF[(st + 1) % 3]
        out = [("s", f"s_lshl_b32 s{sT0}, s{sQS}, 7"), ("s", f"s_lshl_b32 s{sT1}, s{sQS}, 19"), ("s", f"s_add_u32 s{sQS}, s{sQS}, 1"),
               ("s", f"s_cmp_eq_u32 s{sQS}, 10"), ("s", f"s_cselect_b32 s{sQS}, 0, s{sQS}"), ("s", f"s_add_u32 m0, s{sXW}, {buf+XOFF}")]
        for n in range(nx):
            if n == 4: out.append(("s", f"s_add_u32 m0, s{sXW}, {buf+XOFF+4096}"))
            out.append(("M", f"buffer_load_dwordx4 v{vXD+n}, s[{sX}:{sX+3}], s{sT0} offen offset:{(n&3)*1024} lds"))
        out.append(("s", f"s_add_u32 m0, s{sWW}, {buf+WOFF}"))
        for n in range(4):
            out.append(("M", f"buffer_load_dwordx4 v{vWD+n}, s[{sW}:{sW+3}], s{sT1} offen offset:{n*1024 + 8*(n>>1)} lds"))
        return [(k, t, ("q", st)) for k, t in out]
    def kv_issue(kind, t):
        so, sw, off, f = (sKoff, sKW, kslot(t) * 16384, dmaK) if kind == "K" else (sVoff, sVW, VBASE + vslot(t) * 16384, dmaV)
        out = [("s", f"s_add_u32 s{so}, s{sROT}, {t*16384}"), ("s", f"s_and_b32 s{so}, s{so}, 0x7ffff"), ("s", f"s_add_u32 m0, s{sw}, {off}")]
        out += [("M", f(n)) for n in range(4)]
        return [(k, x, (kind, t)) for k, x in out]
    vm = []
    def now(it):
        flat(a, it)
        for x in it:
            if x[0] == "M": vm.append(x[2])
    def vmwait(tag): return vm[::-1].index(tag)
    for st in range(2): now(qstage_issue(st))
    def qreads(st, sp):
        out = [(f"ds_read_b128 {r('a', aQB[sp]+4*q)}, v{vXR+sp} offset:{XOFF + q*2048}", ("B", st, sp)) for q in range(nq)]
        for t in range(8):
            s, odd = t >> 1, t & 1
            for h in range(2):
                out.append((f"ds_read_b64_tr_b16 {r('a', aQA[sp]+4*t+2*h, 2)}, v{vWR+s} offset:{WOFF + odd*8 + h*1024 + sp*8224}", ("A", st, sp, t)))
        return out
    def rot(st):
        d = QBUF[(st + 2) % 3] - QBUF[(st + 1) % 3]
        return [f"v_add_u32 v{vXR+i}, {d}, v{vXR+i}" if d > 0 else f"v_subrev_u32 v{vXR+i}, {-d}, v{vXR+i}" for i in range(6)]
    a(f"s_waitcnt vmcnt({vmwait(('q', 0))})")
    a("s_barrier")
    stamp(a)
    B = Body()
    PH = 8 * nq
    for st in range(10):
        for sp in range(2):
            for t in range(8):
                for q in range(nq):
                    c = "0" if (st == 0 and sp == 0) else O(q, t)
                    B.add(f"{MF} {O(q,t)}, {r('a', aQA[sp]+4*t)}, {r('a', aQB[sp]+4*q)}, {c}",
                          ([("A", st, sp, t)] + ([("B", st, sp)] if t == 0 else [])) if q == 0 else None)
    first = qreads(0, 0)
    for t, _ in first: a(t)
    a("s_waitcnt lgkmcnt(0)")
    LQ = int(QLEAD * nq / 4)
    g = B.spread(qstage_issue(2), -1, 2 * PH - LQ - 6)
    assert g < 2 * PH - LQ
    for st in range(9):
        bar = 2 * PH * (st + 1) - LQ
        B.place_big("B", "s_barrier", bar, ("q", st + 1), hi=bar)
        for i, t in enumerate(rot(st)): B.cv.setdefault(bar - 3 + i // 2, []).append(t)
        if st + 3 < 10: it = qstage_issue(st + 3)
        elif st == 7: it = kv_issue("K", 1) + kv_issue("K", 2)
        else: it = kv_issue("V", 0) + kv_issue("V", 1)
        if st == K0AT: it = it + kv_issue("K", 0)
        if 0 <= st - PF0 < len(PF):
            t = PF[st - PF0]
            it = it + [("s", f"s_add_u32 s4, s{sROT}, {t*16384}", None), ("s", "s_and_b32 s4, s4, 0x7ffff", None),
                       ("M", f"buffer_load_dword v12, v11, s[{sPF}:{sPF+3}], s4 offen", ("pf", t))]
        g = B.spread(it, bar, 2 * PH - 5)
        assert g < bar + 2 * PH
    for st in range(10):
        base = 2 * PH * st
        g = base - LQ + 1
        if st > 0:
            for t, tag in qreads(st, 0): g = B.place_d(t, g, tag, 5 - nq)
        g = max(g, 0)
        rd = qreads(st, 1)
        order = rd[nq:nq + 4] + rd[:nq] + rd[nq + 4:] if st > 0 else rd
        for t, tag in order:
            lo = base if tag[0] == "B" else base - PH + nq * tag[3] + nq
            g = B.place_d(t, max(g, lo), tag, 5 - nq)
        if st < 9: assert g < base + 2 * PH - LQ - 3, (st, g)
    g = 2 * PH * 9 + PH
    for f in range(8): g = B.place_big("D", kread(f, kslot(0) * 16384), g + 1, ("K0", f))
    B.emit(a, resident=[tag for _, tag in first], vm=vm)
    stamp(a)
    a(f"s_mov_b32 s{sQS}, s5")
    a("v_lshlrev_b32 v8, 1, v4\nv_xor_b32 v8, v8, v7\nv_mul_u32_u24 v9, 1280, v6\nv_lshl_add_u32 v8, v8, 4, v9")
    for n in range(4): a(f"v_add_u32 v{vWO+n}, {n*8*1280 - n*1024}, v8" if not WCONT else f"v_mov_b32 v{vWO+n}, v2")
    ar_setup(a)
    if W6:
        a(f"s_lshr_b32 s4, s2, 3\ns_mul_i32 s4, s4, 52\ns_lshr_b32 s4, s4, 8\ns_lshl_b32 s{sT0}, s4, 1\ns_add_u32 s{sT0}, s{sT0}, s{sR}")
        for k in range(2):
            a(f"s_add_u32 s{sPFW+k}, s{sT0}, {14 + 12*k}\ns_and_b32 s{sPFW+k}, s{sPFW+k}, 31\ns_mul_i32 s{sPFW+k}, s{sPFW+k}, {WSTEP}")
        a(f"s_cmp_ge_u32 s4, 3\ns_cselect_b32 s{sPFW+1}, 0x7f000000, s{sPFW+1}")
        a(f"v_mul_u32_u24 v{PFA}, 1280, v3")
    a(f"s_mov_b32 s{sT0}, {CSCALE:#x}")
    for q in range(nq):
        for s in range(4):
            b = vO + (q * 8 + 2 * s) * 4
            for j in range(8): a(f"v_mul_f32 v{b+j}, s{sT0}, v{b+j}")
            for j in range(4): a(f"v_cvt_pk_bf16_f32 v{b+j}, v{b+2*j}, v{b+2*j+1}")
            for j in range(4): a(f"v_accvgpr_write_b32 a{aQ+16*q+4*s+j}, v{b+j}")
    now(kv_issue("K", 3))
    a("s_waitcnt lgkmcnt(0)")
    zero = [f"v_mov_b32 v{vO+i}, 0" for i in range(nq * 32)] + [f"v_accvgpr_write_b32 a{aL+i}, 0" for i in range(nq * 4)]
    zi = 0
    for kt in range(2):
        for s in range(4):
            for q in range(nq):
                a(qk(0, q, kt, s, czero=True))
                for _ in range(2):
                    a(zero[zi]); zi += 1
    for f in range(8): a(kread(f, kslot(0) * 16384 + 8192))
    for t in zero[zi:]: a(t)
    for q in range(nq):
        b = S(0, q, 0); m = vNM + 4 * q
        a(f"v_max3_f32 v{m}, v{b}, v{b+1}, v{b+2}")
        a(f"v_max3_f32 v{m+1}, v{b+3}, v{b+4}, v{b+5}")
        a(f"v_max3_f32 v{m}, v{m}, v{b+6}, v{b+7}")
        a(f"v_max_f32 v{m}, v{m}, v{m+1}")
    xlane(a, [vNM + 4 * q for q in range(nq)], "v_max_f32")
    for q in range(nq):
        m = vNM + 4 * q; b = S(0, q, 0)
        a(f"v_sub_f32 v{m}, 0, v{m}")
        for j in range(1, 4): a(f"v_mov_b32 v{m+j}, v{m}")
        for j in range(8): a(f"v_add_f32 v{b+j}, v{b+j}, v{m}")
    a("s_waitcnt lgkmcnt(0)")
    ex0, cv0 = softmax_ops(0, nq)
    ntail = NTAIL[nq]
    work = []
    for i in range(ntail):
        work.append(ex0[i])
        if i % 2 == 1 and i >= 3: work.append(cv0[(i - 3) // 2])
    work += ["s_nop 0", cv0[ntail // 2 - 1]]
    wi = 0
    for s in range(4):
        for q in range(nq):
            a(qk(1, q, 0, s))
            for t in work[wi:wi + 2]: a(t)
            wi += 2
    for t in work[wi:]: a(t)
    if WARM:
        a(f"s_mul_i32 s{sT0}, s2, 20480\ns_add_u32 s{sX}, s{pWO}, s{sT0}\ns_addc_u32 s{sX+1}, s{pWO+1}, 0\ns_mov_b32 s{sX+2}, 20480")
        a(f"v_lshlrev_b32 v12, 7, v0")
        a(f"buffer_load_dword v12, v12, s[{sX}:{sX+3}], 0 offen")
        vm.append(("warm", 0))
    now(kv_issue("V", 2))
    a(f"s_mov_b32 s{sCNT}, 7")
    if STAMP == 2: a("v_mov_b32 v13, 0\nv_mov_b32 v14, 0")
    a(f"s_waitcnt vmcnt({vmwait(('V', 0))})")
    assert vmwait(("V", 1)) >= 8 and vmwait(("K", 2)) >= 8
    a("s_barrier")
    stamp(a)
    a(".p2align 6")
    a(f"L_loop{L}:")
    gen_body(a, nq, 0, L)
    gen_body(a, nq, 1, L)
    gen_body(a, nq, 2, L)
    gen_body(a, nq, 3, L, loopctl=(f"s_sub_u32 s{sCNT}, s{sCNT}, 1", f"s_cmp_gt_u32 s{sCNT}, 1"))
    a(f"s_cbranch_scc1 L_loop{L}")
    a(f"s_cmp_eq_u32 s{sCNT}, 0")
    a(f"s_cbranch_scc1 L_tail{L}")
    for j, pc in PRE: flat(a, wo_issue(j, pc))
    a(f"s_branch L_loop{L}")
    a(f"L_tail{L}:")
    vm = [("w", 0), ("w", 1), ("old", 0)] + [("V", 29)] * 4 + [("K", 30)] * 4 + [("V", 30)] * 4 + [("K", 31)] * 4
    VMDONE.clear(); VMDONE.update([("w", 0), ("w", 1)])
    for i in (28, 29, 30): gen_body(a, nq, i % 4, L, idx=i, vm=vm)
    gen_body(a, nq, 3, L, last=True, idx=31, vm=vm)
    stamp(a)
    a("s_nop 7")
    for q in range(nq): a(f"v_accvgpr_read_b32 v{vNM+4*q}, a{aL+4*q}")
    a(f"s_mov_b32 s{sT0}, 0x5f800000")
    a("s_mov_b64 s[4:5], 0")
    for q in range(nq):
        a(f"v_cmp_ngt_f32 vcc, s{sT0}, v{vNM+4*q}")
        a("s_or_b64 s[4:5], s[4:5], vcc")
    if FORCE_SAFE: a(f"s_branch L_safe{L}")
    a(f"s_cbranch_scc1 L_safe{L}")
    a(f"L_epi{L}:")
    for q in range(nq): a(f"v_rcp_f32 v{vNM+4*q}, v{vNM+4*q}")
    a(f"s_waitcnt vmcnt({vm[::-1].index(('w', 12))})")
    rds = [t for j in range(6, 13) for t in wo_reads(j, PIECE[j])]
    per = -(-len(rds) // (4 * nq))
    for q in range(nq):
        for s in range(4):
            b = vO + (q * 8 + 2 * s) * 4
            for t in rds[:per]: a(t)
            rds = rds[per:]
            for j in range(8): a(f"v_mul_f32 v{b+j}, v{vNM+4*q}, v{b+j}")
            for j in range(4): a(f"v_cvt_pk_bf16_f32 v{b+j}, v{b+2*j}, v{b+2*j+1}")
            if s == 0:
                a(f"s_lshl_b32 s{sT0}, s{sWAVE}, 2\ns_add_u32 s{sT0}, s{sT0}, {q}\ns_mul_i32 s{sT1}, s{sT0}, 52\ns_lshr_b32 s{sT1}, s{sT1}, 8")
                a(f"s_mul_i32 s{sT1}, s{sT1}, {128*5120 - 5*1024}\ns_lshl_b32 s{sT0}, s{sT0}, 10\ns_add_u32 s{sT0}, s{sT0}, s{sT1}\ns_add_u32 s{sT0}, s{sT0}, s3")
            else:
                a(f"s_add_u32 s{sT0}, s{sT0}, 5120")
            a(f"buffer_store_dwordx4 {r('v', b)}, v2, s[{sWS}:{sWS+3}], s{sT0} offen{OST}")
    a("s_branch L_common")
    gen_safe(a, nq, L)

def gen_safe(a, nq, L):
    a(f"L_safe{L}:")
    a("s_waitcnt vmcnt(0) lgkmcnt(0)")
    for i in range(nq * 32): a(f"v_mov_b32 v{vO+i}, 0")
    for q in range(nq):
        a(f"v_mov_b32 v{vNM+4*q}, 0xff800000")
        a(f"v_mov_b32 v{vNM+4*q+3}, 0")
    kv_voffsets(a, False)
    kv_srds(a)
    a(f"s_add_u32 s{sKW}, s{sVW}, {SBASE}")
    a(f"s_sub_u32 s{sT0}, s{sKW}, {KBASE}")
    for i in range(4): a(f"v_add_u32 v{vKR+i}, s{sT0}, v{vKR+i}")
    for i in range(8): a(f"v_add_u32 v{vVR+i}, s{sKW}, v{vVR+i}")
    a(f"s_mov_b32 s{sKoff}, 0")
    a(f"L_sloop{L}:")
    def tile(vd, srd):
        for hh in range(2):
            a(f"s_add_u32 m0, s{sKW}, {hh*16384}")
            a(f"s_add_u32 s{sVoff}, s{sKoff}, {hh*4096}")
            for n in range(4): a(f"buffer_load_dwordx4 v{vd+n}, s[{srd}:{srd+3}], s{sVoff} offen offset:{n*1024} lds")
    tile(vKD, sK)
    a("s_waitcnt vmcnt(0)")
    for f in range(8): a(kread(f, 0, 16384))
    a("s_waitcnt lgkmcnt(0)")
    tile(vVD, sV)
    for kt in range(2):
        for s in range(4):
            for q in range(nq): a(qk(0, q, kt, s, czero=True))
    a("s_nop 7")
    T = vS + 32
    for q in range(nq):
        b = S(0, q, 0); m = T + 2 * q
        a(f"v_max3_f32 v{m}, v{b}, v{b+1}, v{b+2}")
        a(f"v_max3_f32 v{m+1}, v{b+3}, v{b+4}, v{b+5}")
        a(f"v_max3_f32 v{m}, v{m}, v{b+6}, v{b+7}")
        a(f"v_max3_f32 v{m}, v{m}, v{m+1}, v{vNM+4*q}")
    xlane(a, [T + 2 * q for q in range(nq)], "v_max_f32")
    for q in range(nq):
        m = vNM + 4 * q; b = S(0, q, 0)
        a(f"v_sub_f32 v{m+2}, v{m}, v{T+2*q}")
        a(f"v_exp_f32 v{m+2}, v{m+2}")
        a(f"v_mov_b32 v{m}, v{T+2*q}")
        for j in range(8): a(f"v_sub_f32 v{b+j}, v{b+j}, v{m}")
        for j in range(8): a(f"v_exp_f32 v{b+j}, v{b+j}")
        a(f"v_mul_f32 v{m+3}, v{m+3}, v{m+2}")
        for i in range(32): a(f"v_mul_f32 v{vO+q*32+i}, v{vO+q*32+i}, v{m+2}")
        for j in range(4): a(f"v_cvt_pk_bf16_f32 v{b+j}, v{b+2*j}, v{b+2*j+1}")
        for j in range(4):
            a(f"v_lshlrev_b32 v{b+4}, 16, v{b+j}")
            a(f"v_and_b32 v{b+5}, 0xffff0000, v{b+j}")
            a(f"v_add_f32 v{m+3}, v{m+3}, v{b+4}")
            a(f"v_add_f32 v{m+3}, v{m+3}, v{b+5}")
    a("s_waitcnt vmcnt(0)")
    for d in range(8):
        for h in range(2): a(vread(d, h, 0, 16384))
        if d == 3: a("s_waitcnt lgkmcnt(0)")
    a("s_waitcnt lgkmcnt(0)")
    for d in range(8):
        for q in range(nq): a(pv(0, q, d))
    a("s_nop 7")
    a(f"s_add_u32 s{sKoff}, s{sKoff}, 8192")
    a(f"s_cmp_lt_u32 s{sKoff}, 524288")
    a(f"s_cbranch_scc1 L_sloop{L}")
    xlane(a, [vNM + 4 * q + 3 for q in range(nq)], "v_add_f32", tmp=-2)
    for q in range(nq): a(f"v_mov_b32 v{vNM+4*q}, v{vNM+4*q+3}")
    ar_setup(a)
    a(f"v_mul_u32_u24 v{PFA}, 1280, v3")
    for j in (8, 11): flat(a, wo_issue(j, PIECE[j]))
    a("s_waitcnt vmcnt(0)")
    a(f"s_branch L_epi{L}")

def gen_common(a):
    a("L_common:")
    piece = dict(PIECE)
    vm = [("w", j) for j in range(15)] + [("st", 0)]
    def issue(n, p):
        piece[n] = p
        flat(a, wo_issue(n, p)); vm.extend([("w", n)] * 4)
    def vw(tag): return vm[::-1].index(tag)
    a("s_waitcnt lgkmcnt(0)")
    NPRE = opt("npre", 3)
    for i in range(NPRE): issue(15 + i, piece[6 + i])
    a(f"""s_lshl_b32 s{sT0}, s{sOB}, 2
s_add_u32 s{sT0}, s{sT0}, s{sWAVE}
s_mul_i32 s{sT0}, s{sT0}, {32*5120}
s_add_u32 s{sO}, s{pWS}, s{sT0}
s_addc_u32 s{sO+1}, s{pWS+1}, 0
s_mov_b32 s{sO+2}, {0 if opt("oskip", 0) else 32*5120}
s_mov_b32 s{sOUT}, s{pDBG}
s_mov_b32 s{sOUT+1}, s{pDBG+1}
s_mov_b32 s{sOUT+2}, 256
v_mov_b32 v12, 1
v_mov_b32 v15, 0
v_add_u32 v16, 4096, v2""")
    a(f"s_waitcnt vmcnt({vw(('st', 0))})")
    if opt("opf", 0):
        for half in range(2):
            a(f"v_lshrrev_b32 v17, 5, v3\nv_lshl_add_u32 v17, v1, 2, v17\nv_add_u32 v17, {2*half}, v17")
            a(f"v_mul_u32_u24 v18, 52, v17\nv_lshrrev_b32 v18, 8, v18\nv_mul_u32_u24 v18, {128*5120 - 5*1024}, v18\nv_lshl_add_u32 v18, v17, 10, v18")
            a(f"v_bfe_u32 v19, v3, 3, 2\nv_mul_u32_u24 v19, 5120, v19\nv_add_u32 v18, v18, v19\nv_lshl_add_u32 v18, v7, 7, v18")
            a(f"v_cmp_gt_u32 vcc, 15, v17\nv_mov_b32 v19, 0x7f000000\ns_nop 0\nv_cndmask_b32 v18, v19, v18, vcc")
            a(f"buffer_load_dword v{20+half}, v18, s[{sWS}:{sWS+3}], s3 offen sc1")
            vm.append(("opf", half))
    a("s_barrier")
    a(f"s_cmp_lg_u32 s{sWAVE}, 0")
    a("s_cbranch_scc1 L_nosig")
    a(f"s_lshl_b32 s{sT0}, s{sB}, 5")
    a("s_mov_b64 exec, 1")
    a(f"buffer_atomic_add v12, v15, s[{sOUT}:{sOUT+3}], s{sT0} offen sc1")
    a("s_mov_b64 exec, -1")
    a("L_nosig:")
    stamp(a)
    a("s_cmp_ge_u32 s2, 240")
    a("s_cbranch_scc1 L_exit")
    for j in (13, 14):
        for t in wo_reads(j, piece[j]): a(t)
    for i in range(NPRE, 7): issue(15 + i, piece[6 + i])
    a(f"s_mul_i32 s{sT1}, s{sOB}, 86\ns_lshr_b32 s{sT1}, s{sT1}, 8\ns_lshl_b32 s{sT1}, s{sT1}, 5")
    def poll():
        a(f"buffer_load_dword v12, v15, s[{sOUT}:{sOUT+3}], s{sT1} offen sc0 sc1")
        vm.append(("poll", 0))
    PA = opt("pollat", 5)
    issue(22, 3)
    pend = [13, 14]; nxt = 23
    for j in range(15, 22):
        a(f"s_waitcnt vmcnt({vw(('w', j))}) lgkmcnt(0)")
        for t in wo_reads(j, piece[j]): a(t)
        if j - 15 == PA: poll()
        for x in pend: issue(nxt, piece[x]); nxt += 1
        pend = [j]
    a("s_waitcnt lgkmcnt(0)")
    issue(nxt, piece[pend[0]])
    assert nxt == 31
    a(f"s_cmp_lg_u32 s{sWAVE}, 0")
    a("s_cbranch_scc1 L_go")
    a(f"s_waitcnt vmcnt({vw(('poll', 0))})")
    a(f"s_mov_b32 s{sCNT}, {SPIN}")
    a("L_poll:")
    a(f"v_readfirstlane_b32 s{sT0}, v12")
    a(f"s_sub_u32 s{sCNT}, s{sCNT}, 1")
    a(f"s_cbranch_scc1 L_go")
    a(f"s_cmp_ge_u32 s{sT0}, 32")
    a("s_cbranch_scc1 L_go")
    a(f"buffer_load_dword v12, v15, s[{sOUT}:{sOUT+3}], s{sT1} offen sc0 sc1")
    a("s_waitcnt vmcnt(0)")
    a("s_branch L_poll")
    a("L_go:")
    a("s_barrier")
    stamp(a)
    vAcc = 128
    ring = [208 + 4 * i for i in range(12)] + [36] + ([12] if STAMP < 2 else [])
    RD = len(ring)
    def o_pre(n): return [f"s_add_u32 s{sT1}, s{sR}, {n}", f"s_and_b32 s{sT1}, s{sT1}, 31", f"s_mul_i32 s{sT1}, s{sT1}, 5120"]
    def o_ld(i):
        n, qt = divmod(i, 5)
        return f"buffer_load_dwordx4 {r('v', ring[i % RD])}, v{2 if qt < 4 else 16}, s[{sO}:{sO+3}], s{sT1} offen offset:{(qt&3)*1024}{OLD}"
    for i in range(RD):
        if i % 5 == 0:
            for t in o_pre(i // 5): a(t)
        a(o_ld(i)); vm.append(("o", i))
    B = Body()
    for n in range(32):
        rf, bank = bank_of(n)
        for qt in range(5):
            for nt in range(4):
                acc = r("v", vAcc + (qt * 4 + nt) * 4)
                need = None
                if nt == 0: need = [("vm", ("o", 5 * n + qt))] + ([("W", n)] if (qt == 0 and n >= 22) else [])
                B.add(f"{MF} {acc}, {r(rf, bank+4*nt)}, {r('v', ring[(5*n+qt) % RD])}, {'0' if n == 0 else acc}", need)
    for i in range(160 - RD):
        j = i + RD
        if j % 5 == 0:
            for k, t in enumerate(o_pre(j // 5)): B.pre.setdefault(4 * i + k, []).append(t)
        B.place_big("M", o_ld(j), 4 * i + 3, ("o", j), hi=4 * i + 3)
    for n in range(10):
        j = n + 22
        g = 20 * (n + 1)
        for i, t in enumerate(wo_reads(j, piece[j])):
            g = B.place_d(t, g, ("W", j), 1, req=[("vm", ("w", j))] if i == 0 else None) + 1
    if STAMP == 4:
        a("v_mov_b32 v13, 0\nv_mov_b32 v14, 0\ns_memtime s[100:101]\ns_waitcnt lgkmcnt(0)"); rec(a)
        for n in range(32):
            B.cv.setdefault(20 * n + 1, []).append("s_memtime s[100:101]\ns_waitcnt lgkmcnt(0)\nv_cmp_eq_u32 vcc, v13, v3\nv_mov_b32 v15, s100\nv_add_u32 v13, 1, v13\nv_cndmask_b32 v14, v14, v15, vcc")
    B.emit(a, vm=vm)
    stamp(a)
    vB = 48
    a(f"s_mov_b32 s{sOUT}, s{pOUT}\ns_mov_b32 s{sOUT+1}, s{pOUT+1}\ns_mov_b32 s{sOUT+2}, {8*240*640*2}")
    a(f"s_mul_i32 s{sT0}, s{sWAVE}, 5120")
    a(f"v_add_u32 v8, s{sT0}, v2")
    a("v_add_u32 v9, 40960, v8")
    a("s_nop 4")
    a("s_barrier")
    for nt in range(4):
        a(f"s_cmp_eq_u32 s{sWAVE}, {nt}")
        a(f"s_cbranch_scc1 L_skipw{nt}")
        for qt in range(5): a(f"ds_write_b128 v{8 + (nt >> 1)}, {r('v', vAcc+(qt*4+nt)*4)} offset:{(nt&1)*20480 + qt*1024}")
        a(f"s_branch L_nextw{nt}")
        a(f"L_skipw{nt}:")
        for qt in range(5):
            for j in range(4): a(f"v_mov_b32 v{vB+qt*4+j}, v{vAcc+(qt*4+nt)*4+j}")
        a(f"L_nextw{nt}:")
    a(f"s_mul_i32 s{sT0}, s{sWAVE}, 20480")
    a(f"v_add_u32 v12, s{sT0}, v2")
    for i in range(1, 4):
        a(f"s_add_u32 s{sT1}, s{sWAVE}, {i}\ns_and_b32 s{sT1}, s{sT1}, 3\ns_mul_i32 s{sT1}, s{sT1}, 5120\nv_add_u32 v{16+i}, s{sT1}, v12")
    a(f"s_mul_i32 s{sT0}, s{sOB}, {80*1280}\ns_lshl_b32 s{sT1}, s{sQS}, 7\ns_add_u32 s{sT0}, s{sT0}, s{sT1}\ns_lshl_b32 s{sT1}, s{sWAVE}, 5\ns_add_u32 s{sT0}, s{sT0}, s{sT1}")
    a("v_mul_u32_u24 v10, 1280, v5\nv_lshl_add_u32 v10, v4, 3, v10")
    a("s_waitcnt lgkmcnt(0)")
    a("s_barrier")
    for qt in range(5):
        for i in range(1, 4): a(f"ds_read_b128 {r('v', vAcc+(qt*3+i-1)*4)}, v{16+i} offset:{qt*1024}")
    for qt in range(5):
        a(f"s_waitcnt lgkmcnt({12-3*qt})")
        b0 = vAcc + qt * 12
        for j in range(4): a(f"v_add_f32 v{vB+qt*4+j}, v{vB+qt*4+j}, v{b0+j}")
        for j in range(4): a(f"v_add_f32 v{b0+4+j}, v{b0+4+j}, v{b0+8+j}")
        for j in range(4): a(f"v_add_f32 v{vB+qt*4+j}, v{vB+qt*4+j}, v{b0+4+j}")
        for j in range(2): a(f"v_cvt_pk_bf16_f32 v{vB+qt*4+j}, v{vB+qt*4+2*j}, v{vB+qt*4+2*j+1}")
        a(f"buffer_store_dwordx2 {r('v', vB+qt*4, 2)}, v10, s[{sOUT}:{sOUT+3}], s{sT0} offen")
        if qt < 4: a(f"s_add_u32 s{sT0}, s{sT0}, {16*1280}")
    if STAMP:
        a("s_waitcnt vmcnt(0)")
        a("s_waitcnt lgkmcnt(0)")
        if STAMP >= 2:
            a(f"s_lshl_b32 s{sT0}, s2, 10\ns_add_u32 s{sT0}, s{sT0}, 0x80000\nv_lshlrev_b32 v15, 2, v0")
            a(f"buffer_store_dword v14, v15, s[{sST}:{sST+3}], s{sT0} offen")
        a("s_memtime s[76:77]\ns_memrealtime s[78:79]\ns_waitcnt lgkmcnt(0)")
        stamp_store(a, 18, sSTAMP, sST, 4)

def gen():
    a = Asm()
    a("s_cmp_ge_u32 s2, 256")
    a("s_cbranch_scc1 L_exit")
    a("s_getpc_b64 s[8:9]")
    a(f"s_load_dwordx16 s[{sARG}:{sARG+15}], s[0:1], 0")
    a(f"s_mov_b32 s10, L_exit-{KN}-16\ns_mov_b32 s11, 0x20000\ns_lshr_b32 s4, s2, 3\ns_lshl_b32 s4, s4, 12")
    a("v_lshrrev_b32 v11, 3, v0\nv_lshlrev_b32 v11, 7, v11")
    a("buffer_load_dword v12, v11, s[8:11], s4 offen")
    stamp(a)
    if MAP == "bmajor":
        a(f"s_and_b32 s{sB}, s2, 7\ns_lshr_b32 s{sH}, s2, 3")
        a(f"s_mul_i32 s{sQS}, s{sH}, 5\ns_lshr_b32 s{sQS}, s{sQS}, 4")
    else:
        a(f"""s_and_b32 s{sT0}, s2, 1
s_lshl_b32 s{sB}, s{sT0}, 2
s_lshr_b32 s{sT1}, s2, 3
s_and_b32 s{sT0}, s{sT1}, 3
s_add_u32 s{sB}, s{sB}, s{sT0}
s_mul_i32 s{sQS}, s{sT0}, 10
s_and_b32 s{sH}, s2, 6
s_lshl_b32 s{sH}, s{sH}, 2
s_lshr_b32 s{sT1}, s{sT1}, 2
s_add_u32 s{sH}, s{sH}, s{sT1}
s_mul_i32 s{sT1}, s{sT1}, 5
s_add_u32 s{sQS}, s{sQS}, s{sT1}
s_lshr_b32 s{sQS}, s{sQS}, 2
s_sub_u32 s{sT0}, s{sQS}, 10
s_cmp_ge_u32 s{sQS}, 10
s_cselect_b32 s{sQS}, s{sT0}, s{sQS}""")
    a(f"""v_lshrrev_b32 v1, 6, v0
v_and_b32 v3, 63, v0
v_lshrrev_b32 v4, 4, v3
v_readfirstlane_b32 s{sWAVE}, v1
v_and_b32 v5, 15, v3
v_lshlrev_b32 v2, 4, v3
v_lshrrev_b32 v6, 3, v3
v_and_b32 v7, 7, v3""")
    a("v_lshl_add_u32 v8, v1, 6, v6\nv_mul_u32_u24 v8, 1280, v8\nv_xor_b32 v9, v7, v4")
    for n in range(8):
        a(f"v_xor_b32 v10, {4*(n&1)}, v9")
        a(f"v_lshl_add_u32 v10, v10, 4, v8")
        a(f"v_add_u32 v{vXD+n}, {n*8*1280 - (n&3)*1024}, v10")
    a("v_lshl_add_u32 v8, v1, 4, v4\nv_lshlrev_b32 v8, 13, v8\nv_lshlrev_b32 v9, 2, v4\nv_xor_b32 v9, v9, v5\nv_lshl_add_u32 v8, v9, 4, v8")
    for n in range(4): a(f"v_add_u32 v{vWD+n}, {n*4*8192 - n*1024 - 8*(n>>1)}, v8")
    a(f"""s_lshl_b32 s{sXW}, s{sWAVE}, 13
s_lshl_b32 s{sVW}, s{sWAVE}, 12
s_add_u32 s{sKW}, s{sVW}, {KBASE}
s_mul_i32 s{sWW}, s{sWAVE}, 4112
s_mov_b32 s{sX+2}, 307200
s_mov_b32 s{sX+3}, 0x20000
s_mov_b32 s{sW+3}, 0x20000
s_mul_i32 s{sT0}, s{sB}, 307200
s_lshl_b32 s{sT1}, s{sH}, 8
s_sub_u32 s{sW+2}, 5242880, s{sT1}
s_waitcnt lgkmcnt(0)
s_add_u32 s{sX}, s{pX}, s{sT0}
s_addc_u32 s{sX+1}, s{pX+1}, 0
s_add_u32 s{sW}, s{pWQ}, s{sT1}
s_addc_u32 s{sW+1}, s{pWQ+1}, 0""")
    a(f"s_cmp_eq_u32 s{sWAVE}, 3")
    a("s_cbranch_scc1 L_waveB")
    def rest(a):
        kv_srds(a)
        a(f"""s_mov_b32 s{sWS}, s{pWS}
s_mov_b32 s{sWS+1}, s{pWS+1}
s_mov_b32 s{sWS+2}, {8*15*128*1024}
s_mov_b32 s{sWS+3}, 0x20000""")
        if STAMP:
            a(f"s_add_u32 s{sST}, s{pWS}, 0x10000000\ns_addc_u32 s{sST+1}, s{pWS+1}, 0\ns_mov_b32 s{sST+2}, 0x100000\ns_mov_b32 s{sST+3}, 0x20000")
        if PF:
            a(f"""s_cmp_lt_u32 s{sWAVE}, 2
s_cselect_b32 s{sPF}, s{sK}, s{sV}
s_cselect_b32 s{sPF+1}, s{sK+1}, s{sV+1}
s_mov_b32 s{sPF+2}, 524288
s_mov_b32 s{sPF+3}, 0x20000
v_and_b32 v11, 127, v0
v_lshlrev_b32 v11, 7, v11""")
        kv_voffsets(a, True)
        a(f"v_lshlrev_b32 v8, 8, v5\nv_add_u32 v8, {KBASE}, v8\nv_xor_b32 v9, v4, v5")
        for s in range(4):
            a(f"v_xor_b32 v10, {4*s}, v9")
            a(f"v_lshl_add_u32 v{vKR+s}, v10, 4, v8")
        a("v_lshrrev_b32 v8, 2, v3\nv_and_b32 v9, 7, v8\nv_lshlrev_b32 v8, 8, v8\nv_and_b32 v10, 3, v3\nv_lshl_add_u32 v8, v10, 3, v8")
        for t in range(8):
            a(f"v_xor_b32 v10, {t}, v9")
            a(f"v_lshl_add_u32 v{vVR+t}, v10, 5, v8")
        a(f"v_lshlrev_b32 v8, 13, v1\nv_lshl_add_u32 v8, v5, 7, v8\nv_add_u32 v8, {QBUF[1]}, v8\nv_lshrrev_b32 v9, 1, v5\nv_xor_b32 v9, v9, v4")
        for sp in range(2):
            a(f"v_xor_b32 v10, {4*sp}, v9")
            a(f"v_lshl_add_u32 v{vXR+sp}, v10, 4, v8")
        a(f"v_bfe_u32 v9, v3, 2, 2\nv_lshl_add_u32 v8, v4, 3, v9\nv_lshlrev_b32 v8, 8, v8\nv_and_b32 v10, 3, v3\nv_lshl_add_u32 v8, v10, 4, v8")
        a(f"v_add_u32 v8, {QBUF[1]}, v8\nv_lshl_add_u32 v8, v4, 3, v8")
        for s in range(4):
            a(f"v_xor_b32 v10, {s}, v9")
            a(f"v_lshl_add_u32 v{vWR+s}, v10, 6, v8")
        a("v_and_b32 v8, 3, v3\nv_cmp_eq_u32 vcc, 0, v8\nv_mov_b32 v9, 0x3f803f80\nv_mov_b32 v10, 0\nv_cndmask_b32 v9, v10, v9, vcc")
        for j in range(4): a(f"v_accvgpr_write_b32 a{aONE+j}, v9")
        a(f"s_mul_i32 s3, s{sB}, 96\ns_add_u32 s3, s3, s{sH}\ns_mul_i32 s3, s3, 20480")
        a(f"s_lshr_b32 s{sROT}, s2, 3\ns_lshl_b32 s{sROT}, s{sROT}, 14" if opt("rot", 1) else f"s_mov_b32 s{sROT}, 0")
        if PMAP:
            a(f"""s_lshr_b32 s4, s2, 3
s_mul_i32 s6, s4, 52
s_lshr_b32 s6, s6, 8
s_mul_i32 s5, s6, 5
s_sub_u32 s5, s4, s5
s_mul_i32 s{sR}, s5, {opt("rmul", 0)}
s_and_b32 s7, s2, 1
s_mul_i32 s7, s7, 5
s_add_u32 s5, s5, s7
s_and_b32 s{sOB}, s2, 6
s_mul_i32 s{sOB}, s{sOB}, 3
s_add_u32 s{sOB}, s{sOB}, s6""")
        else:
            a(f"""s_lshr_b32 s4, s2, 3
s_mul_i32 s6, s4, 26
s_lshr_b32 s6, s6, 8
s_mul_i32 s5, s6, 10
s_sub_u32 s5, s4, s5
s_and_b32 s{sOB}, s2, 7
s_mul_i32 s{sOB}, s{sOB}, 3
s_add_u32 s{sOB}, s{sOB}, s6""")
        if not PMAP: a(f"s_mov_b32 s{sR}, 0")
        a(f"""
s_mul_i32 s6, s{sWAVE}, {131072 if WCONT else 1024*1280}
s_lshl_b32 s7, s5, {19 if WCONT else 7}
s_add_u32 s6, s6, s7
s_add_u32 s{sWO}, s{pWO}, s6
s_addc_u32 s{sWO+1}, s{pWO+1}, 0
s_sub_u32 s{sWO+2}, 5242880, s6
s_cmp_ge_u32 s2, 240
s_cselect_b32 s{sWO+2}, 0, s{sWO+2}
{"s_mov_b32 s%d, 0" % (sWO+2) if opt("wskip", 0) else ""}
s_mov_b32 s{sWO+3}, 0x20000""")
    global REST
    REST = rest
    base = nstamp[0]
    gen_wave2(a, 4, "A")
    a("L_waveB:")
    nstamp[0] = base
    gen_wave2(a, 3, "B")
    gen_common(a)
    a("L_exit:")
    a("s_endpgm")
    return a.text()

def gen_wave2(a, nq, L):
    b = Asm()
    gen_wave(b, nq, L)
    i = next(k for k, l in enumerate(b.l) if "s_waitcnt vmcnt" in l)
    c = Asm(); REST(c)
    a.l += b.l[:i] + c.l + b.l[i:]

body = gen()
print(wrap([dict(name=KN, grid=256, block=256, lds=163840, body=body, vgpr=512, sgpr=102, accum=256)]))
```

```python
import sys, struct, math
from gencommon import *

OPT = dict(kv.split("=") for kv in sys.argv[1:])
def opt(k, d): return type(d)(OPT.get(k, d))
STAMP = opt("stamp", 0)
MAP = opt("map", "mixed")
NT = opt("nt", 1)
FORCE_SAFE = opt("safe", 0)
QLEAD = opt("qlead", 28)
K0AT = opt("k0at", 2)
WARM = opt("warm", 1)
OD = opt("od", 5)
OLD = {"": "", "plain": "", "nt": " nt", "sc1": " sc1", "sc01": " sc0 sc1"}[opt("old", "sc1")]
OST = {"": "", "plain": "", "sc1": " sc1", "sc01": " sc0 sc1"}[opt("ost", "sc01")]
SPIN = opt("spin", 1 << 16)
CHAIN = opt("chain", 1)
FST = {"": "", "sc01": " sc0 sc1", "nt": " nt"}[opt("fst", "")]
PMAP = opt("pmap", 1)
PF = [int(t) for t in opt("pf", "").split(",") if t]
PF0 = opt("pf0", 0)
sPF = 72
W6 = [tuple(int(y) for y in x.split(":")) for x in opt("w6", "29:56,30:56").split(",") if x]
sPFW = 6
PFD, PFA = (13, 14) if STAMP < 2 else (12, 1)
SNAKE = opt("snake", 1)

MF = "v_mfma_f32_16x16x32_bf16"
VBASE, SBASE, KBASE = 0, 64 * 1024, 96 * 1024
QBUF = [0, 48 * 1024, 96 * 1024]
XOFF, WOFF = 0, 31744
def kslot(t): return (t + 3) % 4
def vslot(t): return t % 4
vO = 128; vS = 64; vNM = 48
vKR = 16; vVR = 20; vKD = 28; vVD = 32; vXD = 36; vWD = 44
vXR = 64; vWR = 66
vWO = 36
vAR = [40, 44, 8]
aQ = 0; aK = 64; aV = 96; aL = 128; aONE = 144
aQA = [64, 96]; aQB = [148, 164]
sK, sV, sX, sW, sWS = 8, 12, 16, 20, 24
sO, sOUT = 16, 20
sWAVE, sKW, sVW, sXW, sWW = 28, 29, 30, 31, 32
sKoff, sVoff, sCNT, sB, sH, sT0, sT1 = 33, 34, 35, 36, 37, 38, 39
sKinc, sKmask, sVinc, sVmask = 6, 7, 31, 32
sST, sSTAMP = 40, 44
sWO = 76
sROT, sQS, sR, sOB = 80, 81, 82, 83
sARG = 84
pX, pK, pV, pWQ, pWO, pOUT, pDBG, pWS = [sARG + 2 * i for i in range(8)]
CSCALE = struct.unpack("<I", struct.pack("<f", math.log2(math.e) / math.sqrt(128.0)))[0]
WCONT = opt('wcont', 0)
WSTEP = 4096 if WCONT else 32 * 1280

def r(pfx, b, n=4): return f"{pfx}[{b}:{b+n-1}]"
def O(q, d): return r("v", vO + (q * 8 + d) * 4)
def S(p, q, kt): return vS + 32 * p + 8 * q + 4 * kt
def ntf(): return {0: "", 1: " nt", 2: " sc1 nt"}[NT]

nstamp = [0]
def stamp(a):
    if STAMP:
        i = nstamp[0]; nstamp[0] += 1
        assert i < 8
        a(f"s_memtime s[{sSTAMP+4*i}:{sSTAMP+4*i+1}]")
        a(f"s_memrealtime s[{sSTAMP+4*i+2}:{sSTAMP+4*i+3}]")
def rec(a):
    a("v_cmp_eq_u32 vcc, v13, v3\nv_mov_b32 v15, s100\nv_add_u32 v13, 1, v13\nv_cndmask_b32 v14, v14, v15, vcc")

def dmaK(n): return f"buffer_load_dwordx4 v{vKD+n}, s[{sK}:{sK+3}], s{sKoff} offen offset:{n*1024}{ntf()} lds"
def dmaV(n): return f"buffer_load_dwordx4 v{vVD+n}, s[{sV}:{sV+3}], s{sVoff} offen offset:{n*1024}{ntf() if not opt('vdef', 0) else ''} lds"
def kread(f, off, ktoff=4096, aK=aK):
    kt, s = f >> 2, f & 3
    return f"ds_read_b128 {r('a', aK+4*f)}, v{vKR+s} offset:{off + kt*ktoff}"
def vread(d, second, off, soff=4096):
    return f"ds_read_b64_tr_b16 {r('a', aV+4*d+2*second, 2)}, v{vVR+d} offset:{off + second*soff}"
def qk(p, q, kt, s, czero=False, aK=aK):
    b = S(p, q, kt)
    c = r("v", b) if s else ("0" if czero else r("v", vNM + 4 * q))
    return f"{MF} {r('v', b)}, {r('a', aK+4*(kt*4+s))}, {r('a', aQ+16*q+4*s)}, {c}"
def pv(p, q, d): return f"{MF} {O(q,d)}, {r('a', aV+4*d)}, {r('v', S(p,q,0))}, {O(q,d)}"
def sm(p, q): return f"{MF} {r('a', aL+4*q)}, {r('a', aONE)}, {r('v', S(p,q,0))}, {r('a', aL+4*q)}"
def softmax_ops(p, nq):
    ex, cv = [], []
    for kt in range(2):
        for q in range(nq):
            b = S(p, q, kt)
            for j in range(4): ex.append(f"v_exp_f32 v{b+j}, v{b+j}")
            for j in range(2): cv.append(f"v_cvt_pk_bf16_f32 v{S(p,q,0)+2*kt+j}, v{b+2*j}, v{b+2*j+1}")
    return ex, cv

PRE = [(0, 4), (1, 5)]
PLAN = {28: ([0, 1], [(2, 9), (3, 4), (4, 5)]),
        29: ([2, 3], [(5, 6), (6, 0), (7, 9), (8, 4)]),
        30: ([4, 5], [(9, 7), (10, 1), (11, 5), (12, 6)]),
        31: ([], [(13, 8), (14, 2)])}
PIECE = dict(PRE)
for _b in PLAN.values(): PIECE.update(dict(_b[1]))
VBANK = [20, 48, 64, 80, 96, 112]
def bank_of(n):
    if n < 16: return "a", ((n + 10) % 16) * 16
    if n < 22: return "v", VBANK[n - 16]
    return bank_of(n - 22)
def wo_issue(n, piece):
    out = [("s", f"s_add_u32 s{sT0}, s{sR}, {n}"), ("s", f"s_and_b32 s{sT0}, s{sT0}, 31"),
           ("s", f"s_mul_i32 s{sT0}, s{sT0}, {WSTEP}"), ("s", f"s_add_u32 m0, s{sVW}, {piece*16384}")]
    out += [("M", f"buffer_load_dwordx4 v{vWO+i}, s[{sWO}:{sWO+3}], s{sT0} offen offset:{i*1024} lds") for i in range(4)]
    return out
def wo_reads(n, piece):
    rf, bank = bank_of(n)
    return [f"ds_read_b64_tr_b16 {r(rf, bank+4*t+2*h, 2)}, v{vAR[piece >> 2]+t} offset:{(piece & 3)*16384 + h*2048}" for t in range(4) for h in range(2)]
def flat(a, items):
    prev = None
    for it in items:
        k, t = it[0], it[1]
        if k == "M" and prev and "m0" in prev: a("s_nop 0")
        a(t); prev = t

class Body:
    def __init__(self):
        self.mf = []; self.big = {}; self.pre = {}; self.cv = {}; self.lastcv = 0
    def add(self, text, need=None): self.mf.append((text, need))
    def place_big(self, kind, text, target, tag=None, hi=None, req=None):
        n = len(self.mf)
        target = min(target, n - 1)
        hi = min(n - 1, target + 3 if hi is None else max(hi, target))
        g = target
        while g in self.big and g < hi: g += 1
        if g in self.big: g = min(range(target, hi + 1), key=lambda x: len(self.big[x]))
        self.big.setdefault(g, []).append((kind, text, tag, req))
        return g
    def place_d(self, text, lo, tag, cap, req=None):
        g = lo
        while True:
            kinds = [x[0] for x in self.big.get(g, [])]
            if all(k == "D" for k in kinds) and len(kinds) < cap: break
            g += 1
        assert g < len(self.mf)
        self.big.setdefault(g, []).append(("D", text, tag, req))
        return g
    def place_cvt(self, text, lo, hi):
        n = len(self.mf); best = None
        lo = max(lo, self.lastcv)
        for g in range(lo, min(hi, lo + 4, n - 1) + 1):
            kinds = [x[0] for x in self.big.get(g, [])]
            cnt = len(self.cv.get(g, []))
            if (kinds == ["D"] and cnt == 0) or (kinds == [] and cnt < 2): best = g; break
        if best is None: best = min(lo, n - 1)
        self.cv.setdefault(best, []).append(text)
        self.lastcv = best
        return best
    def place_s(self, text, lo, hi=None):
        n = len(self.mf)
        hi = lo if hi is None else hi
        for g in range(lo, min(hi, n - 1) + 1):
            kinds = [x[0] for x in self.big.get(g, [])]
            if not self.pre.get(g) and (kinds == ["E"] or kinds == [] or (kinds == ["D"] and not self.cv.get(g))):
                self.pre.setdefault(g, []).append(text); return g
        self.pre.setdefault(lo, []).append(text); return lo
    def spread(self, it, start, span, req=None):
        nm = sum(1 for x in it if x[0] == "M")
        i = 0; pend = []; lastg = start
        for k, t, tag in it:
            if k != "M": pend.append(t); continue
            g = self.place_big("M", t, max(start + 2 + int(i * span / nm), lastg + 1 + (len(pend) + 1) // 2), tag, req=req if i == 0 else None)
            for j, pt in enumerate(pend):
                self.pre.setdefault(max(lastg + 1, g - (len(pend) - j + 1) // 2), []).append(pt)
            pend = []; lastg = g; i += 1
        return lastg
    def emit(self, a, resident=(), vm=None, vmdone=None):
        total = {}
        for items in self.big.values():
            for k, t, tag, req in items:
                if k in "DM": total[(k, tag)] = total.get((k, tag), 0) + 1
        st = dict(q=[], issued={})
        done = set(resident)
        vmdone = vmdone if vmdone is not None else set()
        def wait(tags):
            lds = [t for t in tags if t[0] != "vm" and t not in done]
            vms = [t[1] for t in tags if t[0] == "vm" and t[1] not in vmdone]
            parts = []
            if vms:
                for t in vms: assert st["issued"].get(("M", t), 0) == total.get(("M", t), 0) and t in vm, ("vm not issued", t)
                N = min(vm[::-1].index(t) for t in vms)
                assert N <= 63
                parts.append(f"vmcnt({N})")
                for t in vm[:len(vm) - N]: vmdone.add(t)
                for t in vm[len(vm) - N:]: vmdone.discard(t)
            if lds:
                q = st["q"]
                for t in lds: assert st["issued"].get(("D", t), 0) == total[("D", t)] and t in q, ("lds not issued", t)
                N = min(min(q[::-1].index(t) for t in lds), 10)
                parts.append(f"lgkmcnt({N})")
                for t in q[:len(q) - N]: done.add(t)
                st["q"] = q[len(q) - N:]
                for t in st["q"]: done.discard(t)
            if parts: a("s_waitcnt " + " ".join(parts))
        n = len(self.mf)
        if self.mf[0][1]: wait(self.mf[0][1])
        for g in range(n):
            a(self.mf[g][0])
            late = None
            nxt = self.mf[g + 1][1] if g + 1 < n else None
            if nxt: wait(nxt)
            for t in self.pre.get(g, []): a(t)
            for kind, text, tag, req in self.big.get(g, []):
                if req: wait(req)
                if kind == "B":
                    nv = vm[::-1].index(tag)
                    a(f"s_waitcnt vmcnt({nv}) lgkmcnt(0)")
                    for t in st["q"]: done.add(t)
                    st["q"] = []
                if not (kind in opt("drop", "") and getattr(self, "loop", False)): a(text)
                if kind in "DM": st["issued"][(kind, tag)] = st["issued"].get((kind, tag), 0) + 1
                if kind == "M" and vm is not None: vm.append(tag); vmdone.discard(tag)
                if kind == "D": st["q"].append(tag); done.discard(tag)
            for t in self.cv.get(g, []): a(t)

def merge(a, V, M):
    pos = {}; n = [0]
    def ready(it): return all(d in pos and n[0] - pos[d] - 1 >= dist for d, dist in it[2])
    def put(it):
        a(it[1]); n[0] += len(it[1].split("\n")); pos[it[0]] = n[0] - 1
    vi = mi = 0
    while vi < len(V) or mi < len(M):
        did = False
        if mi < len(M) and ready(M[mi]): put(M[mi]); mi += 1; did = True
        cost = 0
        while vi < len(V) and cost < 2 and ready(V[vi]):
            cost += 2 if V[vi][1].startswith(("v_exp", "ds_", "buffer_")) else 1
            put(V[vi]); vi += 1; did = True
        if not did: a("s_nop 0"); n[0] += 1

NTAIL = {4: 26, 3: 20}
VMDONE = set()

def gen_body(a, nq, u, L, last=False, loopctl=None, idx=None, vm=None):
    B = Body()
    B.loop = idx is None
    vo, ko = vslot(u) * 16384, kslot(u + 1) * 16384
    def g_qk(p, kts, gen):
        for kt in kts:
            if CHAIN:
                for q in range(nq):
                    for s in range(4): B.add(qk(p, q, kt, s), ([("K", kt * 4 + x, gen) for x in range(4)] if s == 0 else None) if q == 0 else None)
            else:
                for s in range(4):
                    for q in range(nq): B.add(qk(p, q, kt, s), [("K", kt * 4 + s, gen)] if q == 0 else None)
    def g_pv(p, gen):
        for d in range(8):
            qs = list(range(nq)) if (d % 2 == 0 or not SNAKE) else list(range(nq - 1, -1, -1))
            for i, q in enumerate(qs): B.add(pv(p, q, d), [("V", d, gen)] if i == 0 else None)
        for q in range(nq): B.add(sm(p, q))
    g_qk(1, [1], 0); P0 = len(B.mf)
    g_pv(0, 0); Q1 = len(B.mf)
    if not last: g_qk(0, [0, 1], 1)
    P1 = len(B.mf)
    g_pv(1, 1)
    if not last: g_qk(1, [0], 2)
    n = len(B.mf)
    resident = [("K", f, 0) for f in range(4, 8)]
    sc = nq / 4.0
    for d in range(8):
        for h in range(2): B.place_big("D", vread(d, h, vo), int((4 * d + 2 * h) * sc), ("V", d, 0))
    ex0, cv0 = softmax_ops(0, nq); ex1, cv1 = softmax_ops(1, nq)
    ne = len(ex0)
    win = P1 - P0
    full = nq * 17
    ntail = NTAIL[nq]
    if not last:
        for f in range(8): B.place_big("D", kread(f, ko), Q1 - int((22 if CHAIN else 20) * sc) + int(4 * f * sc), ("K", f, 1))
    for d in range(8):
        for h in range(2):
            lo = max(P1 - int(20 * sc) + int((4 * d + 2 * h) * sc), P0 + nq * d + nq)
            B.place_big("D", vread(d, h, vo + 8192), lo, ("V", d, 1))
    if not last:
        for f in range(8): B.place_big("D", kread(f, ko + 8192), P1 + int(12 * sc) + int(4 * f * sc), ("K", f, 2))
        if idx is None or idx == 28:
            g0 = Q1 - int(18 * sc) if idx is None else 3
            gs = [B.place_big("M", dmaV(i), g0 + int((8 if idx is None else 4) * i * sc), ("V", 31)) for i in range(4)]
            mV, mVe = gs[0], gs[-1]
        if idx is None:
            g0 = P1 + int(14 * sc)
            gs = [B.place_big("M", dmaK(i), g0 + int(8 * i * sc)) for i in range(4)]
            mK, mKe = gs[0], gs[-1]
    if idx is not None:
        rd, iss = PLAN[idx]
        g = int(30 * sc)
        for j in rd:
            for i, t in enumerate(wo_reads(j, PIECE[j])):
                g = B.place_big("D", t, g, ("W", j), req=[("vm", ("w", j))] if i == 0 else None) + 2
        g = mVe + 1 if idx == 28 else 0
        span = ((n - 6 - g) // len(iss)) if not last else int(16 * sc)
        for j, pc in iss:
            src = [x for x in rd if PIECE[x] == pc]
            if src: g = max(g, int(74 * sc))
            it = [(k, t, ("w", j)) for k, t in wo_issue(j, pc)]
            g = B.spread(it, g, min(span, int(24 * sc)), req=[("W", src[0])] if src else None) + 1
            assert g < n
        for k, (bi, gp) in enumerate(W6):
            if bi == idx:
                g = int(gp * sc)
                B.place_big("M", f"buffer_load_dword v{PFD}, v{PFA}, s[{sWO}:{sWO+3}], s{sPFW+k} offen", g, ("pfw", k))
    eg0, eg1, egt = {}, {}, {}
    nh = ne - ntail
    for i in range(ntail, ne):
        eg0[i] = B.place_big("E", ex0[i], max(1 + int((i - ntail) * (P0 - 4) / max(nh, 1)), eg0.get(i - 1, 0)))
    for i in range(ne):
        t = P0 + 1 + int(i * (win - 5) / ne)
        if i >= ne // 2: t = max(t, P0 + 5)
        eg1[i] = B.place_big("E", ex1[i], max(t, eg1.get(i - 1, 0)), hi=min(t + 3, P1 - 4))
    if not last:
        for i in range(ntail):
            t = P1 + 1 + int(i * (full - 5) / ne)
            egt[i] = B.place_big("E", ex0[i], max(t, egt.get(i - 1, 0)), hi=min(t + 3, n - 2))
    for j in range(ntail // 2, ne // 2):
        q = (j // 2) % nq
        g = B.place_cvt(cv0[j], eg0[2 * j + 1] + 1, P0 + q - 2)
        assert g <= P0 + q - 2
    for j in range(ne // 2):
        q = (j // 2) % nq
        g = B.place_cvt(cv1[j], eg1[2 * j + 1] + 1, P1 + q - 3)
        assert g <= P1 + q - 3, (j, g, P1)
    assert eg1[ne // 2] >= P0 + 5
    if not last:
        for j in range(ntail // 2): B.place_cvt(cv0[j], egt[2 * j + 1] + 1, n - 1)
        assert min(egt.values()) >= Q1 + 4 * nq + 5
        if ntail > ne // 2: assert egt[ne // 2] >= P1 + 5
        if idx is None:
            B.place_s(f"s_add_u32 m0, s{sVW}, {VBASE + vslot(u+3)*16384}", mV - 4, mV - 1)
            g = B.place_s(f"s_add_u32 s{sVoff}, s{sVoff}, 16384", mV - 12, mV - 6)
            B.place_s(f"s_and_b32 s{sVoff}, s{sVoff}, 0x7ffff", g + 1, mV - 1)
            B.place_s(f"s_add_u32 m0, s{sKW}, {kslot(u+4)*16384}", mK - 4, mK - 1)
            g = B.place_s(f"s_add_u32 s{sKoff}, s{sKoff}, 16384", mK - 12, mK - 6)
            B.place_s(f"s_and_b32 s{sKoff}, s{sKoff}, 0x7ffff", g + 1, mK - 1)
        elif idx == 28:
            B.pre.setdefault(0, []).extend([f"s_add_u32 s{sVoff}, s{sVoff}, 16384", f"s_and_b32 s{sVoff}, s{sVoff}, 0x7ffff"])
            B.pre.setdefault(1, []).append(f"s_add_u32 m0, s{sVW}, {VBASE + vslot(u+3)*16384}")
        if loopctl:
            B.place_s(loopctl[0], n - 8, n - 5)
            B.place_s(loopctl[1], n - 4, n - 2)
    B.emit(a, resident, vm=vm, vmdone=VMDONE if vm is not None else None)
    if idx is not None and not last:
        need = [("V", idx + 1)] + ([("K", idx + 2)] if idx + 2 < 32 else [])
        N = min(vm[::-1].index(t) for t in need)
        if STAMP == 2: a("s_memtime s[100:101]")
        a(f"s_waitcnt vmcnt({N}) lgkmcnt(0)")
        for t in vm[:len(vm) - N]: VMDONE.add(t)
        for t in vm[len(vm) - N:]: VMDONE.discard(t)
        a("s_barrier")
        if STAMP == 2: rec(a)
    elif last:
        if STAMP == 2: a("s_memtime s[100:101]\ns_waitcnt lgkmcnt(0)"); rec(a)
    else:
        if STAMP == 2: a("s_memtime s[100:101]")
        for _ in range(opt("idle", 0)): a("s_nop 15")
        a(f"s_waitcnt vmcnt({opt('vmc', 16)}) lgkmcnt(0)")
        if not opt("nobar", 0): a("s_barrier")
        if STAMP == 2: rec(a)

def kv_voffsets(a, wave):
    if wave:
        a("v_lshlrev_b32 v8, 12, v1")
        a("v_lshl_add_u32 v8, v4, 8, v8")
    else:
        a("v_lshlrev_b32 v8, 8, v4")
    a("v_xor_b32 v9, v5, v4")
    for n in range(4):
        a(f"v_xor_b32 v10, {4*n}, v9")
        a(f"v_lshl_add_u32 v{vKD+n}, v10, 4, v8")
    a("v_lshlrev_b32 v9, 1, v4")
    a("v_xor_b32 v9, v9, v5")
    for p in range(2):
        a(f"v_xor_b32 v10, {8*p}, v9")
        a(f"v_lshl_add_u32 v{vVD+p}, v10, 4, v8")
        a(f"v_mov_b32 v{vVD+p+2}, v{vVD+p}")
def kv_srds(a):
    a(f"""s_lshl_b32 s{sT0}, s{sB}, 5
s_add_u32 s{sT0}, s{sT0}, s{sH}
s_lshl_b32 s{sT0}, s{sT0}, 19
s_add_u32 s{sK}, s{pK}, s{sT0}
s_addc_u32 s{sK+1}, s{pK+1}, 0
s_mov_b32 s{sK+2}, 524288
s_mov_b32 s{sK+3}, 0x20000
s_add_u32 s{sV}, s{pV}, s{sT0}
s_addc_u32 s{sV+1}, s{pV+1}, 0
s_mov_b32 s{sV+2}, 524288
s_mov_b32 s{sV+3}, 0x20000""")
def ar_setup(a):
    a("v_lshrrev_b32 v12, 2, v3\nv_lshlrev_b32 v12, 7, v12\nv_and_b32 v15, 3, v3\nv_lshl_add_u32 v12, v15, 3, v12")
    a(f"v_add_u32 v12, s{sVW}, v12\nv_bfe_u32 v15, v3, 3, 2")
    for t in range(4):
        a(f"v_xor_b32 v{vAR[0]+t}, {t}, v15")
        a(f"v_lshl_add_u32 v{vAR[0]+t}, v{vAR[0]+t}, 5, v12")
        a(f"v_add_u32 v{vAR[1]+t}, 0x10000, v{vAR[0]+t}")
        a(f"v_add_u32 v{vAR[2]+t}, 0x20000, v{vAR[0]+t}")

def xlane(a, regs, op2, tmp=1):
    for op in ("v_permlane32_swap_b32", "v_permlane16_swap_b32"):
        for m in regs: a(f"v_mov_b32 v{m+tmp}, v{m}")
        a("s_nop 1")
        for m in regs: a(f"{op} v{m}, v{m+tmp}")
        a("s_nop 1")
        for m in regs: a(f"{op2} v{m}, v{m}, v{m+tmp}")

def gen_wave(a, nq, L):
    nx = 2 * nq
    def qstage_issue(st):
        buf = QBUF[(st + 1) % 3]
        out = [("s", f"s_lshl_b32 s{sT0}, s{sQS}, 7"), ("s", f"s_lshl_b32 s{sT1}, s{sQS}, 19"), ("s", f"s_add_u32 s{sQS}, s{sQS}, 1"),
               ("s", f"s_cmp_eq_u32 s{sQS}, 10"), ("s", f"s_cselect_b32 s{sQS}, 0, s{sQS}"), ("s", f"s_add_u32 m0, s{sXW}, {buf+XOFF}")]
        for n in range(nx):
            if n == 4: out.append(("s", f"s_add_u32 m0, s{sXW}, {buf+XOFF+4096}"))
            out.append(("M", f"buffer_load_dwordx4 v{vXD+n}, s[{sX}:{sX+3}], s{sT0} offen offset:{(n&3)*1024} lds"))
        out.append(("s", f"s_add_u32 m0, s{sWW}, {buf+WOFF}"))
        for n in range(4):
            out.append(("M", f"buffer_load_dwordx4 v{vWD+n}, s[{sW}:{sW+3}], s{sT1} offen offset:{n*1024 + 8*(n>>1)} lds"))
        return [(k, t, ("q", st)) for k, t in out]
    def kv_issue(kind, t):
        so, sw, off, f = (sKoff, sKW, kslot(t) * 16384, dmaK) if kind == "K" else (sVoff, sVW, VBASE + vslot(t) * 16384, dmaV)
        out = [("s", f"s_add_u32 s{so}, s{sROT}, {t*16384}"), ("s", f"s_and_b32 s{so}, s{so}, 0x7ffff"), ("s", f"s_add_u32 m0, s{sw}, {off}")]
        out += [("M", f(n)) for n in range(4)]
        return [(k, x, (kind, t)) for k, x in out]
    vm = []
    def now(it):
        flat(a, it)
        for x in it:
            if x[0] == "M": vm.append(x[2])
    def vmwait(tag): return vm[::-1].index(tag)
    for st in range(2): now(qstage_issue(st))
    def qreads(st, sp):
        out = [(f"ds_read_b128 {r('a', aQB[sp]+4*q)}, v{vXR+sp} offset:{XOFF + q*2048}", ("B", st, sp)) for q in range(nq)]
        for t in range(8):
            s, odd = t >> 1, t & 1
            for h in range(2):
                out.append((f"ds_read_b64_tr_b16 {r('a', aQA[sp]+4*t+2*h, 2)}, v{vWR+s} offset:{WOFF + odd*8 + h*1024 + sp*8224}", ("A", st, sp, t)))
        return out
    def rot(st):
        d = QBUF[(st + 2) % 3] - QBUF[(st + 1) % 3]
        return [f"v_add_u32 v{vXR+i}, {d}, v{vXR+i}" if d > 0 else f"v_subrev_u32 v{vXR+i}, {-d}, v{vXR+i}" for i in range(6)]
    a(f"s_waitcnt vmcnt({vmwait(('q', 0))})")
    a("s_barrier")
    stamp(a)
    B = Body()
    PH = 8 * nq
    for st in range(10):
        for sp in range(2 if st < 9 else 1):
            for t in range(8):
                for q in range(nq):
                    c = "0" if (st == 0 and sp == 0) else O(q, t)
                    B.add(f"{MF} {O(q,t)}, {r('a', aQA[sp]+4*t)}, {r('a', aQB[sp]+4*q)}, {c}",
                          ([("A", st, sp, t)] + ([("B", st, sp)] if t == 0 else [])) if q == 0 else None)
    first = qreads(0, 0)
    for t, _ in first: a(t)
    a("s_waitcnt lgkmcnt(0)")
    LQ = int(QLEAD * nq / 4)
    g = B.spread(qstage_issue(2), -1, 2 * PH - LQ - 6)
    assert g < 2 * PH - LQ
    for st in range(9):
        bar = 2 * PH * (st + 1) - LQ
        B.place_big("B", "s_barrier", bar, ("q", st + 1), hi=bar)
        for i, t in enumerate(rot(st)): B.cv.setdefault(bar - 3 + i // 2, []).append(t)
        if st + 3 < 10: it = qstage_issue(st + 3)
        elif st == 7: it = kv_issue("K", 1) + kv_issue("K", 2)
        else: it = kv_issue("V", 0) + kv_issue("V", 1)
        if st == K0AT: it = it + kv_issue("K", 0)
        if 0 <= st - PF0 < len(PF):
            t = PF[st - PF0]
            it = it + [("s", f"s_add_u32 s4, s{sROT}, {t*16384}", None), ("s", "s_and_b32 s4, s4, 0x7ffff", None),
                       ("M", f"buffer_load_dword v12, v11, s[{sPF}:{sPF+3}], s4 offen", ("pf", t))]
        g = B.spread(it, bar, 2 * PH - 5 if st < 8 else PH + LQ - 6)
        assert g < bar + 2 * PH
    for st in range(10):
        base = 2 * PH * st
        g = base - LQ + 1
        if st > 0:
            for t, tag in qreads(st, 0): g = B.place_d(t, g, tag, 5 - nq)
        g = max(g, 0)
        rd = qreads(st, 1)
        order = rd[nq:nq + 4] + rd[:nq] + rd[nq + 4:] if st > 0 else rd
        for t, tag in order:
            lo = base if tag[0] == "B" else base - PH + nq * tag[3] + nq
            g = B.place_d(t, max(g, lo), tag, 5 - nq)
        if st < 9: assert g < base + 2 * PH - LQ - 3, (st, g)
    aK0 = 180
    g = 2 * PH * 8
    for f in range(8): g = B.place_d(kread(f, kslot(0) * 16384, aK=aK0), g, ("K0", f), 5 - nq) + 1
    c = Asm()
    c("v_lshlrev_b32 v8, 1, v4\nv_xor_b32 v8, v8, v7\nv_mul_u32_u24 v9, 1280, v6\nv_lshl_add_u32 v8, v8, 4, v9")
    for n in range(4): c(f"v_add_u32 v{vWO+n}, {n*8*1280 - n*1024}, v8")
    ar_setup(c)
    c(f"v_mul_u32_u24 v{PFA}, 1280, v3")
    for i in range(16): c(f"v_accvgpr_write_b32 a{aL+i}, 0")
    g = 2 * PH * 9 - LQ + 2
    for t in c.l:
        while any(x[0] == "M" for x in B.big.get(g, [])): g += 1
        B.cv.setdefault(g, []).append(t.strip()); g += 1
        if g >= len(B.mf): g = len(B.mf) - 1
    sc_ = [f"s_mov_b32 s{sQS}, s5", "s_lshr_b32 s4, s2, 3", "s_mul_i32 s4, s4, 52", "s_lshr_b32 s4, s4, 8", f"s_lshl_b32 s{sT0}, s4, 1", f"s_add_u32 s{sT0}, s{sT0}, s{sR}"]
    for k in range(2):
        sc_ += [f"s_add_u32 s{sPFW+k}, s{sT0}, {14 + 12*k}", f"s_and_b32 s{sPFW+k}, s{sPFW+k}, 31", f"s_mul_i32 s{sPFW+k}, s{sPFW+k}, {WSTEP}"]
    sc_ += [f"s_cmp_ge_u32 s4, 3\ns_cselect_b32 s{sPFW+1}, 0x7f000000, s{sPFW+1}", f"s_mul_i32 s{sT0}, s2, 20480",
            f"s_add_u32 s{sX}, s{pWO}, s{sT0}\ns_addc_u32 s{sX+1}, s{pWO+1}, 0", f"s_mov_b32 s{sX+2}, 20480", f"s_mov_b32 s{sT1}, {CSCALE:#x}"]
    for i, t in enumerate(sc_): B.pre.setdefault(2 * PH * 9 + i, []).append(t)
    B.emit(a, resident=[tag for _, tag in first], vm=vm)
    stamp(a)
    a("s_waitcnt lgkmcnt(0)")
    V, M = [], []
    def vadd(t, deps=(), id=None): V.append((id if id is not None else ("v", len(V)), t, list(deps)))
    def vissue(it):
        prev = ""
        for k, t, tag in it:
            vadd(("s_nop 0\n" if (k == "M" and "m0" in prev) else "") + t); prev = t
            if k == "M": vm.append(tag)
    for q in range(nq):
        for t in range(8): M.append((("lq", q, t), f"{MF} {O(q,t)}, {r('a', aQA[1]+4*t)}, {r('a', aQB[1]+4*q)}, {O(q,t)}", []))
    def conv(q):
        for s in range(4):
            b = vO + (q * 8 + 2 * s) * 4
            for j in range(8): vadd(f"v_mul_f32 v{b+j}, s{sT1}, v{b+j}", [(("lq", q, 2 * s + (j >> 2)), 8)])
            for j in range(4): vadd(f"v_cvt_pk_bf16_f32 v{b+j}, v{b+2*j}, v{b+2*j+1}")
            for j in range(4): vadd(f"v_accvgpr_write_b32 a{aQ+16*q+4*s+j}, v{b+j}", id=("Q", q, s) if j == 3 else None)
        for kt in range(2):
            for s in range(4): M.append((("qk0", q, kt, s), qk(0, q, kt, s, czero=True, aK=aK0), [(("Q", q, 3), 2)]))
        for h in range(2):
            z = r("v", vO + q * 32 + 16 * h, 16)
            M.append((("z", q, h), f"v_mfma_f32_32x32x16_bf16 {z}, {r('a', aL)}, {r('a', aL)}, 0", [(("Q", q, 3), 0)]))
    def stats(qs):
        for q in qs:
            b = S(0, q, 0); m = vNM + 4 * q
            vadd(f"v_max3_f32 v{m}, v{b}, v{b+1}, v{b+2}", [(("qk0", q, 1, 3), 8)])
            vadd(f"v_max3_f32 v{m+1}, v{b+3}, v{b+4}, v{b+5}")
            vadd(f"v_max3_f32 v{m}, v{m}, v{b+6}, v{b+7}")
            vadd(f"v_max_f32 v{m}, v{m}, v{m+1}")
        for op in ("v_permlane32_swap_b32", "v_permlane16_swap_b32"):
            for q in qs: vadd(f"v_mov_b32 v{vNM+4*q+1}, v{vNM+4*q}", id=("cp", op, q))
            for q in qs: vadd(f"{op} v{vNM+4*q}, v{vNM+4*q+1}", [(("cp", op, q), 2)], id=("sw", op, q))
            for q in qs: vadd(f"v_max_f32 v{vNM+4*q}, v{vNM+4*q}, v{vNM+4*q+1}", [(("sw", op, q), 2)])
        for q in qs:
            m = vNM + 4 * q; b = S(0, q, 0)
            vadd(f"v_sub_f32 v{m}, 0, v{m}")
            for j in range(1, 4): vadd(f"v_mov_b32 v{m+j}, v{m}", id=("nm", q) if j == 3 else None)
            for j in range(8): vadd(f"v_add_f32 v{b+j}, v{b+j}, v{m}")
    ex0, cv0 = softmax_ops(0, nq)
    ntail = NTAIL[nq]
    def exps(qs):
        for j in range(ntail // 2):
            if (j // 2) % nq in qs:
                vadd(ex0[2 * j]); vadd(ex0[2 * j + 1], id=("e", j))
        for j in range(ntail // 2):
            if (j // 2) % nq in qs: vadd(cv0[j], [(("e", j), 1)])
    def qk1(qs):
        for q in qs:
            for s in range(4): M.append((("qk1", q, s), qk(1, q, 0, s), [(("nm", q), 2), ("khi", 0)]))
    for f in range(8): vadd(kread(f, kslot(0) * 16384 + 8192))
    conv(0); conv(1)
    vissue(kv_issue("K", 3))
    vadd("s_waitcnt lgkmcnt(0)", id="khi")
    conv(2)
    stats([0, 1])
    if nq == 4: conv(3)
    qk1([0, 1])
    if WARM:
        vadd("v_lshlrev_b32 v12, 7, v0")
        vadd(f"buffer_load_dword v12, v12, s[{sX}:{sX+3}], 0 offen"); vm.append(("warm", 0))
    vissue(kv_issue("V", 2))
    exps([0, 1])
    rest_q = list(range(2, nq))
    stats(rest_q); qk1(rest_q); exps(rest_q)
    merge(a, V, M)
    a(f"s_mov_b32 s{sCNT}, 7")
    if STAMP == 2: a("v_mov_b32 v13, 0\nv_mov_b32 v14, 0")
    a(f"s_waitcnt vmcnt({vmwait(('V', 0))})")
    assert vmwait(("V", 1)) >= 8 and vmwait(("K", 2)) >= 8
    a("s_barrier")
    stamp(a)
    a(".p2align 6")
    a(f"L_loop{L}:")
    gen_body(a, nq, 0, L)
    gen_body(a, nq, 1, L)
    gen_body(a, nq, 2, L)
    gen_body(a, nq, 3, L, loopctl=(f"s_sub_u32 s{sCNT}, s{sCNT}, 1", f"s_cmp_gt_u32 s{sCNT}, 1"))
    a(f"s_cbranch_scc1 L_loop{L}")
    a(f"s_cmp_eq_u32 s{sCNT}, 0")
    a(f"s_cbranch_scc1 L_tail{L}")
    for j, pc in PRE: flat(a, wo_issue(j, pc))
    a(f"s_branch L_loop{L}")
    a(f"L_tail{L}:")
    vm = [("w", 0), ("w", 1), ("old", 0)] + [("V", 29)] * 4 + [("K", 30)] * 4 + [("V", 30)] * 4 + [("K", 31)] * 4
    VMDONE.clear(); VMDONE.update([("w", 0), ("w", 1)])
    for i in (28, 29, 30): gen_body(a, nq, i % 4, L, idx=i, vm=vm)
    gen_body(a, nq, 3, L, last=True, idx=31, vm=vm)
    stamp(a)
    a("s_nop 7")
    for q in range(nq): a(f"v_accvgpr_read_b32 v{vNM+4*q}, a{aL+4*q}")
    a(f"s_mov_b32 s{sT0}, 0x5f800000")
    a("s_mov_b64 s[4:5], 0")
    for q in range(nq):
        a(f"v_cmp_ngt_f32 vcc, s{sT0}, v{vNM+4*q}")
        a("s_or_b64 s[4:5], s[4:5], vcc")
    if FORCE_SAFE: a(f"s_branch L_safe{L}")
    a(f"s_cbranch_scc1 L_safe{L}")
    a(f"L_epi{L}:")
    for q in range(nq): a(f"v_rcp_f32 v{vNM+4*q}, v{vNM+4*q}")
    a(f"s_waitcnt vmcnt({vm[::-1].index(('w', 12))})")
    rds = [t for j in range(6, 13) for t in wo_reads(j, PIECE[j])]
    per = -(-len(rds) // (4 * nq))
    for q in range(nq):
        for s in range(4):
            b = vO + (q * 8 + 2 * s) * 4
            for t in rds[:per]: a(t)
            rds = rds[per:]
            for j in range(8): a(f"v_mul_f32 v{b+j}, v{vNM+4*q}, v{b+j}")
            for j in range(4): a(f"v_cvt_pk_bf16_f32 v{b+j}, v{b+2*j}, v{b+2*j+1}")
            if s == 0:
                a(f"s_lshl_b32 s{sT0}, s{sWAVE}, 2\ns_add_u32 s{sT0}, s{sT0}, {q}\ns_mul_i32 s{sT1}, s{sT0}, 52\ns_lshr_b32 s{sT1}, s{sT1}, 8")
                a(f"s_mul_i32 s{sT1}, s{sT1}, {128*5120 - 5*1024}\ns_lshl_b32 s{sT0}, s{sT0}, 10\ns_add_u32 s{sT0}, s{sT0}, s{sT1}\ns_add_u32 s{sT0}, s{sT0}, s3")
            else:
                a(f"s_add_u32 s{sT0}, s{sT0}, 5120")
            a(f"buffer_store_dwordx4 {r('v', b)}, v2, s[{sWS}:{sWS+3}], s{sT0} offen{OST}")
    a("s_branch L_common")
    gen_safe(a, nq, L)

def gen_safe(a, nq, L):
    a(f"L_safe{L}:")
    a("s_waitcnt vmcnt(0) lgkmcnt(0)")
    for i in range(nq * 32): a(f"v_mov_b32 v{vO+i}, 0")
    for q in range(nq):
        a(f"v_mov_b32 v{vNM+4*q}, 0xff800000")
        a(f"v_mov_b32 v{vNM+4*q+3}, 0")
    kv_voffsets(a, False)
    kv_srds(a)
    a(f"s_add_u32 s{sKW}, s{sVW}, {SBASE}")
    a(f"s_sub_u32 s{sT0}, s{sKW}, {KBASE}")
    for i in range(4): a(f"v_add_u32 v{vKR+i}, s{sT0}, v{vKR+i}")
    for i in range(8): a(f"v_add_u32 v{vVR+i}, s{sKW}, v{vVR+i}")
    a(f"s_mov_b32 s{sKoff}, 0")
    a(f"L_sloop{L}:")
    def tile(vd, srd):
        for hh in range(2):
            a(f"s_add_u32 m0, s{sKW}, {hh*16384}")
            a(f"s_add_u32 s{sVoff}, s{sKoff}, {hh*4096}")
            for n in range(4): a(f"buffer_load_dwordx4 v{vd+n}, s[{srd}:{srd+3}], s{sVoff} offen offset:{n*1024} lds")
    tile(vKD, sK)
    a("s_waitcnt vmcnt(0)")
    for f in range(8): a(kread(f, 0, 16384))
    a("s_waitcnt lgkmcnt(0)")
    tile(vVD, sV)
    for kt in range(2):
        for s in range(4):
            for q in range(nq): a(qk(0, q, kt, s, czero=True))
    a("s_nop 7")
    T = vS + 32
    for q in range(nq):
        b = S(0, q, 0); m = T + 2 * q
        a(f"v_max3_f32 v{m}, v{b}, v{b+1}, v{b+2}")
        a(f"v_max3_f32 v{m+1}, v{b+3}, v{b+4}, v{b+5}")
        a(f"v_max3_f32 v{m}, v{m}, v{b+6}, v{b+7}")
        a(f"v_max3_f32 v{m}, v{m}, v{m+1}, v{vNM+4*q}")
    xlane(a, [T + 2 * q for q in range(nq)], "v_max_f32")
    for q in range(nq):
        m = vNM + 4 * q; b = S(0, q, 0)
        a(f"v_sub_f32 v{m+2}, v{m}, v{T+2*q}")
        a(f"v_exp_f32 v{m+2}, v{m+2}")
        a(f"v_mov_b32 v{m}, v{T+2*q}")
        for j in range(8): a(f"v_sub_f32 v{b+j}, v{b+j}, v{m}")
        for j in range(8): a(f"v_exp_f32 v{b+j}, v{b+j}")
        a(f"v_mul_f32 v{m+3}, v{m+3}, v{m+2}")
        for i in range(32): a(f"v_mul_f32 v{vO+q*32+i}, v{vO+q*32+i}, v{m+2}")
        for j in range(4): a(f"v_cvt_pk_bf16_f32 v{b+j}, v{b+2*j}, v{b+2*j+1}")
        for j in range(4):
            a(f"v_lshlrev_b32 v{b+4}, 16, v{b+j}")
            a(f"v_and_b32 v{b+5}, 0xffff0000, v{b+j}")
            a(f"v_add_f32 v{m+3}, v{m+3}, v{b+4}")
            a(f"v_add_f32 v{m+3}, v{m+3}, v{b+5}")
    a("s_waitcnt vmcnt(0)")
    for d in range(8):
        for h in range(2): a(vread(d, h, 0, 16384))
        if d == 3: a("s_waitcnt lgkmcnt(0)")
    a("s_waitcnt lgkmcnt(0)")
    for d in range(8):
        for q in range(nq): a(pv(0, q, d))
    a("s_nop 7")
    a(f"s_add_u32 s{sKoff}, s{sKoff}, 8192")
    a(f"s_cmp_lt_u32 s{sKoff}, 524288")
    a(f"s_cbranch_scc1 L_sloop{L}")
    xlane(a, [vNM + 4 * q + 3 for q in range(nq)], "v_add_f32", tmp=-2)
    for q in range(nq): a(f"v_mov_b32 v{vNM+4*q}, v{vNM+4*q+3}")
    ar_setup(a)
    a(f"v_mul_u32_u24 v{PFA}, 1280, v3")
    for j in (8, 11): flat(a, wo_issue(j, PIECE[j]))
    a("s_waitcnt vmcnt(0)")
    a(f"s_branch L_epi{L}")

def gen_common(a):
    a("L_common:")
    piece = dict(PIECE)
    vm = [("w", j) for j in range(15)] + [("st", 0)]
    def issue(n, p):
        piece[n] = p
        flat(a, wo_issue(n, p)); vm.extend([("w", n)] * 4)
    def vw(tag): return vm[::-1].index(tag)
    a("s_waitcnt lgkmcnt(0)")
    NPRE = opt("npre", 3)
    for i in range(NPRE): issue(15 + i, piece[6 + i])
    a(f"""s_lshl_b32 s{sT0}, s{sOB}, 2
s_add_u32 s{sT0}, s{sT0}, s{sWAVE}
s_mul_i32 s{sT0}, s{sT0}, {32*5120}
s_add_u32 s{sO}, s{pWS}, s{sT0}
s_addc_u32 s{sO+1}, s{pWS+1}, 0
s_mov_b32 s{sO+2}, {0 if opt("oskip", 0) else 32*5120}
s_mov_b32 s{sOUT}, s{pDBG}
s_mov_b32 s{sOUT+1}, s{pDBG+1}
s_mov_b32 s{sOUT+2}, 256
v_mov_b32 v12, 1
v_mov_b32 v15, 0
v_add_u32 v16, 4096, v2""")
    a(f"s_waitcnt vmcnt({vw(('st', 0))})")
    if opt("opf", 0):
        for half in range(2):
            a(f"v_lshrrev_b32 v17, 5, v3\nv_lshl_add_u32 v17, v1, 2, v17\nv_add_u32 v17, {2*half}, v17")
            a(f"v_mul_u32_u24 v18, 52, v17\nv_lshrrev_b32 v18, 8, v18\nv_mul_u32_u24 v18, {128*5120 - 5*1024}, v18\nv_lshl_add_u32 v18, v17, 10, v18")
            a(f"v_bfe_u32 v19, v3, 3, 2\nv_mul_u32_u24 v19, 5120, v19\nv_add_u32 v18, v18, v19\nv_lshl_add_u32 v18, v7, 7, v18")
            a(f"v_cmp_gt_u32 vcc, 15, v17\nv_mov_b32 v19, 0x7f000000\ns_nop 0\nv_cndmask_b32 v18, v19, v18, vcc")
            a(f"buffer_load_dword v{20+half}, v18, s[{sWS}:{sWS+3}], s3 offen sc1")
            vm.append(("opf", half))
    a("s_barrier")
    a(f"s_cmp_lg_u32 s{sWAVE}, 0")
    a("s_cbranch_scc1 L_nosig")
    a(f"s_lshl_b32 s{sT0}, s{sB}, 5")
    a("s_mov_b64 exec, 1")
    a(f"buffer_atomic_add v12, v15, s[{sOUT}:{sOUT+3}], s{sT0} offen sc1")
    a("s_mov_b64 exec, -1")
    a("L_nosig:")
    stamp(a)
    a("s_cmp_ge_u32 s2, 240")
    a("s_cbranch_scc1 L_exit")
    for j in (13, 14):
        for t in wo_reads(j, piece[j]): a(t)
    for i in range(NPRE, 7): issue(15 + i, piece[6 + i])
    a(f"s_mul_i32 s{sT1}, s{sOB}, 86\ns_lshr_b32 s{sT1}, s{sT1}, 8\ns_lshl_b32 s{sT1}, s{sT1}, 5")
    def poll():
        a(f"buffer_load_dword v12, v15, s[{sOUT}:{sOUT+3}], s{sT1} offen sc0 sc1")
        vm.append(("poll", 0))
    PA = opt("pollat", 5)
    issue(22, 3)
    pend = [13, 14]; nxt = 23
    for j in range(15, 22):
        a(f"s_waitcnt vmcnt({vw(('w', j))}) lgkmcnt(0)")
        for t in wo_reads(j, piece[j]): a(t)
        if j - 15 == PA: poll()
        for x in pend: issue(nxt, piece[x]); nxt += 1
        pend = [j]
    a("s_waitcnt lgkmcnt(0)")
    issue(nxt, piece[pend[0]])
    assert nxt == 31
    a(f"s_cmp_lg_u32 s{sWAVE}, 0")
    a("s_cbranch_scc1 L_go")
    a(f"s_waitcnt vmcnt({vw(('poll', 0))})")
    a(f"s_mov_b32 s{sCNT}, {SPIN}")
    a("L_poll:")
    a(f"v_readfirstlane_b32 s{sT0}, v12")
    a(f"s_sub_u32 s{sCNT}, s{sCNT}, 1")
    a(f"s_cbranch_scc1 L_go")
    a(f"s_cmp_ge_u32 s{sT0}, 32")
    a("s_cbranch_scc1 L_go")
    a(f"buffer_load_dword v12, v15, s[{sOUT}:{sOUT+3}], s{sT1} offen sc0 sc1")
    a("s_waitcnt vmcnt(0)")
    a("s_branch L_poll")
    a("L_go:")
    a("s_barrier")
    stamp(a)
    vAcc = 128
    ring = [208 + 4 * i for i in range(12)] + [36] + ([12] if STAMP < 2 else [])
    RD = len(ring)
    def o_pre(n): return [f"s_add_u32 s{sT1}, s{sR}, {n}", f"s_and_b32 s{sT1}, s{sT1}, 31", f"s_mul_i32 s{sT1}, s{sT1}, 5120"]
    def o_ld(i):
        n, qt = divmod(i, 5)
        return f"buffer_load_dwordx4 {r('v', ring[i % RD])}, v{2 if qt < 4 else 16}, s[{sO}:{sO+3}], s{sT1} offen offset:{(qt&3)*1024}{OLD}"
    for i in range(RD):
        if i % 5 == 0:
            for t in o_pre(i // 5): a(t)
        a(o_ld(i)); vm.append(("o", i))
    B = Body()
    for n in range(32):
        rf, bank = bank_of(n)
        for qt in range(5):
            for nt in range(4):
                acc = r("v", vAcc + (qt * 4 + nt) * 4)
                need = None
                if nt == 0: need = [("vm", ("o", 5 * n + qt))] + ([("W", n)] if (qt == 0 and n >= 22) else [])
                B.add(f"{MF} {acc}, {r(rf, bank+4*nt)}, {r('v', ring[(5*n+qt) % RD])}, {'0' if n == 0 else acc}", need)
    for i in range(160 - RD):
        j = i + RD
        if j % 5 == 0:
            for k, t in enumerate(o_pre(j // 5)): B.pre.setdefault(4 * i + k, []).append(t)
        B.place_big("M", o_ld(j), 4 * i + 3, ("o", j), hi=4 * i + 3)
    for n in range(10):
        j = n + 22
        g = 20 * (n + 1)
        for i, t in enumerate(wo_reads(j, piece[j])):
            g = B.place_d(t, g, ("W", j), 1, req=[("vm", ("w", j))] if i == 0 else None) + 1
    if STAMP == 4:
        a("v_mov_b32 v13, 0\nv_mov_b32 v14, 0\ns_memtime s[100:101]\ns_waitcnt lgkmcnt(0)"); rec(a)
        for n in range(32):
            B.cv.setdefault(20 * n + 1, []).append("s_memtime s[100:101]\ns_waitcnt lgkmcnt(0)\nv_cmp_eq_u32 vcc, v13, v3\nv_mov_b32 v15, s100\nv_add_u32 v13, 1, v13\nv_cndmask_b32 v14, v14, v15, vcc")
    B.emit(a, vm=vm)
    stamp(a)
    vB = 48
    a(f"s_mov_b32 s{sOUT}, s{pOUT}\ns_mov_b32 s{sOUT+1}, s{pOUT+1}\ns_mov_b32 s{sOUT+2}, {8*240*640*2}")
    a(f"s_mul_i32 s{sT0}, s{sWAVE}, 5120")
    a(f"v_add_u32 v8, s{sT0}, v2")
    a("v_add_u32 v9, 40960, v8")
    a("s_nop 4")
    a("s_barrier")
    for nt in range(4):
        a(f"s_cmp_eq_u32 s{sWAVE}, {nt}")
        a(f"s_cbranch_scc1 L_skipw{nt}")
        for qt in range(5): a(f"ds_write_b128 v{8 + (nt >> 1)}, {r('v', vAcc+(qt*4+nt)*4)} offset:{(nt&1)*20480 + qt*1024}")
        a(f"s_branch L_nextw{nt}")
        a(f"L_skipw{nt}:")
        for qt in range(5):
            for j in range(4): a(f"v_mov_b32 v{vB+qt*4+j}, v{vAcc+(qt*4+nt)*4+j}")
        a(f"L_nextw{nt}:")
    a(f"s_mul_i32 s{sT0}, s{sWAVE}, 20480")
    a(f"v_add_u32 v12, s{sT0}, v2")
    for i in range(1, 4):
        a(f"s_add_u32 s{sT1}, s{sWAVE}, {i}\ns_and_b32 s{sT1}, s{sT1}, 3\ns_mul_i32 s{sT1}, s{sT1}, 5120\nv_add_u32 v{16+i}, s{sT1}, v12")
    a(f"s_mul_i32 s{sT0}, s{sOB}, {80*1280}\ns_lshl_b32 s{sT1}, s{sQS}, 7\ns_add_u32 s{sT0}, s{sT0}, s{sT1}\ns_lshl_b32 s{sT1}, s{sWAVE}, 5\ns_add_u32 s{sT0}, s{sT0}, s{sT1}")
    a("v_mul_u32_u24 v10, 1280, v5\nv_lshl_add_u32 v10, v4, 3, v10")
    a("s_waitcnt lgkmcnt(0)")
    a("s_barrier")
    for qt in range(5):
        for i in range(1, 4): a(f"ds_read_b128 {r('v', vAcc+(qt*3+i-1)*4)}, v{16+i} offset:{qt*1024}")
    for qt in range(5):
        a(f"s_waitcnt lgkmcnt({12-3*qt})")
        b0 = vAcc + qt * 12
        for j in range(4): a(f"v_add_f32 v{vB+qt*4+j}, v{vB+qt*4+j}, v{b0+j}")
        for j in range(4): a(f"v_add_f32 v{b0+4+j}, v{b0+4+j}, v{b0+8+j}")
        for j in range(4): a(f"v_add_f32 v{vB+qt*4+j}, v{vB+qt*4+j}, v{b0+4+j}")
        for j in range(2): a(f"v_cvt_pk_bf16_f32 v{vB+qt*4+j}, v{vB+qt*4+2*j}, v{vB+qt*4+2*j+1}")
        a(f"buffer_store_dwordx2 {r('v', vB+qt*4, 2)}, v10, s[{sOUT}:{sOUT+3}], s{sT0} offen{FST}")
        if qt < 4: a(f"s_add_u32 s{sT0}, s{sT0}, {16*1280}")
    if STAMP:
        a("s_waitcnt vmcnt(0)")
        a("s_waitcnt lgkmcnt(0)")
        if STAMP >= 2:
            a(f"s_lshl_b32 s{sT0}, s2, 10\ns_add_u32 s{sT0}, s{sT0}, 0x80000\nv_lshlrev_b32 v15, 2, v0")
            a(f"buffer_store_dword v14, v15, s[{sST}:{sST+3}], s{sT0} offen")
        a("s_memtime s[76:77]\ns_memrealtime s[78:79]\ns_waitcnt lgkmcnt(0)")
        if opt("dbgout", 0):
            a(f"s_mov_b32 s{sOUT}, s{pDBG}\ns_mov_b32 s{sOUT+1}, s{pDBG+1}\ns_mov_b32 s{sOUT+2}, 256")
            a("s_mov_b64 exec, 1\nv_mov_b32 v15, 0")
            words = [1, 2, 3, 4, 5, 6, 7, 9]
            for i in range(8):
                a(f"s_sub_u32 s4, s{sSTAMP+4*(i+1)+2}, s{sSTAMP+4*i+2}\nv_mov_b32 v12, s4")
                a(f"buffer_atomic_umax v12, v15, s[{sOUT}:{sOUT+3}], 0 offen offset:{4*words[i]}\ns_nop 1")
            a(f"v_mov_b32 v12, s78\nbuffer_atomic_umax v12, v15, s[{sOUT}:{sOUT+3}], 0 offen offset:40\ns_nop 1")
            a(f"s_not_b32 s4, s{sSTAMP+2}\nv_mov_b32 v12, s4\nbuffer_atomic_umax v12, v15, s[{sOUT}:{sOUT+3}], 0 offen offset:44")
            a("s_mov_b64 exec, -1")
        else:
            stamp_store(a, 18, sSTAMP, sST, 4)

def gen():
    a = Asm()
    a("s_cmp_ge_u32 s2, 256")
    a("s_cbranch_scc1 L_exit")
    a("s_getpc_b64 s[8:9]")
    a(f"s_load_dwordx16 s[{sARG}:{sARG+15}], s[0:1], 0")
    a(f"s_mov_b32 s10, L_exit-{KN}-16\ns_mov_b32 s11, 0x20000\ns_lshr_b32 s4, s2, 3\ns_lshl_b32 s4, s4, 12")
    a("v_lshrrev_b32 v11, 3, v0\nv_lshlrev_b32 v11, 7, v11")
    a("buffer_load_dword v12, v11, s[8:11], s4 offen")
    stamp(a)
    if MAP == "bmajor":
        a(f"s_and_b32 s{sB}, s2, 7\ns_lshr_b32 s{sH}, s2, 3")
        a(f"s_mul_i32 s{sQS}, s{sH}, 5\ns_lshr_b32 s{sQS}, s{sQS}, 4")
    else:
        a(f"""s_and_b32 s{sT0}, s2, 1
s_lshl_b32 s{sB}, s{sT0}, 2
s_lshr_b32 s{sT1}, s2, 3
s_and_b32 s{sT0}, s{sT1}, 3
s_add_u32 s{sB}, s{sB}, s{sT0}
s_mul_i32 s{sQS}, s{sT0}, 10
s_and_b32 s{sH}, s2, 6
s_lshl_b32 s{sH}, s{sH}, 2
s_lshr_b32 s{sT1}, s{sT1}, 2
s_add_u32 s{sH}, s{sH}, s{sT1}
s_mul_i32 s{sT1}, s{sT1}, 5
s_add_u32 s{sQS}, s{sQS}, s{sT1}
s_lshr_b32 s{sQS}, s{sQS}, 2
s_sub_u32 s{sT0}, s{sQS}, 10
s_cmp_ge_u32 s{sQS}, 10
s_cselect_b32 s{sQS}, s{sT0}, s{sQS}""")
    a(f"""v_lshrrev_b32 v1, 6, v0
v_and_b32 v3, 63, v0
v_lshrrev_b32 v4, 4, v3
v_readfirstlane_b32 s{sWAVE}, v1
v_and_b32 v5, 15, v3
v_lshlrev_b32 v2, 4, v3
v_lshrrev_b32 v6, 3, v3
v_and_b32 v7, 7, v3""")
    a("v_lshl_add_u32 v8, v1, 6, v6\nv_mul_u32_u24 v8, 1280, v8\nv_xor_b32 v9, v7, v4")
    for n in range(8):
        a(f"v_xor_b32 v10, {4*(n&1)}, v9")
        a(f"v_lshl_add_u32 v10, v10, 4, v8")
        a(f"v_add_u32 v{vXD+n}, {n*8*1280 - (n&3)*1024}, v10")
    a("v_lshl_add_u32 v8, v1, 4, v4\nv_lshlrev_b32 v8, 13, v8\nv_lshlrev_b32 v9, 2, v4\nv_xor_b32 v9, v9, v5\nv_lshl_add_u32 v8, v9, 4, v8")
    for n in range(4): a(f"v_add_u32 v{vWD+n}, {n*4*8192 - n*1024 - 8*(n>>1)}, v8")
    a(f"""s_lshl_b32 s{sXW}, s{sWAVE}, 13
s_lshl_b32 s{sVW}, s{sWAVE}, 12
s_add_u32 s{sKW}, s{sVW}, {KBASE}
s_mul_i32 s{sWW}, s{sWAVE}, 4112
s_mov_b32 s{sX+2}, 307200
s_mov_b32 s{sX+3}, 0x20000
s_mov_b32 s{sW+3}, 0x20000
s_mul_i32 s{sT0}, s{sB}, 307200
s_lshl_b32 s{sT1}, s{sH}, 8
s_sub_u32 s{sW+2}, 5242880, s{sT1}
s_waitcnt lgkmcnt(0)
{"s_memtime s[60:61]" + chr(10) + "s_memrealtime s[62:63]" if STAMP == 5 else ""}
s_add_u32 s{sX}, s{pX}, s{sT0}
s_addc_u32 s{sX+1}, s{pX+1}, 0
s_add_u32 s{sW}, s{pWQ}, s{sT1}
s_addc_u32 s{sW+1}, s{pWQ+1}, 0""")
    a(f"s_cmp_eq_u32 s{sWAVE}, 3")
    a("s_cbranch_scc1 L_waveB")
    def rest(a):
        kv_srds(a)
        a(f"""s_mov_b32 s{sWS}, s{pWS}
s_mov_b32 s{sWS+1}, s{pWS+1}
s_mov_b32 s{sWS+2}, {8*15*128*1024}
s_mov_b32 s{sWS+3}, 0x20000""")
        if STAMP:
            a(f"s_add_u32 s{sST}, s{pWS}, 0x10000000\ns_addc_u32 s{sST+1}, s{pWS+1}, 0\ns_mov_b32 s{sST+2}, 0x100000\ns_mov_b32 s{sST+3}, 0x20000")
        if PF:
            a(f"""s_cmp_lt_u32 s{sWAVE}, 2
s_cselect_b32 s{sPF}, s{sK}, s{sV}
s_cselect_b32 s{sPF+1}, s{sK+1}, s{sV+1}
s_mov_b32 s{sPF+2}, 524288
s_mov_b32 s{sPF+3}, 0x20000
v_and_b32 v11, 127, v0
v_lshlrev_b32 v11, 7, v11""")
        kv_voffsets(a, True)
        a(f"v_lshlrev_b32 v8, 8, v5\nv_add_u32 v8, {KBASE}, v8\nv_xor_b32 v9, v4, v5")
        for s in range(4):
            a(f"v_xor_b32 v10, {4*s}, v9")
            a(f"v_lshl_add_u32 v{vKR+s}, v10, 4, v8")
        a("v_lshrrev_b32 v8, 2, v3\nv_and_b32 v9, 7, v8\nv_lshlrev_b32 v8, 8, v8\nv_and_b32 v10, 3, v3\nv_lshl_add_u32 v8, v10, 3, v8")
        for t in range(8):
            a(f"v_xor_b32 v10, {t}, v9")
            a(f"v_lshl_add_u32 v{vVR+t}, v10, 5, v8")
        a(f"v_lshlrev_b32 v8, 13, v1\nv_lshl_add_u32 v8, v5, 7, v8\nv_add_u32 v8, {QBUF[1]}, v8\nv_lshrrev_b32 v9, 1, v5\nv_xor_b32 v9, v9, v4")
        for sp in range(2):
            a(f"v_xor_b32 v10, {4*sp}, v9")
            a(f"v_lshl_add_u32 v{vXR+sp}, v10, 4, v8")
        a(f"v_bfe_u32 v9, v3, 2, 2\nv_lshl_add_u32 v8, v4, 3, v9\nv_lshlrev_b32 v8, 8, v8\nv_and_b32 v10, 3, v3\nv_lshl_add_u32 v8, v10, 4, v8")
        a(f"v_add_u32 v8, {QBUF[1]}, v8\nv_lshl_add_u32 v8, v4, 3, v8")
        for s in range(4):
            a(f"v_xor_b32 v10, {s}, v9")
            a(f"v_lshl_add_u32 v{vWR+s}, v10, 6, v8")
        a("v_and_b32 v8, 3, v3\nv_cmp_eq_u32 vcc, 0, v8\nv_mov_b32 v9, 0x3f803f80\nv_mov_b32 v10, 0\nv_cndmask_b32 v9, v10, v9, vcc")
        for j in range(4): a(f"v_accvgpr_write_b32 a{aONE+j}, v9")
        a(f"s_mul_i32 s3, s{sB}, 96\ns_add_u32 s3, s3, s{sH}\ns_mul_i32 s3, s3, 20480")
        a(f"s_lshr_b32 s{sROT}, s2, 3\ns_lshl_b32 s{sROT}, s{sROT}, 14" if opt("rot", 1) else f"s_mov_b32 s{sROT}, 0")
        if PMAP:
            a(f"""s_lshr_b32 s4, s2, 3
s_mul_i32 s6, s4, 52
s_lshr_b32 s6, s6, 8
s_mul_i32 s5, s6, 5
s_sub_u32 s5, s4, s5
s_mul_i32 s{sR}, s5, {opt("rmul", 0)}
s_and_b32 s7, s2, 1
s_mul_i32 s7, s7, 5
s_add_u32 s5, s5, s7
s_and_b32 s{sOB}, s2, 6
s_mul_i32 s{sOB}, s{sOB}, 3
s_add_u32 s{sOB}, s{sOB}, s6""")
        else:
            a(f"""s_lshr_b32 s4, s2, 3
s_mul_i32 s6, s4, 26
s_lshr_b32 s6, s6, 8
s_mul_i32 s5, s6, 10
s_sub_u32 s5, s4, s5
s_and_b32 s{sOB}, s2, 7
s_mul_i32 s{sOB}, s{sOB}, 3
s_add_u32 s{sOB}, s{sOB}, s6""")
        if not PMAP: a(f"s_mov_b32 s{sR}, 0")
        a(f"""
s_mul_i32 s6, s{sWAVE}, {131072 if WCONT else 1024*1280}
s_lshl_b32 s7, s5, {19 if WCONT else 7}
s_add_u32 s6, s6, s7
s_add_u32 s{sWO}, s{pWO}, s6
s_addc_u32 s{sWO+1}, s{pWO+1}, 0
s_sub_u32 s{sWO+2}, 5242880, s6
s_cmp_ge_u32 s2, 240
s_cselect_b32 s{sWO+2}, 0, s{sWO+2}
{"s_mov_b32 s%d, 0" % (sWO+2) if opt("wskip", 0) else ""}
s_mov_b32 s{sWO+3}, 0x20000""")
    global REST
    REST = rest
    base = nstamp[0]
    gen_wave2(a, 4, "A")
    a("L_waveB:")
    nstamp[0] = base
    gen_wave2(a, 3, "B")
    gen_common(a)
    a("L_exit:")
    a("s_endpgm")
    return a.text()

def gen_wave2(a, nq, L):
    b = Asm()
    gen_wave(b, nq, L)
    i = next(k for k, l in enumerate(b.l) if "s_waitcnt vmcnt" in l)
    c = Asm(); REST(c)
    a.l += b.l[:i] + c.l + b.l[i:]

body = gen()
print(wrap([dict(name=KN, grid=256, block=256, lds=163840, body=body, vgpr=512, sgpr=102, accum=256)]))
```

```python
import sys, struct, math
from gencommon import *

OPT = dict(kv.split("=") for kv in sys.argv[1:])
def opt(k, d): return type(d)(OPT.get(k, d))
STAMP = opt("stamp", 0)
MAP = opt("map", "mixed")
NT = opt("nt", 1)
FORCE_SAFE = opt("safe", 0)
QLEAD = opt("qlead", 28)
K0AT = opt("k0at", 2)
WARM = opt("warm", 1)
OD = opt("od", 5)
OLD = {"": "", "plain": "", "nt": " nt", "sc1": " sc1", "sc01": " sc0 sc1"}[opt("old", "sc1")]
OST = {"": "", "plain": "", "sc1": " sc1", "sc01": " sc0 sc1"}[opt("ost", "sc01")]
SPIN = opt("spin", 1 << 16)
CHAIN = opt("chain", 1)
FST = {"": "", "sc01": " sc0 sc1", "nt": " nt"}[opt("fst", "")]
PMAP = opt("pmap", 1)
PF = [int(t) for t in opt("pf", "").split(",") if t]
PF0 = opt("pf0", 0)
sPF = 72
W6 = [tuple(int(y) for y in x.split(":")) for x in opt("w6", "29:56,30:56").split(",") if x]
sPFW = 6
PFD, PFA = (13, 14) if STAMP < 2 else (12, 1)
SNAKE = opt("snake", 1)

MF = "v_mfma_f32_16x16x32_bf16"
VBASE, SBASE, KBASE = 0, 64 * 1024, 96 * 1024
QBUF = [0, 48 * 1024, 96 * 1024]
XOFF, WOFF = 0, 31744
def kslot(t): return (t + 3) % 4
def vslot(t): return t % 4
vO = 128; vS = 64; vNM = 48
vKR = 16; vVR = 20; vKD = 28; vVD = 32; vXD = 36; vWD = 44
vXR = 64; vWR = 66
vWO = 36
vAR = [40, 44, 8]
aQ = 0; aK = 64; aV = 96; aL = 128; aONE = 144
aQA = [64, 96]; aQB = [148, 164]
sK, sV, sX, sW, sWS = 8, 12, 16, 20, 24
sO, sOUT = 16, 20
sWAVE, sKW, sVW, sXW, sWW = 28, 29, 30, 31, 32
sKoff, sVoff, sCNT, sB, sH, sT0, sT1 = 33, 34, 35, 36, 37, 38, 39
sKinc, sKmask, sVinc, sVmask = 6, 7, 31, 32
sST, sSTAMP = 40, 44
sWO = 76
sROT, sQS, sR, sOB = 80, 81, 82, 83
sARG = 84
pX, pK, pV, pWQ, pWO, pOUT, pDBG, pWS = [sARG + 2 * i for i in range(8)]
CSCALE = struct.unpack("<I", struct.pack("<f", math.log2(math.e) / math.sqrt(128.0)))[0]
WCONT = opt('wcont', 0)
WSTEP = 4096 if WCONT else 32 * 1280

def r(pfx, b, n=4): return f"{pfx}[{b}:{b+n-1}]"
def O(q, d): return r("v", vO + (q * 8 + d) * 4)
def S(p, q, kt): return vS + 32 * p + 8 * q + 4 * kt
def ntf(): return {0: "", 1: " nt", 2: " sc1 nt"}[NT]

nstamp = [0]
def stamp(a):
    if STAMP:
        i = nstamp[0]; nstamp[0] += 1
        assert i < 8
        a(f"s_memtime s[{sSTAMP+4*i}:{sSTAMP+4*i+1}]")
        a(f"s_memrealtime s[{sSTAMP+4*i+2}:{sSTAMP+4*i+3}]")
def rec(a):
    a("v_cmp_eq_u32 vcc, v13, v3\nv_mov_b32 v15, s100\nv_add_u32 v13, 1, v13\nv_cndmask_b32 v14, v14, v15, vcc")

def dmaK(n): return f"buffer_load_dwordx4 v{vKD+n}, s[{sK}:{sK+3}], s{sKoff} offen offset:{n*1024}{ntf()} lds"
def dmaV(n): return f"buffer_load_dwordx4 v{vVD+n}, s[{sV}:{sV+3}], s{sVoff} offen offset:{n*1024}{ntf() if not opt('vdef', 0) else ''} lds"
def kread(f, off, ktoff=4096, aK=aK):
    kt, s = f >> 2, f & 3
    return f"ds_read_b128 {r('a', aK+4*f)}, v{vKR+s} offset:{off + kt*ktoff}"
def vread(d, second, off, soff=4096):
    return f"ds_read_b64_tr_b16 {r('a', aV+4*d+2*second, 2)}, v{vVR+d} offset:{off + second*soff}"
def qk(p, q, kt, s, czero=False, aK=aK):
    b = S(p, q, kt)
    c = r("v", b) if s else ("0" if czero else r("v", vNM + 4 * q))
    return f"{MF} {r('v', b)}, {r('a', aK+4*(kt*4+s))}, {r('a', aQ+16*q+4*s)}, {c}"
def pv(p, q, d): return f"{MF} {O(q,d)}, {r('a', aV+4*d)}, {r('v', S(p,q,0))}, {O(q,d)}"
def sm(p, q): return f"{MF} {r('a', aL+4*q)}, {r('a', aONE)}, {r('v', S(p,q,0))}, {r('a', aL+4*q)}"
def softmax_ops(p, nq):
    ex, cv = [], []
    for kt in range(2):
        for q in range(nq):
            b = S(p, q, kt)
            for j in range(4): ex.append(f"v_exp_f32 v{b+j}, v{b+j}")
            for j in range(2): cv.append(f"v_cvt_pk_bf16_f32 v{S(p,q,0)+2*kt+j}, v{b+2*j}, v{b+2*j+1}")
    return ex, cv

PRE = [(0, 4), (1, 5)]
PLAN = {28: ([0, 1], [(2, 9), (3, 4), (4, 5)]),
        29: ([2, 3], [(5, 6), (6, 0), (7, 9), (8, 4)]),
        30: ([4, 5], [(9, 7), (10, 1), (11, 5), (12, 6)]),
        31: ([], [(13, 8), (14, 2)])}
PIECE = dict(PRE)
for _b in PLAN.values(): PIECE.update(dict(_b[1]))
VBANK = [20, 48, 64, 80, 96, 112]
def bank_of(n):
    if n < 16: return "a", ((n + 10) % 16) * 16
    if n < 22: return "v", VBANK[n - 16]
    return bank_of(n - 22)
def wo_issue(n, piece):
    out = [("s", f"s_add_u32 s{sT0}, s{sR}, {n}"), ("s", f"s_and_b32 s{sT0}, s{sT0}, 31"),
           ("s", f"s_mul_i32 s{sT0}, s{sT0}, {WSTEP}"), ("s", f"s_add_u32 m0, s{sVW}, {piece*16384}")]
    out += [("M", f"buffer_load_dwordx4 v{vWO+i}, s[{sWO}:{sWO+3}], s{sT0} offen offset:{i*1024} lds") for i in range(4)]
    return out
def wo_reads(n, piece):
    rf, bank = bank_of(n)
    return [f"ds_read_b64_tr_b16 {r(rf, bank+4*t+2*h, 2)}, v{vAR[piece >> 2]+t} offset:{(piece & 3)*16384 + h*2048}" for t in range(4) for h in range(2)]
def flat(a, items):
    prev = None
    for it in items:
        k, t = it[0], it[1]
        if k == "M" and prev and "m0" in prev: a("s_nop 0")
        a(t); prev = t

class Body:
    def __init__(self):
        self.mf = []; self.big = {}; self.pre = {}; self.cv = {}; self.lastcv = 0
    def add(self, text, need=None): self.mf.append((text, need))
    def place_big(self, kind, text, target, tag=None, hi=None, req=None):
        n = len(self.mf)
        target = min(target, n - 1)
        hi = min(n - 1, target + 3 if hi is None else max(hi, target))
        g = target
        while g in self.big and g < hi: g += 1
        if g in self.big: g = min(range(target, hi + 1), key=lambda x: len(self.big[x]))
        self.big.setdefault(g, []).append((kind, text, tag, req))
        return g
    def place_d(self, text, lo, tag, cap, req=None):
        g = lo
        while True:
            kinds = [x[0] for x in self.big.get(g, [])]
            if all(k == "D" for k in kinds) and len(kinds) < cap: break
            g += 1
        assert g < len(self.mf)
        self.big.setdefault(g, []).append(("D", text, tag, req))
        return g
    def place_cvt(self, text, lo, hi):
        n = len(self.mf); best = None
        lo = max(lo, self.lastcv)
        for g in range(lo, min(hi, lo + 4, n - 1) + 1):
            kinds = [x[0] for x in self.big.get(g, [])]
            cnt = len(self.cv.get(g, []))
            if (kinds == ["D"] and cnt == 0) or (kinds == [] and cnt < 2): best = g; break
        if best is None: best = min(lo, n - 1)
        self.cv.setdefault(best, []).append(text)
        self.lastcv = best
        return best
    def place_s(self, text, lo, hi=None):
        n = len(self.mf)
        hi = lo if hi is None else hi
        for g in range(lo, min(hi, n - 1) + 1):
            kinds = [x[0] for x in self.big.get(g, [])]
            if not self.pre.get(g) and (kinds == ["E"] or kinds == [] or (kinds == ["D"] and not self.cv.get(g))):
                self.pre.setdefault(g, []).append(text); return g
        self.pre.setdefault(lo, []).append(text); return lo
    def spread(self, it, start, span, req=None):
        nm = sum(1 for x in it if x[0] == "M")
        i = 0; pend = []; lastg = start
        for k, t, tag in it:
            if k != "M": pend.append(t); continue
            g = self.place_big("M", t, max(start + 2 + int(i * span / nm), lastg + 1 + (len(pend) + 1) // 2), tag, req=req if i == 0 else None)
            for j, pt in enumerate(pend):
                self.pre.setdefault(max(lastg + 1, g - (len(pend) - j + 1) // 2), []).append(pt)
            pend = []; lastg = g; i += 1
        return lastg
    def emit(self, a, resident=(), vm=None, vmdone=None):
        total = {}
        for items in self.big.values():
            for k, t, tag, req in items:
                if k in "DM": total[(k, tag)] = total.get((k, tag), 0) + 1
        st = dict(q=[], issued={})
        done = set(resident)
        vmdone = vmdone if vmdone is not None else set()
        def wait(tags):
            lds = [t for t in tags if t[0] != "vm" and t not in done]
            vms = [t[1] for t in tags if t[0] == "vm" and t[1] not in vmdone]
            parts = []
            if vms:
                for t in vms: assert st["issued"].get(("M", t), 0) == total.get(("M", t), 0) and t in vm, ("vm not issued", t)
                N = min(vm[::-1].index(t) for t in vms)
                assert N <= 63
                parts.append(f"vmcnt({N})")
                for t in vm[:len(vm) - N]: vmdone.add(t)
                for t in vm[len(vm) - N:]: vmdone.discard(t)
            if lds:
                q = st["q"]
                for t in lds: assert st["issued"].get(("D", t), 0) == total[("D", t)] and t in q, ("lds not issued", t)
                N = min(min(q[::-1].index(t) for t in lds), 10)
                parts.append(f"lgkmcnt({N})")
                for t in q[:len(q) - N]: done.add(t)
                st["q"] = q[len(q) - N:]
                for t in st["q"]: done.discard(t)
            if parts: a("s_waitcnt " + " ".join(parts))
        n = len(self.mf)
        if self.mf[0][1]: wait(self.mf[0][1])
        for g in range(n):
            a(self.mf[g][0])
            late = None
            nxt = self.mf[g + 1][1] if g + 1 < n else None
            if nxt: wait(nxt)
            for t in self.pre.get(g, []): a(t)
            for kind, text, tag, req in self.big.get(g, []):
                if req: wait(req)
                if kind == "B":
                    nv = vm[::-1].index(tag)
                    a(f"s_waitcnt vmcnt({nv}) lgkmcnt(0)")
                    for t in st["q"]: done.add(t)
                    st["q"] = []
                if not (kind in opt("drop", "") and getattr(self, "loop", False)): a(text)
                if kind in "DM": st["issued"][(kind, tag)] = st["issued"].get((kind, tag), 0) + 1
                if kind == "M" and vm is not None: vm.append(tag); vmdone.discard(tag)
                if kind == "D": st["q"].append(tag); done.discard(tag)
            for t in self.cv.get(g, []): a(t)

def merge(a, V, M):
    pos = {}; n = [0]
    def ready(it): return all(d in pos and n[0] - pos[d] - 1 >= dist for d, dist in it[2])
    def put(it):
        a(it[1]); n[0] += len(it[1].split("\n")); pos[it[0]] = n[0] - 1
    vi = mi = 0
    while vi < len(V) or mi < len(M):
        did = False
        if mi < len(M) and ready(M[mi]): put(M[mi]); mi += 1; did = True
        cost = 0
        while vi < len(V) and cost < 2 and ready(V[vi]):
            cost += 2 if V[vi][1].startswith(("v_exp", "ds_", "buffer_")) else 1
            put(V[vi]); vi += 1; did = True
        if not did: a("s_nop 0"); n[0] += 1

NTAIL = {4: 26, 3: 20}
VMDONE = set()

def gen_body(a, nq, u, L, last=False, loopctl=None, idx=None, vm=None):
    B = Body()
    B.loop = idx is None
    vo, ko = vslot(u) * 16384, kslot(u + 1) * 16384
    def g_qk(p, kts, gen):
        for kt in kts:
            if CHAIN:
                for q in range(nq):
                    for s in range(4): B.add(qk(p, q, kt, s), ([("K", kt * 4 + x, gen) for x in range(4)] if s == 0 else None) if q == 0 else None)
            else:
                for s in range(4):
                    for q in range(nq): B.add(qk(p, q, kt, s), [("K", kt * 4 + s, gen)] if q == 0 else None)
    def g_pv(p, gen):
        for d in range(8):
            qs = list(range(nq)) if (d % 2 == 0 or not SNAKE) else list(range(nq - 1, -1, -1))
            for i, q in enumerate(qs): B.add(pv(p, q, d), [("V", d, gen)] if i == 0 else None)
        for q in range(nq): B.add(sm(p, q))
    g_qk(1, [1], 0); P0 = len(B.mf)
    g_pv(0, 0); Q1 = len(B.mf)
    if not last: g_qk(0, [0, 1], 1)
    P1 = len(B.mf)
    g_pv(1, 1)
    if not last: g_qk(1, [0], 2)
    n = len(B.mf)
    resident = [("K", f, 0) for f in range(4, 8)]
    sc = nq / 4.0
    for d in range(8):
        for h in range(2): B.place_big("D", vread(d, h, vo), int((4 * d + 2 * h) * sc), ("V", d, 0))
    ex0, cv0 = softmax_ops(0, nq); ex1, cv1 = softmax_ops(1, nq)
    ne = len(ex0)
    win = P1 - P0
    full = nq * 17
    ntail = NTAIL[nq]
    if not last:
        for f in range(8): B.place_big("D", kread(f, ko), Q1 - int((22 if CHAIN else 20) * sc) + int(4 * f * sc), ("K", f, 1))
    for d in range(8):
        for h in range(2):
            lo = max(P1 - int(20 * sc) + int((4 * d + 2 * h) * sc), P0 + nq * d + nq)
            B.place_big("D", vread(d, h, vo + 8192), lo, ("V", d, 1))
    if not last:
        for f in range(8): B.place_big("D", kread(f, ko + 8192), P1 + int(12 * sc) + int(4 * f * sc), ("K", f, 2))
        if idx is None or idx == 28:
            g0 = Q1 - int(18 * sc) if idx is None else 3
            gs = [B.place_big("M", dmaV(i), g0 + int((8 if idx is None else 4) * i * sc), ("V", 31)) for i in range(4)]
            mV, mVe = gs[0], gs[-1]
        if idx is None:
            g0 = P1 + int(14 * sc)
            gs = [B.place_big("M", dmaK(i), g0 + int(8 * i * sc)) for i in range(4)]
            mK, mKe = gs[0], gs[-1]
    if idx is not None:
        rd, iss = PLAN[idx]
        g = int(30 * sc)
        for j in rd:
            for i, t in enumerate(wo_reads(j, PIECE[j])):
                g = B.place_big("D", t, g, ("W", j), req=[("vm", ("w", j))] if i == 0 else None) + 2
        g = mVe + 1 if idx == 28 else 0
        span = ((n - 6 - g) // len(iss)) if not last else int(16 * sc)
        for j, pc in iss:
            src = [x for x in rd if PIECE[x] == pc]
            if src: g = max(g, int(74 * sc))
            it = [(k, t, ("w", j)) for k, t in wo_issue(j, pc)]
            g = B.spread(it, g, min(span, int(24 * sc)), req=[("W", src[0])] if src else None) + 1
            assert g < n
        for k, (bi, gp) in enumerate(W6):
            if bi == idx:
                g = int(gp * sc)
                B.place_big("M", f"buffer_load_dword v{PFD}, v{PFA}, s[{sWO}:{sWO+3}], s{sPFW+k} offen", g, ("pfw", k))
    eg0, eg1, egt = {}, {}, {}
    nh = ne - ntail
    for i in range(ntail, ne):
        eg0[i] = B.place_big("E", ex0[i], max(1 + int((i - ntail) * (P0 - 4) / max(nh, 1)), eg0.get(i - 1, 0)))
    for i in range(ne):
        t = P0 + 1 + int(i * (win - 5) / ne)
        if i >= ne // 2: t = max(t, P0 + 5)
        eg1[i] = B.place_big("E", ex1[i], max(t, eg1.get(i - 1, 0)), hi=min(t + 3, P1 - 4))
    if not last:
        for i in range(ntail):
            t = P1 + 1 + int(i * (full - 5) / ne)
            egt[i] = B.place_big("E", ex0[i], max(t, egt.get(i - 1, 0)), hi=min(t + 3, n - 2))
    for j in range(ntail // 2, ne // 2):
        q = (j // 2) % nq
        g = B.place_cvt(cv0[j], eg0[2 * j + 1] + 1, P0 + q - 2)
        assert g <= P0 + q - 2
    for j in range(ne // 2):
        q = (j // 2) % nq
        g = B.place_cvt(cv1[j], eg1[2 * j + 1] + 1, P1 + q - 3)
        assert g <= P1 + q - 3, (j, g, P1)
    assert eg1[ne // 2] >= P0 + 5
    if not last:
        for j in range(ntail // 2): B.place_cvt(cv0[j], egt[2 * j + 1] + 1, n - 1)
        assert min(egt.values()) >= Q1 + 4 * nq + 5
        if ntail > ne // 2: assert egt[ne // 2] >= P1 + 5
        if idx is None:
            B.place_s(f"s_add_u32 m0, s{sVW}, {VBASE + vslot(u+3)*16384}", mV - 4, mV - 1)
            g = B.place_s(f"s_add_u32 s{sVoff}, s{sVoff}, 16384", mV - 12, mV - 6)
            B.place_s(f"s_and_b32 s{sVoff}, s{sVoff}, 0x7ffff", g + 1, mV - 1)
            B.place_s(f"s_add_u32 m0, s{sKW}, {kslot(u+4)*16384}", mK - 4, mK - 1)
            g = B.place_s(f"s_add_u32 s{sKoff}, s{sKoff}, 16384", mK - 12, mK - 6)
            B.place_s(f"s_and_b32 s{sKoff}, s{sKoff}, 0x7ffff", g + 1, mK - 1)
        elif idx == 28:
            B.pre.setdefault(0, []).extend([f"s_add_u32 s{sVoff}, s{sVoff}, 16384", f"s_and_b32 s{sVoff}, s{sVoff}, 0x7ffff"])
            B.pre.setdefault(1, []).append(f"s_add_u32 m0, s{sVW}, {VBASE + vslot(u+3)*16384}")
        if loopctl:
            B.place_s(loopctl[0], n - 8, n - 5)
            B.place_s(loopctl[1], n - 4, n - 2)
    B.emit(a, resident, vm=vm, vmdone=VMDONE if vm is not None else None)
    if idx is not None and not last:
        need = [("V", idx + 1)] + ([("K", idx + 2)] if idx + 2 < 32 else [])
        N = min(vm[::-1].index(t) for t in need)
        if STAMP == 2: a("s_memtime s[100:101]")
        a(f"s_waitcnt vmcnt({N}) lgkmcnt(0)")
        for t in vm[:len(vm) - N]: VMDONE.add(t)
        for t in vm[len(vm) - N:]: VMDONE.discard(t)
        a("s_barrier")
        if STAMP == 2: rec(a)
    elif last:
        if STAMP == 2: a("s_memtime s[100:101]\ns_waitcnt lgkmcnt(0)"); rec(a)
    else:
        if STAMP == 2: a("s_memtime s[100:101]")
        for _ in range(opt("idle", 0)): a("s_nop 15")
        a(f"s_waitcnt vmcnt({opt('vmc', 16)}) lgkmcnt(0)")
        if not opt("nobar", 0): a("s_barrier")
        if STAMP == 2: rec(a)

def kv_voffsets(a, wave):
    if wave:
        a("v_lshlrev_b32 v8, 12, v1")
        a("v_lshl_add_u32 v8, v4, 8, v8")
    else:
        a("v_lshlrev_b32 v8, 8, v4")
    a("v_xor_b32 v9, v5, v4")
    for n in range(4):
        a(f"v_xor_b32 v10, {4*n}, v9")
        a(f"v_lshl_add_u32 v{vKD+n}, v10, 4, v8")
    a("v_lshlrev_b32 v9, 1, v4")
    a("v_xor_b32 v9, v9, v5")
    for p in range(2):
        a(f"v_xor_b32 v10, {8*p}, v9")
        a(f"v_lshl_add_u32 v{vVD+p}, v10, 4, v8")
        a(f"v_mov_b32 v{vVD+p+2}, v{vVD+p}")
def kv_srds(a):
    a(f"""s_lshl_b32 s{sT0}, s{sB}, 5
s_add_u32 s{sT0}, s{sT0}, s{sH}
s_lshl_b32 s{sT0}, s{sT0}, 19
s_add_u32 s{sK}, s{pK}, s{sT0}
s_addc_u32 s{sK+1}, s{pK+1}, 0
s_mov_b32 s{sK+2}, 524288
s_mov_b32 s{sK+3}, 0x20000
s_add_u32 s{sV}, s{pV}, s{sT0}
s_addc_u32 s{sV+1}, s{pV+1}, 0
s_mov_b32 s{sV+2}, 524288
s_mov_b32 s{sV+3}, 0x20000""")
def ar_setup(a):
    a("v_lshrrev_b32 v12, 2, v3\nv_lshlrev_b32 v12, 7, v12\nv_and_b32 v15, 3, v3\nv_lshl_add_u32 v12, v15, 3, v12")
    a(f"v_add_u32 v12, s{sVW}, v12\nv_bfe_u32 v15, v3, 3, 2")
    for t in range(4):
        a(f"v_xor_b32 v{vAR[0]+t}, {t}, v15")
        a(f"v_lshl_add_u32 v{vAR[0]+t}, v{vAR[0]+t}, 5, v12")
        a(f"v_add_u32 v{vAR[1]+t}, 0x10000, v{vAR[0]+t}")
        a(f"v_add_u32 v{vAR[2]+t}, 0x20000, v{vAR[0]+t}")

def xlane(a, regs, op2, tmp=1):
    for op in ("v_permlane32_swap_b32", "v_permlane16_swap_b32"):
        for m in regs: a(f"v_mov_b32 v{m+tmp}, v{m}")
        a("s_nop 1")
        for m in regs: a(f"{op} v{m}, v{m+tmp}")
        a("s_nop 1")
        for m in regs: a(f"{op2} v{m}, v{m}, v{m+tmp}")

def gen_wave(a, nq, L):
    nx = 2 * nq
    def qstage_issue(st):
        buf = QBUF[(st + 1) % 3]
        out = [("s", f"s_lshl_b32 s{sT0}, s{sQS}, 7"), ("s", f"s_lshl_b32 s{sT1}, s{sQS}, 19"), ("s", f"s_add_u32 s{sQS}, s{sQS}, 1"),
               ("s", f"s_cmp_eq_u32 s{sQS}, 10"), ("s", f"s_cselect_b32 s{sQS}, 0, s{sQS}"), ("s", f"s_add_u32 m0, s{sXW}, {buf+XOFF}")]
        for n in range(nx):
            if n == 4: out.append(("s", f"s_add_u32 m0, s{sXW}, {buf+XOFF+4096}"))
            out.append(("M", f"buffer_load_dwordx4 v{vXD+n}, s[{sX}:{sX+3}], s{sT0} offen offset:{(n&3)*1024} lds"))
        out.append(("s", f"s_add_u32 m0, s{sWW}, {buf+WOFF}"))
        for n in range(4):
            out.append(("M", f"buffer_load_dwordx4 v{vWD+n}, s[{sW}:{sW+3}], s{sT1} offen offset:{n*1024 + 8*(n>>1)} lds"))
        return [(k, t, ("q", st)) for k, t in out]
    def kv_issue(kind, t):
        so, sw, off, f = (sKoff, sKW, kslot(t) * 16384, dmaK) if kind == "K" else (sVoff, sVW, VBASE + vslot(t) * 16384, dmaV)
        out = [("s", f"s_add_u32 s{so}, s{sROT}, {t*16384}"), ("s", f"s_and_b32 s{so}, s{so}, 0x7ffff"), ("s", f"s_add_u32 m0, s{sw}, {off}")]
        out += [("M", f(n)) for n in range(4)]
        return [(k, x, (kind, t)) for k, x in out]
    vm = []
    def now(it):
        flat(a, it)
        for x in it:
            if x[0] == "M": vm.append(x[2])
    def vmwait(tag): return vm[::-1].index(tag)
    for st in range(2): now(qstage_issue(st))
    def qreads(st, sp):
        out = [(f"ds_read_b128 {r('a', aQB[sp]+4*q)}, v{vXR+sp} offset:{XOFF + q*2048}", ("B", st, sp)) for q in range(nq)]
        for t in range(8):
            s, odd = t >> 1, t & 1
            for h in range(2):
                out.append((f"ds_read_b64_tr_b16 {r('a', aQA[sp]+4*t+2*h, 2)}, v{vWR+s} offset:{WOFF + odd*8 + h*1024 + sp*8224}", ("A", st, sp, t)))
        return out
    def rot(st):
        d = QBUF[(st + 2) % 3] - QBUF[(st + 1) % 3]
        return [f"v_add_u32 v{vXR+i}, {d}, v{vXR+i}" if d > 0 else f"v_subrev_u32 v{vXR+i}, {-d}, v{vXR+i}" for i in range(6)]
    a(f"s_waitcnt vmcnt({vmwait(('q', 0))})")
    a("s_barrier")
    stamp(a)
    B = Body()
    PH = 8 * nq
    for st in range(10):
        for sp in range(2 if st < 9 else 1):
            for t in range(8):
                for q in range(nq):
                    c = "0" if (st == 0 and sp == 0) else O(q, t)
                    B.add(f"{MF} {O(q,t)}, {r('a', aQA[sp]+4*t)}, {r('a', aQB[sp]+4*q)}, {c}",
                          ([("A", st, sp, t)] + ([("B", st, sp)] if t == 0 else [])) if q == 0 else None)
    first = qreads(0, 0)
    for t, _ in first: a(t)
    a("s_waitcnt lgkmcnt(0)")
    LQ = int(QLEAD * nq / 4)
    g = B.spread(qstage_issue(2), -1, 2 * PH - LQ - 6)
    assert g < 2 * PH - LQ
    for st in range(9):
        bar = 2 * PH * (st + 1) - LQ
        B.place_big("B", "s_barrier", bar, ("q", st + 1), hi=bar)
        for i, t in enumerate(rot(st)): B.cv.setdefault(bar - 3 + i // 2, []).append(t)
        if st + 3 < 10: it = qstage_issue(st + 3)
        elif st == 7: it = kv_issue("K", 1) + kv_issue("K", 2)
        else: it = kv_issue("V", 0) + kv_issue("V", 1)
        if st == K0AT: it = it + kv_issue("K", 0)
        if 0 <= st - PF0 < len(PF):
            t = PF[st - PF0]
            it = it + [("s", f"s_add_u32 s4, s{sROT}, {t*16384}", None), ("s", "s_and_b32 s4, s4, 0x7ffff", None),
                       ("M", f"buffer_load_dword v12, v11, s[{sPF}:{sPF+3}], s4 offen", ("pf", t))]
        g = B.spread(it, bar, 2 * PH - 5 if st < 8 else PH + LQ - 6)
        assert g < bar + 2 * PH
    for st in range(10):
        base = 2 * PH * st
        g = base - LQ + 1
        if st > 0:
            for t, tag in qreads(st, 0): g = B.place_d(t, g, tag, 5 - nq)
        g = max(g, 0)
        rd = qreads(st, 1)
        order = rd[nq:nq + 4] + rd[:nq] + rd[nq + 4:] if st > 0 else rd
        for t, tag in order:
            lo = base if tag[0] == "B" else base - PH + nq * tag[3] + nq
            g = B.place_d(t, max(g, lo), tag, 5 - nq)
        if st < 9: assert g < base + 2 * PH - LQ - 3, (st, g)
    aK0 = 180
    g = 2 * PH * 8
    for f in range(8): g = B.place_d(kread(f, kslot(0) * 16384, aK=aK0), g, ("K0", f), 5 - nq) + 1
    c = Asm()
    c("v_lshlrev_b32 v8, 1, v4\nv_xor_b32 v8, v8, v7\nv_mul_u32_u24 v9, 1280, v6\nv_lshl_add_u32 v8, v8, 4, v9")
    for n in range(4): c(f"v_add_u32 v{vWO+n}, {n*8*1280 - n*1024}, v8")
    ar_setup(c)
    c(f"v_mul_u32_u24 v{PFA}, 1280, v3")
    for i in range(16): c(f"v_accvgpr_write_b32 a{aL+i}, 0")
    g = 2 * PH * 9 - LQ + 2
    for t in c.l:
        while any(x[0] == "M" for x in B.big.get(g, [])): g += 1
        B.cv.setdefault(g, []).append(t.strip()); g += 1
        if g >= len(B.mf): g = len(B.mf) - 1
    sc_ = [f"s_mov_b32 s{sQS}, s5", "s_lshr_b32 s4, s2, 3", "s_mul_i32 s4, s4, 52", "s_lshr_b32 s4, s4, 8", f"s_lshl_b32 s{sT0}, s4, 1", f"s_add_u32 s{sT0}, s{sT0}, s{sR}"]
    for k in range(2):
        sc_ += [f"s_add_u32 s{sPFW+k}, s{sT0}, {14 + 12*k}", f"s_and_b32 s{sPFW+k}, s{sPFW+k}, 31", f"s_mul_i32 s{sPFW+k}, s{sPFW+k}, {WSTEP}"]
    sc_ += [f"s_cmp_ge_u32 s4, 3\ns_cselect_b32 s{sPFW+1}, 0x7f000000, s{sPFW+1}", f"s_mul_i32 s{sT0}, s2, 20480",
            f"s_add_u32 s{sX}, s{pWO}, s{sT0}\ns_addc_u32 s{sX+1}, s{pWO+1}, 0", f"s_mov_b32 s{sX+2}, 20480", f"s_mov_b32 s{sT1}, {CSCALE:#x}"]
    for i, t in enumerate(sc_): B.pre.setdefault(2 * PH * 9 + i, []).append(t)
    B.emit(a, resident=[tag for _, tag in first], vm=vm)
    stamp(a)
    a("s_waitcnt lgkmcnt(0)")
    V, M = [], []
    def vadd(t, deps=(), id=None): V.append((id if id is not None else ("v", len(V)), t, list(deps)))
    def vissue(it):
        prev = ""
        for k, t, tag in it:
            vadd(("s_nop 0\n" if (k == "M" and "m0" in prev) else "") + t); prev = t
            if k == "M": vm.append(tag)
    for q in range(nq):
        for t in range(8): M.append((("lq", q, t), f"{MF} {O(q,t)}, {r('a', aQA[1]+4*t)}, {r('a', aQB[1]+4*q)}, {O(q,t)}", []))
    def conv(q):
        for s in range(4):
            b = vO + (q * 8 + 2 * s) * 4
            for j in range(8): vadd(f"v_mul_f32 v{b+j}, s{sT1}, v{b+j}", [(("lq", q, 2 * s + (j >> 2)), 8)])
            for j in range(4): vadd(f"v_cvt_pk_bf16_f32 v{b+j}, v{b+2*j}, v{b+2*j+1}")
            for j in range(4): vadd(f"v_accvgpr_write_b32 a{aQ+16*q+4*s+j}, v{b+j}", id=("Q", q, s) if j == 3 else None)
        for kt in range(2):
            for s in range(4): M.append((("qk0", q, kt, s), qk(0, q, kt, s, czero=True, aK=aK0), [(("Q", q, 3), 2)]))
        for h in range(2):
            z = r("v", vO + q * 32 + 16 * h, 16)
            M.append((("z", q, h), f"v_mfma_f32_32x32x16_bf16 {z}, {r('a', aL)}, {r('a', aL)}, 0", [(("Q", q, 3), 0)]))
    def stats(qs):
        for q in qs:
            b = S(0, q, 0); m = vNM + 4 * q
            vadd(f"v_max3_f32 v{m}, v{b}, v{b+1}, v{b+2}", [(("qk0", q, 1, 3), 8)])
            vadd(f"v_max3_f32 v{m+1}, v{b+3}, v{b+4}, v{b+5}")
            vadd(f"v_max3_f32 v{m}, v{m}, v{b+6}, v{b+7}")
            vadd(f"v_max_f32 v{m}, v{m}, v{m+1}")
        for op in ("v_permlane32_swap_b32", "v_permlane16_swap_b32"):
            for q in qs: vadd(f"v_mov_b32 v{vNM+4*q+1}, v{vNM+4*q}", id=("cp", op, q))
            for q in qs: vadd(f"{op} v{vNM+4*q}, v{vNM+4*q+1}", [(("cp", op, q), 2)], id=("sw", op, q))
            for q in qs: vadd(f"v_max_f32 v{vNM+4*q}, v{vNM+4*q}, v{vNM+4*q+1}", [(("sw", op, q), 2)])
        for q in qs:
            m = vNM + 4 * q; b = S(0, q, 0)
            vadd(f"v_sub_f32 v{m}, 0, v{m}")
            for j in range(1, 4): vadd(f"v_mov_b32 v{m+j}, v{m}", id=("nm", q) if j == 3 else None)
            for j in range(8): vadd(f"v_add_f32 v{b+j}, v{b+j}, v{m}")
    ex0, cv0 = softmax_ops(0, nq)
    ntail = NTAIL[nq]
    def exps(qs):
        for j in range(ntail // 2):
            if (j // 2) % nq in qs:
                vadd(ex0[2 * j]); vadd(ex0[2 * j + 1], id=("e", j))
        for j in range(ntail // 2):
            if (j // 2) % nq in qs: vadd(cv0[j], [(("e", j), 1)])
    def qk1(qs):
        for q in qs:
            for s in range(4): M.append((("qk1", q, s), qk(1, q, 0, s), [(("nm", q), 2), ("khi", 0)]))
    for f in range(8): vadd(kread(f, kslot(0) * 16384 + 8192))
    conv(0); conv(1)
    vissue(kv_issue("K", 3))
    vadd("s_waitcnt lgkmcnt(0)", id="khi")
    conv(2)
    stats([0, 1])
    if nq == 4: conv(3)
    qk1([0, 1])
    if WARM:
        vadd("v_lshlrev_b32 v12, 7, v0")
        vadd(f"buffer_load_dword v12, v12, s[{sX}:{sX+3}], 0 offen"); vm.append(("warm", 0))
    vissue(kv_issue("V", 2))
    exps([0, 1])
    rest_q = list(range(2, nq))
    stats(rest_q); qk1(rest_q); exps(rest_q)
    merge(a, V, M)
    a(f"s_mov_b32 s{sCNT}, 7")
    if STAMP == 2: a("v_mov_b32 v13, 0\nv_mov_b32 v14, 0")
    a(f"s_waitcnt vmcnt({vmwait(('V', 0))})")
    assert vmwait(("V", 1)) >= 8 and vmwait(("K", 2)) >= 8
    a("s_barrier")
    stamp(a)
    a(".p2align 6")
    a(f"L_loop{L}:")
    gen_body(a, nq, 0, L)
    gen_body(a, nq, 1, L)
    gen_body(a, nq, 2, L)
    gen_body(a, nq, 3, L, loopctl=(f"s_sub_u32 s{sCNT}, s{sCNT}, 1", f"s_cmp_gt_u32 s{sCNT}, 1"))
    a(f"s_cbranch_scc1 L_loop{L}")
    a(f"s_cmp_eq_u32 s{sCNT}, 0")
    a(f"s_cbranch_scc1 L_tail{L}")
    for j, pc in PRE: flat(a, wo_issue(j, pc))
    a(f"s_branch L_loop{L}")
    a(f"L_tail{L}:")
    vm = [("w", 0), ("w", 1), ("old", 0)] + [("V", 29)] * 4 + [("K", 30)] * 4 + [("V", 30)] * 4 + [("K", 31)] * 4
    VMDONE.clear(); VMDONE.update([("w", 0), ("w", 1)])
    for i in (28, 29, 30): gen_body(a, nq, i % 4, L, idx=i, vm=vm)
    gen_body(a, nq, 3, L, last=True, idx=31, vm=vm)
    stamp(a)
    a("s_nop 7")
    for q in range(nq): a(f"v_accvgpr_read_b32 v{vNM+4*q}, a{aL+4*q}")
    a(f"s_mov_b32 s{sT0}, 0x5f800000")
    a("s_mov_b64 s[4:5], 0")
    for q in range(nq):
        a(f"v_cmp_ngt_f32 vcc, s{sT0}, v{vNM+4*q}")
        a("s_or_b64 s[4:5], s[4:5], vcc")
    if FORCE_SAFE: a(f"s_branch L_safe{L}")
    a(f"s_cbranch_scc1 L_safe{L}")
    a(f"L_epi{L}:")
    for q in range(nq): a(f"v_rcp_f32 v{vNM+4*q}, v{vNM+4*q}")
    a(f"s_waitcnt vmcnt({vm[::-1].index(('w', 12))})")
    rds = [t for j in range(6, 13) for t in wo_reads(j, PIECE[j])]
    per = -(-len(rds) // (4 * nq))
    for q in range(nq):
        for s in range(4):
            b = vO + (q * 8 + 2 * s) * 4
            for t in rds[:per]: a(t)
            rds = rds[per:]
            for j in range(8): a(f"v_mul_f32 v{b+j}, v{vNM+4*q}, v{b+j}")
            for j in range(4): a(f"v_cvt_pk_bf16_f32 v{b+j}, v{b+2*j}, v{b+2*j+1}")
            if s == 0:
                a(f"s_lshl_b32 s{sT0}, s{sWAVE}, 2\ns_add_u32 s{sT0}, s{sT0}, {q}\ns_mul_i32 s{sT1}, s{sT0}, 52\ns_lshr_b32 s{sT1}, s{sT1}, 8")
                a(f"s_mul_i32 s{sT1}, s{sT1}, {128*5120 - 5*1024}\ns_lshl_b32 s{sT0}, s{sT0}, 10\ns_add_u32 s{sT0}, s{sT0}, s{sT1}\ns_add_u32 s{sT0}, s{sT0}, s3")
            else:
                a(f"s_add_u32 s{sT0}, s{sT0}, 5120")
            a(f"buffer_store_dwordx4 {r('v', b)}, v2, s[{sWS}:{sWS+3}], s{sT0} offen{OST}")
    a("s_branch L_common")
    gen_safe(a, nq, L)

def gen_safe(a, nq, L):
    a(f"L_safe{L}:")
    a("s_waitcnt vmcnt(0) lgkmcnt(0)")
    for i in range(nq * 32): a(f"v_mov_b32 v{vO+i}, 0")
    for q in range(nq):
        a(f"v_mov_b32 v{vNM+4*q}, 0xff800000")
        a(f"v_mov_b32 v{vNM+4*q+3}, 0")
    kv_voffsets(a, False)
    kv_srds(a)
    a(f"s_add_u32 s{sKW}, s{sVW}, {SBASE}")
    a(f"s_sub_u32 s{sT0}, s{sKW}, {KBASE}")
    for i in range(4): a(f"v_add_u32 v{vKR+i}, s{sT0}, v{vKR+i}")
    for i in range(8): a(f"v_add_u32 v{vVR+i}, s{sKW}, v{vVR+i}")
    a(f"s_mov_b32 s{sKoff}, 0")
    a(f"L_sloop{L}:")
    def tile(vd, srd):
        for hh in range(2):
            a(f"s_add_u32 m0, s{sKW}, {hh*16384}")
            a(f"s_add_u32 s{sVoff}, s{sKoff}, {hh*4096}")
            for n in range(4): a(f"buffer_load_dwordx4 v{vd+n}, s[{srd}:{srd+3}], s{sVoff} offen offset:{n*1024} lds")
    tile(vKD, sK)
    a("s_waitcnt vmcnt(0)")
    for f in range(8): a(kread(f, 0, 16384))
    a("s_waitcnt lgkmcnt(0)")
    tile(vVD, sV)
    for kt in range(2):
        for s in range(4):
            for q in range(nq): a(qk(0, q, kt, s, czero=True))
    a("s_nop 7")
    T = vS + 32
    for q in range(nq):
        b = S(0, q, 0); m = T + 2 * q
        a(f"v_max3_f32 v{m}, v{b}, v{b+1}, v{b+2}")
        a(f"v_max3_f32 v{m+1}, v{b+3}, v{b+4}, v{b+5}")
        a(f"v_max3_f32 v{m}, v{m}, v{b+6}, v{b+7}")
        a(f"v_max3_f32 v{m}, v{m}, v{m+1}, v{vNM+4*q}")
    xlane(a, [T + 2 * q for q in range(nq)], "v_max_f32")
    for q in range(nq):
        m = vNM + 4 * q; b = S(0, q, 0)
        a(f"v_sub_f32 v{m+2}, v{m}, v{T+2*q}")
        a(f"v_exp_f32 v{m+2}, v{m+2}")
        a(f"v_mov_b32 v{m}, v{T+2*q}")
        for j in range(8): a(f"v_sub_f32 v{b+j}, v{b+j}, v{m}")
        for j in range(8): a(f"v_exp_f32 v{b+j}, v{b+j}")
        a(f"v_mul_f32 v{m+3}, v{m+3}, v{m+2}")
        for i in range(32): a(f"v_mul_f32 v{vO+q*32+i}, v{vO+q*32+i}, v{m+2}")
        for j in range(4): a(f"v_cvt_pk_bf16_f32 v{b+j}, v{b+2*j}, v{b+2*j+1}")
        for j in range(4):
            a(f"v_lshlrev_b32 v{b+4}, 16, v{b+j}")
            a(f"v_and_b32 v{b+5}, 0xffff0000, v{b+j}")
            a(f"v_add_f32 v{m+3}, v{m+3}, v{b+4}")
            a(f"v_add_f32 v{m+3}, v{m+3}, v{b+5}")
    a("s_waitcnt vmcnt(0)")
    for d in range(8):
        for h in range(2): a(vread(d, h, 0, 16384))
        if d == 3: a("s_waitcnt lgkmcnt(0)")
    a("s_waitcnt lgkmcnt(0)")
    for d in range(8):
        for q in range(nq): a(pv(0, q, d))
    a("s_nop 7")
    a(f"s_add_u32 s{sKoff}, s{sKoff}, 8192")
    a(f"s_cmp_lt_u32 s{sKoff}, 524288")
    a(f"s_cbranch_scc1 L_sloop{L}")
    xlane(a, [vNM + 4 * q + 3 for q in range(nq)], "v_add_f32", tmp=-2)
    for q in range(nq): a(f"v_mov_b32 v{vNM+4*q}, v{vNM+4*q+3}")
    ar_setup(a)
    a(f"v_mul_u32_u24 v{PFA}, 1280, v3")
    for j in (8, 11): flat(a, wo_issue(j, PIECE[j]))
    a("s_waitcnt vmcnt(0)")
    a(f"s_branch L_epi{L}")

def gen_common(a):
    a("L_common:")
    piece = dict(PIECE)
    vm = [("w", j) for j in range(15)] + [("st", 0)]
    def issue(n, p):
        piece[n] = p
        flat(a, wo_issue(n, p)); vm.extend([("w", n)] * 4)
    def vw(tag): return vm[::-1].index(tag)
    a("s_waitcnt lgkmcnt(0)")
    NPRE = opt("npre", 3)
    for i in range(NPRE): issue(15 + i, piece[6 + i])
    a(f"""s_lshl_b32 s{sT0}, s{sOB}, 2
s_add_u32 s{sT0}, s{sT0}, s{sWAVE}
s_mul_i32 s{sT0}, s{sT0}, {32*5120}
s_add_u32 s{sO}, s{pWS}, s{sT0}
s_addc_u32 s{sO+1}, s{pWS+1}, 0
s_mov_b32 s{sO+2}, {0 if opt("oskip", 0) else 32*5120}
s_mov_b32 s{sOUT}, s{pDBG}
s_mov_b32 s{sOUT+1}, s{pDBG+1}
s_mov_b32 s{sOUT+2}, 256
v_mov_b32 v12, 1
v_mov_b32 v15, 0
v_add_u32 v16, 4096, v2""")
    a(f"s_waitcnt vmcnt({vw(('st', 0))})")
    if opt("opf", 0):
        for half in range(2):
            a(f"v_lshrrev_b32 v17, 5, v3\nv_lshl_add_u32 v17, v1, 2, v17\nv_add_u32 v17, {2*half}, v17")
            a(f"v_mul_u32_u24 v18, 52, v17\nv_lshrrev_b32 v18, 8, v18\nv_mul_u32_u24 v18, {128*5120 - 5*1024}, v18\nv_lshl_add_u32 v18, v17, 10, v18")
            a(f"v_bfe_u32 v19, v3, 3, 2\nv_mul_u32_u24 v19, 5120, v19\nv_add_u32 v18, v18, v19\nv_lshl_add_u32 v18, v7, 7, v18")
            a(f"v_cmp_gt_u32 vcc, 15, v17\nv_mov_b32 v19, 0x7f000000\ns_nop 0\nv_cndmask_b32 v18, v19, v18, vcc")
            a(f"buffer_load_dword v{20+half}, v18, s[{sWS}:{sWS+3}], s3 offen sc1")
            vm.append(("opf", half))
    a("s_barrier")
    a(f"s_cmp_lg_u32 s{sWAVE}, 0")
    a("s_cbranch_scc1 L_nosig")
    a(f"s_lshl_b32 s{sT0}, s{sB}, 5")
    a("s_mov_b64 exec, 1")
    a(f"buffer_atomic_add v12, v15, s[{sOUT}:{sOUT+3}], s{sT0} offen sc1")
    a("s_mov_b64 exec, -1")
    a("L_nosig:")
    stamp(a)
    a("s_cmp_ge_u32 s2, 240")
    a("s_cbranch_scc1 L_exit")
    for j in (13, 14):
        for t in wo_reads(j, piece[j]): a(t)
    for i in range(NPRE, 7): issue(15 + i, piece[6 + i])
    a(f"s_mul_i32 s{sT1}, s{sOB}, 86\ns_lshr_b32 s{sT1}, s{sT1}, 8\ns_lshl_b32 s{sT1}, s{sT1}, 5")
    def poll():
        a(f"buffer_load_dword v12, v15, s[{sOUT}:{sOUT+3}], s{sT1} offen sc0 sc1")
        vm.append(("poll", 0))
    PA = opt("pollat", 5)
    issue(22, 3)
    pend = [13, 14]; nxt = 23
    for j in range(15, 22):
        a(f"s_waitcnt vmcnt({vw(('w', j))}) lgkmcnt(0)")
        for t in wo_reads(j, piece[j]): a(t)
        if j - 15 == PA: poll()
        for x in pend: issue(nxt, piece[x]); nxt += 1
        pend = [j]
    a("s_waitcnt lgkmcnt(0)")
    issue(nxt, piece[pend[0]])
    assert nxt == 31
    a(f"s_cmp_lg_u32 s{sWAVE}, 0")
    a("s_cbranch_scc1 L_go")
    a(f"s_waitcnt vmcnt({vw(('poll', 0))})")
    a(f"s_mov_b32 s{sCNT}, {SPIN}")
    a("L_poll:")
    a(f"v_readfirstlane_b32 s{sT0}, v12")
    a(f"s_sub_u32 s{sCNT}, s{sCNT}, 1")
    a(f"s_cbranch_scc1 L_go")
    a(f"s_cmp_ge_u32 s{sT0}, 32")
    a("s_cbranch_scc1 L_go")
    a(f"buffer_load_dword v12, v15, s[{sOUT}:{sOUT+3}], s{sT1} offen sc0 sc1")
    a("s_waitcnt vmcnt(0)")
    a("s_branch L_poll")
    a("L_go:")
    a("s_barrier")
    stamp(a)
    vAcc = 128
    ring = [208 + 4 * i for i in range(12)] + [36] + ([12] if STAMP < 2 else [])
    RD = len(ring)
    def o_pre(n): return [f"s_add_u32 s{sT1}, s{sR}, {n}", f"s_and_b32 s{sT1}, s{sT1}, 31", f"s_mul_i32 s{sT1}, s{sT1}, 5120"]
    def o_ld(i):
        n, qt = divmod(i, 5)
        return f"buffer_load_dwordx4 {r('v', ring[i % RD])}, v{2 if qt < 4 else 16}, s[{sO}:{sO+3}], s{sT1} offen offset:{(qt&3)*1024}{OLD}"
    for i in range(RD):
        if i % 5 == 0:
            for t in o_pre(i // 5): a(t)
        a(o_ld(i)); vm.append(("o", i))
    B = Body()
    for n in range(32):
        rf, bank = bank_of(n)
        for qt in range(5):
            for nt in range(4):
                acc = r("v", vAcc + (qt * 4 + nt) * 4)
                need = None
                if nt == 0: need = [("vm", ("o", 5 * n + qt))] + ([("W", n)] if (qt == 0 and n >= 22) else [])
                B.add(f"{MF} {acc}, {r(rf, bank+4*nt)}, {r('v', ring[(5*n+qt) % RD])}, {'0' if n == 0 else acc}", need)
    for i in range(160 - RD):
        j = i + RD
        if j % 5 == 0:
            for k, t in enumerate(o_pre(j // 5)): B.pre.setdefault(4 * i + k, []).append(t)
        B.place_big("M", o_ld(j), 4 * i + 3, ("o", j), hi=4 * i + 3)
    for n in range(10):
        j = n + 22
        g = 20 * (n + 1)
        for i, t in enumerate(wo_reads(j, piece[j])):
            g = B.place_d(t, g, ("W", j), 1, req=[("vm", ("w", j))] if i == 0 else None) + 1
    if STAMP == 4:
        a("v_mov_b32 v13, 0\nv_mov_b32 v14, 0\ns_memtime s[100:101]\ns_waitcnt lgkmcnt(0)"); rec(a)
        for n in range(32):
            B.cv.setdefault(20 * n + 1, []).append("s_memtime s[100:101]\ns_waitcnt lgkmcnt(0)\nv_cmp_eq_u32 vcc, v13, v3\nv_mov_b32 v15, s100\nv_add_u32 v13, 1, v13\nv_cndmask_b32 v14, v14, v15, vcc")
    B.emit(a, vm=vm)
    stamp(a)
    vB = 48
    a(f"s_mov_b32 s{sOUT}, s{pOUT}\ns_mov_b32 s{sOUT+1}, s{pOUT+1}\ns_mov_b32 s{sOUT+2}, {8*240*640*2}")
    a(f"s_mul_i32 s{sT0}, s{sWAVE}, 5120")
    a(f"v_add_u32 v8, s{sT0}, v2")
    a("v_add_u32 v9, 40960, v8")
    a("s_nop 4")
    a("s_barrier")
    for nt in range(4):
        a(f"s_cmp_eq_u32 s{sWAVE}, {nt}")
        a(f"s_cbranch_scc1 L_skipw{nt}")
        for qt in range(5): a(f"ds_write_b128 v{8 + (nt >> 1)}, {r('v', vAcc+(qt*4+nt)*4)} offset:{(nt&1)*20480 + qt*1024}")
        a(f"s_branch L_nextw{nt}")
        a(f"L_skipw{nt}:")
        for qt in range(5):
            for j in range(4): a(f"v_mov_b32 v{vB+qt*4+j}, v{vAcc+(qt*4+nt)*4+j}")
        a(f"L_nextw{nt}:")
    a(f"s_mul_i32 s{sT0}, s{sWAVE}, 20480")
    a(f"v_add_u32 v12, s{sT0}, v2")
    for i in range(1, 4):
        a(f"s_add_u32 s{sT1}, s{sWAVE}, {i}\ns_and_b32 s{sT1}, s{sT1}, 3\ns_mul_i32 s{sT1}, s{sT1}, 5120\nv_add_u32 v{16+i}, s{sT1}, v12")
    a(f"s_mul_i32 s{sT0}, s{sOB}, {80*1280}\ns_lshl_b32 s{sT1}, s{sQS}, 7\ns_add_u32 s{sT0}, s{sT0}, s{sT1}\ns_lshl_b32 s{sT1}, s{sWAVE}, 5\ns_add_u32 s{sT0}, s{sT0}, s{sT1}")
    a("v_mul_u32_u24 v10, 1280, v5\nv_lshl_add_u32 v10, v4, 3, v10")
    a("s_waitcnt lgkmcnt(0)")
    a("s_barrier")
    for qt in range(5):
        for i in range(1, 4): a(f"ds_read_b128 {r('v', vAcc+(qt*3+i-1)*4)}, v{16+i} offset:{qt*1024}")
    for qt in range(5):
        a(f"s_waitcnt lgkmcnt({12-3*qt})")
        b0 = vAcc + qt * 12
        for j in range(4): a(f"v_add_f32 v{vB+qt*4+j}, v{vB+qt*4+j}, v{b0+j}")
        for j in range(4): a(f"v_add_f32 v{b0+4+j}, v{b0+4+j}, v{b0+8+j}")
        for j in range(4): a(f"v_add_f32 v{vB+qt*4+j}, v{vB+qt*4+j}, v{b0+4+j}")
        for j in range(2): a(f"v_cvt_pk_bf16_f32 v{vB+qt*4+j}, v{vB+qt*4+2*j}, v{vB+qt*4+2*j+1}")
        a(f"buffer_store_dwordx2 {r('v', vB+qt*4, 2)}, v10, s[{sOUT}:{sOUT+3}], s{sT0} offen{FST}")
        if qt < 4: a(f"s_add_u32 s{sT0}, s{sT0}, {16*1280}")
    if STAMP:
        a("s_waitcnt vmcnt(0)")
        a("s_waitcnt lgkmcnt(0)")
        if STAMP >= 2:
            a(f"s_lshl_b32 s{sT0}, s2, 10\ns_add_u32 s{sT0}, s{sT0}, 0x80000\nv_lshlrev_b32 v15, 2, v0")
            a(f"buffer_store_dword v14, v15, s[{sST}:{sST+3}], s{sT0} offen")
        a("s_memtime s[76:77]\ns_memrealtime s[78:79]\ns_waitcnt lgkmcnt(0)")
        if opt("dbgout", 0):
            a(f"s_cmp_lg_u32 s2, 9\ns_cbranch_scc1 L_exit\ns_cmp_lg_u32 s{sWAVE}, 0\ns_cbranch_scc1 L_exit")
            a(f"s_mov_b32 s{sOUT}, s{pDBG}\ns_mov_b32 s{sOUT+1}, s{pDBG+1}\ns_mov_b32 s{sOUT+2}, 256")
            a("s_mov_b64 exec, 1\nv_mov_b32 v15, 0")
            words = [1, 2, 3, 4, 5, 6, 7, 9]
            for i in range(8):
                a(f"s_sub_u32 s4, s{sSTAMP+4*(i+1)+2}, s{sSTAMP+4*i+2}\nv_mov_b32 v12, s4")
                a(f"buffer_store_dword v12, v15, s[{sOUT}:{sOUT+3}], 0 offen offset:{4*words[i]}\ns_nop 1")
            a(f"s_sub_u32 s4, s78, s{sSTAMP+2}\nv_mov_b32 v12, s4\nbuffer_store_dword v12, v15, s[{sOUT}:{sOUT+3}], 0 offen offset:40")
            a(f"s_sub_u32 s4, s{sSTAMP+16}, s{sSTAMP+12}\nv_mov_b32 v13, s4\nbuffer_store_dword v13, v15, s[{sOUT}:{sOUT+3}], 0 offen offset:44")
        else:
            stamp_store(a, 18, sSTAMP, sST, 4)

def gen():
    a = Asm()
    a("s_cmp_ge_u32 s2, 256")
    a("s_cbranch_scc1 L_exit")
    a("s_getpc_b64 s[8:9]")
    a(f"s_load_dwordx16 s[{sARG}:{sARG+15}], s[0:1], 0")
    a(f"s_mov_b32 s10, L_exit-{KN}-16\ns_mov_b32 s11, 0x20000\ns_lshr_b32 s4, s2, 3\ns_lshl_b32 s4, s4, 12")
    a("v_lshrrev_b32 v11, 3, v0\nv_lshlrev_b32 v11, 7, v11")
    a("buffer_load_dword v12, v11, s[8:11], s4 offen")
    stamp(a)
    if MAP == "bmajor":
        a(f"s_and_b32 s{sB}, s2, 7\ns_lshr_b32 s{sH}, s2, 3")
        a(f"s_mul_i32 s{sQS}, s{sH}, 5\ns_lshr_b32 s{sQS}, s{sQS}, 4")
    else:
        a(f"""s_and_b32 s{sT0}, s2, 1
s_lshl_b32 s{sB}, s{sT0}, 2
s_lshr_b32 s{sT1}, s2, 3
s_and_b32 s{sT0}, s{sT1}, 3
s_add_u32 s{sB}, s{sB}, s{sT0}
s_mul_i32 s{sQS}, s{sT0}, 10
s_and_b32 s{sH}, s2, 6
s_lshl_b32 s{sH}, s{sH}, 2
s_lshr_b32 s{sT1}, s{sT1}, 2
s_add_u32 s{sH}, s{sH}, s{sT1}
s_mul_i32 s{sT1}, s{sT1}, 5
s_add_u32 s{sQS}, s{sQS}, s{sT1}
s_lshr_b32 s{sQS}, s{sQS}, 2
s_sub_u32 s{sT0}, s{sQS}, 10
s_cmp_ge_u32 s{sQS}, 10
s_cselect_b32 s{sQS}, s{sT0}, s{sQS}""")
    a(f"""v_lshrrev_b32 v1, 6, v0
v_and_b32 v3, 63, v0
v_lshrrev_b32 v4, 4, v3
v_readfirstlane_b32 s{sWAVE}, v1
v_and_b32 v5, 15, v3
v_lshlrev_b32 v2, 4, v3
v_lshrrev_b32 v6, 3, v3
v_and_b32 v7, 7, v3""")
    a("v_lshl_add_u32 v8, v1, 6, v6\nv_mul_u32_u24 v8, 1280, v8\nv_xor_b32 v9, v7, v4")
    for n in range(8):
        a(f"v_xor_b32 v10, {4*(n&1)}, v9")
        a(f"v_lshl_add_u32 v10, v10, 4, v8")
        a(f"v_add_u32 v{vXD+n}, {n*8*1280 - (n&3)*1024}, v10")
    a("v_lshl_add_u32 v8, v1, 4, v4\nv_lshlrev_b32 v8, 13, v8\nv_lshlrev_b32 v9, 2, v4\nv_xor_b32 v9, v9, v5\nv_lshl_add_u32 v8, v9, 4, v8")
    for n in range(4): a(f"v_add_u32 v{vWD+n}, {n*4*8192 - n*1024 - 8*(n>>1)}, v8")
    a(f"""s_lshl_b32 s{sXW}, s{sWAVE}, 13
s_lshl_b32 s{sVW}, s{sWAVE}, 12
s_add_u32 s{sKW}, s{sVW}, {KBASE}
s_mul_i32 s{sWW}, s{sWAVE}, 4112
s_mov_b32 s{sX+2}, 307200
s_mov_b32 s{sX+3}, 0x20000
s_mov_b32 s{sW+3}, 0x20000
s_mul_i32 s{sT0}, s{sB}, 307200
s_lshl_b32 s{sT1}, s{sH}, 8
s_sub_u32 s{sW+2}, 5242880, s{sT1}
s_waitcnt lgkmcnt(0)
{"s_memtime s[60:61]" + chr(10) + "s_memrealtime s[62:63]" if STAMP == 5 else ""}
s_add_u32 s{sX}, s{pX}, s{sT0}
s_addc_u32 s{sX+1}, s{pX+1}, 0
s_add_u32 s{sW}, s{pWQ}, s{sT1}
s_addc_u32 s{sW+1}, s{pWQ+1}, 0""")
    a(f"s_cmp_eq_u32 s{sWAVE}, 3")
    a("s_cbranch_scc1 L_waveB")
    def rest(a):
        kv_srds(a)
        a(f"""s_mov_b32 s{sWS}, s{pWS}
s_mov_b32 s{sWS+1}, s{pWS+1}
s_mov_b32 s{sWS+2}, {8*15*128*1024}
s_mov_b32 s{sWS+3}, 0x20000""")
        if STAMP:
            a(f"s_add_u32 s{sST}, s{pWS}, 0x10000000\ns_addc_u32 s{sST+1}, s{pWS+1}, 0\ns_mov_b32 s{sST+2}, 0x100000\ns_mov_b32 s{sST+3}, 0x20000")
        if PF:
            a(f"""s_cmp_lt_u32 s{sWAVE}, 2
s_cselect_b32 s{sPF}, s{sK}, s{sV}
s_cselect_b32 s{sPF+1}, s{sK+1}, s{sV+1}
s_mov_b32 s{sPF+2}, 524288
s_mov_b32 s{sPF+3}, 0x20000
v_and_b32 v11, 127, v0
v_lshlrev_b32 v11, 7, v11""")
        kv_voffsets(a, True)
        a(f"v_lshlrev_b32 v8, 8, v5\nv_add_u32 v8, {KBASE}, v8\nv_xor_b32 v9, v4, v5")
        for s in range(4):
            a(f"v_xor_b32 v10, {4*s}, v9")
            a(f"v_lshl_add_u32 v{vKR+s}, v10, 4, v8")
        a("v_lshrrev_b32 v8, 2, v3\nv_and_b32 v9, 7, v8\nv_lshlrev_b32 v8, 8, v8\nv_and_b32 v10, 3, v3\nv_lshl_add_u32 v8, v10, 3, v8")
        for t in range(8):
            a(f"v_xor_b32 v10, {t}, v9")
            a(f"v_lshl_add_u32 v{vVR+t}, v10, 5, v8")
        a(f"v_lshlrev_b32 v8, 13, v1\nv_lshl_add_u32 v8, v5, 7, v8\nv_add_u32 v8, {QBUF[1]}, v8\nv_lshrrev_b32 v9, 1, v5\nv_xor_b32 v9, v9, v4")
        for sp in range(2):
            a(f"v_xor_b32 v10, {4*sp}, v9")
            a(f"v_lshl_add_u32 v{vXR+sp}, v10, 4, v8")
        a(f"v_bfe_u32 v9, v3, 2, 2\nv_lshl_add_u32 v8, v4, 3, v9\nv_lshlrev_b32 v8, 8, v8\nv_and_b32 v10, 3, v3\nv_lshl_add_u32 v8, v10, 4, v8")
        a(f"v_add_u32 v8, {QBUF[1]}, v8\nv_lshl_add_u32 v8, v4, 3, v8")
        for s in range(4):
            a(f"v_xor_b32 v10, {s}, v9")
            a(f"v_lshl_add_u32 v{vWR+s}, v10, 6, v8")
        a("v_and_b32 v8, 3, v3\nv_cmp_eq_u32 vcc, 0, v8\nv_mov_b32 v9, 0x3f803f80\nv_mov_b32 v10, 0\nv_cndmask_b32 v9, v10, v9, vcc")
        for j in range(4): a(f"v_accvgpr_write_b32 a{aONE+j}, v9")
        a(f"s_mul_i32 s3, s{sB}, 96\ns_add_u32 s3, s3, s{sH}\ns_mul_i32 s3, s3, 20480")
        a(f"s_lshr_b32 s{sROT}, s2, 3\ns_lshl_b32 s{sROT}, s{sROT}, 14" if opt("rot", 1) else f"s_mov_b32 s{sROT}, 0")
        if PMAP:
            a(f"""s_lshr_b32 s4, s2, 3
s_mul_i32 s6, s4, 52
s_lshr_b32 s6, s6, 8
s_mul_i32 s5, s6, 5
s_sub_u32 s5, s4, s5
s_mul_i32 s{sR}, s5, {opt("rmul", 0)}
s_and_b32 s7, s2, 1
s_mul_i32 s7, s7, 5
s_add_u32 s5, s5, s7
s_and_b32 s{sOB}, s2, 6
s_mul_i32 s{sOB}, s{sOB}, 3
s_add_u32 s{sOB}, s{sOB}, s6""")
        else:
            a(f"""s_lshr_b32 s4, s2, 3
s_mul_i32 s6, s4, 26
s_lshr_b32 s6, s6, 8
s_mul_i32 s5, s6, 10
s_sub_u32 s5, s4, s5
s_and_b32 s{sOB}, s2, 7
s_mul_i32 s{sOB}, s{sOB}, 3
s_add_u32 s{sOB}, s{sOB}, s6""")
        if not PMAP: a(f"s_mov_b32 s{sR}, 0")
        a(f"""
s_mul_i32 s6, s{sWAVE}, {131072 if WCONT else 1024*1280}
s_lshl_b32 s7, s5, {19 if WCONT else 7}
s_add_u32 s6, s6, s7
s_add_u32 s{sWO}, s{pWO}, s6
s_addc_u32 s{sWO+1}, s{pWO+1}, 0
s_sub_u32 s{sWO+2}, 5242880, s6
s_cmp_ge_u32 s2, 240
s_cselect_b32 s{sWO+2}, 0, s{sWO+2}
{"s_mov_b32 s%d, 0" % (sWO+2) if opt("wskip", 0) else ""}
s_mov_b32 s{sWO+3}, 0x20000""")
    global REST
    REST = rest
    base = nstamp[0]
    gen_wave2(a, 4, "A")
    a("L_waveB:")
    nstamp[0] = base
    gen_wave2(a, 3, "B")
    gen_common(a)
    a("L_exit:")
    a("s_endpgm")
    return a.text()

def gen_wave2(a, nq, L):
    b = Asm()
    gen_wave(b, nq, L)
    i = next(k for k, l in enumerate(b.l) if "s_waitcnt vmcnt" in l)
    c = Asm(); REST(c)
    a.l += b.l[:i] + c.l + b.l[i:]

body = gen()
print(wrap([dict(name=KN, grid=256, block=256, lds=163840, body=body, vgpr=512, sgpr=102, accum=256)]))
```

```python
import sys, struct, math
from gencommon import *

OPT = dict(kv.split("=") for kv in sys.argv[1:])
def opt(k, d): return type(d)(OPT.get(k, d))
STAMP = opt("stamp", 0)
MAP = opt("map", "mixed")
NT = opt("nt", 1)
FORCE_SAFE = opt("safe", 0)
QLEAD = opt("qlead", 28)
K0AT = opt("k0at", 2)
WARM = opt("warm", 1)
OD = opt("od", 5)
OLD = {"": "", "plain": "", "nt": " nt", "sc1": " sc1", "sc01": " sc0 sc1"}[opt("old", "sc1")]
OST = {"": "", "plain": "", "sc1": " sc1", "sc01": " sc0 sc1"}[opt("ost", "sc01")]
SPIN = opt("spin", 1 << 16)
CHAIN = opt("chain", 1)
LAG = opt("lag", 12)
NV = opt("nv", 0)
vLV = {1: 1, 2: 6, 3: 7}
def valu_sum(nq, q): return nq == 4 and q >= 4 - NV
DMA3 = opt("dma3", 1)
FST = {"": "", "sc01": " sc0 sc1", "nt": " nt"}[opt("fst", "")]
PMAP = opt("pmap", 1)
PF = [int(t) for t in opt("pf", "").split(",") if t]
PF0 = opt("pf0", 0)
sPF = 72
W6 = [tuple(int(y) for y in x.split(":")) for x in opt("w6", "29:56,30:56").split(",") if x]
sPFW = 6
PFD, PFA = (13, 14) if STAMP < 2 else (12, 1)
SNAKE = opt("snake", 1)

MF = "v_mfma_f32_16x16x32_bf16"
VBASE, SBASE, KBASE = 0, 64 * 1024, 96 * 1024
QBUF = [0, 48 * 1024, 96 * 1024]
XOFF, WOFF = 0, 31744
def kslot(t): return (t + 3) % 4
def vslot(t): return t % 4
vO = 128; vS = 64; vNM = 48
vKR = 16; vVR = 20; vKD = 28; vVD = 32; vXD = 36; vWD = 44
vXR = 64; vWR = 66
vWO = 36
vAR = [40, 44, 8]
aQ = 0; aK = 64; aV = 96; aL = 128; aONE = 144
aQA = [64, 96]; aQB = [148, 164]
sK, sV, sX, sW, sWS = 8, 12, 16, 20, 24
sO, sOUT = 16, 20
sWAVE, sKW, sVW, sXW, sWW = 28, 29, 30, 31, 32
sKoff, sVoff, sCNT, sB, sH, sT0, sT1 = 33, 34, 35, 36, 37, 38, 39
sKinc, sKmask, sVinc, sVmask = 6, 7, 31, 32
sST, sSTAMP = 40, 44
sWO = 76
sROT, sQS, sR, sOB = 80, 81, 82, 83
sARG = 84
pX, pK, pV, pWQ, pWO, pOUT, pDBG, pWS = [sARG + 2 * i for i in range(8)]
CSCALE = struct.unpack("<I", struct.pack("<f", math.log2(math.e) / math.sqrt(128.0)))[0]
WCONT = opt('wcont', 0)
WSTEP = 4096 if WCONT else 32 * 1280

def r(pfx, b, n=4): return f"{pfx}[{b}:{b+n-1}]"
def O(q, d): return r("v", vO + (q * 8 + d) * 4)
def S(p, q, kt): return vS + 32 * p + 8 * q + 4 * kt
def ntf(): return {0: "", 1: " nt", 2: " sc1 nt"}[NT]

nstamp = [0]
def stamp(a, early=False):
    if (STAMP == 5) != early and not (STAMP == 5 and nstamp[0] == 0): return
    if STAMP:
        i = nstamp[0]; nstamp[0] += 1
        assert i < 8
        a(f"s_memtime s[{sSTAMP+4*i}:{sSTAMP+4*i+1}]")
        a(f"s_memrealtime s[{sSTAMP+4*i+2}:{sSTAMP+4*i+3}]")
def rec(a):
    a("v_cmp_eq_u32 vcc, v13, v3\nv_mov_b32 v15, s100\nv_add_u32 v13, 1, v13\nv_cndmask_b32 v14, v14, v15, vcc")

def dmaK(n): return f"buffer_load_dwordx4 v{vKD+n}, s[{sK}:{sK+3}], s{sKoff} offen offset:{n*1024}{ntf()} lds"
def dmaV(n): return f"buffer_load_dwordx4 v{vVD+n}, s[{sV}:{sV+3}], s{sVoff} offen offset:{n*1024}{ntf() if not opt('vdef', 0) else ''} lds"
def kread(f, off, ktoff=4096, aK=aK):
    kt, s = f >> 2, f & 3
    return f"ds_read_b128 {r('a', aK+4*f)}, v{vKR+s} offset:{off + kt*ktoff}"
def vread(d, second, off, soff=4096):
    return f"ds_read_b64_tr_b16 {r('a', aV+4*d+2*second, 2)}, v{vVR+d} offset:{off + second*soff}"
def qk(p, q, kt, s, czero=False, aK=aK):
    b = S(p, q, kt)
    c = r("v", b) if s else ("0" if czero else r("v", vNM + 4 * q))
    return f"{MF} {r('v', b)}, {r('a', aK+4*(kt*4+s))}, {r('a', aQ+16*q+4*s)}, {c}"
def pv(p, q, d): return f"{MF} {O(q,d)}, {r('a', aV+4*d)}, {r('v', S(p,q,0))}, {O(q,d)}"
def sm(p, q): return f"{MF} {r('a', aL+4*q)}, {r('a', aONE)}, {r('v', S(p,q,0))}, {r('a', aL+4*q)}"
def softmax_ops(p, nq):
    ex, cv = [], []
    for kt in range(2):
        for q in range(nq):
            b = S(p, q, kt)
            for j in range(4): ex.append(f"v_exp_f32 v{b+j}, v{b+j}")
            for j in range(2):
                pre = [f"v_add_f32 v{vLV[q]}, v{vLV[q]}, v{b+2*j+i}" for i in range(2)] if valu_sum(nq, q) else []
                cv.append(pre + [f"v_cvt_pk_bf16_f32 v{S(p,q,0)+2*kt+j}, v{b+2*j}, v{b+2*j+1}"])
    return ex, cv

PRE = [(0, 4), (1, 5)]
PLAN = {28: ([0, 1], [(2, 9), (3, 4), (4, 5)]),
        29: ([2, 3], [(5, 6), (6, 0), (7, 9), (8, 4)]),
        30: ([4, 5], [(9, 7), (10, 1), (11, 5), (12, 6)]),
        31: ([], [(13, 8), (14, 2)])}
PIECE = dict(PRE)
for _b in PLAN.values(): PIECE.update(dict(_b[1]))
VBANK = [20, 48, 64, 80, 96, 112]
def bank_of(n):
    if n < 16: return "a", ((n + 10) % 16) * 16
    if n < 22: return "v", VBANK[n - 16]
    return bank_of(n - 22)
def wo_issue(n, piece):
    out = [("s", f"s_add_u32 s{sT0}, s{sR}, {n}"), ("s", f"s_and_b32 s{sT0}, s{sT0}, 31"),
           ("s", f"s_mul_i32 s{sT0}, s{sT0}, {WSTEP}"), ("s", f"s_add_u32 m0, s{sVW}, {piece*16384}")]
    out += [("M", f"buffer_load_dwordx4 v{vWO+i}, s[{sWO}:{sWO+3}], s{sT0} offen offset:{i*1024} lds") for i in range(4)]
    return out
def wo_reads(n, piece):
    rf, bank = bank_of(n)
    return [f"ds_read_b64_tr_b16 {r(rf, bank+4*t+2*h, 2)}, v{vAR[piece >> 2]+t} offset:{(piece & 3)*16384 + h*2048}" for t in range(4) for h in range(2)]
def flat(a, items):
    prev = None
    for it in items:
        k, t = it[0], it[1]
        if k == "M" and prev and "m0" in prev: a("s_nop 0")
        a(t); prev = t

class Body:
    def __init__(self):
        self.mf = []; self.big = {}; self.pre = {}; self.cv = {}; self.lastcv = 0; self.lag = 4
    def add(self, text, need=None): self.mf.append((text, need))
    def place_big(self, kind, text, target, tag=None, hi=None, req=None):
        n = len(self.mf)
        target = min(target, n - 1)
        hi = min(n - 1, target + 3 if hi is None else max(hi, target))
        g = target
        while g in self.big and g < hi: g += 1
        if g in self.big: g = min(range(target, hi + 1), key=lambda x: len(self.big[x]))
        self.big.setdefault(g, []).append((kind, text, tag, req))
        return g
    def place_d(self, text, lo, tag, cap, req=None):
        g = lo
        while True:
            kinds = [x[0] for x in self.big.get(g, [])]
            if all(k == "D" for k in kinds) and len(kinds) < cap: break
            g += 1
        assert g < len(self.mf)
        self.big.setdefault(g, []).append(("D", text, tag, req))
        return g
    def place_cvt(self, texts, lo, hi):
        for t in texts: g = self.place_cvt1(t, lo, hi)
        return g
    def place_cvt1(self, text, lo, hi):
        n = len(self.mf); best = None
        lo0 = lo
        lo = max(lo, self.lastcv)
        for g in range(lo, min(hi, lo0 + self.lag, n - 1) + 1):
            kinds = [x[0] for x in self.big.get(g, [])]
            cnt = len(self.cv.get(g, []))
            if (kinds == ["D"] and cnt == 0) or (kinds == [] and cnt < 2): best = g; break
        if best is None: best = min(lo, n - 1)
        self.cv.setdefault(best, []).append(text)
        self.lastcv = best
        return best
    def place_s(self, text, lo, hi=None):
        n = len(self.mf)
        hi = lo if hi is None else hi
        for g in range(lo, min(hi, n - 1) + 1):
            kinds = [x[0] for x in self.big.get(g, [])]
            if not self.pre.get(g) and (kinds == ["E"] or kinds == [] or (kinds == ["D"] and not self.cv.get(g))):
                self.pre.setdefault(g, []).append(text); return g
        self.pre.setdefault(lo, []).append(text); return lo
    def spread(self, it, start, span, req=None):
        nm = sum(1 for x in it if x[0] == "M")
        i = 0; pend = []; lastg = start
        for k, t, tag in it:
            if k != "M": pend.append(t); continue
            g = self.place_big("M", t, max(start + 2 + int(i * span / nm), lastg + 1 + (len(pend) + 1) // 2), tag, req=req if i == 0 else None)
            for j, pt in enumerate(pend):
                self.pre.setdefault(max(lastg + 1, g - (len(pend) - j + 1) // 2), []).append(pt)
            pend = []; lastg = g; i += 1
        return lastg
    def emit(self, a, resident=(), vm=None, vmdone=None):
        total = {}
        for items in self.big.values():
            for k, t, tag, req in items:
                if k in "DM": total[(k, tag)] = total.get((k, tag), 0) + 1
        st = dict(q=[], issued={})
        done = set(resident)
        vmdone = vmdone if vmdone is not None else set()
        def wait(tags):
            lds = [t for t in tags if t[0] != "vm" and t not in done]
            vms = [t[1] for t in tags if t[0] == "vm" and t[1] not in vmdone]
            parts = []
            if vms:
                for t in vms: assert st["issued"].get(("M", t), 0) == total.get(("M", t), 0) and t in vm, ("vm not issued", t)
                N = min(vm[::-1].index(t) for t in vms)
                N = min(N, 60)
                parts.append(f"vmcnt({N})")
                for t in vm[:len(vm) - N]: vmdone.add(t)
                for t in vm[len(vm) - N:]: vmdone.discard(t)
            if lds:
                q = st["q"]
                for t in lds: assert st["issued"].get(("D", t), 0) == total[("D", t)] and t in q, ("lds not issued", t)
                N = min(min(q[::-1].index(t) for t in lds), 10)
                parts.append(f"lgkmcnt({N})")
                for t in q[:len(q) - N]: done.add(t)
                st["q"] = q[len(q) - N:]
                for t in st["q"]: done.discard(t)
            if parts: a("s_waitcnt " + " ".join(parts))
        n = len(self.mf)
        if self.mf[0][1]: wait(self.mf[0][1])
        for g in range(n):
            a(self.mf[g][0])
            late = None
            nxt = self.mf[g + 1][1] if g + 1 < n else None
            if nxt: wait(nxt)
            for t in self.pre.get(g, []): a(t)
            for kind, text, tag, req in self.big.get(g, []):
                if req: wait(req)
                if kind == "B":
                    nv = vm[::-1].index(tag)
                    a(f"s_waitcnt vmcnt({nv}) lgkmcnt(0)")
                    for t in st["q"]: done.add(t)
                    st["q"] = []
                if not (kind in opt("drop", "") and getattr(self, "loop", False)): a(text)
                if kind in "DM": st["issued"][(kind, tag)] = st["issued"].get((kind, tag), 0) + 1
                if kind == "M" and vm is not None: vm.append(tag); vmdone.discard(tag)
                if kind == "D": st["q"].append(tag); done.discard(tag)
            for t in self.cv.get(g, []): a(t)

def estimate(lines):
    tot = 0; t = None; over = 0
    for l in lines + ["v_mfma"]:
        l = l.strip()
        if l.startswith("v_mfma"):
            if t is not None: tot += max(16, t); over += t > 16
            t = 4; lastv = False
        elif l.startswith("ds_"): t += 8 + (4 if lastv else 0)
        elif l.startswith("buffer_"): t += 12
        elif l.startswith("v_"): t = max(t, 8) + (8 if l.startswith("v_exp") else 4); lastv = True
        elif l.endswith(":"): pass
        else: t += 4
    return tot, over

def merge(a, V, M):
    pos = {}; n = [0]
    def ready(it): return all(d in pos and n[0] - pos[d] - 1 >= dist for d, dist in it[2])
    def put(it):
        a(it[1]); n[0] += len(it[1].split("\n")); pos[it[0]] = n[0] - 1
    vi = mi = 0
    while vi < len(V) or mi < len(M):
        did = False
        if mi < len(M) and ready(M[mi]): put(M[mi]); mi += 1; did = True
        cost = 0
        while vi < len(V) and cost < 2 and ready(V[vi]):
            cost += 2 if V[vi][1].startswith(("v_exp", "ds_", "buffer_")) else 1
            put(V[vi]); vi += 1; did = True
        if not did: a("s_nop 0"); n[0] += 1

NTAIL = {4: 26, 3: 20}
VMDONE = set()

def gen_body(a, nq, u, L, last=False, loopctl=None, idx=None, vm=None):
    B = Body()
    B.loop = idx is None
    if nq == 4 and NV and not last: B.lag = LAG
    vo, ko = vslot(u) * 16384, kslot(u + 1) * 16384
    def g_qk(p, kts, gen):
        for kt in kts:
            if CHAIN:
                for q in range(nq):
                    for s in range(4): B.add(qk(p, q, kt, s), ([("K", kt * 4 + x, gen) for x in range(4)] if s == 0 else None) if q == 0 else None)
            else:
                for s in range(4):
                    for q in range(nq): B.add(qk(p, q, kt, s), [("K", kt * 4 + s, gen)] if q == 0 else None)
    def g_pv(p, gen):
        for d in range(8):
            qs = list(range(nq)) if (d % 2 == 0 or not SNAKE) else list(range(nq - 1, -1, -1))
            for i, q in enumerate(qs): B.add(pv(p, q, d), [("V", d, gen)] if i == 0 else None)
        for q in range(nq):
            if not valu_sum(nq, q): B.add(sm(p, q))
    g_qk(1, [1], 0); P0 = len(B.mf)
    g_pv(0, 0); Q1 = len(B.mf)
    if not last: g_qk(0, [0, 1], 1)
    P1 = len(B.mf)
    g_pv(1, 1)
    if not last: g_qk(1, [0], 2)
    n = len(B.mf)
    resident = [("K", f, 0) for f in range(4, 8)]
    sc = nq / 4.0
    for d in range(8):
        for h in range(2): B.place_big("D", vread(d, h, vo), int((4 * d + 2 * h) * sc), ("V", d, 0))
    ex0, cv0 = softmax_ops(0, nq); ex1, cv1 = softmax_ops(1, nq)
    ne = len(ex0)
    win = P1 - P0
    full = nq * 17 - (NV if nq == 4 else 0)
    ntail = NTAIL[nq]
    if not last:
        for f in range(8): B.place_big("D", kread(f, ko), Q1 - int((22 if CHAIN else 20) * sc) + int(4 * f * sc), ("K", f, 1))
    for d in range(8):
        for h in range(2):
            lo = max(P1 - int(20 * sc) + int((4 * d + 2 * h) * sc), P0 + nq * d + nq)
            B.place_big("D", vread(d, h, vo + 8192), lo, ("V", d, 1))
    if not last:
        for f in range(8): B.place_big("D", kread(f, ko + 8192), P1 + int(12 * sc) + int(4 * f * sc), ("K", f, 2))
        mVe = 0
        if DMA3:
            if nq == 3 and (idx is None or idx == 28):
                def stream(so, srd, vd, ldsoff, tag):
                    it = [("s", f"s_add_u32 s{so}, s{so}, 16384", None), ("s", f"s_and_b32 s{so}, s{so}, 0x7ffff", None)]
                    for c in range(4):
                        it += [("s", f"s_add_u32 s4, s{so}, {c*4096}", None), ("s", f"s_mov_b32 m0, {ldsoff + c*4096}", None)]
                        it += [("M", f"buffer_load_dwordx4 v{vd+i}, s[{srd}:{srd+3}], s4 offen offset:{i*1024}{ntf()} lds", tag) for i in range(4)]
                    return it
                it = stream(sVoff, sV, vVD, VBASE + vslot(u + 3) * 16384, ("V", 31))
                if idx is None: it += stream(sKoff, sK, vKD, KBASE + kslot(u + 4) * 16384, None)
                mVe = B.spread(it, 0, n - 12 if idx is None else 40)
                assert mVe < n - 8
        else:
            if idx is None or idx == 28:
                g0 = Q1 - int(18 * sc) if idx is None else 3
                gs = [B.place_big("M", dmaV(i), g0 + int((8 if idx is None else 4) * i * sc), ("V", 31)) for i in range(4)]
                mV, mVe = gs[0], gs[-1]
            if idx is None:
                g0 = P1 + int(14 * sc)
                gs = [B.place_big("M", dmaK(i), g0 + int(8 * i * sc)) for i in range(4)]
                mK, mKe = gs[0], gs[-1]
    if idx is not None:
        rd, iss = PLAN[idx]
        g = int(30 * sc)
        for j in rd:
            for i, t in enumerate(wo_reads(j, PIECE[j])):
                g = B.place_big("D", t, g, ("W", j), req=[("vm", ("w", j))] if i == 0 else None) + 2
        g = mVe + 1 if idx == 28 else 0
        span = ((n - 6 - g) // len(iss)) if not last else int(16 * sc)
        for j, pc in iss:
            src = [x for x in rd if PIECE[x] == pc]
            if src: g = max(g, int(74 * sc))
            it = [(k, t, ("w", j)) for k, t in wo_issue(j, pc)]
            g = B.spread(it, g, min(span, int(24 * sc)), req=[("W", src[0])] if src else None) + 1
            assert g < n
        for k, (bi, gp) in enumerate(W6):
            if bi == idx:
                g = int(gp * sc)
                B.place_big("M", f"buffer_load_dword v{PFD}, v{PFA}, s[{sWO}:{sWO+3}], s{sPFW+k} offen", g, ("pfw", k))
    eg0, eg1, egt = {}, {}, {}
    nh = ne - ntail
    for i in range(ntail, ne):
        eg0[i] = B.place_big("E", ex0[i], max(1 + int((i - ntail) * (P0 - 4) / max(nh, 1)), eg0.get(i - 1, 0)))
    for i in range(ne):
        t = P0 + 1 + int(i * (win - 5) / ne)
        if i >= ne // 2: t = max(t, P0 + 5)
        eg1[i] = B.place_big("E", ex1[i], max(t, eg1.get(i - 1, 0)), hi=min(t + 3, P1 - 4))
    if not last:
        for i in range(ntail):
            t = P1 + 1 + int(i * (full - 5) / ne)
            egt[i] = B.place_big("E", ex0[i], max(t, egt.get(i - 1, 0)), hi=min(t + 3, n - 2))
    for j in range(ntail // 2, ne // 2):
        q = (j // 2) % nq
        g = B.place_cvt(cv0[j], eg0[2 * j + 1] + 1, P0 + q - 2)
        assert g <= P0 + q - 2
    for j in range(ne // 2):
        q = (j // 2) % nq
        g = B.place_cvt(cv1[j], eg1[2 * j + 1] + 1, P1 + q - 3)
        assert g <= P1 + q - 3, (j, g, P1)
    assert eg1[ne // 2] >= P0 + 5
    if not last:
        for j in range(ntail // 2): B.place_cvt(cv0[j], egt[2 * j + 1] + 1, n - 1)
        assert min(egt.values()) >= Q1 + 4 * nq + 5
        if ntail > ne // 2: assert egt[ne // 2] >= P1 + 5
        if DMA3: pass
        elif idx is None:
            B.place_s(f"s_add_u32 m0, s{sVW}, {VBASE + vslot(u+3)*16384}", mV - 4, mV - 1)
            g = B.place_s(f"s_add_u32 s{sVoff}, s{sVoff}, 16384", mV - 12, mV - 6)
            B.place_s(f"s_and_b32 s{sVoff}, s{sVoff}, 0x7ffff", g + 1, mV - 1)
            B.place_s(f"s_add_u32 m0, s{sKW}, {kslot(u+4)*16384}", mK - 4, mK - 1)
            g = B.place_s(f"s_add_u32 s{sKoff}, s{sKoff}, 16384", mK - 12, mK - 6)
            B.place_s(f"s_and_b32 s{sKoff}, s{sKoff}, 0x7ffff", g + 1, mK - 1)
        elif idx == 28:
            B.pre.setdefault(0, []).extend([f"s_add_u32 s{sVoff}, s{sVoff}, 16384", f"s_and_b32 s{sVoff}, s{sVoff}, 0x7ffff"])
            B.pre.setdefault(1, []).append(f"s_add_u32 m0, s{sVW}, {VBASE + vslot(u+3)*16384}")
        if loopctl:
            B.place_s(loopctl[0], n - 8, n - 5)
            B.place_s(loopctl[1], n - 4, n - 2)
    t = Asm()
    B.emit(t, resident, vm=vm, vmdone=VMDONE if vm is not None else None)
    a.l += t.l
    if opt("est", 0): sys.stderr.write(f"body {L} u={u} idx={idx}: mfma {n} est {estimate(t.l)}\n")
    if idx is not None and not last:
        need = [("V", idx + 1)] + ([("K", idx + 2)] if idx + 2 < 32 else [])
        N = min(min(vm[::-1].index(t) if t in vm else 60 for t in need), 60)
        if STAMP == 2: a("s_memtime s[100:101]")
        a(f"s_waitcnt vmcnt({N}) lgkmcnt(0)")
        for t in vm[:len(vm) - N]: VMDONE.add(t)
        for t in vm[len(vm) - N:]: VMDONE.discard(t)
        a("s_barrier")
        if STAMP == 2: rec(a)
    elif last:
        if STAMP == 2: a("s_memtime s[100:101]\ns_waitcnt lgkmcnt(0)"); rec(a)
    else:
        if STAMP == 2: a("s_memtime s[100:101]")
        for _ in range(opt("idle", 0)): a("s_nop 15")
        a(f"s_waitcnt vmcnt({16 if not DMA3 else 60 if nq == 3 else 8 if u == 0 else 0}) lgkmcnt(0)")
        if not opt("nobar", 0): a("s_barrier")
        if STAMP == 2: rec(a)

def kv_voffsets(a, wave):
    if wave:
        a("v_lshlrev_b32 v8, 12, v1")
        a("v_lshl_add_u32 v8, v4, 8, v8")
    else:
        a("v_lshlrev_b32 v8, 8, v4")
    a("v_xor_b32 v9, v5, v4")
    for n in range(4):
        a(f"v_xor_b32 v10, {4*n}, v9")
        a(f"v_lshl_add_u32 v{vKD+n}, v10, 4, v8")
    a("v_lshlrev_b32 v9, 1, v4")
    a("v_xor_b32 v9, v9, v5")
    for p in range(2):
        a(f"v_xor_b32 v10, {8*p}, v9")
        a(f"v_lshl_add_u32 v{vVD+p}, v10, 4, v8")
        a(f"v_mov_b32 v{vVD+p+2}, v{vVD+p}")
def kv_srds(a):
    a(f"""s_lshl_b32 s{sT0}, s{sB}, 5
s_add_u32 s{sT0}, s{sT0}, s{sH}
s_lshl_b32 s{sT0}, s{sT0}, 19
s_add_u32 s{sK}, s{pK}, s{sT0}
s_addc_u32 s{sK+1}, s{pK+1}, 0
s_mov_b32 s{sK+2}, 524288
s_mov_b32 s{sK+3}, 0x20000
s_add_u32 s{sV}, s{pV}, s{sT0}
s_addc_u32 s{sV+1}, s{pV+1}, 0
s_mov_b32 s{sV+2}, 524288
s_mov_b32 s{sV+3}, 0x20000""")
def ar_setup(a):
    a("v_lshrrev_b32 v12, 2, v3\nv_lshlrev_b32 v12, 7, v12\nv_and_b32 v15, 3, v3\nv_lshl_add_u32 v12, v15, 3, v12")
    a(f"v_add_u32 v12, s{sVW}, v12\nv_bfe_u32 v15, v3, 3, 2")
    for t in range(4):
        a(f"v_xor_b32 v{vAR[0]+t}, {t}, v15")
        a(f"v_lshl_add_u32 v{vAR[0]+t}, v{vAR[0]+t}, 5, v12")
        a(f"v_add_u32 v{vAR[1]+t}, 0x10000, v{vAR[0]+t}")
        a(f"v_add_u32 v{vAR[2]+t}, 0x20000, v{vAR[0]+t}")

def xlane(a, regs, op2, tmp=1):
    for op in ("v_permlane32_swap_b32", "v_permlane16_swap_b32"):
        for m in regs: a(f"v_mov_b32 v{m+tmp}, v{m}")
        a("s_nop 1")
        for m in regs: a(f"{op} v{m}, v{m+tmp}")
        a("s_nop 1")
        for m in regs: a(f"{op2} v{m}, v{m}, v{m+tmp}")

def qstage(st, nx):
    buf = QBUF[(st + 1) % 3]
    out = [("s", f"s_lshl_b32 s{sT0}, s{sQS}, 7"), ("s", f"s_lshl_b32 s{sT1}, s{sQS}, 19"), ("s", f"s_add_u32 s{sQS}, s{sQS}, 1"),
           ("s", f"s_cmp_eq_u32 s{sQS}, 10"), ("s", f"s_cselect_b32 s{sQS}, 0, s{sQS}"), ("s", f"s_add_u32 m0, s{sXW}, {buf+XOFF}")]
    for n in range(nx):
        if n == 4: out.append(("s", f"s_add_u32 m0, s{sXW}, {buf+XOFF+4096}"))
        out.append(("M", f"buffer_load_dwordx4 v{vXD+n}, s[{sX}:{sX+3}], s{sT0} offen offset:{(n&3)*1024} lds"))
    out.append(("s", f"s_add_u32 m0, s{sWW}, {buf+WOFF}"))
    for n in range(4):
        out.append(("M", f"buffer_load_dwordx4 v{vWD+n}, s[{sW}:{sW+3}], s{sT1} offen offset:{n*1024 + 8*(n>>1)} lds"))
    return [(k, t, ("q", st)) for k, t in out]

def gen_wave(a, nq, L):
    nx = 2 * nq
    def qstage_issue(st): return qstage(st, nx)
    def kv_issue(kind, t):
        so, sw, off, f = (sKoff, sKW, kslot(t) * 16384, dmaK) if kind == "K" else (sVoff, sVW, VBASE + vslot(t) * 16384, dmaV)
        out = [("s", f"s_add_u32 s{so}, s{sROT}, {t*16384}"), ("s", f"s_and_b32 s{so}, s{so}, 0x7ffff"), ("s", f"s_add_u32 m0, s{sw}, {off}")]
        out += [("M", f(n)) for n in range(4)]
        return [(k, x, (kind, t)) for k, x in out]
    vm = []
    def now(it):
        flat(a, it)
        for x in it:
            if x[0] == "M": vm.append(x[2])
    def vmwait(tag): return vm[::-1].index(tag)
    vm += [("q", 0)] * (nx + 4) + [("q", 1)] * 4
    s1 = qstage_issue(1)[5:-5]
    def qreads(st, sp):
        out = [(f"ds_read_b128 {r('a', aQB[sp]+4*q)}, v{vXR+sp} offset:{XOFF + q*2048}", ("B", st, sp)) for q in range(nq)]
        for t in range(8):
            s, odd = t >> 1, t & 1
            for h in range(2):
                out.append((f"ds_read_b64_tr_b16 {r('a', aQA[sp]+4*t+2*h, 2)}, v{vWR+s} offset:{WOFF + odd*8 + h*1024 + sp*8224}", ("A", st, sp, t)))
        return out
    def rot(st):
        d = QBUF[(st + 2) % 3] - QBUF[(st + 1) % 3]
        return [f"v_add_u32 v{vXR+i}, {d}, v{vXR+i}" if d > 0 else f"v_subrev_u32 v{vXR+i}, {-d}, v{vXR+i}" for i in range(6)]
    stamp(a, True)
    a(f"s_waitcnt vmcnt({vmwait(('q', 0))})")
    stamp(a, True)
    a("s_barrier")
    stamp(a); stamp(a, True)
    B = Body()
    PH = 8 * nq
    for st in range(10):
        for sp in range(2 if st < 9 else 1):
            for t in range(8):
                for q in range(nq):
                    c = "0" if (st == 0 and sp == 0) else O(q, t)
                    B.add(f"{MF} {O(q,t)}, {r('a', aQA[sp]+4*t)}, {r('a', aQB[sp]+4*q)}, {c}",
                          ([("A", st, sp, t)] + ([("B", st, sp)] if t == 0 else [])) if q == 0 else None)
    first = qreads(0, 0)
    for t, _ in first: a(t)
    now(s1); s1 = []
    a("s_waitcnt lgkmcnt(0)")
    stamp(a, True)
    LQ = int(QLEAD * nq / 4)
    now(s1)
    g = B.spread(qstage_issue(2), -1, 2 * PH - LQ - 6)
    assert g < 2 * PH - LQ
    for st in range(9):
        bar = 2 * PH * (st + 1) - LQ
        B.place_big("B", "s_barrier", bar, ("q", st + 1), hi=bar)
        for i, t in enumerate(rot(st)): B.cv.setdefault(bar - 3 + i // 2, []).append(t)
        if st + 3 < 10: it = qstage_issue(st + 3)
        elif st == 7: it = kv_issue("K", 1) + kv_issue("K", 2)
        else: it = kv_issue("V", 0) + kv_issue("V", 1)
        if st == K0AT: it = it + kv_issue("K", 0)
        if 0 <= st - PF0 < len(PF):
            t = PF[st - PF0]
            it = it + [("s", f"s_add_u32 s4, s{sROT}, {t*16384}", None), ("s", "s_and_b32 s4, s4, 0x7ffff", None),
                       ("M", f"buffer_load_dword v12, v11, s[{sPF}:{sPF+3}], s4 offen", ("pf", t))]
        g = B.spread(it, bar, 2 * PH - 5 if st < 8 else PH + LQ - 6)
        assert g < bar + 2 * PH
    for st in range(10):
        base = 2 * PH * st
        g = base - LQ + 1
        if st > 0:
            for t, tag in qreads(st, 0): g = B.place_d(t, g, tag, 5 - nq)
        g = max(g, 0)
        rd = qreads(st, 1)
        order = rd[nq:nq + 4] + rd[:nq] + rd[nq + 4:] if st > 0 else rd
        for t, tag in order:
            lo = base if tag[0] == "B" else base - PH + nq * tag[3] + nq
            g = B.place_d(t, max(g, lo), tag, 5 - nq)
        if st < 9: assert g < base + 2 * PH - LQ - 3, (st, g)
    aK0 = 180
    g = 2 * PH * 8
    for f in range(8): g = B.place_d(kread(f, kslot(0) * 16384, aK=aK0), g, ("K0", f), 5 - nq) + 1
    c = Asm()
    c("v_lshlrev_b32 v8, 1, v4\nv_xor_b32 v8, v8, v7\nv_mul_u32_u24 v9, 1280, v6\nv_lshl_add_u32 v8, v8, 4, v9")
    for n in range(4): c(f"v_add_u32 v{vWO+n}, {n*8*1280 - n*1024}, v8")
    ar_setup(c)
    c(f"v_mul_u32_u24 v{PFA}, 1280, v3")
    for i in range(16): c(f"v_accvgpr_write_b32 a{aL+i}, 0")
    g = 2 * PH * 9 - LQ + 2
    for t in c.l:
        while any(x[0] == "M" for x in B.big.get(g, [])): g += 1
        B.cv.setdefault(g, []).append(t.strip()); g += 1
        if g >= len(B.mf): g = len(B.mf) - 1
    sc_ = [f"s_mov_b32 s{sQS}, s5", "s_lshr_b32 s4, s2, 3", "s_mul_i32 s4, s4, 52", "s_lshr_b32 s4, s4, 8", f"s_lshl_b32 s{sT0}, s4, 1", f"s_add_u32 s{sT0}, s{sT0}, s{sR}"]
    for k in range(2):
        sc_ += [f"s_add_u32 s{sPFW+k}, s{sT0}, {14 + 12*k}", f"s_and_b32 s{sPFW+k}, s{sPFW+k}, 31", f"s_mul_i32 s{sPFW+k}, s{sPFW+k}, {WSTEP}"]
    sc_ += [f"s_cmp_ge_u32 s4, 3\ns_cselect_b32 s{sPFW+1}, 0x7f000000, s{sPFW+1}", f"s_mul_i32 s{sT0}, s2, 20480",
            f"s_add_u32 s{sX}, s{pWO}, s{sT0}\ns_addc_u32 s{sX+1}, s{pWO+1}, 0", f"s_mov_b32 s{sX+2}, 20480", f"s_mov_b32 s{sT1}, {CSCALE:#x}"]
    for i, t in enumerate(sc_): B.pre.setdefault(2 * PH * 9 + i, []).append(t)
    B.emit(a, resident=[tag for _, tag in first], vm=vm)
    stamp(a)
    a("s_waitcnt lgkmcnt(0)")
    V, M = [], []
    def vadd(t, deps=(), id=None): V.append((id if id is not None else ("v", len(V)), t, list(deps)))
    def vissue(it):
        prev = ""
        for k, t, tag in it:
            vadd(("s_nop 0\n" if (k == "M" and "m0" in prev) else "") + t); prev = t
            if k == "M": vm.append(tag)
    for q in range(nq):
        for t in range(8): M.append((("lq", q, t), f"{MF} {O(q,t)}, {r('a', aQA[1]+4*t)}, {r('a', aQB[1]+4*q)}, {O(q,t)}", []))
    def conv(q):
        for s in range(4):
            b = vO + (q * 8 + 2 * s) * 4
            for j in range(8): vadd(f"v_mul_f32 v{b+j}, s{sT1}, v{b+j}", [(("lq", q, 2 * s + (j >> 2)), 8)])
            for j in range(4): vadd(f"v_cvt_pk_bf16_f32 v{b+j}, v{b+2*j}, v{b+2*j+1}")
            for j in range(4): vadd(f"v_accvgpr_write_b32 a{aQ+16*q+4*s+j}, v{b+j}", id=("Q", q, s) if j == 3 else None)
        for kt in range(2):
            for s in range(4): M.append((("qk0", q, kt, s), qk(0, q, kt, s, czero=True, aK=aK0), [(("Q", q, 3), 2)]))
        for h in range(2):
            z = r("v", vO + q * 32 + 16 * h, 16)
            M.append((("z", q, h), f"v_mfma_f32_32x32x16_bf16 {z}, {r('a', aL)}, {r('a', aL)}, 0", [(("Q", q, 3), 0)]))
    def stats(qs):
        for q in qs:
            b = S(0, q, 0); m = vNM + 4 * q
            vadd(f"v_max3_f32 v{m}, v{b}, v{b+1}, v{b+2}", [(("qk0", q, 1, 3), 8)])
            vadd(f"v_max3_f32 v{m+1}, v{b+3}, v{b+4}, v{b+5}")
            vadd(f"v_max3_f32 v{m}, v{m}, v{b+6}, v{b+7}")
            vadd(f"v_max_f32 v{m}, v{m}, v{m+1}")
        for op in ("v_permlane32_swap_b32", "v_permlane16_swap_b32"):
            for q in qs: vadd(f"v_mov_b32 v{vNM+4*q+1}, v{vNM+4*q}", id=("cp", op, q))
            for q in qs: vadd(f"{op} v{vNM+4*q}, v{vNM+4*q+1}", [(("cp", op, q), 2)], id=("sw", op, q))
            for q in qs: vadd(f"v_max_f32 v{vNM+4*q}, v{vNM+4*q}, v{vNM+4*q+1}", [(("sw", op, q), 2)])
        for q in qs:
            m = vNM + 4 * q; b = S(0, q, 0)
            vadd(f"v_sub_f32 v{m}, 0, v{m}")
            for j in range(1, 4): vadd(f"v_mov_b32 v{m+j}, v{m}", id=("nm", q) if j == 3 else None)
            for j in range(8): vadd(f"v_add_f32 v{b+j}, v{b+j}, v{m}")
    ex0, cv0 = softmax_ops(0, nq)
    ntail = NTAIL[nq]
    def exps(qs):
        for j in range(ntail // 2):
            if (j // 2) % nq in qs:
                vadd(ex0[2 * j]); vadd(ex0[2 * j + 1], id=("e", j))
        for j in range(ntail // 2):
            if (j // 2) % nq in qs:
                for t in cv0[j]: vadd(t, [(("e", j), 1)])
    def qk1(qs):
        for q in qs:
            for s in range(4): M.append((("qk1", q, s), qk(1, q, 0, s), [(("nm", q), 2), ("khi", 0)]))
    for f in range(8): vadd(kread(f, kslot(0) * 16384 + 8192))
    for q in range(nq):
        if valu_sum(nq, q): vadd(f"v_mov_b32 v{vLV[q]}, 0")
    conv(0); conv(1)
    vissue(kv_issue("K", 3))
    vadd("s_waitcnt lgkmcnt(0)", id="khi")
    conv(2)
    stats([0, 1])
    if nq == 4: conv(3)
    qk1([0, 1])
    if WARM:
        vadd("v_lshlrev_b32 v12, 7, v0")
        vadd(f"buffer_load_dword v12, v12, s[{sX}:{sX+3}], 0 offen"); vm.append(("warm", 0))
    vissue(kv_issue("V", 2))
    exps([0, 1])
    rest_q = list(range(2, nq))
    stats(rest_q); qk1(rest_q); exps(rest_q)
    merge(a, V, M)
    a(f"s_mov_b32 s{sCNT}, 7")
    if STAMP == 2: a("v_mov_b32 v13, 0\nv_mov_b32 v14, 0")
    if DMA3 and nq == 3:
        for i in range(8): a(f"v_subrev_u32 v{vKD+i}, 12288, v{vKD+i}")
    a(f"s_waitcnt vmcnt({vmwait(('V', 1 if (DMA3 and nq == 3) else 0))})")
    assert vmwait(("V", 1)) >= 8 and vmwait(("K", 2)) >= 8
    a("s_barrier")
    stamp(a)
    a(".p2align 6")
    a(f"L_loop{L}:")
    gen_body(a, nq, 0, L)
    gen_body(a, nq, 1, L)
    gen_body(a, nq, 2, L)
    gen_body(a, nq, 3, L, loopctl=(f"s_sub_u32 s{sCNT}, s{sCNT}, 1", f"s_cmp_gt_u32 s{sCNT}, 1"))
    a(f"s_cbranch_scc1 L_loop{L}")
    a(f"s_cmp_eq_u32 s{sCNT}, 0")
    a(f"s_cbranch_scc1 L_tail{L}")
    for j, pc in PRE: flat(a, wo_issue(j, pc))
    a(f"s_branch L_loop{L}")
    a(f"L_tail{L}:")
    c = 4 if not DMA3 else 16 if nq == 3 else 0
    vm = [("w", 0), ("w", 1), ("old", 0)] + [("V", 29)] * c + [("K", 30)] * c + [("V", 30)] * c + [("K", 31)] * c
    VMDONE.clear(); VMDONE.update([("w", 0), ("w", 1)])
    for i in (28, 29, 30): gen_body(a, nq, i % 4, L, idx=i, vm=vm)
    gen_body(a, nq, 3, L, last=True, idx=31, vm=vm)
    stamp(a)
    vq = [q for q in range(nq) if valu_sum(nq, q)]
    for q in vq: a(f"v_mov_b32 v{vNM+4*q}, v{vLV[q]}")
    if vq: xlane(a, [vNM + 4 * q for q in vq], "v_add_f32")
    else: a("s_nop 7")
    for q in range(nq):
        if q not in vq: a(f"v_accvgpr_read_b32 v{vNM+4*q}, a{aL+4*q}")
    a(f"s_mov_b32 s{sT0}, 0x5f800000")
    a("s_mov_b64 s[4:5], 0")
    for q in range(nq):
        a(f"v_cmp_ngt_f32 vcc, s{sT0}, v{vNM+4*q}")
        a("s_or_b64 s[4:5], s[4:5], vcc")
    if FORCE_SAFE: a(f"s_branch L_safe{L}")
    a(f"s_cbranch_scc1 L_safe{L}")
    a(f"L_epi{L}:")
    for q in range(nq): a(f"v_rcp_f32 v{vNM+4*q}, v{vNM+4*q}")
    a(f"s_waitcnt vmcnt({vm[::-1].index(('w', 12))})")
    rds = [t for j in range(6, 13) for t in wo_reads(j, PIECE[j])]
    per = -(-len(rds) // (4 * nq))
    for q in range(nq):
        for s in range(4):
            b = vO + (q * 8 + 2 * s) * 4
            for t in rds[:per]: a(t)
            rds = rds[per:]
            for j in range(8): a(f"v_mul_f32 v{b+j}, v{vNM+4*q}, v{b+j}")
            for j in range(4): a(f"v_cvt_pk_bf16_f32 v{b+j}, v{b+2*j}, v{b+2*j+1}")
            if s == 0:
                a(f"s_lshl_b32 s{sT0}, s{sWAVE}, 2\ns_add_u32 s{sT0}, s{sT0}, {q}\ns_mul_i32 s{sT1}, s{sT0}, 52\ns_lshr_b32 s{sT1}, s{sT1}, 8")
                a(f"s_mul_i32 s{sT1}, s{sT1}, {128*5120 - 5*1024}\ns_lshl_b32 s{sT0}, s{sT0}, 10\ns_add_u32 s{sT0}, s{sT0}, s{sT1}\ns_add_u32 s{sT0}, s{sT0}, s3")
            else:
                a(f"s_add_u32 s{sT0}, s{sT0}, 5120")
            a(f"buffer_store_dwordx4 {r('v', b)}, v2, s[{sWS}:{sWS+3}], s{sT0} offen{OST}")
    a("s_branch L_common")
    gen_safe(a, nq, L)

def gen_safe(a, nq, L):
    a(f"L_safe{L}:")
    a("s_waitcnt vmcnt(0) lgkmcnt(0)")
    for i in range(nq * 32): a(f"v_mov_b32 v{vO+i}, 0")
    for q in range(nq):
        a(f"v_mov_b32 v{vNM+4*q}, 0xff800000")
        a(f"v_mov_b32 v{vNM+4*q+3}, 0")
    kv_voffsets(a, False)
    kv_srds(a)
    a(f"s_add_u32 s{sKW}, s{sVW}, {SBASE}")
    a(f"s_sub_u32 s{sT0}, s{sKW}, {KBASE}")
    for i in range(4): a(f"v_add_u32 v{vKR+i}, s{sT0}, v{vKR+i}")
    for i in range(8): a(f"v_add_u32 v{vVR+i}, s{sKW}, v{vVR+i}")
    a(f"s_mov_b32 s{sKoff}, 0")
    a(f"L_sloop{L}:")
    def tile(vd, srd):
        for hh in range(2):
            a(f"s_add_u32 m0, s{sKW}, {hh*16384}")
            a(f"s_add_u32 s{sVoff}, s{sKoff}, {hh*4096}")
            for n in range(4): a(f"buffer_load_dwordx4 v{vd+n}, s[{srd}:{srd+3}], s{sVoff} offen offset:{n*1024} lds")
    tile(vKD, sK)
    a("s_waitcnt vmcnt(0)")
    for f in range(8): a(kread(f, 0, 16384))
    a("s_waitcnt lgkmcnt(0)")
    tile(vVD, sV)
    for kt in range(2):
        for s in range(4):
            for q in range(nq): a(qk(0, q, kt, s, czero=True))
    a("s_nop 7")
    T = vS + 32
    for q in range(nq):
        b = S(0, q, 0); m = T + 2 * q
        a(f"v_max3_f32 v{m}, v{b}, v{b+1}, v{b+2}")
        a(f"v_max3_f32 v{m+1}, v{b+3}, v{b+4}, v{b+5}")
        a(f"v_max3_f32 v{m}, v{m}, v{b+6}, v{b+7}")
        a(f"v_max3_f32 v{m}, v{m}, v{m+1}, v{vNM+4*q}")
    xlane(a, [T + 2 * q for q in range(nq)], "v_max_f32")
    for q in range(nq):
        m = vNM + 4 * q; b = S(0, q, 0)
        a(f"v_sub_f32 v{m+2}, v{m}, v{T+2*q}")
        a(f"v_exp_f32 v{m+2}, v{m+2}")
        a(f"v_mov_b32 v{m}, v{T+2*q}")
        for j in range(8): a(f"v_sub_f32 v{b+j}, v{b+j}, v{m}")
        for j in range(8): a(f"v_exp_f32 v{b+j}, v{b+j}")
        a(f"v_mul_f32 v{m+3}, v{m+3}, v{m+2}")
        for i in range(32): a(f"v_mul_f32 v{vO+q*32+i}, v{vO+q*32+i}, v{m+2}")
        for j in range(4): a(f"v_cvt_pk_bf16_f32 v{b+j}, v{b+2*j}, v{b+2*j+1}")
        for j in range(4):
            a(f"v_lshlrev_b32 v{b+4}, 16, v{b+j}")
            a(f"v_and_b32 v{b+5}, 0xffff0000, v{b+j}")
            a(f"v_add_f32 v{m+3}, v{m+3}, v{b+4}")
            a(f"v_add_f32 v{m+3}, v{m+3}, v{b+5}")
    a("s_waitcnt vmcnt(0)")
    for d in range(8):
        for h in range(2): a(vread(d, h, 0, 16384))
        if d == 3: a("s_waitcnt lgkmcnt(0)")
    a("s_waitcnt lgkmcnt(0)")
    for d in range(8):
        for q in range(nq): a(pv(0, q, d))
    a("s_nop 7")
    a(f"s_add_u32 s{sKoff}, s{sKoff}, 8192")
    a(f"s_cmp_lt_u32 s{sKoff}, 524288")
    a(f"s_cbranch_scc1 L_sloop{L}")
    xlane(a, [vNM + 4 * q + 3 for q in range(nq)], "v_add_f32", tmp=-2)
    for q in range(nq): a(f"v_mov_b32 v{vNM+4*q}, v{vNM+4*q+3}")
    ar_setup(a)
    a(f"v_mul_u32_u24 v{PFA}, 1280, v3")
    for j in (8, 11): flat(a, wo_issue(j, PIECE[j]))
    a("s_waitcnt vmcnt(0)")
    a(f"s_branch L_epi{L}")

def gen_common(a):
    a("L_common:")
    piece = dict(PIECE)
    vm = [("w", j) for j in range(15)] + [("st", 0)]
    def issue(n, p):
        piece[n] = p
        flat(a, wo_issue(n, p)); vm.extend([("w", n)] * 4)
    def vw(tag): return vm[::-1].index(tag)
    a("s_waitcnt lgkmcnt(0)")
    NPRE = opt("npre", 3)
    for i in range(NPRE): issue(15 + i, piece[6 + i])
    a(f"""s_lshl_b32 s{sT0}, s{sOB}, 2
s_add_u32 s{sT0}, s{sT0}, s{sWAVE}
s_mul_i32 s{sT0}, s{sT0}, {32*5120}
s_add_u32 s{sO}, s{pWS}, s{sT0}
s_addc_u32 s{sO+1}, s{pWS+1}, 0
s_mov_b32 s{sO+2}, {0 if opt("oskip", 0) else 32*5120}
s_mov_b32 s{sOUT}, s{pDBG}
s_mov_b32 s{sOUT+1}, s{pDBG+1}
s_mov_b32 s{sOUT+2}, 256
v_mov_b32 v12, 1
v_mov_b32 v15, 0
v_add_u32 v16, 4096, v2""")
    a(f"s_waitcnt vmcnt({vw(('st', 0))})")
    if opt("opf", 0):
        for half in range(2):
            a(f"v_lshrrev_b32 v17, 5, v3\nv_lshl_add_u32 v17, v1, 2, v17\nv_add_u32 v17, {2*half}, v17")
            a(f"v_mul_u32_u24 v18, 52, v17\nv_lshrrev_b32 v18, 8, v18\nv_mul_u32_u24 v18, {128*5120 - 5*1024}, v18\nv_lshl_add_u32 v18, v17, 10, v18")
            a(f"v_bfe_u32 v19, v3, 3, 2\nv_mul_u32_u24 v19, 5120, v19\nv_add_u32 v18, v18, v19\nv_lshl_add_u32 v18, v7, 7, v18")
            a(f"v_cmp_gt_u32 vcc, 15, v17\nv_mov_b32 v19, 0x7f000000\ns_nop 0\nv_cndmask_b32 v18, v19, v18, vcc")
            a(f"buffer_load_dword v{20+half}, v18, s[{sWS}:{sWS+3}], s3 offen sc1")
            vm.append(("opf", half))
    a("s_barrier")
    a(f"s_cmp_lg_u32 s{sWAVE}, 0")
    a("s_cbranch_scc1 L_nosig")
    a(f"s_lshl_b32 s{sT0}, s{sB}, 5")
    a("s_mov_b64 exec, 1")
    a(f"buffer_atomic_add v12, v15, s[{sOUT}:{sOUT+3}], s{sT0} offen sc1")
    a("s_mov_b64 exec, -1")
    a("L_nosig:")
    stamp(a)
    a("s_cmp_ge_u32 s2, 240")
    a("s_cbranch_scc1 L_exit")
    for j in (13, 14):
        for t in wo_reads(j, piece[j]): a(t)
    for i in range(NPRE, 7): issue(15 + i, piece[6 + i])
    a(f"s_mul_i32 s{sT1}, s{sOB}, 86\ns_lshr_b32 s{sT1}, s{sT1}, 8\ns_lshl_b32 s{sT1}, s{sT1}, 5")
    def poll():
        a(f"buffer_load_dword v12, v15, s[{sOUT}:{sOUT+3}], s{sT1} offen sc0 sc1")
        vm.append(("poll", 0))
    PA = opt("pollat", 5)
    issue(22, 3)
    pend = [13, 14]; nxt = 23
    for j in range(15, 22):
        a(f"s_waitcnt vmcnt({vw(('w', j))}) lgkmcnt(0)")
        for t in wo_reads(j, piece[j]): a(t)
        if j - 15 == PA: poll()
        for x in pend: issue(nxt, piece[x]); nxt += 1
        pend = [j]
    a("s_waitcnt lgkmcnt(0)")
    issue(nxt, piece[pend[0]])
    assert nxt == 31
    a(f"s_cmp_lg_u32 s{sWAVE}, 0")
    a("s_cbranch_scc1 L_go")
    a(f"s_waitcnt vmcnt({vw(('poll', 0))})")
    a(f"s_mov_b32 s{sCNT}, {SPIN}")
    a("L_poll:")
    a(f"v_readfirstlane_b32 s{sT0}, v12")
    a(f"s_sub_u32 s{sCNT}, s{sCNT}, 1")
    a(f"s_cbranch_scc1 L_go")
    a(f"s_cmp_ge_u32 s{sT0}, 32")
    a("s_cbranch_scc1 L_go")
    a(f"buffer_load_dword v12, v15, s[{sOUT}:{sOUT+3}], s{sT1} offen sc0 sc1")
    a("s_waitcnt vmcnt(0)")
    a("s_branch L_poll")
    a("L_go:")
    a("s_barrier")
    stamp(a)
    vAcc = 128
    ring = [208 + 4 * i for i in range(12)] + [36] + ([12] if STAMP < 2 else [])
    RD = len(ring)
    def o_pre(n): return [f"s_add_u32 s{sT1}, s{sR}, {n}", f"s_and_b32 s{sT1}, s{sT1}, 31", f"s_mul_i32 s{sT1}, s{sT1}, 5120"]
    def o_ld(i):
        n, qt = divmod(i, 5)
        return f"buffer_load_dwordx4 {r('v', ring[i % RD])}, v{2 if qt < 4 else 16}, s[{sO}:{sO+3}], s{sT1} offen offset:{(qt&3)*1024}{OLD}"
    for i in range(RD):
        if i % 5 == 0:
            for t in o_pre(i // 5): a(t)
        a(o_ld(i)); vm.append(("o", i))
    B = Body()
    for n in range(32):
        rf, bank = bank_of(n)
        for qt in range(5):
            for nt in range(4):
                acc = r("v", vAcc + (qt * 4 + nt) * 4)
                need = None
                if nt == 0: need = [("vm", ("o", 5 * n + qt))] + ([("W", n)] if (qt == 0 and n >= 22) else [])
                B.add(f"{MF} {acc}, {r(rf, bank+4*nt)}, {r('v', ring[(5*n+qt) % RD])}, {'0' if n == 0 else acc}", need)
    for i in range(160 - RD):
        j = i + RD
        if j % 5 == 0:
            for k, t in enumerate(o_pre(j // 5)): B.pre.setdefault(4 * i + k, []).append(t)
        B.place_big("M", o_ld(j), 4 * i + 3, ("o", j), hi=4 * i + 3)
    for n in range(10):
        j = n + 22
        g = 20 * (n + 1)
        for i, t in enumerate(wo_reads(j, piece[j])):
            g = B.place_d(t, g, ("W", j), 1, req=[("vm", ("w", j))] if i == 0 else None) + 1
    if STAMP == 4:
        a("v_mov_b32 v13, 0\nv_mov_b32 v14, 0\ns_memtime s[100:101]\ns_waitcnt lgkmcnt(0)"); rec(a)
        for n in range(32):
            B.cv.setdefault(20 * n + 1, []).append("s_memtime s[100:101]\ns_waitcnt lgkmcnt(0)\nv_cmp_eq_u32 vcc, v13, v3\nv_mov_b32 v15, s100\nv_add_u32 v13, 1, v13\nv_cndmask_b32 v14, v14, v15, vcc")
    B.emit(a, vm=vm)
    stamp(a)
    vB = 48
    a(f"s_mov_b32 s{sOUT}, s{pOUT}\ns_mov_b32 s{sOUT+1}, s{pOUT+1}\ns_mov_b32 s{sOUT+2}, {8*240*640*2}")
    a(f"s_mul_i32 s{sT0}, s{sWAVE}, 5120")
    a(f"v_add_u32 v8, s{sT0}, v2")
    a("v_add_u32 v9, 40960, v8")
    a("s_nop 4")
    a("s_barrier")
    for nt in range(4):
        a(f"s_cmp_eq_u32 s{sWAVE}, {nt}")
        a(f"s_cbranch_scc1 L_skipw{nt}")
        for qt in range(5): a(f"ds_write_b128 v{8 + (nt >> 1)}, {r('v', vAcc+(qt*4+nt)*4)} offset:{(nt&1)*20480 + qt*1024}")
        a(f"s_branch L_nextw{nt}")
        a(f"L_skipw{nt}:")
        for qt in range(5):
            for j in range(4): a(f"v_mov_b32 v{vB+qt*4+j}, v{vAcc+(qt*4+nt)*4+j}")
        a(f"L_nextw{nt}:")
    a(f"s_mul_i32 s{sT0}, s{sWAVE}, 20480")
    a(f"v_add_u32 v12, s{sT0}, v2")
    for i in range(1, 4):
        a(f"s_add_u32 s{sT1}, s{sWAVE}, {i}\ns_and_b32 s{sT1}, s{sT1}, 3\ns_mul_i32 s{sT1}, s{sT1}, 5120\nv_add_u32 v{16+i}, s{sT1}, v12")
    a(f"s_mul_i32 s{sT0}, s{sOB}, {80*1280}\ns_lshl_b32 s{sT1}, s{sQS}, 7\ns_add_u32 s{sT0}, s{sT0}, s{sT1}\ns_lshl_b32 s{sT1}, s{sWAVE}, 5\ns_add_u32 s{sT0}, s{sT0}, s{sT1}")
    a("v_mul_u32_u24 v10, 1280, v5\nv_lshl_add_u32 v10, v4, 3, v10")
    a("s_waitcnt lgkmcnt(0)")
    a("s_barrier")
    for qt in range(5):
        for i in range(1, 4): a(f"ds_read_b128 {r('v', vAcc+(qt*3+i-1)*4)}, v{16+i} offset:{qt*1024}")
    for qt in range(5):
        a(f"s_waitcnt lgkmcnt({12-3*qt})")
        b0 = vAcc + qt * 12
        for j in range(4): a(f"v_add_f32 v{vB+qt*4+j}, v{vB+qt*4+j}, v{b0+j}")
        for j in range(4): a(f"v_add_f32 v{b0+4+j}, v{b0+4+j}, v{b0+8+j}")
        for j in range(4): a(f"v_add_f32 v{vB+qt*4+j}, v{vB+qt*4+j}, v{b0+4+j}")
        for j in range(2): a(f"v_cvt_pk_bf16_f32 v{vB+qt*4+j}, v{vB+qt*4+2*j}, v{vB+qt*4+2*j+1}")
        a(f"buffer_store_dwordx2 {r('v', vB+qt*4, 2)}, v10, s[{sOUT}:{sOUT+3}], s{sT0} offen{FST}")
        if qt < 4: a(f"s_add_u32 s{sT0}, s{sT0}, {16*1280}")
    if STAMP:
        a("s_waitcnt vmcnt(0)")
        a("s_waitcnt lgkmcnt(0)")
        if STAMP >= 2:
            a(f"s_lshl_b32 s{sT0}, s2, 10\ns_add_u32 s{sT0}, s{sT0}, 0x80000\nv_lshlrev_b32 v15, 2, v0")
            a(f"buffer_store_dword v14, v15, s[{sST}:{sST+3}], s{sT0} offen")
        a("s_memtime s[76:77]\ns_memrealtime s[78:79]\ns_waitcnt lgkmcnt(0)")
        if opt("dbgout", 0):
            a(f"s_cmp_lg_u32 s2, 9\ns_cbranch_scc1 L_exit\ns_cmp_lg_u32 s{sWAVE}, 0\ns_cbranch_scc1 L_exit")
            a(f"s_mov_b32 s{sOUT}, s{pDBG}\ns_mov_b32 s{sOUT+1}, s{pDBG+1}\ns_mov_b32 s{sOUT+2}, 256")
            a("s_mov_b64 exec, 1\nv_mov_b32 v15, 0")
            words = [1, 2, 3, 4, 5, 6, 7, 9]
            for i in range(8):
                a(f"s_sub_u32 s4, s{sSTAMP+4*(i+1)+2}, s{sSTAMP+4*i+2}\nv_mov_b32 v12, s4")
                a(f"buffer_store_dword v12, v15, s[{sOUT}:{sOUT+3}], 0 offen offset:{4*words[i]}\ns_nop 1")
            a(f"s_sub_u32 s4, s78, s{sSTAMP+2}\nv_mov_b32 v12, s4\nbuffer_store_dword v12, v15, s[{sOUT}:{sOUT+3}], 0 offen offset:40")
            a(f"s_sub_u32 s4, s{sSTAMP+16}, s{sSTAMP+12}\nv_mov_b32 v13, s4\nbuffer_store_dword v13, v15, s[{sOUT}:{sOUT+3}], 0 offen offset:44")
        else:
            stamp_store(a, 18, sSTAMP, sST, 4)

def gen():
    a = Asm()
    a("s_cmp_ge_u32 s2, 256")
    a("s_cbranch_scc1 L_exit")
    a("s_getpc_b64 s[8:9]")
    a(f"s_load_dwordx16 s[{sARG}:{sARG+15}], s[0:1], 0")
    a(f"s_mov_b32 s10, L_exit-{KN}-16\ns_mov_b32 s11, 0x20000\ns_lshr_b32 s4, s2, 3\ns_lshl_b32 s4, s4, 12")
    a("v_lshrrev_b32 v11, 3, v0\nv_lshlrev_b32 v11, 7, v11")
    a("buffer_load_dword v12, v11, s[8:11], s4 offen")
    stamp(a)
    if MAP == "bmajor":
        a(f"s_and_b32 s{sB}, s2, 7\ns_lshr_b32 s{sH}, s2, 3")
        a(f"s_mul_i32 s{sQS}, s{sH}, 5\ns_lshr_b32 s{sQS}, s{sQS}, 4")
    else:
        a(f"""s_and_b32 s{sT0}, s2, 1
s_lshl_b32 s{sB}, s{sT0}, 2
s_lshr_b32 s{sT1}, s2, 3
s_and_b32 s{sT0}, s{sT1}, 3
s_add_u32 s{sB}, s{sB}, s{sT0}
s_mul_i32 s{sQS}, s{sT0}, 10
s_and_b32 s{sH}, s2, 6
s_lshl_b32 s{sH}, s{sH}, 2
s_lshr_b32 s{sT1}, s{sT1}, 2
s_add_u32 s{sH}, s{sH}, s{sT1}
s_mul_i32 s{sT1}, s{sT1}, 5
s_add_u32 s{sQS}, s{sQS}, s{sT1}
s_lshr_b32 s{sQS}, s{sQS}, 2
s_sub_u32 s{sT0}, s{sQS}, 10
s_cmp_ge_u32 s{sQS}, 10
s_cselect_b32 s{sQS}, s{sT0}, s{sQS}""")
        QG = opt("qg", 14)
        if QG in (2, 4):
            a(f"s_add_u32 s{sQS}, s{sH}, s{sB}\ns_and_b32 s{sQS}, s{sQS}, {QG-1}\ns_mul_i32 s{sQS}, s{sQS}, 5\ns_lshr_b32 s{sQS}, s{sQS}, {QG//4}")
        elif QG == 12:
            a(f"s_add_u32 s{sQS}, s{sH}, s{sB}\ns_and_b32 s{sQS}, s{sQS}, 1")
        elif QG == 14:
            a(f"s_add_u32 s{sQS}, s{sH}, s{sB}\ns_and_b32 s{sQS}, s{sQS}, 3")
        elif QG == 20:
            a(f"s_mul_i32 s{sQS}, s{sH}, {opt('qa', 1)}\ns_mul_i32 s{sT0}, s{sB}, {opt('qb', 1)}\ns_add_u32 s{sQS}, s{sQS}, s{sT0}\ns_and_b32 s{sQS}, s{sQS}, {opt('qm', 3)}\ns_mul_i32 s{sQS}, s{sQS}, {opt('qs', 1)}")
        elif QG == 1:
            a(f"s_mov_b32 s{sQS}, 0")
    a(f"""v_lshrrev_b32 v1, 6, v0
v_and_b32 v3, 63, v0
v_lshrrev_b32 v4, 4, v3
v_readfirstlane_b32 s{sWAVE}, v1
v_and_b32 v5, 15, v3
v_lshlrev_b32 v2, 4, v3
v_lshrrev_b32 v6, 3, v3
v_and_b32 v7, 7, v3""")
    a("v_lshl_add_u32 v8, v1, 6, v6\nv_mul_u32_u24 v8, 1280, v8\nv_xor_b32 v9, v7, v4")
    for n in range(8):
        a(f"v_xor_b32 v10, {4*(n&1)}, v9")
        a(f"v_lshl_add_u32 v10, v10, 4, v8")
        a(f"v_add_u32 v{vXD+n}, {n*8*1280 - (n&3)*1024}, v10")
    a("v_lshl_add_u32 v8, v1, 4, v4\nv_lshlrev_b32 v8, 13, v8\nv_lshlrev_b32 v9, 2, v4\nv_xor_b32 v9, v9, v5\nv_lshl_add_u32 v8, v9, 4, v8")
    for n in range(4): a(f"v_add_u32 v{vWD+n}, {n*4*8192 - n*1024 - 8*(n>>1)}, v8")
    a(f"""s_lshl_b32 s{sXW}, s{sWAVE}, 13
s_lshl_b32 s{sVW}, s{sWAVE}, 12
s_add_u32 s{sKW}, s{sVW}, {KBASE}
s_mul_i32 s{sWW}, s{sWAVE}, 4112
s_mov_b32 s{sX+2}, 307200
s_mov_b32 s{sX+3}, 0x20000
s_mov_b32 s{sW+3}, 0x20000
s_mul_i32 s{sT0}, s{sB}, 307200
s_lshl_b32 s{sT1}, s{sH}, 8
s_sub_u32 s{sW+2}, 5242880, s{sT1}
s_waitcnt lgkmcnt(0)
s_add_u32 s{sX}, s{pX}, s{sT0}
s_addc_u32 s{sX+1}, s{pX+1}, 0
s_add_u32 s{sW}, s{pWQ}, s{sT1}
s_addc_u32 s{sW+1}, s{pWQ+1}, 0""")
    stamp(a, True)
    def rest(a):
        kv_srds(a)
        a(f"""s_mov_b32 s{sWS}, s{pWS}
s_mov_b32 s{sWS+1}, s{pWS+1}
s_mov_b32 s{sWS+2}, {8*15*128*1024}
s_mov_b32 s{sWS+3}, 0x20000""")
        if STAMP:
            a(f"s_add_u32 s{sST}, s{pWS}, 0x10000000\ns_addc_u32 s{sST+1}, s{pWS+1}, 0\ns_mov_b32 s{sST+2}, 0x100000\ns_mov_b32 s{sST+3}, 0x20000")
        if PF:
            a(f"""s_cmp_lt_u32 s{sWAVE}, 2
s_cselect_b32 s{sPF}, s{sK}, s{sV}
s_cselect_b32 s{sPF+1}, s{sK+1}, s{sV+1}
s_mov_b32 s{sPF+2}, 524288
s_mov_b32 s{sPF+3}, 0x20000
v_and_b32 v11, 127, v0
v_lshlrev_b32 v11, 7, v11""")
        kv_voffsets(a, True)
        a(f"v_lshlrev_b32 v8, 8, v5\nv_add_u32 v8, {KBASE}, v8\nv_xor_b32 v9, v4, v5")
        for s in range(4):
            a(f"v_xor_b32 v10, {4*s}, v9")
            a(f"v_lshl_add_u32 v{vKR+s}, v10, 4, v8")
        a("v_lshrrev_b32 v8, 2, v3\nv_and_b32 v9, 7, v8\nv_lshlrev_b32 v8, 8, v8\nv_and_b32 v10, 3, v3\nv_lshl_add_u32 v8, v10, 3, v8")
        for t in range(8):
            a(f"v_xor_b32 v10, {t}, v9")
            a(f"v_lshl_add_u32 v{vVR+t}, v10, 5, v8")
        a(f"v_lshlrev_b32 v8, 13, v1\nv_lshl_add_u32 v8, v5, 7, v8\nv_add_u32 v8, {QBUF[1]}, v8\nv_lshrrev_b32 v9, 1, v5\nv_xor_b32 v9, v9, v4")
        for sp in range(2):
            a(f"v_xor_b32 v10, {4*sp}, v9")
            a(f"v_lshl_add_u32 v{vXR+sp}, v10, 4, v8")
        a(f"v_bfe_u32 v9, v3, 2, 2\nv_lshl_add_u32 v8, v4, 3, v9\nv_lshlrev_b32 v8, 8, v8\nv_and_b32 v10, 3, v3\nv_lshl_add_u32 v8, v10, 4, v8")
        a(f"v_add_u32 v8, {QBUF[1]}, v8\nv_lshl_add_u32 v8, v4, 3, v8")
        for s in range(4):
            a(f"v_xor_b32 v10, {s}, v9")
            a(f"v_lshl_add_u32 v{vWR+s}, v10, 6, v8")
        a("v_and_b32 v8, 3, v3\nv_cmp_eq_u32 vcc, 0, v8\nv_mov_b32 v9, 0x3f803f80\nv_mov_b32 v10, 0\nv_cndmask_b32 v9, v10, v9, vcc")
        for j in range(4): a(f"v_accvgpr_write_b32 a{aONE+j}, v9")
        a(f"s_mul_i32 s3, s{sB}, 96\ns_add_u32 s3, s3, s{sH}\ns_mul_i32 s3, s3, 20480")
        a(f"s_lshr_b32 s{sROT}, s2, 3\ns_lshl_b32 s{sROT}, s{sROT}, 14" if opt("rot", 1) else f"s_mov_b32 s{sROT}, 0")
        if PMAP:
            a(f"""s_lshr_b32 s4, s2, 3
s_mul_i32 s6, s4, 52
s_lshr_b32 s6, s6, 8
s_mul_i32 s5, s6, 5
s_sub_u32 s5, s4, s5
s_mul_i32 s{sR}, s5, {opt("rmul", 0)}
s_and_b32 s7, s2, 1
s_mul_i32 s7, s7, 5
s_add_u32 s5, s5, s7
s_and_b32 s{sOB}, s2, 6
s_mul_i32 s{sOB}, s{sOB}, 3
s_add_u32 s{sOB}, s{sOB}, s6""")
        else:
            a(f"""s_lshr_b32 s4, s2, 3
s_mul_i32 s6, s4, 26
s_lshr_b32 s6, s6, 8
s_mul_i32 s5, s6, 10
s_sub_u32 s5, s4, s5
s_and_b32 s{sOB}, s2, 7
s_mul_i32 s{sOB}, s{sOB}, 3
s_add_u32 s{sOB}, s{sOB}, s6""")
        if not PMAP: a(f"s_mov_b32 s{sR}, 0")
        a(f"""
s_mul_i32 s6, s{sWAVE}, {131072 if WCONT else 1024*1280}
s_lshl_b32 s7, s5, {19 if WCONT else 7}
s_add_u32 s6, s6, s7
s_add_u32 s{sWO}, s{pWO}, s6
s_addc_u32 s{sWO+1}, s{pWO+1}, 0
s_sub_u32 s{sWO+2}, 5242880, s6
s_cmp_ge_u32 s2, 240
s_cselect_b32 s{sWO+2}, 0, s{sWO+2}
{"s_mov_b32 s%d, 0" % (sWO+2) if opt("wskip", 0) else ""}
s_mov_b32 s{sWO+3}, 0x20000""")
    s0 = qstage(0, 8)
    s0 = s0[:5] + s0[-5:] + s0[5:-5]
    flat(a, s0[:-2])
    a(f"s_cmp_eq_u32 s{sWAVE}, 3")
    a("s_cbranch_scc1 L_x6")
    flat(a, s0[-2:])
    a("L_x6:")
    stamp(a, True)
    rest(a)
    s1 = qstage(1, 8)
    flat(a, s1[:5] + s1[-5:])
    stamp(a, True)
    a(f"s_cmp_eq_u32 s{sWAVE}, 3")
    a("s_cbranch_scc1 L_waveB")
    base = nstamp[0]
    gen_wave(a, 4, "A")
    a("L_waveB:")
    nstamp[0] = base
    gen_wave(a, 3, "B")
    gen_common(a)
    a("L_exit:")
    a("s_endpgm")
    return a.text()

body = gen()
print(wrap([dict(name=KN, grid=256, block=256, lds=163840, body=body, vgpr=512, sgpr=102, accum=256)]))
```

```python
import sys, struct, math
from gencommon import *

OPT = dict(kv.split("=") for kv in sys.argv[1:])
def opt(k, d): return type(d)(OPT.get(k, d))
STAMP = opt("stamp", 0)
MAP = opt("map", "mixed")
NT = opt("nt", 1)
FORCE_SAFE = opt("safe", 0)
QLEAD = opt("qlead", 28)
K0AT = opt("k0at", 2)
WARM = opt("warm", 1)
OD = opt("od", 5)
OLD = {"": "", "plain": "", "nt": " nt", "sc1": " sc1", "sc01": " sc0 sc1"}[opt("old", "sc1")]
OST = {"": "", "plain": "", "sc1": " sc1", "sc01": " sc0 sc1"}[opt("ost", "sc01")]
SPIN = opt("spin", 1 << 16)
CHAIN = opt("chain", 1)
LAG = opt("lag", 12)
NV = opt("nv", 0)
vLV = {1: 1, 2: 6, 3: 7}
def valu_sum(nq, q): return nq == 4 and q >= 4 - NV
DMA3 = opt("dma3", 1)
FST = {"": "", "sc01": " sc0 sc1", "nt": " nt"}[opt("fst", "")]
PMAP = opt("pmap", 1)
PF = [int(t) for t in opt("pf", "").split(",") if t]
PF0 = opt("pf0", 0)
sPF = 72
W6 = [tuple(int(y) for y in x.split(":")) for x in opt("w6", "29:56,30:56").split(",") if x]
sPFW = 6
PFD, PFA = (13, 14) if STAMP < 2 else (12, 1)
SNAKE = opt("snake", 1)

MF = "v_mfma_f32_16x16x32_bf16"
VBASE, SBASE, KBASE = 0, 64 * 1024, 96 * 1024
QBUF = [0, 48 * 1024, 96 * 1024]
XOFF, WOFF = 0, 31744
def kslot(t): return (t + 3) % 4
def vslot(t): return t % 4
vO = 128; vS = 64; vNM = 48
vKR = 16; vVR = 20; vKD = 28; vVD = 32; vXD = 36; vWD = 44
vXR = 64; vWR = 66
vWO = 36
vAR = [40, 44, 8]
aQ = 0; aK = 64; aV = 96; aL = 128; aONE = 144
aQA = [64, 96]; aQB = [148, 164]
sK, sV, sX, sW, sWS = 8, 12, 16, 20, 24
sO, sOUT = 16, 20
sWAVE, sKW, sVW, sXW, sWW = 28, 29, 30, 31, 32
sKoff, sVoff, sCNT, sB, sH, sT0, sT1 = 33, 34, 35, 36, 37, 38, 39
sKinc, sKmask, sVinc, sVmask = 6, 7, 31, 32
sST, sSTAMP = 40, 44
sWO = 76
sROT, sQS, sR, sOB = 80, 81, 82, 83
sARG = 84
pX, pK, pV, pWQ, pWO, pOUT, pDBG, pWS = [sARG + 2 * i for i in range(8)]
CSCALE = struct.unpack("<I", struct.pack("<f", math.log2(math.e) / math.sqrt(128.0)))[0]
WCONT = opt('wcont', 0)
WSTEP = 4096 if WCONT else 32 * 1280

def r(pfx, b, n=4): return f"{pfx}[{b}:{b+n-1}]"
def O(q, d): return r("v", vO + (q * 8 + d) * 4)
def S(p, q, kt): return vS + 32 * p + 8 * q + 4 * kt
def pol(srd): return "" if (srd == sV and opt("vdef", 0)) or (srd == sK and opt("kdef", 0)) else ntf()
def ntf(): return {0: "", 1: " nt", 2: " sc1 nt"}[NT]

nstamp = [0]
def stamp(a, early=False):
    if (STAMP == 5) != early and not (STAMP == 5 and nstamp[0] == 0): return
    if STAMP:
        i = nstamp[0]; nstamp[0] += 1
        assert i < 8
        a(f"s_memtime s[{sSTAMP+4*i}:{sSTAMP+4*i+1}]")
        a(f"s_memrealtime s[{sSTAMP+4*i+2}:{sSTAMP+4*i+3}]")
def rec(a):
    a("v_cmp_eq_u32 vcc, v13, v3\nv_mov_b32 v15, s100\nv_add_u32 v13, 1, v13\nv_cndmask_b32 v14, v14, v15, vcc")

def dmaK(n): return f"buffer_load_dwordx4 v{vKD+n}, s[{sK}:{sK+3}], s{sKoff} offen offset:{n*1024}{pol(sK)} lds"
def dmaV(n): return f"buffer_load_dwordx4 v{vVD+n}, s[{sV}:{sV+3}], s{sVoff} offen offset:{n*1024}{ntf() if not opt('vdef', 0) else ''} lds"
def kread(f, off, ktoff=4096, aK=aK):
    kt, s = f >> 2, f & 3
    return f"ds_read_b128 {r('a', aK+4*f)}, v{vKR+s} offset:{off + kt*ktoff}"
def vread(d, second, off, soff=4096):
    return f"ds_read_b64_tr_b16 {r('a', aV+4*d+2*second, 2)}, v{vVR+d} offset:{off + second*soff}"
def qk(p, q, kt, s, czero=False, aK=aK):
    b = S(p, q, kt)
    c = r("v", b) if s else ("0" if czero else r("v", vNM + 4 * q))
    return f"{MF} {r('v', b)}, {r('a', aK+4*(kt*4+s))}, {r('a', aQ+16*q+4*s)}, {c}"
def pv(p, q, d): return f"{MF} {O(q,d)}, {r('a', aV+4*d)}, {r('v', S(p,q,0))}, {O(q,d)}"
def sm(p, q): return f"{MF} {r('a', aL+4*q)}, {r('a', aONE)}, {r('v', S(p,q,0))}, {r('a', aL+4*q)}"
def softmax_ops(p, nq):
    ex, cv = [], []
    for kt in range(2):
        for q in range(nq):
            b = S(p, q, kt)
            for j in range(4): ex.append(f"v_exp_f32 v{b+j}, v{b+j}")
            for j in range(2):
                pre = [f"v_add_f32 v{vLV[q]}, v{vLV[q]}, v{b+2*j+i}" for i in range(2)] if valu_sum(nq, q) else []
                cv.append(pre + [f"v_cvt_pk_bf16_f32 v{S(p,q,0)+2*kt+j}, v{b+2*j}, v{b+2*j+1}"])
    return ex, cv

PRE = [(0, 4), (1, 5)]
PLAN = {28: ([0, 1], [(2, 9), (3, 4), (4, 5)]),
        29: ([2, 3], [(5, 6), (6, 0), (7, 9), (8, 4)]),
        30: ([4, 5], [(9, 7), (10, 1), (11, 5), (12, 6)]),
        31: ([], [(13, 8), (14, 2)])}
PIECE = dict(PRE)
for _b in PLAN.values(): PIECE.update(dict(_b[1]))
VBANK = [20, 48, 64, 80, 96, 112]
def bank_of(n):
    if n < 16: return "a", ((n + 10) % 16) * 16
    if n < 22: return "v", VBANK[n - 16]
    return bank_of(n - 22)
def wo_issue(n, piece):
    out = [("s", f"s_add_u32 s{sT0}, s{sR}, {n}"), ("s", f"s_and_b32 s{sT0}, s{sT0}, 31"),
           ("s", f"s_mul_i32 s{sT0}, s{sT0}, {WSTEP}"), ("s", f"s_add_u32 m0, s{sVW}, {piece*16384}")]
    out += [("M", f"buffer_load_dwordx4 v{vWO+i}, s[{sWO}:{sWO+3}], s{sT0} offen offset:{i*1024} lds") for i in range(4)]
    return out
def wo_reads(n, piece):
    rf, bank = bank_of(n)
    return [f"ds_read_b64_tr_b16 {r(rf, bank+4*t+2*h, 2)}, v{vAR[piece >> 2]+t} offset:{(piece & 3)*16384 + h*2048}" for t in range(4) for h in range(2)]
def flat(a, items):
    prev = None
    for it in items:
        k, t = it[0], it[1]
        if k == "M" and prev and "m0" in prev: a("s_nop 0")
        a(t); prev = t

class Body:
    def __init__(self):
        self.mf = []; self.big = {}; self.pre = {}; self.cv = {}; self.lastcv = 0; self.lag = 4
    def add(self, text, need=None): self.mf.append((text, need))
    def place_big(self, kind, text, target, tag=None, hi=None, req=None):
        n = len(self.mf)
        target = min(target, n - 1)
        hi = min(n - 1, target + 3 if hi is None else max(hi, target))
        g = target
        while g in self.big and g < hi: g += 1
        if g in self.big: g = min(range(target, hi + 1), key=lambda x: len(self.big[x]))
        self.big.setdefault(g, []).append((kind, text, tag, req))
        return g
    def place_d(self, text, lo, tag, cap, req=None):
        g = lo
        while True:
            kinds = [x[0] for x in self.big.get(g, [])]
            if all(k == "D" for k in kinds) and len(kinds) < cap: break
            g += 1
        assert g < len(self.mf)
        self.big.setdefault(g, []).append(("D", text, tag, req))
        return g
    def place_cvt(self, texts, lo, hi):
        for t in texts: g = self.place_cvt1(t, lo, hi)
        return g
    def place_cvt1(self, text, lo, hi):
        n = len(self.mf); best = None
        lo0 = lo
        lo = max(lo, self.lastcv)
        for g in range(lo, min(hi, lo0 + self.lag, n - 1) + 1):
            kinds = [x[0] for x in self.big.get(g, [])]
            cnt = len(self.cv.get(g, []))
            if (kinds == ["D"] and cnt == 0) or (kinds == [] and cnt < 2): best = g; break
        if best is None: best = min(lo, n - 1)
        self.cv.setdefault(best, []).append(text)
        self.lastcv = best
        return best
    def place_s(self, text, lo, hi=None):
        n = len(self.mf)
        hi = lo if hi is None else hi
        for g in range(lo, min(hi, n - 1) + 1):
            kinds = [x[0] for x in self.big.get(g, [])]
            if not self.pre.get(g) and (kinds == ["E"] or kinds == [] or (kinds == ["D"] and not self.cv.get(g))):
                self.pre.setdefault(g, []).append(text); return g
        self.pre.setdefault(lo, []).append(text); return lo
    def spread(self, it, start, span, req=None):
        nm = sum(1 for x in it if x[0] == "M")
        i = 0; pend = []; lastg = start
        for k, t, tag in it:
            if k != "M": pend.append(t); continue
            g = self.place_big("M", t, max(start + 2 + int(i * span / nm), lastg + 1 + (len(pend) + 1) // 2), tag, req=req if i == 0 else None)
            for j, pt in enumerate(pend):
                self.pre.setdefault(max(lastg + 1, g - (len(pend) - j + 1) // 2), []).append(pt)
            pend = []; lastg = g; i += 1
        return lastg
    def emit(self, a, resident=(), vm=None, vmdone=None):
        total = {}
        for items in self.big.values():
            for k, t, tag, req in items:
                if k in "DM": total[(k, tag)] = total.get((k, tag), 0) + 1
        st = dict(q=[], issued={})
        done = set(resident)
        vmdone = vmdone if vmdone is not None else set()
        def wait(tags):
            lds = [t for t in tags if t[0] != "vm" and t not in done]
            vms = [t[1] for t in tags if t[0] == "vm" and t[1] not in vmdone]
            parts = []
            if vms:
                for t in vms: assert st["issued"].get(("M", t), 0) == total.get(("M", t), 0) and t in vm, ("vm not issued", t)
                N = min(vm[::-1].index(t) for t in vms)
                N = min(N, 60)
                parts.append(f"vmcnt({N})")
                for t in vm[:len(vm) - N]: vmdone.add(t)
                for t in vm[len(vm) - N:]: vmdone.discard(t)
            if lds:
                q = st["q"]
                for t in lds: assert st["issued"].get(("D", t), 0) == total[("D", t)] and t in q, ("lds not issued", t)
                N = min(min(q[::-1].index(t) for t in lds), 10)
                parts.append(f"lgkmcnt({N})")
                for t in q[:len(q) - N]: done.add(t)
                st["q"] = q[len(q) - N:]
                for t in st["q"]: done.discard(t)
            if parts: a("s_waitcnt " + " ".join(parts))
        n = len(self.mf)
        if self.mf[0][1]: wait(self.mf[0][1])
        for g in range(n):
            a(self.mf[g][0])
            late = None
            nxt = self.mf[g + 1][1] if g + 1 < n else None
            if nxt: wait(nxt)
            for t in self.pre.get(g, []): a(t)
            for kind, text, tag, req in self.big.get(g, []):
                if req: wait(req)
                if kind == "B":
                    nv = vm[::-1].index(tag)
                    a(f"s_waitcnt vmcnt({nv}) lgkmcnt(0)")
                    for t in st["q"]: done.add(t)
                    st["q"] = []
                if not (kind in opt("drop", "") and getattr(self, "loop", False)): a(text)
                if kind in "DM": st["issued"][(kind, tag)] = st["issued"].get((kind, tag), 0) + 1
                if kind == "M" and vm is not None: vm.append(tag); vmdone.discard(tag)
                if kind == "D": st["q"].append(tag); done.discard(tag)
            for t in self.cv.get(g, []): a(t)

def estimate(lines):
    tot = 0; t = None; over = 0
    for l in lines + ["v_mfma"]:
        l = l.strip()
        if l.startswith("v_mfma"):
            if t is not None: tot += max(16, t); over += t > 16
            t = 4; lastv = False
        elif l.startswith("ds_"): t += 8 + (4 if lastv else 0)
        elif l.startswith("buffer_"): t += 12
        elif l.startswith("v_"): t = max(t, 8) + (8 if l.startswith("v_exp") else 4); lastv = True
        elif l.endswith(":"): pass
        else: t += 4
    return tot, over

def merge(a, V, M):
    pos = {}; n = [0]
    def ready(it): return all(d in pos and n[0] - pos[d] - 1 >= dist for d, dist in it[2])
    def put(it):
        a(it[1]); n[0] += len(it[1].split("\n")); pos[it[0]] = n[0] - 1
    vi = mi = 0
    while vi < len(V) or mi < len(M):
        did = False
        if mi < len(M) and ready(M[mi]): put(M[mi]); mi += 1; did = True
        cost = 0
        while vi < len(V) and cost < 2 and ready(V[vi]):
            cost += 2 if V[vi][1].startswith(("v_exp", "ds_", "buffer_")) else 1
            put(V[vi]); vi += 1; did = True
        if not did: a("s_nop 0"); n[0] += 1

NTAIL = {4: 26, 3: 20}
VMDONE = set()

def gen_body(a, nq, u, L, last=False, loopctl=None, idx=None, vm=None):
    B = Body()
    B.loop = idx is None
    if nq == 4 and NV and not last: B.lag = LAG
    vo, ko = vslot(u) * 16384, kslot(u + 1) * 16384
    def g_qk(p, kts, gen):
        for kt in kts:
            if CHAIN:
                for q in range(nq):
                    for s in range(4): B.add(qk(p, q, kt, s), ([("K", kt * 4 + x, gen) for x in range(4)] if s == 0 else None) if q == 0 else None)
            else:
                for s in range(4):
                    for q in range(nq): B.add(qk(p, q, kt, s), [("K", kt * 4 + s, gen)] if q == 0 else None)
    def g_pv(p, gen):
        for d in range(8):
            qs = list(range(nq)) if (d % 2 == 0 or not SNAKE) else list(range(nq - 1, -1, -1))
            for i, q in enumerate(qs): B.add(pv(p, q, d), [("V", d, gen)] if i == 0 else None)
        for q in range(nq):
            if not valu_sum(nq, q): B.add(sm(p, q))
    g_qk(1, [1], 0); P0 = len(B.mf)
    g_pv(0, 0); Q1 = len(B.mf)
    if not last: g_qk(0, [0, 1], 1)
    P1 = len(B.mf)
    g_pv(1, 1)
    if not last: g_qk(1, [0], 2)
    n = len(B.mf)
    resident = [("K", f, 0) for f in range(4, 8)]
    sc = nq / 4.0
    for d in range(8):
        for h in range(2): B.place_big("D", vread(d, h, vo), int((4 * d + 2 * h) * sc), ("V", d, 0))
    ex0, cv0 = softmax_ops(0, nq); ex1, cv1 = softmax_ops(1, nq)
    ne = len(ex0)
    win = P1 - P0
    full = nq * 17 - (NV if nq == 4 else 0)
    ntail = NTAIL[nq]
    if not last:
        for f in range(8): B.place_big("D", kread(f, ko), Q1 - int((22 if CHAIN else 20) * sc) + int(4 * f * sc), ("K", f, 1))
    for d in range(8):
        for h in range(2):
            lo = max(P1 - int(20 * sc) + int((4 * d + 2 * h) * sc), P0 + nq * d + nq)
            B.place_big("D", vread(d, h, vo + 8192), lo, ("V", d, 1))
    if not last:
        for f in range(8): B.place_big("D", kread(f, ko + 8192), P1 + int(12 * sc) + int(4 * f * sc), ("K", f, 2))
        mVe = 0
        if DMA3:
            if nq == 3 and (idx is None or idx == 28):
                def stream(so, srd, vd, ldsoff, tag):
                    it = [("s", f"s_add_u32 s{so}, s{so}, 16384", None), ("s", f"s_and_b32 s{so}, s{so}, 0x7ffff", None)]
                    for c in range(4):
                        it += [("s", f"s_add_u32 s4, s{so}, {c*4096}", None), ("s", f"s_mov_b32 m0, {ldsoff + c*4096}", None)]
                        it += [("M", f"buffer_load_dwordx4 v{vd+i}, s[{srd}:{srd+3}], s4 offen offset:{i*1024}{pol(srd)} lds", tag) for i in range(4)]
                    return it
                it = stream(sVoff, sV, vVD, VBASE + vslot(u + 3) * 16384, ("V", 31))
                if idx is None: it += stream(sKoff, sK, vKD, KBASE + kslot(u + 4) * 16384, None)
                mVe = B.spread(it, 0, n - 12 if idx is None else 40)
                assert mVe < n - 8
        else:
            if idx is None or idx == 28:
                g0 = Q1 - int(18 * sc) if idx is None else 3
                gs = [B.place_big("M", dmaV(i), g0 + int((8 if idx is None else 4) * i * sc), ("V", 31)) for i in range(4)]
                mV, mVe = gs[0], gs[-1]
            if idx is None:
                g0 = P1 + int(14 * sc)
                gs = [B.place_big("M", dmaK(i), g0 + int(8 * i * sc)) for i in range(4)]
                mK, mKe = gs[0], gs[-1]
    if idx is not None:
        rd, iss = PLAN[idx]
        g = int(30 * sc)
        for j in rd:
            for i, t in enumerate(wo_reads(j, PIECE[j])):
                g = B.place_big("D", t, g, ("W", j), req=[("vm", ("w", j))] if i == 0 else None) + 2
        g = mVe + 1 if idx == 28 else 0
        span = ((n - 6 - g) // len(iss)) if not last else int(16 * sc)
        for j, pc in iss:
            src = [x for x in rd if PIECE[x] == pc]
            if src: g = max(g, int(74 * sc))
            it = [(k, t, ("w", j)) for k, t in wo_issue(j, pc)]
            g = B.spread(it, g, min(span, int(24 * sc)), req=[("W", src[0])] if src else None) + 1
            assert g < n
        for k, (bi, gp) in enumerate(W6):
            if bi == idx:
                g = int(gp * sc)
                B.place_big("M", f"buffer_load_dword v{PFD}, v{PFA}, s[{sWO}:{sWO+3}], s{sPFW+k} offen", g, ("pfw", k))
    eg0, eg1, egt = {}, {}, {}
    nh = ne - ntail
    for i in range(ntail, ne):
        eg0[i] = B.place_big("E", ex0[i], max(1 + int((i - ntail) * (P0 - 4) / max(nh, 1)), eg0.get(i - 1, 0)))
    for i in range(ne):
        t = P0 + 1 + int(i * (win - 5) / ne)
        if i >= ne // 2: t = max(t, P0 + 5)
        eg1[i] = B.place_big("E", ex1[i], max(t, eg1.get(i - 1, 0)), hi=min(t + 3, P1 - 4))
    if not last:
        for i in range(ntail):
            t = P1 + 1 + int(i * (full - 5) / ne)
            egt[i] = B.place_big("E", ex0[i], max(t, egt.get(i - 1, 0)), hi=min(t + 3, n - 2))
    for j in range(ntail // 2, ne // 2):
        q = (j // 2) % nq
        g = B.place_cvt(cv0[j], eg0[2 * j + 1] + 1, P0 + q - 2)
        assert g <= P0 + q - 2
    for j in range(ne // 2):
        q = (j // 2) % nq
        g = B.place_cvt(cv1[j], eg1[2 * j + 1] + 1, P1 + q - 3)
        assert g <= P1 + q - 3, (j, g, P1)
    assert eg1[ne // 2] >= P0 + 5
    if not last:
        for j in range(ntail // 2): B.place_cvt(cv0[j], egt[2 * j + 1] + 1, n - 1)
        assert min(egt.values()) >= Q1 + 4 * nq + 5
        if ntail > ne // 2: assert egt[ne // 2] >= P1 + 5
        if DMA3: pass
        elif idx is None:
            B.place_s(f"s_add_u32 m0, s{sVW}, {VBASE + vslot(u+3)*16384}", mV - 4, mV - 1)
            g = B.place_s(f"s_add_u32 s{sVoff}, s{sVoff}, 16384", mV - 12, mV - 6)
            B.place_s(f"s_and_b32 s{sVoff}, s{sVoff}, 0x7ffff", g + 1, mV - 1)
            B.place_s(f"s_add_u32 m0, s{sKW}, {kslot(u+4)*16384}", mK - 4, mK - 1)
            g = B.place_s(f"s_add_u32 s{sKoff}, s{sKoff}, 16384", mK - 12, mK - 6)
            B.place_s(f"s_and_b32 s{sKoff}, s{sKoff}, 0x7ffff", g + 1, mK - 1)
        elif idx == 28:
            B.pre.setdefault(0, []).extend([f"s_add_u32 s{sVoff}, s{sVoff}, 16384", f"s_and_b32 s{sVoff}, s{sVoff}, 0x7ffff"])
            B.pre.setdefault(1, []).append(f"s_add_u32 m0, s{sVW}, {VBASE + vslot(u+3)*16384}")
        if loopctl:
            B.place_s(loopctl[0], n - 8, n - 5)
            B.place_s(loopctl[1], n - 4, n - 2)
    t = Asm()
    B.emit(t, resident, vm=vm, vmdone=VMDONE if vm is not None else None)
    a.l += t.l
    if opt("est", 0): sys.stderr.write(f"body {L} u={u} idx={idx}: mfma {n} est {estimate(t.l)}\n")
    if idx is not None and not last:
        need = [("V", idx + 1)] + ([("K", idx + 2)] if idx + 2 < 32 else [])
        N = min(min(vm[::-1].index(t) if t in vm else 60 for t in need), 60)
        if STAMP == 2: a("s_memtime s[100:101]")
        a(f"s_waitcnt vmcnt({N}) lgkmcnt(0)")
        for t in vm[:len(vm) - N]: VMDONE.add(t)
        for t in vm[len(vm) - N:]: VMDONE.discard(t)
        a("s_barrier")
        if STAMP == 2: rec(a)
    elif last:
        if STAMP == 2: a("s_memtime s[100:101]\ns_waitcnt lgkmcnt(0)"); rec(a)
    else:
        if STAMP == 2: a("s_memtime s[100:101]")
        for _ in range(opt("idle", 0)): a("s_nop 15")
        a(f"s_waitcnt vmcnt({16 if not DMA3 else 60 if nq == 3 else 8 if u == 0 else 0}) lgkmcnt(0)")
        if not opt("nobar", 0): a("s_barrier")
        if STAMP == 2: rec(a)

def kv_voffsets(a, wave):
    if wave:
        a("v_lshlrev_b32 v8, 12, v1")
        a("v_lshl_add_u32 v8, v4, 8, v8")
    else:
        a("v_lshlrev_b32 v8, 8, v4")
    a("v_xor_b32 v9, v5, v4")
    for n in range(4):
        a(f"v_xor_b32 v10, {4*n}, v9")
        a(f"v_lshl_add_u32 v{vKD+n}, v10, 4, v8")
    a("v_lshlrev_b32 v9, 1, v4")
    a("v_xor_b32 v9, v9, v5")
    for p in range(2):
        a(f"v_xor_b32 v10, {8*p}, v9")
        a(f"v_lshl_add_u32 v{vVD+p}, v10, 4, v8")
        a(f"v_mov_b32 v{vVD+p+2}, v{vVD+p}")
def kv_srds(a):
    a(f"""s_lshl_b32 s{sT0}, s{sB}, 5
s_add_u32 s{sT0}, s{sT0}, s{sH}
s_lshl_b32 s{sT0}, s{sT0}, 19
s_add_u32 s{sK}, s{pK}, s{sT0}
s_addc_u32 s{sK+1}, s{pK+1}, 0
s_mov_b32 s{sK+2}, 524288
s_mov_b32 s{sK+3}, 0x20000
s_add_u32 s{sV}, s{pV}, s{sT0}
s_addc_u32 s{sV+1}, s{pV+1}, 0
s_mov_b32 s{sV+2}, 524288
s_mov_b32 s{sV+3}, 0x20000""")
def ar_setup(a):
    a("v_lshrrev_b32 v12, 2, v3\nv_lshlrev_b32 v12, 7, v12\nv_and_b32 v15, 3, v3\nv_lshl_add_u32 v12, v15, 3, v12")
    a(f"v_add_u32 v12, s{sVW}, v12\nv_bfe_u32 v15, v3, 3, 2")
    for t in range(4):
        a(f"v_xor_b32 v{vAR[0]+t}, {t}, v15")
        a(f"v_lshl_add_u32 v{vAR[0]+t}, v{vAR[0]+t}, 5, v12")
        a(f"v_add_u32 v{vAR[1]+t}, 0x10000, v{vAR[0]+t}")
        a(f"v_add_u32 v{vAR[2]+t}, 0x20000, v{vAR[0]+t}")

def xlane(a, regs, op2, tmp=1):
    for op in ("v_permlane32_swap_b32", "v_permlane16_swap_b32"):
        for m in regs: a(f"v_mov_b32 v{m+tmp}, v{m}")
        a("s_nop 1")
        for m in regs: a(f"{op} v{m}, v{m+tmp}")
        a("s_nop 1")
        for m in regs: a(f"{op2} v{m}, v{m}, v{m+tmp}")

def qstage(st, nx):
    buf = QBUF[(st + 1) % 3]
    out = [("s", f"s_lshl_b32 s{sT0}, s{sQS}, 7"), ("s", f"s_lshl_b32 s{sT1}, s{sQS}, 19"), ("s", f"s_add_u32 s{sQS}, s{sQS}, 1"),
           ("s", f"s_cmp_eq_u32 s{sQS}, 10"), ("s", f"s_cselect_b32 s{sQS}, 0, s{sQS}"), ("s", f"s_add_u32 m0, s{sXW}, {buf+XOFF}")]
    for n in range(nx):
        if n == 4: out.append(("s", f"s_add_u32 m0, s{sXW}, {buf+XOFF+4096}"))
        out.append(("M", f"buffer_load_dwordx4 v{vXD+n}, s[{sX}:{sX+3}], s{sT0} offen offset:{(n&3)*1024} lds"))
    out.append(("s", f"s_add_u32 m0, s{sWW}, {buf+WOFF}"))
    for n in range(4):
        out.append(("M", f"buffer_load_dwordx4 v{vWD+n}, s[{sW}:{sW+3}], s{sT1} offen offset:{n*1024 + 8*(n>>1)} lds"))
    return [(k, t, ("q", st)) for k, t in out]

def gen_wave(a, nq, L):
    nx = 2 * nq
    def qstage_issue(st): return qstage(st, nx)
    def kv_issue(kind, t):
        so, sw, off, f = (sKoff, sKW, kslot(t) * 16384, dmaK) if kind == "K" else (sVoff, sVW, VBASE + vslot(t) * 16384, dmaV)
        out = [("s", f"s_add_u32 s{so}, s{sROT}, {t*16384}"), ("s", f"s_and_b32 s{so}, s{so}, 0x7ffff"), ("s", f"s_add_u32 m0, s{sw}, {off}")]
        out += [("M", f(n)) for n in range(4)]
        return [(k, x, (kind, t)) for k, x in out]
    vm = []
    def now(it):
        flat(a, it)
        for x in it:
            if x[0] == "M": vm.append(x[2])
    def vmwait(tag): return vm[::-1].index(tag)
    vm += [("q", 0)] * (nx + 4) + [("q", 1)] * 4
    s1 = qstage_issue(1)[5:-5]
    def qreads(st, sp):
        out = [(f"ds_read_b128 {r('a', aQB[sp]+4*q)}, v{vXR+sp} offset:{XOFF + q*2048}", ("B", st, sp)) for q in range(nq)]
        for t in range(8):
            s, odd = t >> 1, t & 1
            for h in range(2):
                out.append((f"ds_read_b64_tr_b16 {r('a', aQA[sp]+4*t+2*h, 2)}, v{vWR+s} offset:{WOFF + odd*8 + h*1024 + sp*8224}", ("A", st, sp, t)))
        return out
    def rot(st):
        d = QBUF[(st + 2) % 3] - QBUF[(st + 1) % 3]
        return [f"v_add_u32 v{vXR+i}, {d}, v{vXR+i}" if d > 0 else f"v_subrev_u32 v{vXR+i}, {-d}, v{vXR+i}" for i in range(6)]
    stamp(a, True)
    a(f"s_waitcnt vmcnt({vmwait(('q', 0))})")
    stamp(a, True)
    a("s_barrier")
    stamp(a); stamp(a, True)
    B = Body()
    PH = 8 * nq
    for st in range(10):
        for sp in range(2 if st < 9 else 1):
            for t in range(8):
                for q in range(nq):
                    c = "0" if (st == 0 and sp == 0) else O(q, t)
                    B.add(f"{MF} {O(q,t)}, {r('a', aQA[sp]+4*t)}, {r('a', aQB[sp]+4*q)}, {c}",
                          ([("A", st, sp, t)] + ([("B", st, sp)] if t == 0 else [])) if q == 0 else None)
    first = qreads(0, 0)
    for t, _ in first: a(t)
    now(s1); s1 = []
    a("s_waitcnt lgkmcnt(0)")
    stamp(a, True)
    LQ = int(QLEAD * nq / 4)
    now(s1)
    g = B.spread(qstage_issue(2), -1, 2 * PH - LQ - 6)
    assert g < 2 * PH - LQ
    for st in range(9):
        bar = 2 * PH * (st + 1) - LQ
        B.place_big("B", "s_barrier", bar, ("q", st + 1), hi=bar)
        for i, t in enumerate(rot(st)): B.cv.setdefault(bar - 3 + i // 2, []).append(t)
        if st + 3 < 10: it = qstage_issue(st + 3)
        elif st == 7: it = kv_issue("K", 1) + kv_issue("K", 2)
        else: it = kv_issue("V", 0) + kv_issue("V", 1)
        if st == K0AT: it = it + kv_issue("K", 0)
        if 0 <= st - PF0 < len(PF):
            t = PF[st - PF0]
            it = it + [("s", f"s_add_u32 s4, s{sROT}, {t*16384}", None), ("s", "s_and_b32 s4, s4, 0x7ffff", None),
                       ("M", f"buffer_load_dword v12, v11, s[{sPF}:{sPF+3}], s4 offen", ("pf", t))]
        g = B.spread(it, bar, 2 * PH - 5 if st < 8 else PH + LQ - 6)
        assert g < bar + 2 * PH
    for st in range(10):
        base = 2 * PH * st
        g = base - LQ + 1
        if st > 0:
            for t, tag in qreads(st, 0): g = B.place_d(t, g, tag, 5 - nq)
        g = max(g, 0)
        rd = qreads(st, 1)
        order = rd[nq:nq + 4] + rd[:nq] + rd[nq + 4:] if st > 0 else rd
        for t, tag in order:
            lo = base if tag[0] == "B" else base - PH + nq * tag[3] + nq
            g = B.place_d(t, max(g, lo), tag, 5 - nq)
        if st < 9: assert g < base + 2 * PH - LQ - 3, (st, g)
    aK0 = 180
    g = 2 * PH * 8
    for f in range(8): g = B.place_d(kread(f, kslot(0) * 16384, aK=aK0), g, ("K0", f), 5 - nq) + 1
    c = Asm()
    c("v_lshlrev_b32 v8, 1, v4\nv_xor_b32 v8, v8, v7\nv_mul_u32_u24 v9, 1280, v6\nv_lshl_add_u32 v8, v8, 4, v9")
    for n in range(4): c(f"v_add_u32 v{vWO+n}, {n*8*1280 - n*1024}, v8")
    ar_setup(c)
    c(f"v_mul_u32_u24 v{PFA}, 1280, v3")
    for i in range(16): c(f"v_accvgpr_write_b32 a{aL+i}, 0")
    g = 2 * PH * 9 - LQ + 2
    for t in c.l:
        while any(x[0] == "M" for x in B.big.get(g, [])): g += 1
        B.cv.setdefault(g, []).append(t.strip()); g += 1
        if g >= len(B.mf): g = len(B.mf) - 1
    sc_ = [f"s_mov_b32 s{sQS}, s5", "s_lshr_b32 s4, s2, 3", "s_mul_i32 s4, s4, 52", "s_lshr_b32 s4, s4, 8", f"s_lshl_b32 s{sT0}, s4, 1", f"s_add_u32 s{sT0}, s{sT0}, s{sR}"]
    for k in range(2):
        sc_ += [f"s_add_u32 s{sPFW+k}, s{sT0}, {14 + 12*k}", f"s_and_b32 s{sPFW+k}, s{sPFW+k}, 31", f"s_mul_i32 s{sPFW+k}, s{sPFW+k}, {WSTEP}"]
    sc_ += [f"s_cmp_ge_u32 s4, 3\ns_cselect_b32 s{sPFW+1}, 0x7f000000, s{sPFW+1}", f"s_mul_i32 s{sT0}, s2, 20480",
            f"s_add_u32 s{sX}, s{pWO}, s{sT0}\ns_addc_u32 s{sX+1}, s{pWO+1}, 0", f"s_mov_b32 s{sX+2}, 20480", f"s_mov_b32 s{sT1}, {CSCALE:#x}"]
    for i, t in enumerate(sc_): B.pre.setdefault(2 * PH * 9 + i, []).append(t)
    B.emit(a, resident=[tag for _, tag in first], vm=vm)
    stamp(a)
    a("s_waitcnt lgkmcnt(0)")
    V, M = [], []
    def vadd(t, deps=(), id=None): V.append((id if id is not None else ("v", len(V)), t, list(deps)))
    def vissue(it):
        prev = ""
        for k, t, tag in it:
            vadd(("s_nop 0\n" if (k == "M" and "m0" in prev) else "") + t); prev = t
            if k == "M": vm.append(tag)
    for q in range(nq):
        for t in range(8): M.append((("lq", q, t), f"{MF} {O(q,t)}, {r('a', aQA[1]+4*t)}, {r('a', aQB[1]+4*q)}, {O(q,t)}", []))
    def conv(q):
        for s in range(4):
            b = vO + (q * 8 + 2 * s) * 4
            for j in range(8): vadd(f"v_mul_f32 v{b+j}, s{sT1}, v{b+j}", [(("lq", q, 2 * s + (j >> 2)), 8)])
            for j in range(4): vadd(f"v_cvt_pk_bf16_f32 v{b+j}, v{b+2*j}, v{b+2*j+1}")
            for j in range(4): vadd(f"v_accvgpr_write_b32 a{aQ+16*q+4*s+j}, v{b+j}", id=("Q", q, s) if j == 3 else None)
        for kt in range(2):
            for s in range(4): M.append((("qk0", q, kt, s), qk(0, q, kt, s, czero=True, aK=aK0), [(("Q", q, 3), 2)]))
        for h in range(2):
            z = r("v", vO + q * 32 + 16 * h, 16)
            M.append((("z", q, h), f"v_mfma_f32_32x32x16_bf16 {z}, {r('a', aL)}, {r('a', aL)}, 0", [(("Q", q, 3), 0)]))
    def stats(qs):
        for q in qs:
            b = S(0, q, 0); m = vNM + 4 * q
            vadd(f"v_max3_f32 v{m}, v{b}, v{b+1}, v{b+2}", [(("qk0", q, 1, 3), 8)])
            vadd(f"v_max3_f32 v{m+1}, v{b+3}, v{b+4}, v{b+5}")
            vadd(f"v_max3_f32 v{m}, v{m}, v{b+6}, v{b+7}")
            vadd(f"v_max_f32 v{m}, v{m}, v{m+1}")
        for op in ("v_permlane32_swap_b32", "v_permlane16_swap_b32"):
            for q in qs: vadd(f"v_mov_b32 v{vNM+4*q+1}, v{vNM+4*q}", id=("cp", op, q))
            for q in qs: vadd(f"{op} v{vNM+4*q}, v{vNM+4*q+1}", [(("cp", op, q), 2)], id=("sw", op, q))
            for q in qs: vadd(f"v_max_f32 v{vNM+4*q}, v{vNM+4*q}, v{vNM+4*q+1}", [(("sw", op, q), 2)])
        for q in qs:
            m = vNM + 4 * q; b = S(0, q, 0)
            vadd(f"v_sub_f32 v{m}, 0, v{m}")
            for j in range(1, 4): vadd(f"v_mov_b32 v{m+j}, v{m}", id=("nm", q) if j == 3 else None)
            for j in range(8): vadd(f"v_add_f32 v{b+j}, v{b+j}, v{m}")
    ex0, cv0 = softmax_ops(0, nq)
    ntail = NTAIL[nq]
    def exps(qs):
        for j in range(ntail // 2):
            if (j // 2) % nq in qs:
                vadd(ex0[2 * j]); vadd(ex0[2 * j + 1], id=("e", j))
        for j in range(ntail // 2):
            if (j // 2) % nq in qs:
                for t in cv0[j]: vadd(t, [(("e", j), 1)])
    def qk1(qs):
        for q in qs:
            for s in range(4): M.append((("qk1", q, s), qk(1, q, 0, s), [(("nm", q), 2), ("khi", 0)]))
    for f in range(8): vadd(kread(f, kslot(0) * 16384 + 8192))
    for q in range(nq):
        if valu_sum(nq, q): vadd(f"v_mov_b32 v{vLV[q]}, 0")
    conv(0); conv(1)
    vissue(kv_issue("K", 3))
    vadd("s_waitcnt lgkmcnt(0)", id="khi")
    conv(2)
    stats([0, 1])
    if nq == 4: conv(3)
    qk1([0, 1])
    if WARM:
        vadd("v_lshlrev_b32 v12, 7, v0")
        vadd(f"buffer_load_dword v12, v12, s[{sX}:{sX+3}], 0 offen"); vm.append(("warm", 0))
    vissue(kv_issue("V", 2))
    exps([0, 1])
    rest_q = list(range(2, nq))
    stats(rest_q); qk1(rest_q); exps(rest_q)
    merge(a, V, M)
    a(f"s_mov_b32 s{sCNT}, 7")
    if STAMP == 2: a("v_mov_b32 v13, 0\nv_mov_b32 v14, 0")
    if DMA3 and nq == 3:
        for i in range(8): a(f"v_subrev_u32 v{vKD+i}, 12288, v{vKD+i}")
    a(f"s_waitcnt vmcnt({vmwait(('V', 1 if (DMA3 and nq == 3) else 0))})")
    assert vmwait(("V", 1)) >= 8 and vmwait(("K", 2)) >= 8
    a("s_barrier")
    stamp(a)
    a(".p2align 6")
    a(f"L_loop{L}:")
    gen_body(a, nq, 0, L)
    gen_body(a, nq, 1, L)
    gen_body(a, nq, 2, L)
    gen_body(a, nq, 3, L, loopctl=(f"s_sub_u32 s{sCNT}, s{sCNT}, 1", f"s_cmp_gt_u32 s{sCNT}, 1"))
    a(f"s_cbranch_scc1 L_loop{L}")
    a(f"s_cmp_eq_u32 s{sCNT}, 0")
    a(f"s_cbranch_scc1 L_tail{L}")
    for j, pc in PRE: flat(a, wo_issue(j, pc))
    a(f"s_branch L_loop{L}")
    a(f"L_tail{L}:")
    c = 4 if not DMA3 else 16 if nq == 3 else 0
    vm = [("w", 0), ("w", 1), ("old", 0)] + [("V", 29)] * c + [("K", 30)] * c + [("V", 30)] * c + [("K", 31)] * c
    VMDONE.clear(); VMDONE.update([("w", 0), ("w", 1)])
    for i in (28, 29, 30): gen_body(a, nq, i % 4, L, idx=i, vm=vm)
    gen_body(a, nq, 3, L, last=True, idx=31, vm=vm)
    stamp(a)
    vq = [q for q in range(nq) if valu_sum(nq, q)]
    for q in vq: a(f"v_mov_b32 v{vNM+4*q}, v{vLV[q]}")
    if vq: xlane(a, [vNM + 4 * q for q in vq], "v_add_f32")
    else: a("s_nop 7")
    for q in range(nq):
        if q not in vq: a(f"v_accvgpr_read_b32 v{vNM+4*q}, a{aL+4*q}")
    a(f"s_mov_b32 s{sT0}, 0x5f800000")
    a("s_mov_b64 s[4:5], 0")
    for q in range(nq):
        a(f"v_cmp_ngt_f32 vcc, s{sT0}, v{vNM+4*q}")
        a("s_or_b64 s[4:5], s[4:5], vcc")
    if FORCE_SAFE: a(f"s_branch L_safe{L}")
    a(f"s_cbranch_scc1 L_safe{L}")
    a(f"L_epi{L}:")
    for q in range(nq): a(f"v_rcp_f32 v{vNM+4*q}, v{vNM+4*q}")
    a(f"s_waitcnt vmcnt({vm[::-1].index(('w', 12))})")
    rds = [t for j in range(6, 13) for t in wo_reads(j, PIECE[j])]
    per = -(-len(rds) // (4 * nq))
    for q in range(nq):
        for s in range(4):
            b = vO + (q * 8 + 2 * s) * 4
            for t in rds[:per]: a(t)
            rds = rds[per:]
            for j in range(8): a(f"v_mul_f32 v{b+j}, v{vNM+4*q}, v{b+j}")
            for j in range(4): a(f"v_cvt_pk_bf16_f32 v{b+j}, v{b+2*j}, v{b+2*j+1}")
            if s == 0:
                a(f"s_lshl_b32 s{sT0}, s{sWAVE}, 2\ns_add_u32 s{sT0}, s{sT0}, {q}\ns_mul_i32 s{sT1}, s{sT0}, 52\ns_lshr_b32 s{sT1}, s{sT1}, 8")
                a(f"s_mul_i32 s{sT1}, s{sT1}, {128*5120 - 5*1024}\ns_lshl_b32 s{sT0}, s{sT0}, 10\ns_add_u32 s{sT0}, s{sT0}, s{sT1}\ns_add_u32 s{sT0}, s{sT0}, s3")
            else:
                a(f"s_add_u32 s{sT0}, s{sT0}, 5120")
            a(f"buffer_store_dwordx4 {r('v', b)}, v2, s[{sWS}:{sWS+3}], s{sT0} offen{OST}")
    a("s_branch L_common")
    gen_safe(a, nq, L)

def gen_safe(a, nq, L):
    a(f"L_safe{L}:")
    a("s_waitcnt vmcnt(0) lgkmcnt(0)")
    for i in range(nq * 32): a(f"v_mov_b32 v{vO+i}, 0")
    for q in range(nq):
        a(f"v_mov_b32 v{vNM+4*q}, 0xff800000")
        a(f"v_mov_b32 v{vNM+4*q+3}, 0")
    kv_voffsets(a, False)
    kv_srds(a)
    a(f"s_add_u32 s{sKW}, s{sVW}, {SBASE}")
    a(f"s_sub_u32 s{sT0}, s{sKW}, {KBASE}")
    for i in range(4): a(f"v_add_u32 v{vKR+i}, s{sT0}, v{vKR+i}")
    for i in range(8): a(f"v_add_u32 v{vVR+i}, s{sKW}, v{vVR+i}")
    a(f"s_mov_b32 s{sKoff}, 0")
    a(f"L_sloop{L}:")
    def tile(vd, srd):
        for hh in range(2):
            a(f"s_add_u32 m0, s{sKW}, {hh*16384}")
            a(f"s_add_u32 s{sVoff}, s{sKoff}, {hh*4096}")
            for n in range(4): a(f"buffer_load_dwordx4 v{vd+n}, s[{srd}:{srd+3}], s{sVoff} offen offset:{n*1024} lds")
    tile(vKD, sK)
    a("s_waitcnt vmcnt(0)")
    for f in range(8): a(kread(f, 0, 16384))
    a("s_waitcnt lgkmcnt(0)")
    tile(vVD, sV)
    for kt in range(2):
        for s in range(4):
            for q in range(nq): a(qk(0, q, kt, s, czero=True))
    a("s_nop 7")
    T = vS + 32
    for q in range(nq):
        b = S(0, q, 0); m = T + 2 * q
        a(f"v_max3_f32 v{m}, v{b}, v{b+1}, v{b+2}")
        a(f"v_max3_f32 v{m+1}, v{b+3}, v{b+4}, v{b+5}")
        a(f"v_max3_f32 v{m}, v{m}, v{b+6}, v{b+7}")
        a(f"v_max3_f32 v{m}, v{m}, v{m+1}, v{vNM+4*q}")
    xlane(a, [T + 2 * q for q in range(nq)], "v_max_f32")
    for q in range(nq):
        m = vNM + 4 * q; b = S(0, q, 0)
        a(f"v_sub_f32 v{m+2}, v{m}, v{T+2*q}")
        a(f"v_exp_f32 v{m+2}, v{m+2}")
        a(f"v_mov_b32 v{m}, v{T+2*q}")
        for j in range(8): a(f"v_sub_f32 v{b+j}, v{b+j}, v{m}")
        for j in range(8): a(f"v_exp_f32 v{b+j}, v{b+j}")
        a(f"v_mul_f32 v{m+3}, v{m+3}, v{m+2}")
        for i in range(32): a(f"v_mul_f32 v{vO+q*32+i}, v{vO+q*32+i}, v{m+2}")
        for j in range(4): a(f"v_cvt_pk_bf16_f32 v{b+j}, v{b+2*j}, v{b+2*j+1}")
        for j in range(4):
            a(f"v_lshlrev_b32 v{b+4}, 16, v{b+j}")
            a(f"v_and_b32 v{b+5}, 0xffff0000, v{b+j}")
            a(f"v_add_f32 v{m+3}, v{m+3}, v{b+4}")
            a(f"v_add_f32 v{m+3}, v{m+3}, v{b+5}")
    a("s_waitcnt vmcnt(0)")
    for d in range(8):
        for h in range(2): a(vread(d, h, 0, 16384))
        if d == 3: a("s_waitcnt lgkmcnt(0)")
    a("s_waitcnt lgkmcnt(0)")
    for d in range(8):
        for q in range(nq): a(pv(0, q, d))
    a("s_nop 7")
    a(f"s_add_u32 s{sKoff}, s{sKoff}, 8192")
    a(f"s_cmp_lt_u32 s{sKoff}, 524288")
    a(f"s_cbranch_scc1 L_sloop{L}")
    xlane(a, [vNM + 4 * q + 3 for q in range(nq)], "v_add_f32", tmp=-2)
    for q in range(nq): a(f"v_mov_b32 v{vNM+4*q}, v{vNM+4*q+3}")
    ar_setup(a)
    a(f"v_mul_u32_u24 v{PFA}, 1280, v3")
    for j in (8, 11): flat(a, wo_issue(j, PIECE[j]))
    a("s_waitcnt vmcnt(0)")
    a(f"s_branch L_epi{L}")

def gen_common(a):
    a("L_common:")
    piece = dict(PIECE)
    vm = [("w", j) for j in range(15)] + [("st", 0)]
    def issue(n, p):
        piece[n] = p
        flat(a, wo_issue(n, p)); vm.extend([("w", n)] * 4)
    def vw(tag): return vm[::-1].index(tag)
    a("s_waitcnt lgkmcnt(0)")
    NPRE = opt("npre", 3)
    for i in range(NPRE): issue(15 + i, piece[6 + i])
    a(f"""s_lshl_b32 s{sT0}, s{sOB}, 2
s_add_u32 s{sT0}, s{sT0}, s{sWAVE}
s_mul_i32 s{sT0}, s{sT0}, {32*5120}
s_add_u32 s{sO}, s{pWS}, s{sT0}
s_addc_u32 s{sO+1}, s{pWS+1}, 0
s_mov_b32 s{sO+2}, {0 if opt("oskip", 0) else 32*5120}
s_mov_b32 s{sOUT}, s{pDBG}
s_mov_b32 s{sOUT+1}, s{pDBG+1}
s_mov_b32 s{sOUT+2}, 256
v_mov_b32 v12, 1
v_mov_b32 v15, 0
v_add_u32 v16, 4096, v2""")
    a(f"s_waitcnt vmcnt({vw(('st', 0))})")
    if opt("opf", 0):
        for half in range(2):
            a(f"v_lshrrev_b32 v17, 5, v3\nv_lshl_add_u32 v17, v1, 2, v17\nv_add_u32 v17, {2*half}, v17")
            a(f"v_mul_u32_u24 v18, 52, v17\nv_lshrrev_b32 v18, 8, v18\nv_mul_u32_u24 v18, {128*5120 - 5*1024}, v18\nv_lshl_add_u32 v18, v17, 10, v18")
            a(f"v_bfe_u32 v19, v3, 3, 2\nv_mul_u32_u24 v19, 5120, v19\nv_add_u32 v18, v18, v19\nv_lshl_add_u32 v18, v7, 7, v18")
            a(f"v_cmp_gt_u32 vcc, 15, v17\nv_mov_b32 v19, 0x7f000000\ns_nop 0\nv_cndmask_b32 v18, v19, v18, vcc")
            a(f"buffer_load_dword v{20+half}, v18, s[{sWS}:{sWS+3}], s3 offen sc1")
            vm.append(("opf", half))
    a("s_barrier")
    a(f"s_cmp_lg_u32 s{sWAVE}, 0")
    a("s_cbranch_scc1 L_nosig")
    a(f"s_lshl_b32 s{sT0}, s{sB}, 5")
    a("s_mov_b64 exec, 1")
    a(f"buffer_atomic_add v12, v15, s[{sOUT}:{sOUT+3}], s{sT0} offen sc1")
    a("s_mov_b64 exec, -1")
    a("L_nosig:")
    stamp(a)
    a("s_cmp_ge_u32 s2, 240")
    a("s_cbranch_scc1 L_exit")
    for j in (13, 14):
        for t in wo_reads(j, piece[j]): a(t)
    for i in range(NPRE, 7): issue(15 + i, piece[6 + i])
    a(f"s_mul_i32 s{sT1}, s{sOB}, 86\ns_lshr_b32 s{sT1}, s{sT1}, 8\ns_lshl_b32 s{sT1}, s{sT1}, 5")
    def poll():
        a(f"buffer_load_dword v12, v15, s[{sOUT}:{sOUT+3}], s{sT1} offen sc0 sc1")
        vm.append(("poll", 0))
    PA = opt("pollat", 5)
    issue(22, 3)
    pend = [13, 14]; nxt = 23
    for j in range(15, 22):
        a(f"s_waitcnt vmcnt({vw(('w', j))}) lgkmcnt(0)")
        for t in wo_reads(j, piece[j]): a(t)
        if j - 15 == PA: poll()
        for x in pend: issue(nxt, piece[x]); nxt += 1
        pend = [j]
    a("s_waitcnt lgkmcnt(0)")
    issue(nxt, piece[pend[0]])
    assert nxt == 31
    a(f"s_cmp_lg_u32 s{sWAVE}, 0")
    a("s_cbranch_scc1 L_go")
    a(f"s_waitcnt vmcnt({vw(('poll', 0))})")
    a(f"s_mov_b32 s{sCNT}, {SPIN}")
    a("L_poll:")
    a(f"v_readfirstlane_b32 s{sT0}, v12")
    a(f"s_sub_u32 s{sCNT}, s{sCNT}, 1")
    a(f"s_cbranch_scc1 L_go")
    a(f"s_cmp_ge_u32 s{sT0}, 32")
    a("s_cbranch_scc1 L_go")
    a(f"buffer_load_dword v12, v15, s[{sOUT}:{sOUT+3}], s{sT1} offen sc0 sc1")
    a("s_waitcnt vmcnt(0)")
    a("s_branch L_poll")
    a("L_go:")
    a("s_barrier")
    stamp(a)
    vAcc = 128
    ring = [208 + 4 * i for i in range(12)] + [36] + ([12] if STAMP < 2 else [])
    RD = len(ring)
    def o_pre(n): return [f"s_add_u32 s{sT1}, s{sR}, {n}", f"s_and_b32 s{sT1}, s{sT1}, 31", f"s_mul_i32 s{sT1}, s{sT1}, 5120"]
    def o_ld(i):
        n, qt = divmod(i, 5)
        return f"buffer_load_dwordx4 {r('v', ring[i % RD])}, v{2 if qt < 4 else 16}, s[{sO}:{sO+3}], s{sT1} offen offset:{(qt&3)*1024}{OLD}"
    for i in range(RD):
        if i % 5 == 0:
            for t in o_pre(i // 5): a(t)
        a(o_ld(i)); vm.append(("o", i))
    B = Body()
    for n in range(32):
        rf, bank = bank_of(n)
        for qt in range(5):
            for nt in range(4):
                acc = r("v", vAcc + (qt * 4 + nt) * 4)
                need = None
                if nt == 0: need = [("vm", ("o", 5 * n + qt))] + ([("W", n)] if (qt == 0 and n >= 22) else [])
                B.add(f"{MF} {acc}, {r(rf, bank+4*nt)}, {r('v', ring[(5*n+qt) % RD])}, {'0' if n == 0 else acc}", need)
    for i in range(160 - RD):
        j = i + RD
        if j % 5 == 0:
            for k, t in enumerate(o_pre(j // 5)): B.pre.setdefault(4 * i + k, []).append(t)
        B.place_big("M", o_ld(j), 4 * i + 3, ("o", j), hi=4 * i + 3)
    for n in range(10):
        j = n + 22
        g = 20 * (n + 1)
        for i, t in enumerate(wo_reads(j, piece[j])):
            g = B.place_d(t, g, ("W", j), 1, req=[("vm", ("w", j))] if i == 0 else None) + 1
    if STAMP == 4:
        a("v_mov_b32 v13, 0\nv_mov_b32 v14, 0\ns_memtime s[100:101]\ns_waitcnt lgkmcnt(0)"); rec(a)
        for n in range(32):
            B.cv.setdefault(20 * n + 1, []).append("s_memtime s[100:101]\ns_waitcnt lgkmcnt(0)\nv_cmp_eq_u32 vcc, v13, v3\nv_mov_b32 v15, s100\nv_add_u32 v13, 1, v13\nv_cndmask_b32 v14, v14, v15, vcc")
    B.emit(a, vm=vm)
    stamp(a)
    vB = 48
    a(f"s_mov_b32 s{sOUT}, s{pOUT}\ns_mov_b32 s{sOUT+1}, s{pOUT+1}\ns_mov_b32 s{sOUT+2}, {8*240*640*2}")
    a(f"s_mul_i32 s{sT0}, s{sWAVE}, 5120")
    a(f"v_add_u32 v8, s{sT0}, v2")
    a("v_add_u32 v9, 40960, v8")
    a("s_nop 4")
    a("s_barrier")
    for nt in range(4):
        a(f"s_cmp_eq_u32 s{sWAVE}, {nt}")
        a(f"s_cbranch_scc1 L_skipw{nt}")
        for qt in range(5): a(f"ds_write_b128 v{8 + (nt >> 1)}, {r('v', vAcc+(qt*4+nt)*4)} offset:{(nt&1)*20480 + qt*1024}")
        a(f"s_branch L_nextw{nt}")
        a(f"L_skipw{nt}:")
        for qt in range(5):
            for j in range(4): a(f"v_mov_b32 v{vB+qt*4+j}, v{vAcc+(qt*4+nt)*4+j}")
        a(f"L_nextw{nt}:")
    a(f"s_mul_i32 s{sT0}, s{sWAVE}, 20480")
    a(f"v_add_u32 v12, s{sT0}, v2")
    for i in range(1, 4):
        a(f"s_add_u32 s{sT1}, s{sWAVE}, {i}\ns_and_b32 s{sT1}, s{sT1}, 3\ns_mul_i32 s{sT1}, s{sT1}, 5120\nv_add_u32 v{16+i}, s{sT1}, v12")
    a(f"s_mul_i32 s{sT0}, s{sOB}, {80*1280}\ns_lshl_b32 s{sT1}, s{sQS}, 7\ns_add_u32 s{sT0}, s{sT0}, s{sT1}\ns_lshl_b32 s{sT1}, s{sWAVE}, 5\ns_add_u32 s{sT0}, s{sT0}, s{sT1}")
    a("v_mul_u32_u24 v10, 1280, v5\nv_lshl_add_u32 v10, v4, 3, v10")
    a("s_waitcnt lgkmcnt(0)")
    a("s_barrier")
    for qt in range(5):
        for i in range(1, 4): a(f"ds_read_b128 {r('v', vAcc+(qt*3+i-1)*4)}, v{16+i} offset:{qt*1024}")
    for qt in range(5):
        a(f"s_waitcnt lgkmcnt({12-3*qt})")
        b0 = vAcc + qt * 12
        for j in range(4): a(f"v_add_f32 v{vB+qt*4+j}, v{vB+qt*4+j}, v{b0+j}")
        for j in range(4): a(f"v_add_f32 v{b0+4+j}, v{b0+4+j}, v{b0+8+j}")
        for j in range(4): a(f"v_add_f32 v{vB+qt*4+j}, v{vB+qt*4+j}, v{b0+4+j}")
        for j in range(2): a(f"v_cvt_pk_bf16_f32 v{vB+qt*4+j}, v{vB+qt*4+2*j}, v{vB+qt*4+2*j+1}")
        a(f"buffer_store_dwordx2 {r('v', vB+qt*4, 2)}, v10, s[{sOUT}:{sOUT+3}], s{sT0} offen{FST}")
        if qt < 4: a(f"s_add_u32 s{sT0}, s{sT0}, {16*1280}")
    if STAMP:
        a("s_waitcnt vmcnt(0)")
        a("s_waitcnt lgkmcnt(0)")
        if STAMP >= 2:
            a(f"s_lshl_b32 s{sT0}, s2, 10\ns_add_u32 s{sT0}, s{sT0}, 0x80000\nv_lshlrev_b32 v15, 2, v0")
            a(f"buffer_store_dword v14, v15, s[{sST}:{sST+3}], s{sT0} offen")
        a("s_memtime s[76:77]\ns_memrealtime s[78:79]\ns_waitcnt lgkmcnt(0)")
        if opt("dbgout", 0):
            a(f"s_cmp_lg_u32 s2, 9\ns_cbranch_scc1 L_exit\ns_cmp_lg_u32 s{sWAVE}, 0\ns_cbranch_scc1 L_exit")
            a(f"s_mov_b32 s{sOUT}, s{pDBG}\ns_mov_b32 s{sOUT+1}, s{pDBG+1}\ns_mov_b32 s{sOUT+2}, 256")
            a("s_mov_b64 exec, 1\nv_mov_b32 v15, 0")
            words = [1, 2, 3, 4, 5, 6, 7, 9]
            for i in range(8):
                a(f"s_sub_u32 s4, s{sSTAMP+4*(i+1)+2}, s{sSTAMP+4*i+2}\nv_mov_b32 v12, s4")
                a(f"buffer_store_dword v12, v15, s[{sOUT}:{sOUT+3}], 0 offen offset:{4*words[i]}\ns_nop 1")
            a(f"s_sub_u32 s4, s78, s{sSTAMP+2}\nv_mov_b32 v12, s4\nbuffer_store_dword v12, v15, s[{sOUT}:{sOUT+3}], 0 offen offset:40")
            a(f"s_sub_u32 s4, s{sSTAMP+16}, s{sSTAMP+12}\nv_mov_b32 v13, s4\nbuffer_store_dword v13, v15, s[{sOUT}:{sOUT+3}], 0 offen offset:44")
        else:
            stamp_store(a, 18, sSTAMP, sST, 4)

TICKET = opt("ticket", 0)
def gen():
    a = Asm()
    a("s_cmp_ge_u32 s2, 256")
    a("s_cbranch_scc1 L_exit")
    a("s_getpc_b64 s[8:9]")
    a(f"s_load_dwordx16 s[{sARG}:{sARG+15}], s[0:1], 0")
    stamp(a)
    a("s_getreg_b32 s6, hwreg(HW_REG_XCC_ID, 0, 3)\ns_getreg_b32 s7, hwreg(HW_REG_HW_ID, 13, 2)\ns_getreg_b32 s4, hwreg(HW_REG_HW_ID, 8, 4)")
    a("s_mul_i32 s7, s7, 9\ns_add_u32 s7, s7, s4")
    a(f"s_mov_b32 s10, L_exit-{KN}-16\ns_mov_b32 s11, 0x20000\ns_mul_i32 s4, s7, 2304")
    a("v_lshrrev_b32 v11, 2, v0\nv_lshlrev_b32 v11, 7, v11")
    a(f"""v_lshrrev_b32 v1, 6, v0
v_and_b32 v3, 63, v0
v_lshrrev_b32 v4, 4, v3
v_readfirstlane_b32 s{sWAVE}, v1
v_and_b32 v5, 15, v3
v_lshlrev_b32 v2, 4, v3
v_lshrrev_b32 v6, 3, v3
v_and_b32 v7, 7, v3""")
    if TICKET:
        a(f"""s_mul_i32 s5, s7, 114
v_add_u32 v8, s5, v0
v_and_b32 v8, 4095, v8
v_lshrrev_b32 v9, 2, v8
v_mul_u32_u24 v9, 1280, v9
v_and_b32 v10, 3, v8
v_lshl_add_u32 v13, v10, 7, v9
v_lshrrev_b32 v9, 4, v8
v_lshlrev_b32 v9, 13, v9
v_and_b32 v10, 15, v8
v_lshl_add_u32 v14, v10, 7, v9
v_mov_b32 v15, 1
v_mov_b32 v16, 0
s_and_b32 s{sT0}, s6, 1
s_mul_i32 s{sT0}, s{sT0}, 1228800
s_lshr_b32 s{sT1}, s6, 1
s_lshl_b32 s{sT1}, s{sT1}, 11
s_mov_b32 s{sX+2}, 1228800
s_mov_b32 s{sX+3}, 0x20000
s_sub_u32 s{sW+2}, 5242880, s{sT1}
s_mov_b32 s{sW+3}, 0x20000
s_mov_b32 s{sWS+2}, 256
s_mov_b32 s{sWS+3}, 0x20000
s_lshl_b32 s5, s6, 5
s_cmp_lg_u32 s{sWAVE}, 0
s_waitcnt lgkmcnt(0)
s_mov_b32 s{sWS}, s{pDBG}
s_mov_b32 s{sWS+1}, s{pDBG+1}
s_cbranch_scc1 L_notk
s_mov_b64 exec, 1
buffer_atomic_add v15, v16, s[{sWS}:{sWS+3}], s5 offen offset:4 sc0 sc1
s_mov_b64 exec, -1
L_notk:
s_add_u32 s{sX}, s{pX}, s{sT0}
s_addc_u32 s{sX+1}, s{pX+1}, 0
s_add_u32 s{sW}, s{pWQ}, s{sT1}
s_addc_u32 s{sW+1}, s{pWQ+1}, 0""")
        if opt("qpf", 0):
            a(f"buffer_load_dword v12, v14, s[{sW}:{sW+3}], 0 offen")
            a(f"buffer_load_dword v12, v13, s[{sX}:{sX+3}], 0 offen")
    a("buffer_load_dword v12, v11, s[8:11], s4 offen")
    stamp(a, True)
    a("v_lshl_add_u32 v8, v1, 6, v6\nv_mul_u32_u24 v8, 1280, v8\nv_xor_b32 v9, v7, v4")
    for n in range(8):
        a(f"v_xor_b32 v10, {4*(n&1)}, v9")
        a(f"v_lshl_add_u32 v10, v10, 4, v8")
        a(f"v_add_u32 v{vXD+n}, {n*8*1280 - (n&3)*1024}, v10")
    a("v_lshl_add_u32 v8, v1, 4, v4\nv_lshlrev_b32 v8, 13, v8\nv_lshlrev_b32 v9, 2, v4\nv_xor_b32 v9, v9, v5\nv_lshl_add_u32 v8, v9, 4, v8")
    for n in range(4): a(f"v_add_u32 v{vWD+n}, {n*4*8192 - n*1024 - 8*(n>>1)}, v8")
    a(f"""s_lshl_b32 s{sXW}, s{sWAVE}, 13
s_lshl_b32 s{sVW}, s{sWAVE}, 12
s_add_u32 s{sKW}, s{sVW}, {KBASE}
s_mul_i32 s{sWW}, s{sWAVE}, 4112""")
    def rest_v(a):
        kv_voffsets(a, True)
        a("v_lshrrev_b32 v8, 2, v3\nv_and_b32 v9, 7, v8\nv_lshlrev_b32 v8, 8, v8\nv_and_b32 v10, 3, v3\nv_lshl_add_u32 v8, v10, 3, v8")
        for t in range(8):
            a(f"v_xor_b32 v10, {t}, v9")
            a(f"v_lshl_add_u32 v{vVR+t}, v10, 5, v8")
        a(f"v_lshlrev_b32 v8, 13, v1\nv_lshl_add_u32 v8, v5, 7, v8\nv_add_u32 v8, {QBUF[1]}, v8\nv_lshrrev_b32 v9, 1, v5\nv_xor_b32 v9, v9, v4")
        for sp in range(2):
            a(f"v_xor_b32 v10, {4*sp}, v9")
            a(f"v_lshl_add_u32 v{vXR+sp}, v10, 4, v8")
        a(f"v_bfe_u32 v9, v3, 2, 2\nv_lshl_add_u32 v8, v4, 3, v9\nv_lshlrev_b32 v8, 8, v8\nv_and_b32 v10, 3, v3\nv_lshl_add_u32 v8, v10, 4, v8")
        a(f"v_add_u32 v8, {QBUF[1]}, v8\nv_lshl_add_u32 v8, v4, 3, v8")
        for s in range(4):
            a(f"v_xor_b32 v10, {s}, v9")
            a(f"v_lshl_add_u32 v{vWR+s}, v10, 6, v8")
        a("v_and_b32 v8, 3, v3\nv_cmp_eq_u32 vcc, 0, v8\nv_mov_b32 v9, 0x3f803f80\nv_mov_b32 v10, 0\nv_cndmask_b32 v9, v10, v9, vcc")
        for j in range(4): a(f"v_accvgpr_write_b32 a{aONE+j}, v9")
    def kr_setup(a):
        a(f"v_lshlrev_b32 v8, 8, v5\nv_add_u32 v8, {KBASE}, v8\nv_xor_b32 v9, v4, v5")
        for s in range(4):
            a(f"v_xor_b32 v10, {4*s}, v9")
            a(f"v_lshl_add_u32 v{vKR+s}, v10, 4, v8")
    if TICKET:
        rest_v(a)
        a(f"""s_cmp_lg_u32 s{sWAVE}, 0
s_cbranch_scc1 L_tkwait
s_mov_b32 s{sCNT}, 8
s_waitcnt vmcnt({3 if opt("qpf", 0) else 1})
L_tkchk:
v_readfirstlane_b32 s2, v15
s_cmp_lt_u32 s2, 32
s_cbranch_scc1 L_tkok
s_add_u32 s6, s6, 1
s_and_b32 s6, s6, 7
s_lshl_b32 s5, s6, 5
v_mov_b32 v15, 1
s_mov_b64 exec, 1
buffer_atomic_add v15, v16, s[{sWS}:{sWS+3}], s5 offen offset:4 sc0 sc1
s_mov_b64 exec, -1
s_waitcnt vmcnt(0)
s_sub_u32 s{sCNT}, s{sCNT}, 1
s_cbranch_scc0 L_tkchk
s_mov_b32 s2, 32
L_tkok:
s_lshl_b32 s2, s2, 3
s_or_b32 s2, s2, s6
v_mov_b32 v15, s2
ds_write_b32 v16, v15
s_waitcnt lgkmcnt(0)
L_tkwait:
s_barrier
ds_read_b32 v15, v16
s_waitcnt lgkmcnt(0)
v_readfirstlane_b32 s2, v15
s_cmp_ge_u32 s2, 256
s_cbranch_scc1 L_exit""")
    else:
        a("s_waitcnt lgkmcnt(0)")
    stamp(a, True)
    a(f"""s_and_b32 s{sT0}, s2, 1
s_lshl_b32 s{sB}, s{sT0}, 2
s_bfe_u32 s{sT0}, s2, 0x20003
s_add_u32 s{sB}, s{sB}, s{sT0}
s_and_b32 s{sH}, s2, 6
s_lshl_b32 s{sH}, s{sH}, 2
s_lshr_b32 s{sT1}, s2, 5
s_add_u32 s{sH}, s{sH}, s{sT1}
s_add_u32 s{sQS}, s{sH}, s{sB}
s_and_b32 s{sQS}, s{sQS}, {opt("qm", 3)}
s_mul_i32 s{sT0}, s{sB}, 307200
s_lshl_b32 s{sT1}, s{sH}, 8
s_mov_b32 s{sX+2}, 307200
s_mov_b32 s{sX+3}, 0x20000
s_mov_b32 s{sW+3}, 0x20000
s_sub_u32 s{sW+2}, 5242880, s{sT1}
s_add_u32 s{sX}, s{pX}, s{sT0}
s_addc_u32 s{sX+1}, s{pX+1}, 0
s_add_u32 s{sW}, s{pWQ}, s{sT1}
s_addc_u32 s{sW+1}, s{pWQ+1}, 0""")
    s0 = qstage(0, 8)
    s0 = s0[:5] + s0[-5:] + s0[5:-5]
    flat(a, s0[:-2])
    a(f"s_cmp_eq_u32 s{sWAVE}, 3")
    a("s_cbranch_scc1 L_x6")
    flat(a, s0[-2:])
    a("L_x6:")
    if not TICKET: rest_v(a)
    kr_setup(a)
    kv_srds(a)
    a(f"""s_mov_b32 s{sWS}, s{pWS}
s_mov_b32 s{sWS+1}, s{pWS+1}
s_mov_b32 s{sWS+2}, {8*15*128*1024}
s_mov_b32 s{sWS+3}, 0x20000""")
    if STAMP:
        a(f"s_add_u32 s{sST}, s{pWS}, 0x10000000\ns_addc_u32 s{sST+1}, s{pWS+1}, 0\ns_mov_b32 s{sST+2}, 0x100000\ns_mov_b32 s{sST+3}, 0x20000")
    a(f"s_mul_i32 s3, s{sB}, 96\ns_add_u32 s3, s3, s{sH}\ns_mul_i32 s3, s3, 20480")
    a(f"s_lshr_b32 s{sROT}, s2, 3\ns_lshl_b32 s{sROT}, s{sROT}, 14")
    a(f"""s_lshr_b32 s4, s2, 3
s_mul_i32 s6, s4, 52
s_lshr_b32 s6, s6, 8
s_mul_i32 s5, s6, 5
s_sub_u32 s5, s4, s5
s_mov_b32 s{sR}, 0
s_and_b32 s7, s2, 1
s_mul_i32 s7, s7, 5
s_add_u32 s5, s5, s7
s_and_b32 s{sOB}, s2, 6
s_mul_i32 s{sOB}, s{sOB}, 3
s_add_u32 s{sOB}, s{sOB}, s6
s_mul_i32 s6, s{sWAVE}, {1024*1280}
s_lshl_b32 s7, s5, 7
s_add_u32 s6, s6, s7
s_add_u32 s{sWO}, s{pWO}, s6
s_addc_u32 s{sWO+1}, s{pWO+1}, 0
s_sub_u32 s{sWO+2}, 5242880, s6
s_cmp_ge_u32 s2, 240
s_cselect_b32 s{sWO+2}, 0, s{sWO+2}
s_mov_b32 s{sWO+3}, 0x20000""")
    s1 = qstage(1, 8)
    flat(a, s1[:5] + s1[-5:])
    stamp(a, True)
    a(f"s_cmp_eq_u32 s{sWAVE}, 3")
    a("s_cbranch_scc1 L_waveB")
    base = nstamp[0]
    gen_wave(a, 4, "A")
    a("L_waveB:")
    nstamp[0] = base
    gen_wave(a, 3, "B")
    gen_common(a)
    a("L_exit:")
    a("s_endpgm")
    return a.text()

body = gen()
print(wrap([dict(name=KN, grid=256, block=256, lds=163840, body=body, vgpr=512, sgpr=102, accum=256)]))
```

```python
import sys, struct, math
from gencommon import *

OPT = dict(kv.split("=") for kv in sys.argv[1:])
def opt(k, d): return type(d)(OPT.get(k, d))
STAMP = opt("stamp", 0)
MAP = opt("map", "mixed")
NT = opt("nt", 1)
FORCE_SAFE = opt("safe", 0)
QLEAD = opt("qlead", 28)
K0AT = opt("k0at", 2)
WARM = opt("warm", 1)
OD = opt("od", 5)
OLD = {"": "", "plain": "", "nt": " nt", "sc1": " sc1", "sc01": " sc0 sc1"}[opt("old", "sc1")]
OST = {"": "", "plain": "", "sc1": " sc1", "sc01": " sc0 sc1"}[opt("ost", "sc01")]
SPIN = opt("spin", 1 << 16)
CHAIN = opt("chain", 1)
LAG = opt("lag", 12)
NV = opt("nv", 0)
vLV = {1: 1, 2: 6, 3: 7}
def valu_sum(nq, q): return nq == 4 and q >= 4 - NV
DMA3 = opt("dma3", 1)
FST = {"": "", "sc01": " sc0 sc1", "nt": " nt"}[opt("fst", "")]
PMAP = opt("pmap", 1)
PF = [int(t) for t in opt("pf", "").split(",") if t]
PF0 = opt("pf0", 0)
sPF = 72
W6 = [tuple(int(y) for y in x.split(":")) for x in opt("w6", "29:56,30:56").split(",") if x]
sPFW = 6
PFD, PFA = (13, 14) if STAMP < 2 else (12, 1)
SNAKE = opt("snake", 1)

MF = "v_mfma_f32_16x16x32_bf16"
VBASE, SBASE, KBASE = 0, 64 * 1024, 96 * 1024
QBUF = [0, 48 * 1024, 96 * 1024]
XOFF, WOFF = 0, 31744
def kslot(t): return (t + 3) % 4
def vslot(t): return t % 4
vO = 128; vS = 64; vNM = 48
vKR = 16; vVR = 20; vKD = 28; vVD = 32; vXD = 36; vWD = 44
vXR = 64; vWR = 66
vWO = 36
vAR = [40, 44, 8]
aQ = 0; aK = 64; aV = 96; aL = 128; aONE = 144
aQA = [64, 96]; aQB = [148, 164]
sK, sV, sX, sW, sWS = 8, 12, 16, 20, 24
sO, sOUT = 16, 20
sWAVE, sKW, sVW, sXW, sWW = 28, 29, 30, 31, 32
sKoff, sVoff, sCNT, sB, sH, sT0, sT1 = 33, 34, 35, 36, 37, 38, 39
sKinc, sKmask, sVinc, sVmask = 6, 7, 31, 32
sST, sSTAMP = 40, 44
sWO = 76
sROT, sQS, sR, sOB = 80, 81, 82, 83
sARG = 84
pX, pK, pV, pWQ, pWO, pOUT, pDBG, pWS = [sARG + 2 * i for i in range(8)]
CSCALE = struct.unpack("<I", struct.pack("<f", math.log2(math.e) / math.sqrt(128.0)))[0]
WCONT = opt('wcont', 0)
WSTEP = 4096 if WCONT else 32 * 1280

def r(pfx, b, n=4): return f"{pfx}[{b}:{b+n-1}]"
def O(q, d): return r("v", vO + (q * 8 + d) * 4)
def S(p, q, kt): return vS + 32 * p + 8 * q + 4 * kt
def pol(srd): return "" if (srd == sV and opt("vdef", 0)) or (srd == sK and opt("kdef", 0)) else ntf()
POLS = {"n": " nt", "d": "", "s": " sc1", "t": " sc1 nt", "z": " sc0", "a": " sc0 sc1 nt", "b": " sc0 sc1", "y": " sc0 nt"}
def pol2(srd, c, i):
    m = opt("pm", "")
    if not m: return pol(srd)
    if m[0] == "i": return POLS[m[1 + i]]
    return POLS[m[(0 if srd == sK else 4) + c]]
def ntf(): return {0: "", 1: " nt", 2: " sc1 nt"}[NT]

nstamp = [0]
def stamp(a, early=False):
    if (STAMP == 5) != early and not (STAMP == 5 and nstamp[0] == 0): return
    if STAMP:
        i = nstamp[0]; nstamp[0] += 1
        assert i < 8
        a(f"s_memtime s[{sSTAMP+4*i}:{sSTAMP+4*i+1}]")
        a(f"s_memrealtime s[{sSTAMP+4*i+2}:{sSTAMP+4*i+3}]")
def rec(a):
    a("v_cmp_eq_u32 vcc, v13, v3\nv_mov_b32 v15, s100\nv_add_u32 v13, 1, v13\nv_cndmask_b32 v14, v14, v15, vcc")

def dmaK(n): return f"buffer_load_dwordx4 v{vKD+n}, s[{sK}:{sK+3}], s{sKoff} offen offset:{n*1024}{pol(sK)} lds"
def dmaV(n): return f"buffer_load_dwordx4 v{vVD+n}, s[{sV}:{sV+3}], s{sVoff} offen offset:{n*1024}{ntf() if not opt('vdef', 0) else ''} lds"
def kread(f, off, ktoff=4096, aK=aK):
    kt, s = f >> 2, f & 3
    return f"ds_read_b128 {r('a', aK+4*f)}, v{vKR+s} offset:{off + kt*ktoff}"
def vread(d, second, off, soff=4096):
    return f"ds_read_b64_tr_b16 {r('a', aV+4*d+2*second, 2)}, v{vVR+d} offset:{off + second*soff}"
def qk(p, q, kt, s, czero=False, aK=aK):
    b = S(p, q, kt)
    c = r("v", b) if s else ("0" if czero else r("v", vNM + 4 * q))
    return f"{MF} {r('v', b)}, {r('a', aK+4*(kt*4+s))}, {r('a', aQ+16*q+4*s)}, {c}"
def pv(p, q, d): return f"{MF} {O(q,d)}, {r('a', aV+4*d)}, {r('v', S(p,q,0))}, {O(q,d)}"
def sm(p, q): return f"{MF} {r('a', aL+4*q)}, {r('a', aONE)}, {r('v', S(p,q,0))}, {r('a', aL+4*q)}"
def softmax_ops(p, nq):
    ex, cv = [], []
    for kt in range(2):
        for q in range(nq):
            b = S(p, q, kt)
            for j in range(4): ex.append(f"v_exp_f32 v{b+j}, v{b+j}")
            for j in range(2):
                pre = [f"v_add_f32 v{vLV[q]}, v{vLV[q]}, v{b+2*j+i}" for i in range(2)] if valu_sum(nq, q) else []
                cv.append(pre + [f"v_cvt_pk_bf16_f32 v{S(p,q,0)+2*kt+j}, v{b+2*j}, v{b+2*j+1}"])
    return ex, cv

PRE = [(0, 4), (1, 5)]
PLAN = {28: ([0, 1], [(2, 9), (3, 4), (4, 5)]),
        29: ([2, 3], [(5, 6), (6, 0), (7, 9), (8, 4)]),
        30: ([4, 5], [(9, 7), (10, 1), (11, 5), (12, 6)]),
        31: ([], [(13, 8), (14, 2)])}
PIECE = dict(PRE)
for _b in PLAN.values(): PIECE.update(dict(_b[1]))
VBANK = [20, 48, 64, 80, 96, 112]
def bank_of(n):
    if n < 16: return "a", ((n + 10) % 16) * 16
    if n < 22: return "v", VBANK[n - 16]
    return bank_of(n - 22)
def wo_issue(n, piece):
    out = [("s", f"s_add_u32 s{sT0}, s{sR}, {n}"), ("s", f"s_and_b32 s{sT0}, s{sT0}, 31"),
           ("s", f"s_mul_i32 s{sT0}, s{sT0}, {WSTEP}"), ("s", f"s_add_u32 m0, s{sVW}, {piece*16384}")]
    out += [("M", f"buffer_load_dwordx4 v{vWO+i}, s[{sWO}:{sWO+3}], s{sT0} offen offset:{i*1024} lds") for i in range(4)]
    return out
def wo_reads(n, piece):
    rf, bank = bank_of(n)
    return [f"ds_read_b64_tr_b16 {r(rf, bank+4*t+2*h, 2)}, v{vAR[piece >> 2]+t} offset:{(piece & 3)*16384 + h*2048}" for t in range(4) for h in range(2)]
def flat(a, items):
    prev = None
    for it in items:
        k, t = it[0], it[1]
        if k == "M" and prev and "m0" in prev: a("s_nop 0")
        a(t); prev = t

class Body:
    def __init__(self):
        self.mf = []; self.big = {}; self.pre = {}; self.cv = {}; self.lastcv = 0; self.lag = 4
    def add(self, text, need=None): self.mf.append((text, need))
    def place_big(self, kind, text, target, tag=None, hi=None, req=None):
        n = len(self.mf)
        target = min(target, n - 1)
        hi = min(n - 1, target + 3 if hi is None else max(hi, target))
        g = target
        while g in self.big and g < hi: g += 1
        if g in self.big: g = min(range(target, hi + 1), key=lambda x: len(self.big[x]))
        self.big.setdefault(g, []).append((kind, text, tag, req))
        return g
    def place_d(self, text, lo, tag, cap, req=None):
        g = lo
        while True:
            kinds = [x[0] for x in self.big.get(g, [])]
            if all(k == "D" for k in kinds) and len(kinds) < cap: break
            g += 1
        assert g < len(self.mf)
        self.big.setdefault(g, []).append(("D", text, tag, req))
        return g
    def place_cvt(self, texts, lo, hi):
        for t in texts: g = self.place_cvt1(t, lo, hi)
        return g
    def place_cvt1(self, text, lo, hi):
        n = len(self.mf); best = None
        lo0 = lo
        lo = max(lo, self.lastcv)
        for g in range(lo, min(hi, lo0 + self.lag, n - 1) + 1):
            kinds = [x[0] for x in self.big.get(g, [])]
            cnt = len(self.cv.get(g, []))
            if (kinds == ["D"] and cnt == 0) or (kinds == [] and cnt < 2): best = g; break
        if best is None: best = min(lo, n - 1)
        self.cv.setdefault(best, []).append(text)
        self.lastcv = best
        return best
    def place_s(self, text, lo, hi=None):
        n = len(self.mf)
        hi = lo if hi is None else hi
        for g in range(lo, min(hi, n - 1) + 1):
            kinds = [x[0] for x in self.big.get(g, [])]
            if not self.pre.get(g) and (kinds == ["E"] or kinds == [] or (kinds == ["D"] and not self.cv.get(g))):
                self.pre.setdefault(g, []).append(text); return g
        self.pre.setdefault(lo, []).append(text); return lo
    def spread(self, it, start, span, req=None):
        nm = sum(1 for x in it if x[0] == "M")
        i = 0; pend = []; lastg = start
        for k, t, tag in it:
            if k != "M": pend.append(t); continue
            g = self.place_big("M", t, max(start + 2 + int(i * span / nm), lastg + 1 + (len(pend) + 1) // 2), tag, req=req if i == 0 else None)
            for j, pt in enumerate(pend):
                self.pre.setdefault(max(lastg + 1, g - (len(pend) - j + 1) // 2), []).append(pt)
            pend = []; lastg = g; i += 1
        return lastg
    def emit(self, a, resident=(), vm=None, vmdone=None):
        total = {}
        for items in self.big.values():
            for k, t, tag, req in items:
                if k in "DM": total[(k, tag)] = total.get((k, tag), 0) + 1
        st = dict(q=[], issued={})
        done = set(resident)
        vmdone = vmdone if vmdone is not None else set()
        def wait(tags):
            lds = [t for t in tags if t[0] != "vm" and t not in done]
            vms = [t[1] for t in tags if t[0] == "vm" and t[1] not in vmdone]
            parts = []
            if vms:
                for t in vms: assert st["issued"].get(("M", t), 0) == total.get(("M", t), 0) and t in vm, ("vm not issued", t)
                N = min(vm[::-1].index(t) for t in vms)
                N = min(N, 60)
                parts.append(f"vmcnt({N})")
                for t in vm[:len(vm) - N]: vmdone.add(t)
                for t in vm[len(vm) - N:]: vmdone.discard(t)
            if lds:
                q = st["q"]
                for t in lds: assert st["issued"].get(("D", t), 0) == total[("D", t)] and t in q, ("lds not issued", t)
                N = min(min(q[::-1].index(t) for t in lds), 10)
                parts.append(f"lgkmcnt({N})")
                for t in q[:len(q) - N]: done.add(t)
                st["q"] = q[len(q) - N:]
                for t in st["q"]: done.discard(t)
            if parts: a("s_waitcnt " + " ".join(parts))
        n = len(self.mf)
        if self.mf[0][1]: wait(self.mf[0][1])
        for g in range(n):
            a(self.mf[g][0])
            late = None
            nxt = self.mf[g + 1][1] if g + 1 < n else None
            if nxt: wait(nxt)
            for t in self.pre.get(g, []): a(t)
            for kind, text, tag, req in self.big.get(g, []):
                if req: wait(req)
                if kind == "B":
                    nv = vm[::-1].index(tag)
                    a(f"s_waitcnt vmcnt({nv}) lgkmcnt(0)")
                    for t in st["q"]: done.add(t)
                    st["q"] = []
                if not (kind in opt("drop", "") and getattr(self, "loop", False)): a(text)
                if kind in "DM": st["issued"][(kind, tag)] = st["issued"].get((kind, tag), 0) + 1
                if kind == "M" and vm is not None: vm.append(tag); vmdone.discard(tag)
                if kind == "D": st["q"].append(tag); done.discard(tag)
            for t in self.cv.get(g, []): a(t)

def estimate(lines):
    tot = 0; t = None; over = 0
    for l in lines + ["v_mfma"]:
        l = l.strip()
        if l.startswith("v_mfma"):
            if t is not None: tot += max(16, t); over += t > 16
            t = 4; lastv = False
        elif l.startswith("ds_"): t += 8 + (4 if lastv else 0)
        elif l.startswith("buffer_"): t += 12
        elif l.startswith("v_"): t = max(t, 8) + (8 if l.startswith("v_exp") else 4); lastv = True
        elif l.endswith(":"): pass
        else: t += 4
    return tot, over

def merge(a, V, M):
    pos = {}; n = [0]
    def ready(it): return all(d in pos and n[0] - pos[d] - 1 >= dist for d, dist in it[2])
    def put(it):
        a(it[1]); n[0] += len(it[1].split("\n")); pos[it[0]] = n[0] - 1
    vi = mi = 0
    while vi < len(V) or mi < len(M):
        did = False
        if mi < len(M) and ready(M[mi]): put(M[mi]); mi += 1; did = True
        cost = 0
        while vi < len(V) and cost < 2 and ready(V[vi]):
            cost += 2 if V[vi][1].startswith(("v_exp", "ds_", "buffer_")) else 1
            put(V[vi]); vi += 1; did = True
        if not did: a("s_nop 0"); n[0] += 1

NTAIL = {4: 26, 3: 20}
VMDONE = set()

def gen_body(a, nq, u, L, last=False, loopctl=None, idx=None, vm=None):
    B = Body()
    B.loop = idx is None
    if nq == 4 and NV and not last: B.lag = LAG
    vo, ko = vslot(u) * 16384, kslot(u + 1) * 16384
    def g_qk(p, kts, gen):
        for kt in kts:
            if CHAIN:
                for q in range(nq):
                    for s in range(4): B.add(qk(p, q, kt, s), ([("K", kt * 4 + x, gen) for x in range(4)] if s == 0 else None) if q == 0 else None)
            else:
                for s in range(4):
                    for q in range(nq): B.add(qk(p, q, kt, s), [("K", kt * 4 + s, gen)] if q == 0 else None)
    def g_pv(p, gen):
        for d in range(8):
            qs = list(range(nq)) if (d % 2 == 0 or not SNAKE) else list(range(nq - 1, -1, -1))
            for i, q in enumerate(qs): B.add(pv(p, q, d), [("V", d, gen)] if i == 0 else None)
        for q in range(nq):
            if not valu_sum(nq, q): B.add(sm(p, q))
    g_qk(1, [1], 0); P0 = len(B.mf)
    g_pv(0, 0); Q1 = len(B.mf)
    if not last: g_qk(0, [0, 1], 1)
    P1 = len(B.mf)
    g_pv(1, 1)
    if not last: g_qk(1, [0], 2)
    n = len(B.mf)
    resident = [("K", f, 0) for f in range(4, 8)]
    sc = nq / 4.0
    for d in range(8):
        for h in range(2): B.place_big("D", vread(d, h, vo), int((4 * d + 2 * h) * sc), ("V", d, 0))
    ex0, cv0 = softmax_ops(0, nq); ex1, cv1 = softmax_ops(1, nq)
    ne = len(ex0)
    win = P1 - P0
    full = nq * 17 - (NV if nq == 4 else 0)
    ntail = NTAIL[nq]
    if not last:
        for f in range(8): B.place_big("D", kread(f, ko), Q1 - int((22 if CHAIN else 20) * sc) + int(4 * f * sc), ("K", f, 1))
    for d in range(8):
        for h in range(2):
            lo = max(P1 - int(20 * sc) + int((4 * d + 2 * h) * sc), P0 + nq * d + nq)
            B.place_big("D", vread(d, h, vo + 8192), lo, ("V", d, 1))
    if not last:
        for f in range(8): B.place_big("D", kread(f, ko + 8192), P1 + int(12 * sc) + int(4 * f * sc), ("K", f, 2))
        mVe = 0
        if DMA3:
            if nq == 3 and (idx is None or idx == 28):
                def stream(so, srd, vd, ldsoff, tag):
                    it = [("s", f"s_add_u32 s{so}, s{so}, 16384", None), ("s", f"s_and_b32 s{so}, s{so}, 0x7ffff", None)]
                    for c in range(4):
                        it += [("s", f"s_add_u32 s4, s{so}, {c*4096}", None), ("s", f"s_mov_b32 m0, {ldsoff + c*4096}", None)]
                        it += [("M", f"buffer_load_dwordx4 v{vd+i}, s[{srd}:{srd+3}], s4 offen offset:{i*1024}{pol2(srd, c, i)} lds", tag) for i in range(4)]
                    return it
                it = stream(sVoff, sV, vVD, VBASE + vslot(u + 3) * 16384, ("V", 31))
                if idx is None: it += stream(sKoff, sK, vKD, KBASE + kslot(u + 4) * 16384, None)
                mVe = B.spread(it, 0, n - 12 if idx is None else 40)
                assert mVe < n - 8
        else:
            if idx is None or idx == 28:
                g0 = Q1 - int(18 * sc) if idx is None else 3
                gs = [B.place_big("M", dmaV(i), g0 + int((8 if idx is None else 4) * i * sc), ("V", 31)) for i in range(4)]
                mV, mVe = gs[0], gs[-1]
            if idx is None:
                g0 = P1 + int(14 * sc)
                gs = [B.place_big("M", dmaK(i), g0 + int(8 * i * sc)) for i in range(4)]
                mK, mKe = gs[0], gs[-1]
    if idx is not None:
        rd, iss = PLAN[idx]
        g = int(30 * sc)
        for j in rd:
            for i, t in enumerate(wo_reads(j, PIECE[j])):
                g = B.place_big("D", t, g, ("W", j), req=[("vm", ("w", j))] if i == 0 else None) + 2
        g = mVe + 1 if idx == 28 else 0
        span = ((n - 6 - g) // len(iss)) if not last else int(16 * sc)
        for j, pc in iss:
            src = [x for x in rd if PIECE[x] == pc]
            if src: g = max(g, int(74 * sc))
            it = [(k, t, ("w", j)) for k, t in wo_issue(j, pc)]
            g = B.spread(it, g, min(span, int(24 * sc)), req=[("W", src[0])] if src else None) + 1
            assert g < n
        for k, (bi, gp) in enumerate(W6):
            if bi == idx:
                g = int(gp * sc)
                B.place_big("M", f"buffer_load_dword v{PFD}, v{PFA}, s[{sWO}:{sWO+3}], s{sPFW+k} offen", g, ("pfw", k))
    eg0, eg1, egt = {}, {}, {}
    nh = ne - ntail
    for i in range(ntail, ne):
        eg0[i] = B.place_big("E", ex0[i], max(1 + int((i - ntail) * (P0 - 4) / max(nh, 1)), eg0.get(i - 1, 0)))
    for i in range(ne):
        t = P0 + 1 + int(i * (win - 5) / ne)
        if i >= ne // 2: t = max(t, P0 + 5)
        eg1[i] = B.place_big("E", ex1[i], max(t, eg1.get(i - 1, 0)), hi=min(t + 3, P1 - 4))
    if not last:
        for i in range(ntail):
            t = P1 + 1 + int(i * (full - 5) / ne)
            egt[i] = B.place_big("E", ex0[i], max(t, egt.get(i - 1, 0)), hi=min(t + 3, n - 2))
    for j in range(ntail // 2, ne // 2):
        q = (j // 2) % nq
        g = B.place_cvt(cv0[j], eg0[2 * j + 1] + 1, P0 + q - 2)
        assert g <= P0 + q - 2
    for j in range(ne // 2):
        q = (j // 2) % nq
        g = B.place_cvt(cv1[j], eg1[2 * j + 1] + 1, P1 + q - 3)
        assert g <= P1 + q - 3, (j, g, P1)
    assert eg1[ne // 2] >= P0 + 5
    if not last:
        for j in range(ntail // 2): B.place_cvt(cv0[j], egt[2 * j + 1] + 1, n - 1)
        assert min(egt.values()) >= Q1 + 4 * nq + 5
        if ntail > ne // 2: assert egt[ne // 2] >= P1 + 5
        if DMA3: pass
        elif idx is None:
            B.place_s(f"s_add_u32 m0, s{sVW}, {VBASE + vslot(u+3)*16384}", mV - 4, mV - 1)
            g = B.place_s(f"s_add_u32 s{sVoff}, s{sVoff}, 16384", mV - 12, mV - 6)
            B.place_s(f"s_and_b32 s{sVoff}, s{sVoff}, 0x7ffff", g + 1, mV - 1)
            B.place_s(f"s_add_u32 m0, s{sKW}, {kslot(u+4)*16384}", mK - 4, mK - 1)
            g = B.place_s(f"s_add_u32 s{sKoff}, s{sKoff}, 16384", mK - 12, mK - 6)
            B.place_s(f"s_and_b32 s{sKoff}, s{sKoff}, 0x7ffff", g + 1, mK - 1)
        elif idx == 28:
            B.pre.setdefault(0, []).extend([f"s_add_u32 s{sVoff}, s{sVoff}, 16384", f"s_and_b32 s{sVoff}, s{sVoff}, 0x7ffff"])
            B.pre.setdefault(1, []).append(f"s_add_u32 m0, s{sVW}, {VBASE + vslot(u+3)*16384}")
        if loopctl:
            B.place_s(loopctl[0], n - 8, n - 5)
            B.place_s(loopctl[1], n - 4, n - 2)
    t = Asm()
    B.emit(t, resident, vm=vm, vmdone=VMDONE if vm is not None else None)
    a.l += t.l
    if opt("est", 0): sys.stderr.write(f"body {L} u={u} idx={idx}: mfma {n} est {estimate(t.l)}\n")
    if idx is not None and not last:
        need = [("V", idx + 1)] + ([("K", idx + 2)] if idx + 2 < 32 else [])
        N = min(min(vm[::-1].index(t) if t in vm else 60 for t in need), 60)
        if STAMP == 2: a("s_memtime s[100:101]")
        a(f"s_waitcnt vmcnt({N}) lgkmcnt(0)")
        for t in vm[:len(vm) - N]: VMDONE.add(t)
        for t in vm[len(vm) - N:]: VMDONE.discard(t)
        a("s_barrier")
        if STAMP == 2: rec(a)
    elif last:
        if STAMP == 2: a("s_memtime s[100:101]\ns_waitcnt lgkmcnt(0)"); rec(a)
    else:
        if STAMP == 2: a("s_memtime s[100:101]")
        for _ in range(opt("idle", 0)): a("s_nop 15")
        a(f"s_waitcnt vmcnt({16 if not DMA3 else 60 if nq == 3 else 8 if u == 0 else 0}) lgkmcnt(0)")
        if not opt("nobar", 0): a("s_barrier")
        if STAMP == 2: rec(a)

def kv_voffsets(a, wave):
    if wave:
        a("v_lshlrev_b32 v8, 12, v1")
        a("v_lshl_add_u32 v8, v4, 8, v8")
    else:
        a("v_lshlrev_b32 v8, 8, v4")
    a("v_xor_b32 v9, v5, v4")
    for n in range(4):
        a(f"v_xor_b32 v10, {4*n}, v9")
        a(f"v_lshl_add_u32 v{vKD+n}, v10, 4, v8")
    a("v_lshlrev_b32 v9, 1, v4")
    a("v_xor_b32 v9, v9, v5")
    for p in range(2):
        a(f"v_xor_b32 v10, {8*p}, v9")
        a(f"v_lshl_add_u32 v{vVD+p}, v10, 4, v8")
        a(f"v_mov_b32 v{vVD+p+2}, v{vVD+p}")
def kv_srds(a):
    a(f"""s_lshl_b32 s{sT0}, s{sB}, 5
s_add_u32 s{sT0}, s{sT0}, s{sH}
s_lshl_b32 s{sT0}, s{sT0}, 19
s_add_u32 s{sK}, s{pK}, s{sT0}
s_addc_u32 s{sK+1}, s{pK+1}, 0
s_mov_b32 s{sK+2}, 524288
s_mov_b32 s{sK+3}, 0x20000
s_add_u32 s{sV}, s{pV}, s{sT0}
s_addc_u32 s{sV+1}, s{pV+1}, 0
s_mov_b32 s{sV+2}, 524288
s_mov_b32 s{sV+3}, 0x20000""")
def ar_setup(a):
    a("v_lshrrev_b32 v12, 2, v3\nv_lshlrev_b32 v12, 7, v12\nv_and_b32 v15, 3, v3\nv_lshl_add_u32 v12, v15, 3, v12")
    a(f"v_add_u32 v12, s{sVW}, v12\nv_bfe_u32 v15, v3, 3, 2")
    for t in range(4):
        a(f"v_xor_b32 v{vAR[0]+t}, {t}, v15")
        a(f"v_lshl_add_u32 v{vAR[0]+t}, v{vAR[0]+t}, 5, v12")
        a(f"v_add_u32 v{vAR[1]+t}, 0x10000, v{vAR[0]+t}")
        a(f"v_add_u32 v{vAR[2]+t}, 0x20000, v{vAR[0]+t}")

def xlane(a, regs, op2, tmp=1):
    for op in ("v_permlane32_swap_b32", "v_permlane16_swap_b32"):
        for m in regs: a(f"v_mov_b32 v{m+tmp}, v{m}")
        a("s_nop 1")
        for m in regs: a(f"{op} v{m}, v{m+tmp}")
        a("s_nop 1")
        for m in regs: a(f"{op2} v{m}, v{m}, v{m+tmp}")

def qstage(st, nx):
    buf = QBUF[(st + 1) % 3]
    out = [("s", f"s_lshl_b32 s{sT0}, s{sQS}, 7"), ("s", f"s_lshl_b32 s{sT1}, s{sQS}, 19"), ("s", f"s_add_u32 s{sQS}, s{sQS}, 1"),
           ("s", f"s_cmp_eq_u32 s{sQS}, 10"), ("s", f"s_cselect_b32 s{sQS}, 0, s{sQS}"), ("s", f"s_add_u32 m0, s{sXW}, {buf+XOFF}")]
    for n in range(nx):
        if n == 4: out.append(("s", f"s_add_u32 m0, s{sXW}, {buf+XOFF+4096}"))
        out.append(("M", f"buffer_load_dwordx4 v{vXD+n}, s[{sX}:{sX+3}], s{sT0} offen offset:{(n&3)*1024} lds"))
    out.append(("s", f"s_add_u32 m0, s{sWW}, {buf+WOFF}"))
    for n in range(4):
        out.append(("M", f"buffer_load_dwordx4 v{vWD+n}, s[{sW}:{sW+3}], s{sT1} offen offset:{n*1024 + 8*(n>>1)} lds"))
    return [(k, t, ("q", st)) for k, t in out]

def gen_wave(a, nq, L):
    nx = 2 * nq
    def qstage_issue(st): return qstage(st, nx)
    def kv_issue(kind, t):
        so, sw, off, f = (sKoff, sKW, kslot(t) * 16384, dmaK) if kind == "K" else (sVoff, sVW, VBASE + vslot(t) * 16384, dmaV)
        out = [("s", f"s_add_u32 s{so}, s{sROT}, {t*16384}"), ("s", f"s_and_b32 s{so}, s{so}, 0x7ffff"), ("s", f"s_add_u32 m0, s{sw}, {off}")]
        out += [("M", f(n)) for n in range(4)]
        return [(k, x, (kind, t)) for k, x in out]
    vm = []
    def now(it):
        flat(a, it)
        for x in it:
            if x[0] == "M": vm.append(x[2])
    def vmwait(tag): return vm[::-1].index(tag)
    vm += [("q", 0)] * (nx + 4) + [("q", 1)] * 4
    s1 = qstage_issue(1)[5:-5]
    def qreads(st, sp):
        out = [(f"ds_read_b128 {r('a', aQB[sp]+4*q)}, v{vXR+sp} offset:{XOFF + q*2048}", ("B", st, sp)) for q in range(nq)]
        for t in range(8):
            s, odd = t >> 1, t & 1
            for h in range(2):
                out.append((f"ds_read_b64_tr_b16 {r('a', aQA[sp]+4*t+2*h, 2)}, v{vWR+s} offset:{WOFF + odd*8 + h*1024 + sp*8224}", ("A", st, sp, t)))
        return out
    def rot(st):
        d = QBUF[(st + 2) % 3] - QBUF[(st + 1) % 3]
        return [f"v_add_u32 v{vXR+i}, {d}, v{vXR+i}" if d > 0 else f"v_subrev_u32 v{vXR+i}, {-d}, v{vXR+i}" for i in range(6)]
    stamp(a, True)
    a(f"s_waitcnt vmcnt({vmwait(('q', 0))})")
    stamp(a, True)
    a("s_barrier")
    stamp(a); stamp(a, True)
    B = Body()
    PH = 8 * nq
    for st in range(10):
        for sp in range(2 if st < 9 else 1):
            for t in range(8):
                for q in range(nq):
                    c = "0" if (st == 0 and sp == 0) else O(q, t)
                    B.add(f"{MF} {O(q,t)}, {r('a', aQA[sp]+4*t)}, {r('a', aQB[sp]+4*q)}, {c}",
                          ([("A", st, sp, t)] + ([("B", st, sp)] if t == 0 else [])) if q == 0 else None)
    first = qreads(0, 0)
    for t, _ in first: a(t)
    now(s1); s1 = []
    a("s_waitcnt lgkmcnt(0)")
    stamp(a, True)
    LQ = int(QLEAD * nq / 4)
    now(s1)
    g = B.spread(qstage_issue(2), -1, 2 * PH - LQ - 6)
    assert g < 2 * PH - LQ
    for st in range(9):
        bar = 2 * PH * (st + 1) - LQ
        B.place_big("B", "s_barrier", bar, ("q", st + 1), hi=bar)
        for i, t in enumerate(rot(st)): B.cv.setdefault(bar - 3 + i // 2, []).append(t)
        if st + 3 < 10: it = qstage_issue(st + 3)
        elif st == 7: it = kv_issue("K", 1) + kv_issue("K", 2)
        else: it = kv_issue("V", 0) + kv_issue("V", 1)
        if st == K0AT: it = it + kv_issue("K", 0)
        if 0 <= st - PF0 < len(PF):
            t = PF[st - PF0]
            it = it + [("s", f"s_add_u32 s4, s{sROT}, {t*16384}", None), ("s", "s_and_b32 s4, s4, 0x7ffff", None),
                       ("M", f"buffer_load_dword v12, v11, s[{sPF}:{sPF+3}], s4 offen", ("pf", t))]
        g = B.spread(it, bar, 2 * PH - 5 if st < 8 else PH + LQ - 6)
        assert g < bar + 2 * PH
    for st in range(10):
        base = 2 * PH * st
        g = base - LQ + 1
        if st > 0:
            for t, tag in qreads(st, 0): g = B.place_d(t, g, tag, 5 - nq)
        g = max(g, 0)
        rd = qreads(st, 1)
        order = rd[nq:nq + 4] + rd[:nq] + rd[nq + 4:] if st > 0 else rd
        for t, tag in order:
            lo = base if tag[0] == "B" else base - PH + nq * tag[3] + nq
            g = B.place_d(t, max(g, lo), tag, 5 - nq)
        if st < 9: assert g < base + 2 * PH - LQ - 3, (st, g)
    aK0 = 180
    g = 2 * PH * 8
    for f in range(8): g = B.place_d(kread(f, kslot(0) * 16384, aK=aK0), g, ("K0", f), 5 - nq) + 1
    c = Asm()
    c("v_lshlrev_b32 v8, 1, v4\nv_xor_b32 v8, v8, v7\nv_mul_u32_u24 v9, 1280, v6\nv_lshl_add_u32 v8, v8, 4, v9")
    for n in range(4): c(f"v_add_u32 v{vWO+n}, {n*8*1280 - n*1024}, v8")
    ar_setup(c)
    c(f"v_mul_u32_u24 v{PFA}, 1280, v3")
    for i in range(16): c(f"v_accvgpr_write_b32 a{aL+i}, 0")
    g = 2 * PH * 9 - LQ + 2
    for t in c.l:
        while any(x[0] == "M" for x in B.big.get(g, [])): g += 1
        B.cv.setdefault(g, []).append(t.strip()); g += 1
        if g >= len(B.mf): g = len(B.mf) - 1
    sc_ = [f"s_mov_b32 s{sQS}, s5", "s_lshr_b32 s4, s2, 3", "s_mul_i32 s4, s4, 52", "s_lshr_b32 s4, s4, 8", f"s_lshl_b32 s{sT0}, s4, 1", f"s_add_u32 s{sT0}, s{sT0}, s{sR}"]
    for k in range(2):
        sc_ += [f"s_add_u32 s{sPFW+k}, s{sT0}, {14 + 12*k}", f"s_and_b32 s{sPFW+k}, s{sPFW+k}, 31", f"s_mul_i32 s{sPFW+k}, s{sPFW+k}, {WSTEP}"]
    sc_ += [f"s_cmp_ge_u32 s4, 3\ns_cselect_b32 s{sPFW+1}, 0x7f000000, s{sPFW+1}", f"s_mul_i32 s{sT0}, s2, 20480",
            f"s_add_u32 s{sX}, s{pWO}, s{sT0}\ns_addc_u32 s{sX+1}, s{pWO+1}, 0", f"s_mov_b32 s{sX+2}, 20480", f"s_mov_b32 s{sT1}, {CSCALE:#x}"]
    for i, t in enumerate(sc_): B.pre.setdefault(2 * PH * 9 + i, []).append(t)
    B.emit(a, resident=[tag for _, tag in first], vm=vm)
    stamp(a)
    a("s_waitcnt lgkmcnt(0)")
    V, M = [], []
    def vadd(t, deps=(), id=None): V.append((id if id is not None else ("v", len(V)), t, list(deps)))
    def vissue(it):
        prev = ""
        for k, t, tag in it:
            vadd(("s_nop 0\n" if (k == "M" and "m0" in prev) else "") + t); prev = t
            if k == "M": vm.append(tag)
    for q in range(nq):
        for t in range(8): M.append((("lq", q, t), f"{MF} {O(q,t)}, {r('a', aQA[1]+4*t)}, {r('a', aQB[1]+4*q)}, {O(q,t)}", []))
    def conv(q):
        for s in range(4):
            b = vO + (q * 8 + 2 * s) * 4
            for j in range(8): vadd(f"v_mul_f32 v{b+j}, s{sT1}, v{b+j}", [(("lq", q, 2 * s + (j >> 2)), 8)])
            for j in range(4): vadd(f"v_cvt_pk_bf16_f32 v{b+j}, v{b+2*j}, v{b+2*j+1}")
            for j in range(4): vadd(f"v_accvgpr_write_b32 a{aQ+16*q+4*s+j}, v{b+j}", id=("Q", q, s) if j == 3 else None)
        for kt in range(2):
            for s in range(4): M.append((("qk0", q, kt, s), qk(0, q, kt, s, czero=True, aK=aK0), [(("Q", q, 3), 2)]))
        for h in range(2):
            z = r("v", vO + q * 32 + 16 * h, 16)
            M.append((("z", q, h), f"v_mfma_f32_32x32x16_bf16 {z}, {r('a', aL)}, {r('a', aL)}, 0", [(("Q", q, 3), 0)]))
    def stats(qs):
        for q in qs:
            b = S(0, q, 0); m = vNM + 4 * q
            vadd(f"v_max3_f32 v{m}, v{b}, v{b+1}, v{b+2}", [(("qk0", q, 1, 3), 8)])
            vadd(f"v_max3_f32 v{m+1}, v{b+3}, v{b+4}, v{b+5}")
            vadd(f"v_max3_f32 v{m}, v{m}, v{b+6}, v{b+7}")
            vadd(f"v_max_f32 v{m}, v{m}, v{m+1}")
        for op in ("v_permlane32_swap_b32", "v_permlane16_swap_b32"):
            for q in qs: vadd(f"v_mov_b32 v{vNM+4*q+1}, v{vNM+4*q}", id=("cp", op, q))
            for q in qs: vadd(f"{op} v{vNM+4*q}, v{vNM+4*q+1}", [(("cp", op, q), 2)], id=("sw", op, q))
            for q in qs: vadd(f"v_max_f32 v{vNM+4*q}, v{vNM+4*q}, v{vNM+4*q+1}", [(("sw", op, q), 2)])
        for q in qs:
            m = vNM + 4 * q; b = S(0, q, 0)
            vadd(f"v_sub_f32 v{m}, 0, v{m}")
            for j in range(1, 4): vadd(f"v_mov_b32 v{m+j}, v{m}", id=("nm", q) if j == 3 else None)
            for j in range(8): vadd(f"v_add_f32 v{b+j}, v{b+j}, v{m}")
    ex0, cv0 = softmax_ops(0, nq)
    ntail = NTAIL[nq]
    def exps(qs):
        for j in range(ntail // 2):
            if (j // 2) % nq in qs:
                vadd(ex0[2 * j]); vadd(ex0[2 * j + 1], id=("e", j))
        for j in range(ntail // 2):
            if (j // 2) % nq in qs:
                for t in cv0[j]: vadd(t, [(("e", j), 1)])
    def qk1(qs):
        for q in qs:
            for s in range(4): M.append((("qk1", q, s), qk(1, q, 0, s), [(("nm", q), 2), ("khi", 0)]))
    for f in range(8): vadd(kread(f, kslot(0) * 16384 + 8192))
    for q in range(nq):
        if valu_sum(nq, q): vadd(f"v_mov_b32 v{vLV[q]}, 0")
    conv(0); conv(1)
    vissue(kv_issue("K", 3))
    vadd("s_waitcnt lgkmcnt(0)", id="khi")
    conv(2)
    stats([0, 1])
    if nq == 4: conv(3)
    qk1([0, 1])
    if WARM:
        vadd("v_lshlrev_b32 v12, 7, v0")
        vadd(f"buffer_load_dword v12, v12, s[{sX}:{sX+3}], 0 offen"); vm.append(("warm", 0))
    vissue(kv_issue("V", 2))
    exps([0, 1])
    rest_q = list(range(2, nq))
    stats(rest_q); qk1(rest_q); exps(rest_q)
    merge(a, V, M)
    a(f"s_mov_b32 s{sCNT}, 7")
    if STAMP == 2: a("v_mov_b32 v13, 0\nv_mov_b32 v14, 0")
    if DMA3 and nq == 3:
        for i in range(8): a(f"v_subrev_u32 v{vKD+i}, 12288, v{vKD+i}")
    a(f"s_waitcnt vmcnt({vmwait(('V', 1 if (DMA3 and nq == 3) else 0))})")
    assert vmwait(("V", 1)) >= 8 and vmwait(("K", 2)) >= 8
    a("s_barrier")
    stamp(a)
    a(".p2align 6")
    a(f"L_loop{L}:")
    gen_body(a, nq, 0, L)
    gen_body(a, nq, 1, L)
    gen_body(a, nq, 2, L)
    gen_body(a, nq, 3, L, loopctl=(f"s_sub_u32 s{sCNT}, s{sCNT}, 1", f"s_cmp_gt_u32 s{sCNT}, 1"))
    a(f"s_cbranch_scc1 L_loop{L}")
    a(f"s_cmp_eq_u32 s{sCNT}, 0")
    a(f"s_cbranch_scc1 L_tail{L}")
    for j, pc in PRE: flat(a, wo_issue(j, pc))
    a(f"s_branch L_loop{L}")
    a(f"L_tail{L}:")
    c = 4 if not DMA3 else 16 if nq == 3 else 0
    vm = [("w", 0), ("w", 1), ("old", 0)] + [("V", 29)] * c + [("K", 30)] * c + [("V", 30)] * c + [("K", 31)] * c
    VMDONE.clear(); VMDONE.update([("w", 0), ("w", 1)])
    for i in (28, 29, 30): gen_body(a, nq, i % 4, L, idx=i, vm=vm)
    gen_body(a, nq, 3, L, last=True, idx=31, vm=vm)
    stamp(a)
    vq = [q for q in range(nq) if valu_sum(nq, q)]
    for q in vq: a(f"v_mov_b32 v{vNM+4*q}, v{vLV[q]}")
    if vq: xlane(a, [vNM + 4 * q for q in vq], "v_add_f32")
    else: a("s_nop 7")
    for q in range(nq):
        if q not in vq: a(f"v_accvgpr_read_b32 v{vNM+4*q}, a{aL+4*q}")
    a(f"s_mov_b32 s{sT0}, 0x5f800000")
    a("s_mov_b64 s[4:5], 0")
    for q in range(nq):
        a(f"v_cmp_ngt_f32 vcc, s{sT0}, v{vNM+4*q}")
        a("s_or_b64 s[4:5], s[4:5], vcc")
    if FORCE_SAFE: a(f"s_branch L_safe{L}")
    a(f"s_cbranch_scc1 L_safe{L}")
    a(f"L_epi{L}:")
    for q in range(nq): a(f"v_rcp_f32 v{vNM+4*q}, v{vNM+4*q}")
    a(f"s_waitcnt vmcnt({vm[::-1].index(('w', 12))})")
    rds = [t for j in range(6, 13) for t in wo_reads(j, PIECE[j])]
    per = -(-len(rds) // (4 * nq))
    for q in range(nq):
        for s in range(4):
            b = vO + (q * 8 + 2 * s) * 4
            for t in rds[:per]: a(t)
            rds = rds[per:]
            for j in range(8): a(f"v_mul_f32 v{b+j}, v{vNM+4*q}, v{b+j}")
            for j in range(4): a(f"v_cvt_pk_bf16_f32 v{b+j}, v{b+2*j}, v{b+2*j+1}")
            if s == 0:
                a(f"s_lshl_b32 s{sT0}, s{sWAVE}, 2\ns_add_u32 s{sT0}, s{sT0}, {q}\ns_mul_i32 s{sT1}, s{sT0}, 52\ns_lshr_b32 s{sT1}, s{sT1}, 8")
                a(f"s_mul_i32 s{sT1}, s{sT1}, {128*5120 - 5*1024}\ns_lshl_b32 s{sT0}, s{sT0}, 10\ns_add_u32 s{sT0}, s{sT0}, s{sT1}\ns_add_u32 s{sT0}, s{sT0}, s3")
            else:
                a(f"s_add_u32 s{sT0}, s{sT0}, 5120")
            a(f"buffer_store_dwordx4 {r('v', b)}, v2, s[{sWS}:{sWS+3}], s{sT0} offen{OST}")
    a("s_branch L_common")
    gen_safe(a, nq, L)

def gen_safe(a, nq, L):
    a(f"L_safe{L}:")
    a("s_waitcnt vmcnt(0) lgkmcnt(0)")
    for i in range(nq * 32): a(f"v_mov_b32 v{vO+i}, 0")
    for q in range(nq):
        a(f"v_mov_b32 v{vNM+4*q}, 0xff800000")
        a(f"v_mov_b32 v{vNM+4*q+3}, 0")
    kv_voffsets(a, False)
    kv_srds(a)
    a(f"s_add_u32 s{sKW}, s{sVW}, {SBASE}")
    a(f"s_sub_u32 s{sT0}, s{sKW}, {KBASE}")
    for i in range(4): a(f"v_add_u32 v{vKR+i}, s{sT0}, v{vKR+i}")
    for i in range(8): a(f"v_add_u32 v{vVR+i}, s{sKW}, v{vVR+i}")
    a(f"s_mov_b32 s{sKoff}, 0")
    a(f"L_sloop{L}:")
    def tile(vd, srd):
        for hh in range(2):
            a(f"s_add_u32 m0, s{sKW}, {hh*16384}")
            a(f"s_add_u32 s{sVoff}, s{sKoff}, {hh*4096}")
            for n in range(4): a(f"buffer_load_dwordx4 v{vd+n}, s[{srd}:{srd+3}], s{sVoff} offen offset:{n*1024} lds")
    tile(vKD, sK)
    a("s_waitcnt vmcnt(0)")
    for f in range(8): a(kread(f, 0, 16384))
    a("s_waitcnt lgkmcnt(0)")
    tile(vVD, sV)
    for kt in range(2):
        for s in range(4):
            for q in range(nq): a(qk(0, q, kt, s, czero=True))
    a("s_nop 7")
    T = vS + 32
    for q in range(nq):
        b = S(0, q, 0); m = T + 2 * q
        a(f"v_max3_f32 v{m}, v{b}, v{b+1}, v{b+2}")
        a(f"v_max3_f32 v{m+1}, v{b+3}, v{b+4}, v{b+5}")
        a(f"v_max3_f32 v{m}, v{m}, v{b+6}, v{b+7}")
        a(f"v_max3_f32 v{m}, v{m}, v{m+1}, v{vNM+4*q}")
    xlane(a, [T + 2 * q for q in range(nq)], "v_max_f32")
    for q in range(nq):
        m = vNM + 4 * q; b = S(0, q, 0)
        a(f"v_sub_f32 v{m+2}, v{m}, v{T+2*q}")
        a(f"v_exp_f32 v{m+2}, v{m+2}")
        a(f"v_mov_b32 v{m}, v{T+2*q}")
        for j in range(8): a(f"v_sub_f32 v{b+j}, v{b+j}, v{m}")
        for j in range(8): a(f"v_exp_f32 v{b+j}, v{b+j}")
        a(f"v_mul_f32 v{m+3}, v{m+3}, v{m+2}")
        for i in range(32): a(f"v_mul_f32 v{vO+q*32+i}, v{vO+q*32+i}, v{m+2}")
        for j in range(4): a(f"v_cvt_pk_bf16_f32 v{b+j}, v{b+2*j}, v{b+2*j+1}")
        for j in range(4):
            a(f"v_lshlrev_b32 v{b+4}, 16, v{b+j}")
            a(f"v_and_b32 v{b+5}, 0xffff0000, v{b+j}")
            a(f"v_add_f32 v{m+3}, v{m+3}, v{b+4}")
            a(f"v_add_f32 v{m+3}, v{m+3}, v{b+5}")
    a("s_waitcnt vmcnt(0)")
    for d in range(8):
        for h in range(2): a(vread(d, h, 0, 16384))
        if d == 3: a("s_waitcnt lgkmcnt(0)")
    a("s_waitcnt lgkmcnt(0)")
    for d in range(8):
        for q in range(nq): a(pv(0, q, d))
    a("s_nop 7")
    a(f"s_add_u32 s{sKoff}, s{sKoff}, 8192")
    a(f"s_cmp_lt_u32 s{sKoff}, 524288")
    a(f"s_cbranch_scc1 L_sloop{L}")
    xlane(a, [vNM + 4 * q + 3 for q in range(nq)], "v_add_f32", tmp=-2)
    for q in range(nq): a(f"v_mov_b32 v{vNM+4*q}, v{vNM+4*q+3}")
    ar_setup(a)
    a(f"v_mul_u32_u24 v{PFA}, 1280, v3")
    for j in (8, 11): flat(a, wo_issue(j, PIECE[j]))
    a("s_waitcnt vmcnt(0)")
    a(f"s_branch L_epi{L}")

def gen_common(a):
    a("L_common:")
    piece = dict(PIECE)
    vm = [("w", j) for j in range(15)] + [("st", 0)]
    def issue(n, p):
        piece[n] = p
        flat(a, wo_issue(n, p)); vm.extend([("w", n)] * 4)
    def vw(tag): return vm[::-1].index(tag)
    a("s_waitcnt lgkmcnt(0)")
    NPRE = opt("npre", 3)
    for i in range(NPRE): issue(15 + i, piece[6 + i])
    a(f"""s_lshl_b32 s{sT0}, s{sOB}, 2
s_add_u32 s{sT0}, s{sT0}, s{sWAVE}
s_mul_i32 s{sT0}, s{sT0}, {32*5120}
s_add_u32 s{sO}, s{pWS}, s{sT0}
s_addc_u32 s{sO+1}, s{pWS+1}, 0
s_mov_b32 s{sO+2}, {0 if opt("oskip", 0) else 32*5120}
s_mov_b32 s{sOUT}, s{pDBG}
s_mov_b32 s{sOUT+1}, s{pDBG+1}
s_mov_b32 s{sOUT+2}, 256
v_mov_b32 v12, 1
v_mov_b32 v15, 0
v_add_u32 v16, 4096, v2""")
    a(f"s_waitcnt vmcnt({vw(('st', 0))})")
    if opt("opf", 0):
        for half in range(2):
            a(f"v_lshrrev_b32 v17, 5, v3\nv_lshl_add_u32 v17, v1, 2, v17\nv_add_u32 v17, {2*half}, v17")
            a(f"v_mul_u32_u24 v18, 52, v17\nv_lshrrev_b32 v18, 8, v18\nv_mul_u32_u24 v18, {128*5120 - 5*1024}, v18\nv_lshl_add_u32 v18, v17, 10, v18")
            a(f"v_bfe_u32 v19, v3, 3, 2\nv_mul_u32_u24 v19, 5120, v19\nv_add_u32 v18, v18, v19\nv_lshl_add_u32 v18, v7, 7, v18")
            a(f"v_cmp_gt_u32 vcc, 15, v17\nv_mov_b32 v19, 0x7f000000\ns_nop 0\nv_cndmask_b32 v18, v19, v18, vcc")
            a(f"buffer_load_dword v{20+half}, v18, s[{sWS}:{sWS+3}], s3 offen sc1")
            vm.append(("opf", half))
    a("s_barrier")
    a(f"s_cmp_lg_u32 s{sWAVE}, 0")
    a("s_cbranch_scc1 L_nosig")
    a(f"s_lshl_b32 s{sT0}, s{sB}, 5")
    a("s_mov_b64 exec, 1")
    a(f"buffer_atomic_add v12, v15, s[{sOUT}:{sOUT+3}], s{sT0} offen sc1")
    a("s_mov_b64 exec, -1")
    a("L_nosig:")
    stamp(a)
    a("s_cmp_ge_u32 s2, 240")
    a("s_cbranch_scc1 L_exit")
    for j in (13, 14):
        for t in wo_reads(j, piece[j]): a(t)
    for i in range(NPRE, 7): issue(15 + i, piece[6 + i])
    a(f"s_mul_i32 s{sT1}, s{sOB}, 86\ns_lshr_b32 s{sT1}, s{sT1}, 8\ns_lshl_b32 s{sT1}, s{sT1}, 5")
    def poll():
        a(f"buffer_load_dword v12, v15, s[{sOUT}:{sOUT+3}], s{sT1} offen sc0 sc1")
        vm.append(("poll", 0))
    PA = opt("pollat", 5)
    issue(22, 3)
    pend = [13, 14]; nxt = 23
    for j in range(15, 22):
        a(f"s_waitcnt vmcnt({vw(('w', j))}) lgkmcnt(0)")
        for t in wo_reads(j, piece[j]): a(t)
        if j - 15 == PA: poll()
        for x in pend: issue(nxt, piece[x]); nxt += 1
        pend = [j]
    a("s_waitcnt lgkmcnt(0)")
    issue(nxt, piece[pend[0]])
    assert nxt == 31
    a(f"s_cmp_lg_u32 s{sWAVE}, 0")
    a("s_cbranch_scc1 L_go")
    a(f"s_waitcnt vmcnt({vw(('poll', 0))})")
    a(f"s_mov_b32 s{sCNT}, {SPIN}")
    a("L_poll:")
    a(f"v_readfirstlane_b32 s{sT0}, v12")
    a(f"s_sub_u32 s{sCNT}, s{sCNT}, 1")
    a(f"s_cbranch_scc1 L_go")
    a(f"s_cmp_ge_u32 s{sT0}, 32")
    a("s_cbranch_scc1 L_go")
    a(f"buffer_load_dword v12, v15, s[{sOUT}:{sOUT+3}], s{sT1} offen sc0 sc1")
    a("s_waitcnt vmcnt(0)")
    a("s_branch L_poll")
    a("L_go:")
    a("s_barrier")
    stamp(a)
    vAcc = 128
    ring = [208 + 4 * i for i in range(12)] + [36] + ([12] if STAMP < 2 else [])
    RD = len(ring)
    def o_pre(n): return [f"s_add_u32 s{sT1}, s{sR}, {n}", f"s_and_b32 s{sT1}, s{sT1}, 31", f"s_mul_i32 s{sT1}, s{sT1}, 5120"]
    def o_ld(i):
        n, qt = divmod(i, 5)
        return f"buffer_load_dwordx4 {r('v', ring[i % RD])}, v{2 if qt < 4 else 16}, s[{sO}:{sO+3}], s{sT1} offen offset:{(qt&3)*1024}{OLD}"
    for i in range(RD):
        if i % 5 == 0:
            for t in o_pre(i // 5): a(t)
        a(o_ld(i)); vm.append(("o", i))
    B = Body()
    for n in range(32):
        rf, bank = bank_of(n)
        for qt in range(5):
            for nt in range(4):
                acc = r("v", vAcc + (qt * 4 + nt) * 4)
                need = None
                if nt == 0: need = [("vm", ("o", 5 * n + qt))] + ([("W", n)] if (qt == 0 and n >= 22) else [])
                B.add(f"{MF} {acc}, {r(rf, bank+4*nt)}, {r('v', ring[(5*n+qt) % RD])}, {'0' if n == 0 else acc}", need)
    for i in range(160 - RD):
        j = i + RD
        if j % 5 == 0:
            for k, t in enumerate(o_pre(j // 5)): B.pre.setdefault(4 * i + k, []).append(t)
        B.place_big("M", o_ld(j), 4 * i + 3, ("o", j), hi=4 * i + 3)
    for n in range(10):
        j = n + 22
        g = 20 * (n + 1)
        for i, t in enumerate(wo_reads(j, piece[j])):
            g = B.place_d(t, g, ("W", j), 1, req=[("vm", ("w", j))] if i == 0 else None) + 1
    if STAMP == 4:
        a("v_mov_b32 v13, 0\nv_mov_b32 v14, 0\ns_memtime s[100:101]\ns_waitcnt lgkmcnt(0)"); rec(a)
        for n in range(32):
            B.cv.setdefault(20 * n + 1, []).append("s_memtime s[100:101]\ns_waitcnt lgkmcnt(0)\nv_cmp_eq_u32 vcc, v13, v3\nv_mov_b32 v15, s100\nv_add_u32 v13, 1, v13\nv_cndmask_b32 v14, v14, v15, vcc")
    B.emit(a, vm=vm)
    stamp(a)
    vB = 48
    a(f"s_mov_b32 s{sOUT}, s{pOUT}\ns_mov_b32 s{sOUT+1}, s{pOUT+1}\ns_mov_b32 s{sOUT+2}, {8*240*640*2}")
    a(f"s_mul_i32 s{sT0}, s{sWAVE}, 5120")
    a(f"v_add_u32 v8, s{sT0}, v2")
    a("v_add_u32 v9, 40960, v8")
    a("s_nop 4")
    a("s_barrier")
    for nt in range(4):
        a(f"s_cmp_eq_u32 s{sWAVE}, {nt}")
        a(f"s_cbranch_scc1 L_skipw{nt}")
        for qt in range(5): a(f"ds_write_b128 v{8 + (nt >> 1)}, {r('v', vAcc+(qt*4+nt)*4)} offset:{(nt&1)*20480 + qt*1024}")
        a(f"s_branch L_nextw{nt}")
        a(f"L_skipw{nt}:")
        for qt in range(5):
            for j in range(4): a(f"v_mov_b32 v{vB+qt*4+j}, v{vAcc+(qt*4+nt)*4+j}")
        a(f"L_nextw{nt}:")
    a(f"s_mul_i32 s{sT0}, s{sWAVE}, 20480")
    a(f"v_add_u32 v12, s{sT0}, v2")
    for i in range(1, 4):
        a(f"s_add_u32 s{sT1}, s{sWAVE}, {i}\ns_and_b32 s{sT1}, s{sT1}, 3\ns_mul_i32 s{sT1}, s{sT1}, 5120\nv_add_u32 v{16+i}, s{sT1}, v12")
    a(f"s_mul_i32 s{sT0}, s{sOB}, {80*1280}\ns_lshl_b32 s{sT1}, s{sQS}, 7\ns_add_u32 s{sT0}, s{sT0}, s{sT1}\ns_lshl_b32 s{sT1}, s{sWAVE}, 5\ns_add_u32 s{sT0}, s{sT0}, s{sT1}")
    a("v_mul_u32_u24 v10, 1280, v5\nv_lshl_add_u32 v10, v4, 3, v10")
    a("s_waitcnt lgkmcnt(0)")
    a("s_barrier")
    for qt in range(5):
        for i in range(1, 4): a(f"ds_read_b128 {r('v', vAcc+(qt*3+i-1)*4)}, v{16+i} offset:{qt*1024}")
    for qt in range(5):
        a(f"s_waitcnt lgkmcnt({12-3*qt})")
        b0 = vAcc + qt * 12
        for j in range(4): a(f"v_add_f32 v{vB+qt*4+j}, v{vB+qt*4+j}, v{b0+j}")
        for j in range(4): a(f"v_add_f32 v{b0+4+j}, v{b0+4+j}, v{b0+8+j}")
        for j in range(4): a(f"v_add_f32 v{vB+qt*4+j}, v{vB+qt*4+j}, v{b0+4+j}")
        for j in range(2): a(f"v_cvt_pk_bf16_f32 v{vB+qt*4+j}, v{vB+qt*4+2*j}, v{vB+qt*4+2*j+1}")
        a(f"buffer_store_dwordx2 {r('v', vB+qt*4, 2)}, v10, s[{sOUT}:{sOUT+3}], s{sT0} offen{FST}")
        if qt < 4: a(f"s_add_u32 s{sT0}, s{sT0}, {16*1280}")
    if STAMP:
        a("s_waitcnt vmcnt(0)")
        a("s_waitcnt lgkmcnt(0)")
        if STAMP >= 2:
            a(f"s_lshl_b32 s{sT0}, s2, 10\ns_add_u32 s{sT0}, s{sT0}, 0x80000\nv_lshlrev_b32 v15, 2, v0")
            a(f"buffer_store_dword v14, v15, s[{sST}:{sST+3}], s{sT0} offen")
        a("s_memtime s[76:77]\ns_memrealtime s[78:79]\ns_waitcnt lgkmcnt(0)")
        if opt("dbgout", 0):
            a(f"s_cmp_lg_u32 s2, 9\ns_cbranch_scc1 L_exit\ns_cmp_lg_u32 s{sWAVE}, 0\ns_cbranch_scc1 L_exit")
            a(f"s_mov_b32 s{sOUT}, s{pDBG}\ns_mov_b32 s{sOUT+1}, s{pDBG+1}\ns_mov_b32 s{sOUT+2}, 256")
            a("s_mov_b64 exec, 1\nv_mov_b32 v15, 0")
            words = [1, 2, 3, 4, 5, 6, 7, 9]
            for i in range(8):
                a(f"s_sub_u32 s4, s{sSTAMP+4*(i+1)+2}, s{sSTAMP+4*i+2}\nv_mov_b32 v12, s4")
                a(f"buffer_store_dword v12, v15, s[{sOUT}:{sOUT+3}], 0 offen offset:{4*words[i]}\ns_nop 1")
            a(f"s_sub_u32 s4, s78, s{sSTAMP+2}\nv_mov_b32 v12, s4\nbuffer_store_dword v12, v15, s[{sOUT}:{sOUT+3}], 0 offen offset:40")
            a(f"s_sub_u32 s4, s{sSTAMP+16}, s{sSTAMP+12}\nv_mov_b32 v13, s4\nbuffer_store_dword v13, v15, s[{sOUT}:{sOUT+3}], 0 offen offset:44")
        else:
            stamp_store(a, 18, sSTAMP, sST, 4)

TICKET = opt("ticket", 0)
def gen():
    a = Asm()
    a("s_cmp_ge_u32 s2, 256")
    a("s_cbranch_scc1 L_exit")
    a("s_getpc_b64 s[8:9]")
    a(f"s_load_dwordx16 s[{sARG}:{sARG+15}], s[0:1], 0")
    stamp(a)
    a("s_getreg_b32 s6, hwreg(HW_REG_XCC_ID, 0, 3)\ns_getreg_b32 s7, hwreg(HW_REG_HW_ID, 13, 2)\ns_getreg_b32 s4, hwreg(HW_REG_HW_ID, 8, 4)")
    a("s_mul_i32 s7, s7, 9\ns_add_u32 s7, s7, s4")
    a(f"s_mov_b32 s10, L_exit-{KN}-16\ns_mov_b32 s11, 0x20000\ns_mul_i32 s4, s7, 2304")
    a("v_lshrrev_b32 v11, 2, v0\nv_lshlrev_b32 v11, 7, v11")
    a(f"""v_lshrrev_b32 v1, 6, v0
v_and_b32 v3, 63, v0
v_lshrrev_b32 v4, 4, v3
v_readfirstlane_b32 s{sWAVE}, v1
v_and_b32 v5, 15, v3
v_lshlrev_b32 v2, 4, v3
v_lshrrev_b32 v6, 3, v3
v_and_b32 v7, 7, v3""")
    if TICKET:
        a(f"""s_mul_i32 s5, s7, 114
v_add_u32 v8, s5, v0
v_and_b32 v8, 4095, v8
v_lshrrev_b32 v9, 2, v8
v_mul_u32_u24 v9, 1280, v9
v_and_b32 v10, 3, v8
v_lshl_add_u32 v13, v10, 7, v9
v_lshrrev_b32 v9, 4, v8
v_lshlrev_b32 v9, 13, v9
v_and_b32 v10, 15, v8
v_lshl_add_u32 v14, v10, 7, v9
v_mov_b32 v15, 1
v_mov_b32 v16, 0
s_and_b32 s{sT0}, s6, 1
s_mul_i32 s{sT0}, s{sT0}, 1228800
s_lshr_b32 s{sT1}, s6, 1
s_lshl_b32 s{sT1}, s{sT1}, 11
s_mov_b32 s{sX+2}, 1228800
s_mov_b32 s{sX+3}, 0x20000
s_sub_u32 s{sW+2}, 5242880, s{sT1}
s_mov_b32 s{sW+3}, 0x20000
s_mov_b32 s{sWS+2}, 256
s_mov_b32 s{sWS+3}, 0x20000
s_lshl_b32 s5, s6, 5
s_cmp_lg_u32 s{sWAVE}, 0
s_waitcnt lgkmcnt(0)
s_mov_b32 s{sWS}, s{pDBG}
s_mov_b32 s{sWS+1}, s{pDBG+1}
s_cbranch_scc1 L_notk
s_mov_b64 exec, 1
buffer_atomic_add v15, v16, s[{sWS}:{sWS+3}], s5 offen offset:4 sc0 sc1
s_mov_b64 exec, -1
L_notk:
s_add_u32 s{sX}, s{pX}, s{sT0}
s_addc_u32 s{sX+1}, s{pX+1}, 0
s_add_u32 s{sW}, s{pWQ}, s{sT1}
s_addc_u32 s{sW+1}, s{pWQ+1}, 0""")
        if opt("qpf", 0):
            a(f"buffer_load_dword v12, v14, s[{sW}:{sW+3}], 0 offen")
            a(f"buffer_load_dword v12, v13, s[{sX}:{sX+3}], 0 offen")
    a("buffer_load_dword v12, v11, s[8:11], s4 offen")
    stamp(a, True)
    a("v_lshl_add_u32 v8, v1, 6, v6\nv_mul_u32_u24 v8, 1280, v8\nv_xor_b32 v9, v7, v4")
    for n in range(8):
        a(f"v_xor_b32 v10, {4*(n&1)}, v9")
        a(f"v_lshl_add_u32 v10, v10, 4, v8")
        a(f"v_add_u32 v{vXD+n}, {n*8*1280 - (n&3)*1024}, v10")
    a("v_lshl_add_u32 v8, v1, 4, v4\nv_lshlrev_b32 v8, 13, v8\nv_lshlrev_b32 v9, 2, v4\nv_xor_b32 v9, v9, v5\nv_lshl_add_u32 v8, v9, 4, v8")
    for n in range(4): a(f"v_add_u32 v{vWD+n}, {n*4*8192 - n*1024 - 8*(n>>1)}, v8")
    a(f"""s_lshl_b32 s{sXW}, s{sWAVE}, 13
s_lshl_b32 s{sVW}, s{sWAVE}, 12
s_add_u32 s{sKW}, s{sVW}, {KBASE}
s_mul_i32 s{sWW}, s{sWAVE}, 4112""")
    def rest_v(a):
        kv_voffsets(a, True)
        a("v_lshrrev_b32 v8, 2, v3\nv_and_b32 v9, 7, v8\nv_lshlrev_b32 v8, 8, v8\nv_and_b32 v10, 3, v3\nv_lshl_add_u32 v8, v10, 3, v8")
        for t in range(8):
            a(f"v_xor_b32 v10, {t}, v9")
            a(f"v_lshl_add_u32 v{vVR+t}, v10, 5, v8")
        a(f"v_lshlrev_b32 v8, 13, v1\nv_lshl_add_u32 v8, v5, 7, v8\nv_add_u32 v8, {QBUF[1]}, v8\nv_lshrrev_b32 v9, 1, v5\nv_xor_b32 v9, v9, v4")
        for sp in range(2):
            a(f"v_xor_b32 v10, {4*sp}, v9")
            a(f"v_lshl_add_u32 v{vXR+sp}, v10, 4, v8")
        a(f"v_bfe_u32 v9, v3, 2, 2\nv_lshl_add_u32 v8, v4, 3, v9\nv_lshlrev_b32 v8, 8, v8\nv_and_b32 v10, 3, v3\nv_lshl_add_u32 v8, v10, 4, v8")
        a(f"v_add_u32 v8, {QBUF[1]}, v8\nv_lshl_add_u32 v8, v4, 3, v8")
        for s in range(4):
            a(f"v_xor_b32 v10, {s}, v9")
            a(f"v_lshl_add_u32 v{vWR+s}, v10, 6, v8")
        a("v_and_b32 v8, 3, v3\nv_cmp_eq_u32 vcc, 0, v8\nv_mov_b32 v9, 0x3f803f80\nv_mov_b32 v10, 0\nv_cndmask_b32 v9, v10, v9, vcc")
        for j in range(4): a(f"v_accvgpr_write_b32 a{aONE+j}, v9")
    def kr_setup(a):
        a(f"v_lshlrev_b32 v8, 8, v5\nv_add_u32 v8, {KBASE}, v8\nv_xor_b32 v9, v4, v5")
        for s in range(4):
            a(f"v_xor_b32 v10, {4*s}, v9")
            a(f"v_lshl_add_u32 v{vKR+s}, v10, 4, v8")
    if TICKET:
        rest_v(a)
        a(f"""s_cmp_lg_u32 s{sWAVE}, 0
s_cbranch_scc1 L_tkwait
s_mov_b32 s{sCNT}, 8
s_waitcnt vmcnt({3 if opt("qpf", 0) else 1})
L_tkchk:
v_readfirstlane_b32 s2, v15
s_cmp_lt_u32 s2, 32
s_cbranch_scc1 L_tkok
s_add_u32 s6, s6, 1
s_and_b32 s6, s6, 7
s_lshl_b32 s5, s6, 5
v_mov_b32 v15, 1
s_mov_b64 exec, 1
buffer_atomic_add v15, v16, s[{sWS}:{sWS+3}], s5 offen offset:4 sc0 sc1
s_mov_b64 exec, -1
s_waitcnt vmcnt(0)
s_sub_u32 s{sCNT}, s{sCNT}, 1
s_cbranch_scc0 L_tkchk
s_mov_b32 s2, 32
L_tkok:
s_lshl_b32 s2, s2, 3
s_or_b32 s2, s2, s6
v_mov_b32 v15, s2
ds_write_b32 v16, v15
s_waitcnt lgkmcnt(0)
L_tkwait:
s_barrier
ds_read_b32 v15, v16
s_waitcnt lgkmcnt(0)
v_readfirstlane_b32 s2, v15
s_cmp_ge_u32 s2, 256
s_cbranch_scc1 L_exit""")
    else:
        a("s_waitcnt lgkmcnt(0)")
    stamp(a, True)
    a(f"""s_and_b32 s{sT0}, s2, 1
s_lshl_b32 s{sB}, s{sT0}, 2
s_bfe_u32 s{sT0}, s2, 0x20003
s_add_u32 s{sB}, s{sB}, s{sT0}
s_and_b32 s{sH}, s2, 6
s_lshl_b32 s{sH}, s{sH}, 2
s_lshr_b32 s{sT1}, s2, 5
s_add_u32 s{sH}, s{sH}, s{sT1}
s_add_u32 s{sQS}, s{sH}, s{sB}
s_and_b32 s{sQS}, s{sQS}, {opt("qm", 3)}
s_mul_i32 s{sT0}, s{sB}, 307200
s_lshl_b32 s{sT1}, s{sH}, 8
s_mov_b32 s{sX+2}, 307200
s_mov_b32 s{sX+3}, 0x20000
s_mov_b32 s{sW+3}, 0x20000
s_sub_u32 s{sW+2}, 5242880, s{sT1}
s_add_u32 s{sX}, s{pX}, s{sT0}
s_addc_u32 s{sX+1}, s{pX+1}, 0
s_add_u32 s{sW}, s{pWQ}, s{sT1}
s_addc_u32 s{sW+1}, s{pWQ+1}, 0""")
    s0 = qstage(0, 8)
    s0 = s0[:5] + s0[-5:] + s0[5:-5]
    flat(a, s0[:-2])
    a(f"s_cmp_eq_u32 s{sWAVE}, 3")
    a("s_cbranch_scc1 L_x6")
    flat(a, s0[-2:])
    a("L_x6:")
    if not TICKET: rest_v(a)
    kr_setup(a)
    kv_srds(a)
    a(f"""s_mov_b32 s{sWS}, s{pWS}
s_mov_b32 s{sWS+1}, s{pWS+1}
s_mov_b32 s{sWS+2}, {8*15*128*1024}
s_mov_b32 s{sWS+3}, 0x20000""")
    if STAMP:
        a(f"s_add_u32 s{sST}, s{pWS}, 0x10000000\ns_addc_u32 s{sST+1}, s{pWS+1}, 0\ns_mov_b32 s{sST+2}, 0x100000\ns_mov_b32 s{sST+3}, 0x20000")
    a(f"s_mul_i32 s3, s{sB}, 96\ns_add_u32 s3, s3, s{sH}\ns_mul_i32 s3, s3, 20480")
    a(f"s_lshr_b32 s{sROT}, s2, 3\ns_lshl_b32 s{sROT}, s{sROT}, 14")
    a(f"""s_lshr_b32 s4, s2, 3
s_mul_i32 s6, s4, 52
s_lshr_b32 s6, s6, 8
s_mul_i32 s5, s6, 5
s_sub_u32 s5, s4, s5
s_mov_b32 s{sR}, 0
s_and_b32 s7, s2, 1
s_mul_i32 s7, s7, 5
s_add_u32 s5, s5, s7
s_and_b32 s{sOB}, s2, 6
s_mul_i32 s{sOB}, s{sOB}, 3
s_add_u32 s{sOB}, s{sOB}, s6
s_mul_i32 s6, s{sWAVE}, {1024*1280}
s_lshl_b32 s7, s5, 7
s_add_u32 s6, s6, s7
s_add_u32 s{sWO}, s{pWO}, s6
s_addc_u32 s{sWO+1}, s{pWO+1}, 0
s_sub_u32 s{sWO+2}, 5242880, s6
s_cmp_ge_u32 s2, 240
s_cselect_b32 s{sWO+2}, 0, s{sWO+2}
s_mov_b32 s{sWO+3}, 0x20000""")
    s1 = qstage(1, 8)
    flat(a, s1[:5] + s1[-5:])
    stamp(a, True)
    a(f"s_cmp_eq_u32 s{sWAVE}, 3")
    a("s_cbranch_scc1 L_waveB")
    base = nstamp[0]
    gen_wave(a, 4, "A")
    a("L_waveB:")
    nstamp[0] = base
    gen_wave(a, 3, "B")
    gen_common(a)
    a("L_exit:")
    a("s_endpgm")
    return a.text()

body = gen()
print(wrap([dict(name=KN, grid=256, block=256, lds=163840, body=body, vgpr=512, sgpr=102, accum=256)]))
```

```python
import sys, struct, math
from gencommon import *

OPT = dict(kv.split("=") for kv in sys.argv[1:])
def opt(k, d): return type(d)(OPT.get(k, d))
STAMP = opt("stamp", 0)
MAP = opt("map", "mixed")
NT = opt("nt", 1)
FORCE_SAFE = opt("safe", 0)
QLEAD = opt("qlead", 28)
K0AT = opt("k0at", 2)
WARM = opt("warm", 1)
OD = opt("od", 5)
OLD = {"": "", "plain": "", "nt": " nt", "sc1": " sc1", "sc01": " sc0 sc1"}[opt("old", "sc1")]
OST = {"": "", "plain": "", "sc1": " sc1", "sc01": " sc0 sc1"}[opt("ost", "sc01")]
SPIN = opt("spin", 1 << 16)
CHAIN = opt("chain", 1)
LAG = opt("lag", 12)
NV = opt("nv", 0)
vLV = {1: 1, 2: 6, 3: 7}
def valu_sum(nq, q): return nq == 4 and q >= 4 - NV
DMA3 = opt("dma3", 1)
FST = {"": "", "sc01": " sc0 sc1", "nt": " nt"}[opt("fst", "")]
PMAP = opt("pmap", 1)
PF = [int(t) for t in opt("pf", "").split(",") if t]
PF0 = opt("pf0", 0)
sPF = 72
W6 = [tuple(int(y) for y in x.split(":")) for x in opt("w6", "29:56,30:56").split(",") if x]
sPFW = 6
PFD, PFA = (13, 14) if STAMP < 2 else (12, 1)
SNAKE = opt("snake", 1)

MF = "v_mfma_f32_16x16x32_bf16"
VBASE, SBASE, KBASE = 0, 64 * 1024, 96 * 1024
QBUF = [0, 48 * 1024, 96 * 1024]
XOFF, WOFF = 0, 31744
def kslot(t): return (t + 3) % 4
def vslot(t): return t % 4
vO = 128; vS = 64; vNM = 48
vKR = 16; vVR = 20; vKD = 28; vVD = 32; vXD = 36; vWD = 44
vXR = 64; vWR = 66
vWO = 36
vAR = [40, 44, 8]
aQ = 0; aK = 64; aV = 96; aL = 128; aONE = 144
aQA = [64, 96]; aQB = [148, 164]
sK, sV, sX, sW, sWS = 8, 12, 16, 20, 24
sO, sOUT = 16, 20
sWAVE, sKW, sVW, sXW, sWW = 28, 29, 30, 31, 32
sKoff, sVoff, sCNT, sB, sH, sT0, sT1 = 33, 34, 35, 36, 37, 38, 39
sKinc, sKmask, sVinc, sVmask = 6, 7, 31, 32
sST, sSTAMP = 40, 44
sWO = 76
sROT, sQS, sR, sOB = 80, 81, 82, 83
sARG = 84
pX, pK, pV, pWQ, pWO, pOUT, pDBG, pWS = [sARG + 2 * i for i in range(8)]
CSCALE = struct.unpack("<I", struct.pack("<f", math.log2(math.e) / math.sqrt(128.0)))[0]
WCONT = opt('wcont', 0)
WSTEP = 4096 if WCONT else 32 * 1280

def r(pfx, b, n=4): return f"{pfx}[{b}:{b+n-1}]"
def O(q, d): return r("v", vO + (q * 8 + d) * 4)
def S(p, q, kt): return vS + 32 * p + 8 * q + 4 * kt
def pol(srd): return "" if (srd == sV and opt("vdef", 0)) or (srd == sK and opt("kdef", 0)) else ntf()
POLS = {"n": " nt", "d": "", "s": " sc1", "t": " sc1 nt", "z": " sc0", "a": " sc0 sc1 nt", "b": " sc0 sc1", "y": " sc0 nt"}
def pol2(srd, c, i):
    m = opt("pm", "")
    if not m: return pol(srd)
    if m[0] == "i": return POLS[m[1 + i]]
    return POLS[m[(0 if srd == sK else 4) + c]]
def ntf(): return {0: "", 1: " nt", 2: " sc1 nt"}[NT]

nstamp = [0]
def stamp(a, early=False):
    if (STAMP == 5) != early and not (STAMP == 5 and nstamp[0] == 0): return
    if STAMP:
        i = nstamp[0]; nstamp[0] += 1
        assert i < 8
        a(f"s_memtime s[{sSTAMP+4*i}:{sSTAMP+4*i+1}]")
        a(f"s_memrealtime s[{sSTAMP+4*i+2}:{sSTAMP+4*i+3}]")
def rec(a):
    a("v_cmp_eq_u32 vcc, v13, v3\nv_mov_b32 v15, s100\nv_add_u32 v13, 1, v13\nv_cndmask_b32 v14, v14, v15, vcc")

def dmaK(n): return f"buffer_load_dwordx4 v{vKD+n}, s[{sK}:{sK+3}], s{sKoff} offen offset:{n*1024}{pol(sK)} lds"
def dmaV(n): return f"buffer_load_dwordx4 v{vVD+n}, s[{sV}:{sV+3}], s{sVoff} offen offset:{n*1024}{ntf() if not opt('vdef', 0) else ''} lds"
def kread(f, off, ktoff=4096, aK=aK):
    kt, s = f >> 2, f & 3
    return f"ds_read_b128 {r('a', aK+4*f)}, v{vKR+s} offset:{off + kt*ktoff}"
def vread(d, second, off, soff=4096):
    return f"ds_read_b64_tr_b16 {r('a', aV+4*d+2*second, 2)}, v{vVR+d} offset:{off + second*soff}"
def qk(p, q, kt, s, czero=False, aK=aK):
    b = S(p, q, kt)
    c = r("v", b) if s else ("0" if czero else r("v", vNM + 4 * q))
    return f"{MF} {r('v', b)}, {r('a', aK+4*(kt*4+s))}, {r('a', aQ+16*q+4*s)}, {c}"
def pv(p, q, d): return f"{MF} {O(q,d)}, {r('a', aV+4*d)}, {r('v', S(p,q,0))}, {O(q,d)}"
def sm(p, q): return f"{MF} {r('a', aL+4*q)}, {r('a', aONE)}, {r('v', S(p,q,0))}, {r('a', aL+4*q)}"
def softmax_ops(p, nq):
    ex, cv = [], []
    for kt in range(2):
        for q in range(nq):
            b = S(p, q, kt)
            for j in range(4): ex.append(f"v_exp_f32 v{b+j}, v{b+j}")
            for j in range(2):
                pre = [f"v_add_f32 v{vLV[q]}, v{vLV[q]}, v{b+2*j+i}" for i in range(2)] if valu_sum(nq, q) else []
                cv.append(pre + [f"v_cvt_pk_bf16_f32 v{S(p,q,0)+2*kt+j}, v{b+2*j}, v{b+2*j+1}"])
    return ex, cv

PRE = [(0, 4), (1, 5)]
PLAN = {28: ([0, 1], [(2, 9), (3, 4), (4, 5)]),
        29: ([2, 3], [(5, 6), (6, 0), (7, 9), (8, 4)]),
        30: ([4, 5], [(9, 7), (10, 1), (11, 5), (12, 6)]),
        31: ([], [(13, 8), (14, 2)])}
PIECE = dict(PRE)
for _b in PLAN.values(): PIECE.update(dict(_b[1]))
VBANK = [20, 48, 64, 80, 96, 112]
def bank_of(n):
    if n < 16: return "a", ((n + 10) % 16) * 16
    if n < 22: return "v", VBANK[n - 16]
    return bank_of(n - 22)
def wo_issue(n, piece):
    out = [("s", f"s_add_u32 s{sT0}, s{sR}, {n}"), ("s", f"s_and_b32 s{sT0}, s{sT0}, 31"),
           ("s", f"s_mul_i32 s{sT0}, s{sT0}, {WSTEP}"), ("s", f"s_add_u32 m0, s{sVW}, {piece*16384}")]
    out += [("M", f"buffer_load_dwordx4 v{vWO+i}, s[{sWO}:{sWO+3}], s{sT0} offen offset:{i*1024} lds") for i in range(4)]
    return out
def wo_reads(n, piece):
    rf, bank = bank_of(n)
    return [f"ds_read_b64_tr_b16 {r(rf, bank+4*t+2*h, 2)}, v{vAR[piece >> 2]+t} offset:{(piece & 3)*16384 + h*2048}" for t in range(4) for h in range(2)]
def flat(a, items):
    prev = None
    for it in items:
        k, t = it[0], it[1]
        if k == "M" and prev and "m0" in prev: a("s_nop 0")
        a(t); prev = t

class Body:
    def __init__(self):
        self.mf = []; self.big = {}; self.pre = {}; self.cv = {}; self.lastcv = 0; self.lag = 4
    def add(self, text, need=None): self.mf.append((text, need))
    def place_big(self, kind, text, target, tag=None, hi=None, req=None):
        n = len(self.mf)
        target = min(target, n - 1)
        hi = min(n - 1, target + 3 if hi is None else max(hi, target))
        g = target
        while g in self.big and g < hi: g += 1
        if g in self.big: g = min(range(target, hi + 1), key=lambda x: len(self.big[x]))
        self.big.setdefault(g, []).append((kind, text, tag, req))
        return g
    def place_d(self, text, lo, tag, cap, req=None):
        g = lo
        while True:
            kinds = [x[0] for x in self.big.get(g, [])]
            if all(k == "D" for k in kinds) and len(kinds) < cap: break
            g += 1
        assert g < len(self.mf)
        self.big.setdefault(g, []).append(("D", text, tag, req))
        return g
    def place_cvt(self, texts, lo, hi):
        for t in texts: g = self.place_cvt1(t, lo, hi)
        return g
    def place_cvt1(self, text, lo, hi):
        n = len(self.mf); best = None
        lo0 = lo
        lo = max(lo, self.lastcv)
        for g in range(lo, min(hi, lo0 + self.lag, n - 1) + 1):
            kinds = [x[0] for x in self.big.get(g, [])]
            cnt = len(self.cv.get(g, []))
            if (kinds == ["D"] and cnt == 0) or (kinds == [] and cnt < 2): best = g; break
        if best is None: best = min(lo, n - 1)
        self.cv.setdefault(best, []).append(text)
        self.lastcv = best
        return best
    def place_s(self, text, lo, hi=None):
        n = len(self.mf)
        hi = lo if hi is None else hi
        for g in range(lo, min(hi, n - 1) + 1):
            kinds = [x[0] for x in self.big.get(g, [])]
            if not self.pre.get(g) and (kinds == ["E"] or kinds == [] or (kinds == ["D"] and not self.cv.get(g))):
                self.pre.setdefault(g, []).append(text); return g
        self.pre.setdefault(lo, []).append(text); return lo
    def spread(self, it, start, span, req=None):
        nm = sum(1 for x in it if x[0] == "M")
        i = 0; pend = []; lastg = start
        for k, t, tag in it:
            if k != "M": pend.append(t); continue
            g = self.place_big("M", t, max(start + 2 + int(i * span / nm), lastg + 1 + (len(pend) + 1) // 2), tag, req=req if i == 0 else None)
            for j, pt in enumerate(pend):
                self.pre.setdefault(max(lastg + 1, g - (len(pend) - j + 1) // 2), []).append(pt)
            pend = []; lastg = g; i += 1
        return lastg
    def emit(self, a, resident=(), vm=None, vmdone=None):
        total = {}
        for items in self.big.values():
            for k, t, tag, req in items:
                if k in "DM": total[(k, tag)] = total.get((k, tag), 0) + 1
        st = dict(q=[], issued={})
        done = set(resident)
        vmdone = vmdone if vmdone is not None else set()
        def wait(tags):
            lds = [t for t in tags if t[0] != "vm" and t not in done]
            vms = [t[1] for t in tags if t[0] == "vm" and t[1] not in vmdone]
            parts = []
            if vms:
                for t in vms: assert st["issued"].get(("M", t), 0) == total.get(("M", t), 0) and t in vm, ("vm not issued", t)
                N = min(vm[::-1].index(t) for t in vms)
                N = min(N, 60)
                parts.append(f"vmcnt({N})")
                for t in vm[:len(vm) - N]: vmdone.add(t)
                for t in vm[len(vm) - N:]: vmdone.discard(t)
            if lds:
                q = st["q"]
                for t in lds: assert st["issued"].get(("D", t), 0) == total[("D", t)] and t in q, ("lds not issued", t)
                N = min(min(q[::-1].index(t) for t in lds), 10)
                parts.append(f"lgkmcnt({N})")
                for t in q[:len(q) - N]: done.add(t)
                st["q"] = q[len(q) - N:]
                for t in st["q"]: done.discard(t)
            if parts: a("s_waitcnt " + " ".join(parts))
        n = len(self.mf)
        if self.mf[0][1]: wait(self.mf[0][1])
        for g in range(n):
            a(self.mf[g][0])
            late = None
            nxt = self.mf[g + 1][1] if g + 1 < n else None
            if nxt: wait(nxt)
            for t in self.pre.get(g, []): a(t)
            for kind, text, tag, req in self.big.get(g, []):
                if req: wait(req)
                if kind == "B":
                    nv = vm[::-1].index(tag)
                    a(f"s_waitcnt vmcnt({nv}) lgkmcnt(0)")
                    for t in st["q"]: done.add(t)
                    st["q"] = []
                if not (kind in opt("drop", "") and getattr(self, "loop", False)): a(text)
                if kind in "DM": st["issued"][(kind, tag)] = st["issued"].get((kind, tag), 0) + 1
                if kind == "M" and vm is not None: vm.append(tag); vmdone.discard(tag)
                if kind == "D": st["q"].append(tag); done.discard(tag)
            for t in self.cv.get(g, []): a(t)

def estimate(lines):
    tot = 0; t = None; over = 0
    for l in lines + ["v_mfma"]:
        l = l.strip()
        if l.startswith("v_mfma"):
            if t is not None: tot += max(16, t); over += t > 16
            t = 4; lastv = False
        elif l.startswith("ds_"): t += 8 + (4 if lastv else 0)
        elif l.startswith("buffer_"): t += 12
        elif l.startswith("v_"): t = max(t, 8) + (8 if l.startswith("v_exp") else 4); lastv = True
        elif l.endswith(":"): pass
        else: t += 4
    return tot, over

def merge(a, V, M):
    pos = {}; n = [0]
    def ready(it): return all(d in pos and n[0] - pos[d] - 1 >= dist for d, dist in it[2])
    def put(it):
        a(it[1]); n[0] += len(it[1].split("\n")); pos[it[0]] = n[0] - 1
    vi = mi = 0
    while vi < len(V) or mi < len(M):
        did = False
        if mi < len(M) and ready(M[mi]): put(M[mi]); mi += 1; did = True
        cost = 0
        while vi < len(V) and cost < 2 and ready(V[vi]):
            cost += 2 if V[vi][1].startswith(("v_exp", "ds_", "buffer_")) else 1
            put(V[vi]); vi += 1; did = True
        if not did: a("s_nop 0"); n[0] += 1

NTAIL = {4: 26, 3: 20}
VMDONE = set()

def gen_body(a, nq, u, L, last=False, loopctl=None, idx=None, vm=None):
    B = Body()
    B.loop = idx is None
    if nq == 4 and NV and not last: B.lag = LAG
    vo, ko = vslot(u) * 16384, kslot(u + 1) * 16384
    def g_qk(p, kts, gen):
        for kt in kts:
            if CHAIN:
                for q in range(nq):
                    for s in range(4): B.add(qk(p, q, kt, s), ([("K", kt * 4 + x, gen) for x in range(4)] if s == 0 else None) if q == 0 else None)
            else:
                for s in range(4):
                    for q in range(nq): B.add(qk(p, q, kt, s), [("K", kt * 4 + s, gen)] if q == 0 else None)
    def g_pv(p, gen):
        for d in range(8):
            qs = list(range(nq)) if (d % 2 == 0 or not SNAKE) else list(range(nq - 1, -1, -1))
            for i, q in enumerate(qs): B.add(pv(p, q, d), [("V", d, gen)] if i == 0 else None)
        for q in range(nq):
            if not valu_sum(nq, q): B.add(sm(p, q))
    g_qk(1, [1], 0); P0 = len(B.mf)
    g_pv(0, 0); Q1 = len(B.mf)
    if not last: g_qk(0, [0, 1], 1)
    P1 = len(B.mf)
    g_pv(1, 1)
    if not last: g_qk(1, [0], 2)
    n = len(B.mf)
    resident = [("K", f, 0) for f in range(4, 8)]
    sc = nq / 4.0
    for d in range(8):
        for h in range(2): B.place_big("D", vread(d, h, vo), int((4 * d + 2 * h) * sc), ("V", d, 0))
    ex0, cv0 = softmax_ops(0, nq); ex1, cv1 = softmax_ops(1, nq)
    ne = len(ex0)
    win = P1 - P0
    full = nq * 17 - (NV if nq == 4 else 0)
    ntail = NTAIL[nq]
    if not last:
        for f in range(8): B.place_big("D", kread(f, ko), Q1 - int((22 if CHAIN else 20) * sc) + int(4 * f * sc), ("K", f, 1))
    for d in range(8):
        for h in range(2):
            lo = max(P1 - int(20 * sc) + int((4 * d + 2 * h) * sc), P0 + nq * d + nq)
            B.place_big("D", vread(d, h, vo + 8192), lo, ("V", d, 1))
    if not last:
        for f in range(8): B.place_big("D", kread(f, ko + 8192), P1 + int(12 * sc) + int(4 * f * sc), ("K", f, 2))
        mVe = 0
        if DMA3:
            if nq == 3 and (idx is None or idx == 28):
                def stream(so, srd, vd, ldsoff, tag):
                    it = [("s", f"s_add_u32 s{so}, s{so}, 16384", None), ("s", f"s_and_b32 s{so}, s{so}, 0x7ffff", None)]
                    for c in range(4):
                        it += [("s", f"s_add_u32 s4, s{so}, {c*4096}", None), ("s", f"s_mov_b32 m0, {ldsoff + c*4096}", None)]
                        it += [("M", f"buffer_load_dwordx4 v{vd+i}, s[{srd}:{srd+3}], s4 offen offset:{i*1024}{pol2(srd, c, i)} lds", tag) for i in range(4)]
                    return it
                it = stream(sVoff, sV, vVD, VBASE + vslot(u + 3) * 16384, ("V", 31))
                if idx is None: it += stream(sKoff, sK, vKD, KBASE + kslot(u + 4) * 16384, None)
                mVe = B.spread(it, 0, n - 12 if idx is None else 40)
                assert mVe < n - 8
        else:
            if idx is None or idx == 28:
                g0 = Q1 - int(18 * sc) if idx is None else 3
                gs = [B.place_big("M", dmaV(i), g0 + int((8 if idx is None else 4) * i * sc), ("V", 31)) for i in range(4)]
                mV, mVe = gs[0], gs[-1]
            if idx is None:
                g0 = P1 + int(14 * sc)
                gs = [B.place_big("M", dmaK(i), g0 + int(8 * i * sc)) for i in range(4)]
                mK, mKe = gs[0], gs[-1]
    if idx is not None:
        rd, iss = PLAN[idx]
        g = int(30 * sc)
        for j in rd:
            for i, t in enumerate(wo_reads(j, PIECE[j])):
                g = B.place_big("D", t, g, ("W", j), req=[("vm", ("w", j))] if i == 0 else None) + 2
        g = mVe + 1 if idx == 28 else 0
        span = ((n - 6 - g) // len(iss)) if not last else int(16 * sc)
        for j, pc in iss:
            src = [x for x in rd if PIECE[x] == pc]
            if src: g = max(g, int(74 * sc))
            it = [(k, t, ("w", j)) for k, t in wo_issue(j, pc)]
            g = B.spread(it, g, min(span, int(24 * sc)), req=[("W", src[0])] if src else None) + 1
            assert g < n
        for k, (bi, gp) in enumerate(W6):
            if bi == idx:
                g = int(gp * sc)
                B.place_big("M", f"buffer_load_dword v{PFD}, v{PFA}, s[{sWO}:{sWO+3}], s{sPFW+k} offen", g, ("pfw", k))
    eg0, eg1, egt = {}, {}, {}
    nh = ne - ntail
    for i in range(ntail, ne):
        eg0[i] = B.place_big("E", ex0[i], max(1 + int((i - ntail) * (P0 - 4) / max(nh, 1)), eg0.get(i - 1, 0)))
    for i in range(ne):
        t = P0 + 1 + int(i * (win - 5) / ne)
        if i >= ne // 2: t = max(t, P0 + 5)
        eg1[i] = B.place_big("E", ex1[i], max(t, eg1.get(i - 1, 0)), hi=min(t + 3, P1 - 4))
    if not last:
        for i in range(ntail):
            t = P1 + 1 + int(i * (full - 5) / ne)
            egt[i] = B.place_big("E", ex0[i], max(t, egt.get(i - 1, 0)), hi=min(t + 3, n - 2))
    for j in range(ntail // 2, ne // 2):
        q = (j // 2) % nq
        g = B.place_cvt(cv0[j], eg0[2 * j + 1] + 1, P0 + q - 2)
        assert g <= P0 + q - 2
    for j in range(ne // 2):
        q = (j // 2) % nq
        g = B.place_cvt(cv1[j], eg1[2 * j + 1] + 1, P1 + q - 3)
        assert g <= P1 + q - 3, (j, g, P1)
    assert eg1[ne // 2] >= P0 + 5
    if not last:
        for j in range(ntail // 2): B.place_cvt(cv0[j], egt[2 * j + 1] + 1, n - 1)
        assert min(egt.values()) >= Q1 + 4 * nq + 5
        if ntail > ne // 2: assert egt[ne // 2] >= P1 + 5
        if DMA3: pass
        elif idx is None:
            B.place_s(f"s_add_u32 m0, s{sVW}, {VBASE + vslot(u+3)*16384}", mV - 4, mV - 1)
            g = B.place_s(f"s_add_u32 s{sVoff}, s{sVoff}, 16384", mV - 12, mV - 6)
            B.place_s(f"s_and_b32 s{sVoff}, s{sVoff}, 0x7ffff", g + 1, mV - 1)
            B.place_s(f"s_add_u32 m0, s{sKW}, {kslot(u+4)*16384}", mK - 4, mK - 1)
            g = B.place_s(f"s_add_u32 s{sKoff}, s{sKoff}, 16384", mK - 12, mK - 6)
            B.place_s(f"s_and_b32 s{sKoff}, s{sKoff}, 0x7ffff", g + 1, mK - 1)
        elif idx == 28:
            B.pre.setdefault(0, []).extend([f"s_add_u32 s{sVoff}, s{sVoff}, 16384", f"s_and_b32 s{sVoff}, s{sVoff}, 0x7ffff"])
            B.pre.setdefault(1, []).append(f"s_add_u32 m0, s{sVW}, {VBASE + vslot(u+3)*16384}")
        if loopctl:
            B.place_s(loopctl[0], n - 8, n - 5)
            B.place_s(loopctl[1], n - 4, n - 2)
    t = Asm()
    B.emit(t, resident, vm=vm, vmdone=VMDONE if vm is not None else None)
    a.l += t.l
    if opt("est", 0): sys.stderr.write(f"body {L} u={u} idx={idx}: mfma {n} est {estimate(t.l)}\n")
    if idx is not None and not last:
        need = [("V", idx + 1)] + ([("K", idx + 2)] if idx + 2 < 32 else [])
        N = min(min(vm[::-1].index(t) if t in vm else 60 for t in need), 60)
        if STAMP == 2: a("s_memtime s[100:101]")
        a(f"s_waitcnt vmcnt({N}) lgkmcnt(0)")
        for t in vm[:len(vm) - N]: VMDONE.add(t)
        for t in vm[len(vm) - N:]: VMDONE.discard(t)
        a("s_barrier")
        if STAMP == 2: rec(a)
    elif last:
        if STAMP == 2: a("s_memtime s[100:101]\ns_waitcnt lgkmcnt(0)"); rec(a)
    else:
        if STAMP == 2: a("s_memtime s[100:101]")
        for _ in range(opt("idle", 0)): a("s_nop 15")
        a(f"s_waitcnt vmcnt({16 if not DMA3 else 60 if nq == 3 else 8 if u == 0 else 0}) lgkmcnt(0)")
        if not opt("nobar", 0): a("s_barrier")
        if STAMP == 2: rec(a)

def kv_voffsets(a, wave):
    if wave:
        a("v_lshlrev_b32 v8, 12, v1")
        a("v_lshl_add_u32 v8, v4, 8, v8")
    else:
        a("v_lshlrev_b32 v8, 8, v4")
    a("v_xor_b32 v9, v5, v4")
    for n in range(4):
        a(f"v_xor_b32 v10, {4*n}, v9")
        a(f"v_lshl_add_u32 v{vKD+n}, v10, 4, v8")
    a("v_lshlrev_b32 v9, 1, v4")
    a("v_xor_b32 v9, v9, v5")
    for p in range(2):
        a(f"v_xor_b32 v10, {8*p}, v9")
        a(f"v_lshl_add_u32 v{vVD+p}, v10, 4, v8")
        a(f"v_mov_b32 v{vVD+p+2}, v{vVD+p}")
def kv_srds(a):
    a(f"""s_lshl_b32 s{sT0}, s{sB}, 5
s_add_u32 s{sT0}, s{sT0}, s{sH}
s_lshl_b32 s{sT0}, s{sT0}, 19
s_add_u32 s{sK}, s{pK}, s{sT0}
s_addc_u32 s{sK+1}, s{pK+1}, 0
s_mov_b32 s{sK+2}, 524288
s_mov_b32 s{sK+3}, 0x20000
s_add_u32 s{sV}, s{pV}, s{sT0}
s_addc_u32 s{sV+1}, s{pV+1}, 0
s_mov_b32 s{sV+2}, 524288
s_mov_b32 s{sV+3}, 0x20000""")
def ar_setup(a):
    a("v_lshrrev_b32 v12, 2, v3\nv_lshlrev_b32 v12, 7, v12\nv_and_b32 v15, 3, v3\nv_lshl_add_u32 v12, v15, 3, v12")
    a(f"v_add_u32 v12, s{sVW}, v12\nv_bfe_u32 v15, v3, 3, 2")
    for t in range(4):
        a(f"v_xor_b32 v{vAR[0]+t}, {t}, v15")
        a(f"v_lshl_add_u32 v{vAR[0]+t}, v{vAR[0]+t}, 5, v12")
        a(f"v_add_u32 v{vAR[1]+t}, 0x10000, v{vAR[0]+t}")
        a(f"v_add_u32 v{vAR[2]+t}, 0x20000, v{vAR[0]+t}")

def xlane(a, regs, op2, tmp=1):
    for op in ("v_permlane32_swap_b32", "v_permlane16_swap_b32"):
        for m in regs: a(f"v_mov_b32 v{m+tmp}, v{m}")
        a("s_nop 1")
        for m in regs: a(f"{op} v{m}, v{m+tmp}")
        a("s_nop 1")
        for m in regs: a(f"{op2} v{m}, v{m}, v{m+tmp}")

def qstage(st, nx):
    buf = QBUF[(st + 1) % 3]
    out = [("s", f"s_lshl_b32 s{sT0}, s{sQS}, 7"), ("s", f"s_lshl_b32 s{sT1}, s{sQS}, 19"), ("s", f"s_add_u32 s{sQS}, s{sQS}, 1"),
           ("s", f"s_cmp_eq_u32 s{sQS}, 10"), ("s", f"s_cselect_b32 s{sQS}, 0, s{sQS}"), ("s", f"s_add_u32 m0, s{sXW}, {buf+XOFF}")]
    for n in range(nx):
        if n == 4: out.append(("s", f"s_add_u32 m0, s{sXW}, {buf+XOFF+4096}"))
        out.append(("M", f"buffer_load_dwordx4 v{vXD+n}, s[{sX}:{sX+3}], s{sT0} offen offset:{(n&3)*1024} lds"))
    out.append(("s", f"s_add_u32 m0, s{sWW}, {buf+WOFF}"))
    for n in range(4):
        out.append(("M", f"buffer_load_dwordx4 v{vWD+n}, s[{sW}:{sW+3}], s{sT1} offen offset:{n*1024 + 8*(n>>1)} lds"))
    return [(k, t, ("q", st)) for k, t in out]

def gen_wave(a, nq, L):
    nx = 2 * nq
    def qstage_issue(st): return qstage(st, nx)
    def kv_issue(kind, t):
        so, sw, off, f = (sKoff, sKW, kslot(t) * 16384, dmaK) if kind == "K" else (sVoff, sVW, VBASE + vslot(t) * 16384, dmaV)
        out = [("s", f"s_add_u32 s{so}, s{sROT}, {t*16384}"), ("s", f"s_and_b32 s{so}, s{so}, 0x7ffff"), ("s", f"s_add_u32 m0, s{sw}, {off}")]
        out += [("M", f(n)) for n in range(4)]
        return [(k, x, (kind, t)) for k, x in out]
    vm = []
    def now(it):
        flat(a, it)
        for x in it:
            if x[0] == "M": vm.append(x[2])
    def vmwait(tag): return vm[::-1].index(tag)
    vm += [("q", 0)] * (nx + 4) + [("q", 1)] * 4
    s1 = qstage_issue(1)[5:-5]
    def qreads(st, sp):
        out = [(f"ds_read_b128 {r('a', aQB[sp]+4*q)}, v{vXR+sp} offset:{XOFF + q*2048}", ("B", st, sp)) for q in range(nq)]
        for t in range(8):
            s, odd = t >> 1, t & 1
            for h in range(2):
                out.append((f"ds_read_b64_tr_b16 {r('a', aQA[sp]+4*t+2*h, 2)}, v{vWR+s} offset:{WOFF + odd*8 + h*1024 + sp*8224}", ("A", st, sp, t)))
        return out
    def rot(st):
        d = QBUF[(st + 2) % 3] - QBUF[(st + 1) % 3]
        return [f"v_add_u32 v{vXR+i}, {d}, v{vXR+i}" if d > 0 else f"v_subrev_u32 v{vXR+i}, {-d}, v{vXR+i}" for i in range(6)]
    stamp(a, True)
    a(f"s_waitcnt vmcnt({vmwait(('q', 0))})")
    stamp(a, True)
    a("s_barrier")
    stamp(a); stamp(a, True)
    B = Body()
    PH = 8 * nq
    for st in range(10):
        for sp in range(2 if st < 9 else 1):
            for t in range(8):
                for q in range(nq):
                    c = "0" if (st == 0 and sp == 0) else O(q, t)
                    B.add(f"{MF} {O(q,t)}, {r('a', aQA[sp]+4*t)}, {r('a', aQB[sp]+4*q)}, {c}",
                          ([("A", st, sp, t)] + ([("B", st, sp)] if t == 0 else [])) if q == 0 else None)
    first = qreads(0, 0)
    for t, _ in first: a(t)
    now(s1); s1 = []
    a("s_waitcnt lgkmcnt(0)")
    stamp(a, True)
    LQ = int(QLEAD * nq / 4)
    now(s1)
    g = B.spread(qstage_issue(2), -1, 2 * PH - LQ - 6)
    assert g < 2 * PH - LQ
    for st in range(9):
        bar = 2 * PH * (st + 1) - LQ
        B.place_big("B", "s_barrier", bar, ("q", st + 1), hi=bar)
        for i, t in enumerate(rot(st)): B.cv.setdefault(bar - 3 + i // 2, []).append(t)
        if st + 3 < 10: it = qstage_issue(st + 3)
        elif st == 7: it = kv_issue("K", 1) + kv_issue("K", 2)
        else: it = kv_issue("V", 0) + kv_issue("V", 1)
        if st == K0AT: it = it + kv_issue("K", 0)
        if 0 <= st - PF0 < len(PF):
            t = PF[st - PF0]
            it = it + [("s", f"s_add_u32 s4, s{sROT}, {t*16384}", None), ("s", "s_and_b32 s4, s4, 0x7ffff", None),
                       ("M", f"buffer_load_dword v12, v11, s[{sPF}:{sPF+3}], s4 offen", ("pf", t))]
        g = B.spread(it, bar, 2 * PH - 5 if st < 8 else PH + LQ - 6)
        assert g < bar + 2 * PH
    for st in range(10):
        base = 2 * PH * st
        g = base - LQ + 1
        if st > 0:
            for t, tag in qreads(st, 0): g = B.place_d(t, g, tag, 5 - nq)
        g = max(g, 0)
        rd = qreads(st, 1)
        order = rd[nq:nq + 4] + rd[:nq] + rd[nq + 4:] if st > 0 else rd
        for t, tag in order:
            lo = base if tag[0] == "B" else base - PH + nq * tag[3] + nq
            g = B.place_d(t, max(g, lo), tag, 5 - nq)
        if st < 9: assert g < base + 2 * PH - LQ - 3, (st, g)
    aK0 = 180
    g = 2 * PH * 8
    for f in range(8): g = B.place_d(kread(f, kslot(0) * 16384, aK=aK0), g, ("K0", f), 5 - nq) + 1
    c = Asm()
    c("v_lshlrev_b32 v8, 1, v4\nv_xor_b32 v8, v8, v7\nv_mul_u32_u24 v9, 1280, v6\nv_lshl_add_u32 v8, v8, 4, v9")
    for n in range(4): c(f"v_add_u32 v{vWO+n}, {n*8*1280 - n*1024}, v8")
    ar_setup(c)
    c(f"v_mul_u32_u24 v{PFA}, 1280, v3")
    for i in range(16): c(f"v_accvgpr_write_b32 a{aL+i}, 0")
    g = 2 * PH * 9 - LQ + 2
    for t in c.l:
        while any(x[0] == "M" for x in B.big.get(g, [])): g += 1
        B.cv.setdefault(g, []).append(t.strip()); g += 1
        if g >= len(B.mf): g = len(B.mf) - 1
    sc_ = [f"s_mov_b32 s{sQS}, s5", "s_lshr_b32 s4, s2, 3", "s_mul_i32 s4, s4, 52", "s_lshr_b32 s4, s4, 8", f"s_lshl_b32 s{sT0}, s4, 1", f"s_add_u32 s{sT0}, s{sT0}, s{sR}"]
    for k in range(2):
        sc_ += [f"s_add_u32 s{sPFW+k}, s{sT0}, {14 + 12*k}", f"s_and_b32 s{sPFW+k}, s{sPFW+k}, 31", f"s_mul_i32 s{sPFW+k}, s{sPFW+k}, {WSTEP}"]
    sc_ += [f"s_cmp_ge_u32 s4, 3\ns_cselect_b32 s{sPFW+1}, 0x7f000000, s{sPFW+1}", f"s_mul_i32 s{sT0}, s2, 20480",
            f"s_add_u32 s{sX}, s{pWO}, s{sT0}\ns_addc_u32 s{sX+1}, s{pWO+1}, 0", f"s_mov_b32 s{sX+2}, 20480", f"s_mov_b32 s{sT1}, {CSCALE:#x}"]
    for i, t in enumerate(sc_): B.pre.setdefault(2 * PH * 9 + i, []).append(t)
    B.emit(a, resident=[tag for _, tag in first], vm=vm)
    stamp(a)
    a("s_waitcnt lgkmcnt(0)")
    V, M = [], []
    def vadd(t, deps=(), id=None): V.append((id if id is not None else ("v", len(V)), t, list(deps)))
    def vissue(it):
        prev = ""
        for k, t, tag in it:
            vadd(("s_nop 0\n" if (k == "M" and "m0" in prev) else "") + t); prev = t
            if k == "M": vm.append(tag)
    for q in range(nq):
        for t in range(8): M.append((("lq", q, t), f"{MF} {O(q,t)}, {r('a', aQA[1]+4*t)}, {r('a', aQB[1]+4*q)}, {O(q,t)}", []))
    def conv(q):
        for s in range(4):
            b = vO + (q * 8 + 2 * s) * 4
            for j in range(8): vadd(f"v_mul_f32 v{b+j}, s{sT1}, v{b+j}", [(("lq", q, 2 * s + (j >> 2)), 8)])
            for j in range(4): vadd(f"v_cvt_pk_bf16_f32 v{b+j}, v{b+2*j}, v{b+2*j+1}")
            for j in range(4): vadd(f"v_accvgpr_write_b32 a{aQ+16*q+4*s+j}, v{b+j}", id=("Q", q, s) if j == 3 else None)
        for kt in range(2):
            for s in range(4): M.append((("qk0", q, kt, s), qk(0, q, kt, s, czero=True, aK=aK0), [(("Q", q, 3), 2)]))
        for h in range(2):
            z = r("v", vO + q * 32 + 16 * h, 16)
            M.append((("z", q, h), f"v_mfma_f32_32x32x16_bf16 {z}, {r('a', aL)}, {r('a', aL)}, 0", [(("Q", q, 3), 0)]))
    def stats(qs):
        for q in qs:
            b = S(0, q, 0); m = vNM + 4 * q
            vadd(f"v_max3_f32 v{m}, v{b}, v{b+1}, v{b+2}", [(("qk0", q, 1, 3), 8)])
            vadd(f"v_max3_f32 v{m+1}, v{b+3}, v{b+4}, v{b+5}")
            vadd(f"v_max3_f32 v{m}, v{m}, v{b+6}, v{b+7}")
            vadd(f"v_max_f32 v{m}, v{m}, v{m+1}")
        for op in ("v_permlane32_swap_b32", "v_permlane16_swap_b32"):
            for q in qs: vadd(f"v_mov_b32 v{vNM+4*q+1}, v{vNM+4*q}", id=("cp", op, q))
            for q in qs: vadd(f"{op} v{vNM+4*q}, v{vNM+4*q+1}", [(("cp", op, q), 2)], id=("sw", op, q))
            for q in qs: vadd(f"v_max_f32 v{vNM+4*q}, v{vNM+4*q}, v{vNM+4*q+1}", [(("sw", op, q), 2)])
        for q in qs:
            m = vNM + 4 * q; b = S(0, q, 0)
            vadd(f"v_sub_f32 v{m}, 0, v{m}")
            for j in range(1, 4): vadd(f"v_mov_b32 v{m+j}, v{m}", id=("nm", q) if j == 3 else None)
            for j in range(8): vadd(f"v_add_f32 v{b+j}, v{b+j}, v{m}")
    ex0, cv0 = softmax_ops(0, nq)
    ntail = NTAIL[nq]
    def exps(qs):
        for j in range(ntail // 2):
            if (j // 2) % nq in qs:
                vadd(ex0[2 * j]); vadd(ex0[2 * j + 1], id=("e", j))
        for j in range(ntail // 2):
            if (j // 2) % nq in qs:
                for t in cv0[j]: vadd(t, [(("e", j), 1)])
    def qk1(qs):
        for q in qs:
            for s in range(4): M.append((("qk1", q, s), qk(1, q, 0, s), [(("nm", q), 2), ("khi", 0)]))
    for f in range(8): vadd(kread(f, kslot(0) * 16384 + 8192))
    for q in range(nq):
        if valu_sum(nq, q): vadd(f"v_mov_b32 v{vLV[q]}, 0")
    conv(0); conv(1)
    vissue(kv_issue("K", 3))
    vadd("s_waitcnt lgkmcnt(0)", id="khi")
    conv(2)
    stats([0, 1])
    if nq == 4: conv(3)
    qk1([0, 1])
    if WARM:
        vadd("v_lshlrev_b32 v12, 7, v0")
        vadd(f"buffer_load_dword v12, v12, s[{sX}:{sX+3}], 0 offen"); vm.append(("warm", 0))
    vissue(kv_issue("V", 2))
    exps([0, 1])
    rest_q = list(range(2, nq))
    stats(rest_q); qk1(rest_q); exps(rest_q)
    merge(a, V, M)
    a(f"s_mov_b32 s{sCNT}, 7")
    if STAMP == 2: a("v_mov_b32 v13, 0\nv_mov_b32 v14, 0")
    if DMA3 and nq == 3:
        for i in range(8): a(f"v_subrev_u32 v{vKD+i}, 12288, v{vKD+i}")
    a(f"s_waitcnt vmcnt({vmwait(('V', 1 if (DMA3 and nq == 3) else 0))})")
    assert vmwait(("V", 1)) >= 8 and vmwait(("K", 2)) >= 8
    a("s_barrier")
    stamp(a)
    a(".p2align 6")
    a(f"L_loop{L}:")
    gen_body(a, nq, 0, L)
    gen_body(a, nq, 1, L)
    gen_body(a, nq, 2, L)
    gen_body(a, nq, 3, L, loopctl=(f"s_sub_u32 s{sCNT}, s{sCNT}, 1", f"s_cmp_gt_u32 s{sCNT}, 1"))
    a(f"s_cbranch_scc1 L_loop{L}")
    a(f"s_cmp_eq_u32 s{sCNT}, 0")
    a(f"s_cbranch_scc1 L_tail{L}")
    for j, pc in PRE: flat(a, wo_issue(j, pc))
    a(f"s_branch L_loop{L}")
    a(f"L_tail{L}:")
    c = 4 if not DMA3 else 16 if nq == 3 else 0
    vm = [("w", 0), ("w", 1), ("old", 0)] + [("V", 29)] * c + [("K", 30)] * c + [("V", 30)] * c + [("K", 31)] * c
    VMDONE.clear(); VMDONE.update([("w", 0), ("w", 1)])
    for i in (28, 29, 30): gen_body(a, nq, i % 4, L, idx=i, vm=vm)
    gen_body(a, nq, 3, L, last=True, idx=31, vm=vm)
    stamp(a)
    vq = [q for q in range(nq) if valu_sum(nq, q)]
    for q in vq: a(f"v_mov_b32 v{vNM+4*q}, v{vLV[q]}")
    if vq: xlane(a, [vNM + 4 * q for q in vq], "v_add_f32")
    else: a("s_nop 7")
    for q in range(nq):
        if q not in vq: a(f"v_accvgpr_read_b32 v{vNM+4*q}, a{aL+4*q}")
    a(f"s_mov_b32 s{sT0}, 0x5f800000")
    a("s_mov_b64 s[4:5], 0")
    for q in range(nq):
        a(f"v_cmp_ngt_f32 vcc, s{sT0}, v{vNM+4*q}")
        a("s_or_b64 s[4:5], s[4:5], vcc")
    if FORCE_SAFE: a(f"s_branch L_safe{L}")
    a(f"s_cbranch_scc1 L_safe{L}")
    a(f"L_epi{L}:")
    for q in range(nq): a(f"v_rcp_f32 v{vNM+4*q}, v{vNM+4*q}")
    a(f"s_waitcnt vmcnt({vm[::-1].index(('w', 12))})")
    rds = [t for j in range(6, 13) for t in wo_reads(j, PIECE[j])]
    per = -(-len(rds) // (4 * nq))
    for q in range(nq):
        for s in range(4):
            b = vO + (q * 8 + 2 * s) * 4
            for t in rds[:per]: a(t)
            rds = rds[per:]
            for j in range(8): a(f"v_mul_f32 v{b+j}, v{vNM+4*q}, v{b+j}")
            for j in range(4): a(f"v_cvt_pk_bf16_f32 v{b+j}, v{b+2*j}, v{b+2*j+1}")
            if s == 0:
                a(f"s_lshl_b32 s{sT0}, s{sWAVE}, 2\ns_add_u32 s{sT0}, s{sT0}, {q}\ns_mul_i32 s{sT1}, s{sT0}, 52\ns_lshr_b32 s{sT1}, s{sT1}, 8")
                a(f"s_mul_i32 s{sT1}, s{sT1}, {128*5120 - 5*1024}\ns_lshl_b32 s{sT0}, s{sT0}, 10\ns_add_u32 s{sT0}, s{sT0}, s{sT1}\ns_add_u32 s{sT0}, s{sT0}, s3")
            else:
                a(f"s_add_u32 s{sT0}, s{sT0}, 5120")
            a(f"buffer_store_dwordx4 {r('v', b)}, v2, s[{sWS}:{sWS+3}], s{sT0} offen{OST}")
    a("s_branch L_common")
    gen_safe(a, nq, L)

def gen_safe(a, nq, L):
    a(f"L_safe{L}:")
    a("s_waitcnt vmcnt(0) lgkmcnt(0)")
    for i in range(nq * 32): a(f"v_mov_b32 v{vO+i}, 0")
    for q in range(nq):
        a(f"v_mov_b32 v{vNM+4*q}, 0xff800000")
        a(f"v_mov_b32 v{vNM+4*q+3}, 0")
    kv_voffsets(a, False)
    kv_srds(a)
    a(f"s_add_u32 s{sKW}, s{sVW}, {SBASE}")
    a(f"s_sub_u32 s{sT0}, s{sKW}, {KBASE}")
    for i in range(4): a(f"v_add_u32 v{vKR+i}, s{sT0}, v{vKR+i}")
    for i in range(8): a(f"v_add_u32 v{vVR+i}, s{sKW}, v{vVR+i}")
    a(f"s_mov_b32 s{sKoff}, 0")
    a(f"L_sloop{L}:")
    def tile(vd, srd):
        for hh in range(2):
            a(f"s_add_u32 m0, s{sKW}, {hh*16384}")
            a(f"s_add_u32 s{sVoff}, s{sKoff}, {hh*4096}")
            for n in range(4): a(f"buffer_load_dwordx4 v{vd+n}, s[{srd}:{srd+3}], s{sVoff} offen offset:{n*1024} lds")
    tile(vKD, sK)
    a("s_waitcnt vmcnt(0)")
    for f in range(8): a(kread(f, 0, 16384))
    a("s_waitcnt lgkmcnt(0)")
    tile(vVD, sV)
    for kt in range(2):
        for s in range(4):
            for q in range(nq): a(qk(0, q, kt, s, czero=True))
    a("s_nop 7")
    T = vS + 32
    for q in range(nq):
        b = S(0, q, 0); m = T + 2 * q
        a(f"v_max3_f32 v{m}, v{b}, v{b+1}, v{b+2}")
        a(f"v_max3_f32 v{m+1}, v{b+3}, v{b+4}, v{b+5}")
        a(f"v_max3_f32 v{m}, v{m}, v{b+6}, v{b+7}")
        a(f"v_max3_f32 v{m}, v{m}, v{m+1}, v{vNM+4*q}")
    xlane(a, [T + 2 * q for q in range(nq)], "v_max_f32")
    for q in range(nq):
        m = vNM + 4 * q; b = S(0, q, 0)
        a(f"v_sub_f32 v{m+2}, v{m}, v{T+2*q}")
        a(f"v_exp_f32 v{m+2}, v{m+2}")
        a(f"v_mov_b32 v{m}, v{T+2*q}")
        for j in range(8): a(f"v_sub_f32 v{b+j}, v{b+j}, v{m}")
        for j in range(8): a(f"v_exp_f32 v{b+j}, v{b+j}")
        a(f"v_mul_f32 v{m+3}, v{m+3}, v{m+2}")
        for i in range(32): a(f"v_mul_f32 v{vO+q*32+i}, v{vO+q*32+i}, v{m+2}")
        for j in range(4): a(f"v_cvt_pk_bf16_f32 v{b+j}, v{b+2*j}, v{b+2*j+1}")
        for j in range(4):
            a(f"v_lshlrev_b32 v{b+4}, 16, v{b+j}")
            a(f"v_and_b32 v{b+5}, 0xffff0000, v{b+j}")
            a(f"v_add_f32 v{m+3}, v{m+3}, v{b+4}")
            a(f"v_add_f32 v{m+3}, v{m+3}, v{b+5}")
    a("s_waitcnt vmcnt(0)")
    for d in range(8):
        for h in range(2): a(vread(d, h, 0, 16384))
        if d == 3: a("s_waitcnt lgkmcnt(0)")
    a("s_waitcnt lgkmcnt(0)")
    for d in range(8):
        for q in range(nq): a(pv(0, q, d))
    a("s_nop 7")
    a(f"s_add_u32 s{sKoff}, s{sKoff}, 8192")
    a(f"s_cmp_lt_u32 s{sKoff}, 524288")
    a(f"s_cbranch_scc1 L_sloop{L}")
    xlane(a, [vNM + 4 * q + 3 for q in range(nq)], "v_add_f32", tmp=-2)
    for q in range(nq): a(f"v_mov_b32 v{vNM+4*q}, v{vNM+4*q+3}")
    ar_setup(a)
    a(f"v_mul_u32_u24 v{PFA}, 1280, v3")
    for j in (8, 11): flat(a, wo_issue(j, PIECE[j]))
    a("s_waitcnt vmcnt(0)")
    a(f"s_branch L_epi{L}")

def gen_common(a):
    a("L_common:")
    piece = dict(PIECE)
    vm = [("w", j) for j in range(15)] + [("st", 0)]
    def issue(n, p):
        piece[n] = p
        flat(a, wo_issue(n, p)); vm.extend([("w", n)] * 4)
    def vw(tag): return vm[::-1].index(tag)
    a("s_waitcnt lgkmcnt(0)")
    NPRE = opt("npre", 3)
    for i in range(NPRE): issue(15 + i, piece[6 + i])
    a(f"""s_lshl_b32 s{sT0}, s{sOB}, 2
s_add_u32 s{sT0}, s{sT0}, s{sWAVE}
s_mul_i32 s{sT0}, s{sT0}, {32*5120}
s_add_u32 s{sO}, s{pWS}, s{sT0}
s_addc_u32 s{sO+1}, s{pWS+1}, 0
s_mov_b32 s{sO+2}, {0 if opt("oskip", 0) else 32*5120}
s_mov_b32 s{sOUT}, s{pDBG}
s_mov_b32 s{sOUT+1}, s{pDBG+1}
s_mov_b32 s{sOUT+2}, 256
v_mov_b32 v12, 1
v_mov_b32 v15, 0
v_add_u32 v16, 4096, v2""")
    a(f"s_waitcnt vmcnt({vw(('st', 0))})")
    if opt("opf", 0):
        for half in range(2):
            a(f"v_lshrrev_b32 v17, 5, v3\nv_lshl_add_u32 v17, v1, 2, v17\nv_add_u32 v17, {2*half}, v17")
            a(f"v_mul_u32_u24 v18, 52, v17\nv_lshrrev_b32 v18, 8, v18\nv_mul_u32_u24 v18, {128*5120 - 5*1024}, v18\nv_lshl_add_u32 v18, v17, 10, v18")
            a(f"v_bfe_u32 v19, v3, 3, 2\nv_mul_u32_u24 v19, 5120, v19\nv_add_u32 v18, v18, v19\nv_lshl_add_u32 v18, v7, 7, v18")
            a(f"v_cmp_gt_u32 vcc, 15, v17\nv_mov_b32 v19, 0x7f000000\ns_nop 0\nv_cndmask_b32 v18, v19, v18, vcc")
            a(f"buffer_load_dword v{20+half}, v18, s[{sWS}:{sWS+3}], s3 offen sc1")
            vm.append(("opf", half))
    a("s_barrier")
    a(f"s_cmp_lg_u32 s{sWAVE}, 0")
    a("s_cbranch_scc1 L_nosig")
    a(f"s_lshl_b32 s{sT0}, s{sB}, 5")
    a("s_mov_b64 exec, 1")
    a(f"buffer_atomic_add v12, v15, s[{sOUT}:{sOUT+3}], s{sT0} offen sc1")
    a("s_mov_b64 exec, -1")
    a("L_nosig:")
    stamp(a)
    a("s_cmp_ge_u32 s2, 240")
    a("s_cbranch_scc1 L_exit")
    for j in (13, 14):
        for t in wo_reads(j, piece[j]): a(t)
    for i in range(NPRE, 7): issue(15 + i, piece[6 + i])
    a(f"s_mul_i32 s{sT1}, s{sOB}, 86\ns_lshr_b32 s{sT1}, s{sT1}, 8\ns_lshl_b32 s{sT1}, s{sT1}, 5")
    def poll():
        a(f"buffer_load_dword v12, v15, s[{sOUT}:{sOUT+3}], s{sT1} offen sc0 sc1")
        vm.append(("poll", 0))
    PA = opt("pollat", 5)
    issue(22, 3)
    pend = [13, 14]; nxt = 23
    for j in range(15, 22):
        a(f"s_waitcnt vmcnt({vw(('w', j))}) lgkmcnt(0)")
        for t in wo_reads(j, piece[j]): a(t)
        if j - 15 == PA: poll()
        for x in pend: issue(nxt, piece[x]); nxt += 1
        pend = [j]
    a("s_waitcnt lgkmcnt(0)")
    issue(nxt, piece[pend[0]])
    assert nxt == 31
    a(f"s_cmp_lg_u32 s{sWAVE}, 0")
    a("s_cbranch_scc1 L_go")
    a(f"s_waitcnt vmcnt({vw(('poll', 0))})")
    a(f"s_mov_b32 s{sCNT}, {SPIN}")
    a("L_poll:")
    a(f"v_readfirstlane_b32 s{sT0}, v12")
    a(f"s_sub_u32 s{sCNT}, s{sCNT}, 1")
    a(f"s_cbranch_scc1 L_go")
    a(f"s_cmp_ge_u32 s{sT0}, 32")
    a("s_cbranch_scc1 L_go")
    a(f"buffer_load_dword v12, v15, s[{sOUT}:{sOUT+3}], s{sT1} offen sc0 sc1")
    a("s_waitcnt vmcnt(0)")
    a("s_branch L_poll")
    a("L_go:")
    a("s_barrier")
    stamp(a)
    vAcc = 128
    ring = [208 + 4 * i for i in range(12)] + [36] + ([12] if STAMP < 2 else [])
    RD = len(ring)
    def o_pre(n): return [f"s_add_u32 s{sT1}, s{sR}, {n}", f"s_and_b32 s{sT1}, s{sT1}, 31", f"s_mul_i32 s{sT1}, s{sT1}, 5120"]
    def o_ld(i):
        n, qt = divmod(i, 5)
        return f"buffer_load_dwordx4 {r('v', ring[i % RD])}, v{2 if qt < 4 else 16}, s[{sO}:{sO+3}], s{sT1} offen offset:{(qt&3)*1024}{OLD}"
    for i in range(RD):
        if i % 5 == 0:
            for t in o_pre(i // 5): a(t)
        a(o_ld(i)); vm.append(("o", i))
    B = Body()
    for n in range(32):
        rf, bank = bank_of(n)
        for qt in range(5):
            for nt in range(4):
                acc = r("v", vAcc + (qt * 4 + nt) * 4)
                need = None
                if nt == 0: need = [("vm", ("o", 5 * n + qt))] + ([("W", n)] if (qt == 0 and n >= 22) else [])
                B.add(f"{MF} {acc}, {r(rf, bank+4*nt)}, {r('v', ring[(5*n+qt) % RD])}, {'0' if n == 0 else acc}", need)
    for i in range(160 - RD):
        j = i + RD
        if j % 5 == 0:
            for k, t in enumerate(o_pre(j // 5)): B.pre.setdefault(4 * i + k, []).append(t)
        B.place_big("M", o_ld(j), 4 * i + 3, ("o", j), hi=4 * i + 3)
    for n in range(10):
        j = n + 22
        g = 20 * (n + 1)
        for i, t in enumerate(wo_reads(j, piece[j])):
            g = B.place_d(t, g, ("W", j), 1, req=[("vm", ("w", j))] if i == 0 else None) + 1
    if STAMP == 4:
        a("v_mov_b32 v13, 0\nv_mov_b32 v14, 0\ns_memtime s[100:101]\ns_waitcnt lgkmcnt(0)"); rec(a)
        for n in range(32):
            B.cv.setdefault(20 * n + 1, []).append("s_memtime s[100:101]\ns_waitcnt lgkmcnt(0)\nv_cmp_eq_u32 vcc, v13, v3\nv_mov_b32 v15, s100\nv_add_u32 v13, 1, v13\nv_cndmask_b32 v14, v14, v15, vcc")
    B.emit(a, vm=vm)
    stamp(a)
    vB = 48
    a(f"s_mov_b32 s{sOUT}, s{pOUT}\ns_mov_b32 s{sOUT+1}, s{pOUT+1}\ns_mov_b32 s{sOUT+2}, {8*240*640*2}")
    a(f"s_mul_i32 s{sT0}, s{sWAVE}, 5120")
    a(f"v_add_u32 v8, s{sT0}, v2")
    a("v_add_u32 v9, 40960, v8")
    a("s_nop 4")
    a("s_barrier")
    for nt in range(4):
        a(f"s_cmp_eq_u32 s{sWAVE}, {nt}")
        a(f"s_cbranch_scc1 L_skipw{nt}")
        for qt in range(5): a(f"ds_write_b128 v{8 + (nt >> 1)}, {r('v', vAcc+(qt*4+nt)*4)} offset:{(nt&1)*20480 + qt*1024}")
        a(f"s_branch L_nextw{nt}")
        a(f"L_skipw{nt}:")
        for qt in range(5):
            for j in range(4): a(f"v_mov_b32 v{vB+qt*4+j}, v{vAcc+(qt*4+nt)*4+j}")
        a(f"L_nextw{nt}:")
    a(f"s_mul_i32 s{sT0}, s{sWAVE}, 20480")
    a(f"v_add_u32 v12, s{sT0}, v2")
    for i in range(1, 4):
        a(f"s_add_u32 s{sT1}, s{sWAVE}, {i}\ns_and_b32 s{sT1}, s{sT1}, 3\ns_mul_i32 s{sT1}, s{sT1}, 5120\nv_add_u32 v{16+i}, s{sT1}, v12")
    a(f"s_mul_i32 s{sT0}, s{sOB}, {80*1280}\ns_lshl_b32 s{sT1}, s{sQS}, 7\ns_add_u32 s{sT0}, s{sT0}, s{sT1}\ns_lshl_b32 s{sT1}, s{sWAVE}, 5\ns_add_u32 s{sT0}, s{sT0}, s{sT1}")
    a("v_mul_u32_u24 v10, 1280, v5\nv_lshl_add_u32 v10, v4, 3, v10")
    a("s_waitcnt lgkmcnt(0)")
    a("s_barrier")
    for qt in range(5):
        for i in range(1, 4): a(f"ds_read_b128 {r('v', vAcc+(qt*3+i-1)*4)}, v{16+i} offset:{qt*1024}")
    for qt in range(5):
        a(f"s_waitcnt lgkmcnt({12-3*qt})")
        b0 = vAcc + qt * 12
        for j in range(4): a(f"v_add_f32 v{vB+qt*4+j}, v{vB+qt*4+j}, v{b0+j}")
        for j in range(4): a(f"v_add_f32 v{b0+4+j}, v{b0+4+j}, v{b0+8+j}")
        for j in range(4): a(f"v_add_f32 v{vB+qt*4+j}, v{vB+qt*4+j}, v{b0+4+j}")
        for j in range(2): a(f"v_cvt_pk_bf16_f32 v{vB+qt*4+j}, v{vB+qt*4+2*j}, v{vB+qt*4+2*j+1}")
        a(f"buffer_store_dwordx2 {r('v', vB+qt*4, 2)}, v10, s[{sOUT}:{sOUT+3}], s{sT0} offen{FST}")
        if qt < 4: a(f"s_add_u32 s{sT0}, s{sT0}, {16*1280}")
    if STAMP:
        a("s_waitcnt vmcnt(0)")
        a("s_waitcnt lgkmcnt(0)")
        if STAMP >= 2:
            a(f"s_lshl_b32 s{sT0}, s2, 10\ns_add_u32 s{sT0}, s{sT0}, 0x80000\nv_lshlrev_b32 v15, 2, v0")
            a(f"buffer_store_dword v14, v15, s[{sST}:{sST+3}], s{sT0} offen")
        a("s_memtime s[76:77]\ns_memrealtime s[78:79]\ns_waitcnt lgkmcnt(0)")
        if opt("dbgout", 0):
            a(f"s_cmp_lg_u32 s2, 9\ns_cbranch_scc1 L_exit\ns_cmp_lg_u32 s{sWAVE}, 0\ns_cbranch_scc1 L_exit")
            a(f"s_mov_b32 s{sOUT}, s{pDBG}\ns_mov_b32 s{sOUT+1}, s{pDBG+1}\ns_mov_b32 s{sOUT+2}, 256")
            a("s_mov_b64 exec, 1\nv_mov_b32 v15, 0")
            words = [1, 2, 3, 4, 5, 6, 7, 9]
            for i in range(8):
                a(f"s_sub_u32 s4, s{sSTAMP+4*(i+1)+2}, s{sSTAMP+4*i+2}\nv_mov_b32 v12, s4")
                a(f"buffer_store_dword v12, v15, s[{sOUT}:{sOUT+3}], 0 offen offset:{4*words[i]}\ns_nop 1")
            a(f"s_sub_u32 s4, s78, s{sSTAMP+2}\nv_mov_b32 v12, s4\nbuffer_store_dword v12, v15, s[{sOUT}:{sOUT+3}], 0 offen offset:40")
            a(f"s_sub_u32 s4, s{sSTAMP+16}, s{sSTAMP+12}\nv_mov_b32 v13, s4\nbuffer_store_dword v13, v15, s[{sOUT}:{sOUT+3}], 0 offen offset:44")
        else:
            stamp_store(a, 18, sSTAMP, sST, 4)

TICKET = opt("ticket", 0)
def gen():
    a = Asm()
    a("s_cmp_ge_u32 s2, 256")
    a("s_cbranch_scc1 L_exit")
    a("s_getpc_b64 s[8:9]")
    a(f"s_load_dwordx16 s[{sARG}:{sARG+15}], s[0:1], 0")
    stamp(a)
    a("s_getreg_b32 s6, hwreg(HW_REG_XCC_ID, 0, 3)\ns_getreg_b32 s7, hwreg(HW_REG_HW_ID, 13, 2)\ns_getreg_b32 s4, hwreg(HW_REG_HW_ID, 8, 4)")
    a("s_mul_i32 s7, s7, 9\ns_add_u32 s7, s7, s4")
    a(f"s_mov_b32 s10, L_exit-{KN}-16\ns_mov_b32 s11, 0x20000\ns_mul_i32 s4, s7, 2304")
    a("v_lshrrev_b32 v11, 2, v0\nv_lshlrev_b32 v11, 7, v11")
    a(f"""v_lshrrev_b32 v1, 6, v0
v_and_b32 v3, 63, v0
v_lshrrev_b32 v4, 4, v3
v_readfirstlane_b32 s{sWAVE}, v1
v_and_b32 v5, 15, v3
v_lshlrev_b32 v2, 4, v3
v_lshrrev_b32 v6, 3, v3
v_and_b32 v7, 7, v3""")
    if TICKET:
        a(f"""s_mul_i32 s5, s7, 114
v_add_u32 v8, s5, v0
v_and_b32 v8, 4095, v8
v_lshrrev_b32 v9, 2, v8
v_mul_u32_u24 v9, 1280, v9
v_and_b32 v10, 3, v8
v_lshl_add_u32 v13, v10, 7, v9
v_lshrrev_b32 v9, 4, v8
v_lshlrev_b32 v9, 13, v9
v_and_b32 v10, 15, v8
v_lshl_add_u32 v14, v10, 7, v9
v_mov_b32 v15, 1
v_mov_b32 v16, 0
s_and_b32 s{sT0}, s6, 1
s_mul_i32 s{sT0}, s{sT0}, 1228800
s_lshr_b32 s{sT1}, s6, 1
s_lshl_b32 s{sT1}, s{sT1}, 11
s_mov_b32 s{sX+2}, 1228800
s_mov_b32 s{sX+3}, 0x20000
s_sub_u32 s{sW+2}, 5242880, s{sT1}
s_mov_b32 s{sW+3}, 0x20000
s_mov_b32 s{sWS+2}, 256
s_mov_b32 s{sWS+3}, 0x20000
s_lshl_b32 s5, s6, 5
s_cmp_lg_u32 s{sWAVE}, 0
s_waitcnt lgkmcnt(0)
s_mov_b32 s{sWS}, s{pDBG}
s_mov_b32 s{sWS+1}, s{pDBG+1}
s_cbranch_scc1 L_notk
s_mov_b64 exec, 1
buffer_atomic_add v15, v16, s[{sWS}:{sWS+3}], s5 offen offset:4 sc0 sc1
s_mov_b64 exec, -1
L_notk:
s_add_u32 s{sX}, s{pX}, s{sT0}
s_addc_u32 s{sX+1}, s{pX+1}, 0
s_add_u32 s{sW}, s{pWQ}, s{sT1}
s_addc_u32 s{sW+1}, s{pWQ+1}, 0""")
        if opt("qpf", 0):
            a(f"buffer_load_dword v12, v14, s[{sW}:{sW+3}], 0 offen")
            a(f"buffer_load_dword v12, v13, s[{sX}:{sX+3}], 0 offen")
    TOUCH = opt("touch", 0)
    if TOUCH == 1: a("buffer_load_dword v12, v11, s[8:11], s4 offen")
    if TOUCH == 2:
        a("v_lshlrev_b32 v11, 7, v0\ns_mov_b32 s4, 32768\ns_mov_b32 s5, 65536")
        a("buffer_load_dword v12, v11, s[8:11], 0 offen\nbuffer_load_dword v12, v11, s[8:11], s4 offen\nbuffer_load_dword v12, v11, s[8:11], s5 offen")
    stamp(a, True)
    a("v_lshl_add_u32 v8, v1, 6, v6\nv_mul_u32_u24 v8, 1280, v8\nv_xor_b32 v9, v7, v4")
    for n in range(8):
        a(f"v_xor_b32 v10, {4*(n&1)}, v9")
        a(f"v_lshl_add_u32 v10, v10, 4, v8")
        a(f"v_add_u32 v{vXD+n}, {n*8*1280 - (n&3)*1024}, v10")
    a("v_lshl_add_u32 v8, v1, 4, v4\nv_lshlrev_b32 v8, 13, v8\nv_lshlrev_b32 v9, 2, v4\nv_xor_b32 v9, v9, v5\nv_lshl_add_u32 v8, v9, 4, v8")
    for n in range(4): a(f"v_add_u32 v{vWD+n}, {n*4*8192 - n*1024 - 8*(n>>1)}, v8")
    a(f"""s_lshl_b32 s{sXW}, s{sWAVE}, 13
s_lshl_b32 s{sVW}, s{sWAVE}, 12
s_add_u32 s{sKW}, s{sVW}, {KBASE}
s_mul_i32 s{sWW}, s{sWAVE}, 4112""")
    def rest_v(a):
        kv_voffsets(a, True)
        a("v_lshrrev_b32 v8, 2, v3\nv_and_b32 v9, 7, v8\nv_lshlrev_b32 v8, 8, v8\nv_and_b32 v10, 3, v3\nv_lshl_add_u32 v8, v10, 3, v8")
        for t in range(8):
            a(f"v_xor_b32 v10, {t}, v9")
            a(f"v_lshl_add_u32 v{vVR+t}, v10, 5, v8")
        a(f"v_lshlrev_b32 v8, 13, v1\nv_lshl_add_u32 v8, v5, 7, v8\nv_add_u32 v8, {QBUF[1]}, v8\nv_lshrrev_b32 v9, 1, v5\nv_xor_b32 v9, v9, v4")
        for sp in range(2):
            a(f"v_xor_b32 v10, {4*sp}, v9")
            a(f"v_lshl_add_u32 v{vXR+sp}, v10, 4, v8")
        a(f"v_bfe_u32 v9, v3, 2, 2\nv_lshl_add_u32 v8, v4, 3, v9\nv_lshlrev_b32 v8, 8, v8\nv_and_b32 v10, 3, v3\nv_lshl_add_u32 v8, v10, 4, v8")
        a(f"v_add_u32 v8, {QBUF[1]}, v8\nv_lshl_add_u32 v8, v4, 3, v8")
        for s in range(4):
            a(f"v_xor_b32 v10, {s}, v9")
            a(f"v_lshl_add_u32 v{vWR+s}, v10, 6, v8")
        a("v_and_b32 v8, 3, v3\nv_cmp_eq_u32 vcc, 0, v8\nv_mov_b32 v9, 0x3f803f80\nv_mov_b32 v10, 0\nv_cndmask_b32 v9, v10, v9, vcc")
        for j in range(4): a(f"v_accvgpr_write_b32 a{aONE+j}, v9")
    def kr_setup(a):
        a(f"v_lshlrev_b32 v8, 8, v5\nv_add_u32 v8, {KBASE}, v8\nv_xor_b32 v9, v4, v5")
        for s in range(4):
            a(f"v_xor_b32 v10, {4*s}, v9")
            a(f"v_lshl_add_u32 v{vKR+s}, v10, 4, v8")
    if TICKET:
        rest_v(a)
        a(f"""s_cmp_lg_u32 s{sWAVE}, 0
s_cbranch_scc1 L_tkwait
s_mov_b32 s{sCNT}, 8
s_waitcnt vmcnt({3 if opt("qpf", 0) else 1})
L_tkchk:
v_readfirstlane_b32 s2, v15
s_cmp_lt_u32 s2, 32
s_cbranch_scc1 L_tkok
s_add_u32 s6, s6, 1
s_and_b32 s6, s6, 7
s_lshl_b32 s5, s6, 5
v_mov_b32 v15, 1
s_mov_b64 exec, 1
buffer_atomic_add v15, v16, s[{sWS}:{sWS+3}], s5 offen offset:4 sc0 sc1
s_mov_b64 exec, -1
s_waitcnt vmcnt(0)
s_sub_u32 s{sCNT}, s{sCNT}, 1
s_cbranch_scc0 L_tkchk
s_mov_b32 s2, 32
L_tkok:
s_lshl_b32 s2, s2, 3
s_or_b32 s2, s2, s6
v_mov_b32 v15, s2
ds_write_b32 v16, v15
s_waitcnt lgkmcnt(0)
L_tkwait:
s_barrier
ds_read_b32 v15, v16
s_waitcnt lgkmcnt(0)
v_readfirstlane_b32 s2, v15
s_cmp_ge_u32 s2, 256
s_cbranch_scc1 L_exit""")
    else:
        a("s_waitcnt lgkmcnt(0)")
    stamp(a, True)
    a(f"""s_and_b32 s{sT0}, s2, 1
s_lshl_b32 s{sB}, s{sT0}, 2
s_bfe_u32 s{sT0}, s2, 0x20003
s_add_u32 s{sB}, s{sB}, s{sT0}
s_and_b32 s{sH}, s2, 6
s_lshl_b32 s{sH}, s{sH}, 2
s_lshr_b32 s{sT1}, s2, 5
s_add_u32 s{sH}, s{sH}, s{sT1}
s_add_u32 s{sQS}, s{sH}, s{sB}
s_and_b32 s{sQS}, s{sQS}, {opt("qm", 3)}
s_mul_i32 s{sT0}, s{sB}, 307200
s_lshl_b32 s{sT1}, s{sH}, 8
s_mov_b32 s{sX+2}, 307200
s_mov_b32 s{sX+3}, 0x20000
s_mov_b32 s{sW+3}, 0x20000
s_sub_u32 s{sW+2}, 5242880, s{sT1}
s_add_u32 s{sX}, s{pX}, s{sT0}
s_addc_u32 s{sX+1}, s{pX+1}, 0
s_add_u32 s{sW}, s{pWQ}, s{sT1}
s_addc_u32 s{sW+1}, s{pWQ+1}, 0""")
    s0 = qstage(0, 8)
    s0 = s0[:5] + s0[-5:] + s0[5:-5]
    flat(a, s0[:-2])
    a(f"s_cmp_eq_u32 s{sWAVE}, 3")
    a("s_cbranch_scc1 L_x6")
    flat(a, s0[-2:])
    a("L_x6:")
    if not TICKET: rest_v(a)
    kr_setup(a)
    kv_srds(a)
    a(f"""s_mov_b32 s{sWS}, s{pWS}
s_mov_b32 s{sWS+1}, s{pWS+1}
s_mov_b32 s{sWS+2}, {8*15*128*1024}
s_mov_b32 s{sWS+3}, 0x20000""")
    if STAMP:
        a(f"s_add_u32 s{sST}, s{pWS}, 0x10000000\ns_addc_u32 s{sST+1}, s{pWS+1}, 0\ns_mov_b32 s{sST+2}, 0x100000\ns_mov_b32 s{sST+3}, 0x20000")
    a(f"s_mul_i32 s3, s{sB}, 96\ns_add_u32 s3, s3, s{sH}\ns_mul_i32 s3, s3, 20480")
    a(f"s_lshr_b32 s{sROT}, s2, 3\ns_lshl_b32 s{sROT}, s{sROT}, 14")
    a(f"""s_lshr_b32 s4, s2, 3
s_mul_i32 s6, s4, 52
s_lshr_b32 s6, s6, 8
s_mul_i32 s5, s6, 5
s_sub_u32 s5, s4, s5
s_mov_b32 s{sR}, 0
s_and_b32 s7, s2, 1
s_mul_i32 s7, s7, 5
s_add_u32 s5, s5, s7
s_and_b32 s{sOB}, s2, 6
s_mul_i32 s{sOB}, s{sOB}, 3
s_add_u32 s{sOB}, s{sOB}, s6
s_mul_i32 s6, s{sWAVE}, {1024*1280}
s_lshl_b32 s7, s5, 7
s_add_u32 s6, s6, s7
s_add_u32 s{sWO}, s{pWO}, s6
s_addc_u32 s{sWO+1}, s{pWO+1}, 0
s_sub_u32 s{sWO+2}, 5242880, s6
s_cmp_ge_u32 s2, 240
s_cselect_b32 s{sWO+2}, 0, s{sWO+2}
s_mov_b32 s{sWO+3}, 0x20000""")
    s1 = qstage(1, 8)
    flat(a, s1[:5] + s1[-5:])
    stamp(a, True)
    a(f"s_cmp_eq_u32 s{sWAVE}, 3")
    a("s_cbranch_scc1 L_waveB")
    base = nstamp[0]
    gen_wave(a, 4, "A")
    a("L_waveB:")
    nstamp[0] = base
    gen_wave(a, 3, "B")
    gen_common(a)
    a("L_exit:")
    a("s_endpgm")
    return a.text()

body = gen()
print(wrap([dict(name=KN, grid=256, block=256, lds=163840, body=body, vgpr=512, sgpr=102, accum=256)]))
```

```python
import sys, struct, math
from gencommon import *

OPT = dict(kv.split("=") for kv in sys.argv[1:])
def opt(k, d): return type(d)(OPT.get(k, d))
STAMP = opt("stamp", 0)
MAP = opt("map", "mixed")
NT = opt("nt", 1)
FORCE_SAFE = opt("safe", 0)
QLEAD = opt("qlead", 28)
K0AT = opt("k0at", 2)
WARM = opt("warm", 1)
OD = opt("od", 5)
OLD = {"": "", "plain": "", "nt": " nt", "sc1": " sc1", "sc01": " sc0 sc1"}[opt("old", "sc1")]
OST = {"": "", "plain": "", "sc1": " sc1", "sc01": " sc0 sc1"}[opt("ost", "sc01")]
SPIN = opt("spin", 1 << 16)
CHAIN = opt("chain", 1)
LAG = opt("lag", 12)
NV = opt("nv", 0)
vLV = {1: 1, 2: 6, 3: 7}
def valu_sum(nq, q): return nq == 4 and q >= 4 - NV
DMA3 = opt("dma3", 1)
FST = {"": "", "sc01": " sc0 sc1", "nt": " nt"}[opt("fst", "")]
PMAP = opt("pmap", 1)
PF = [int(t) for t in opt("pf", "").split(",") if t]
PF0 = opt("pf0", 0)
sPF = 72
W6 = [tuple(int(y) for y in x.split(":")) for x in opt("w6", "29:56,30:56").split(",") if x]
sPFW = 6
PFD, PFA = (13, 14) if STAMP < 2 else (12, 1)
SNAKE = opt("snake", 1)

MF = "v_mfma_f32_16x16x32_bf16"
VBASE, SBASE, KBASE = 0, 64 * 1024, 96 * 1024
QBUF = [0, 48 * 1024, 96 * 1024]
XOFF, WOFF = 0, 31744
def kslot(t): return (t + 3) % 4
def vslot(t): return t % 4
vO = 128; vS = 64; vNM = 48
vKR = 16; vVR = 20; vKD = 28; vVD = 32; vXD = 36; vWD = 44
vXR = 64; vWR = 66
vWO = 36
vAR = [40, 44, 8]
aQ = 0; aK = 64; aV = 96; aL = 128; aONE = 144
aQA = [64, 96]; aQB = [148, 164]
sK, sV, sX, sW, sWS = 8, 12, 16, 20, 24
sO, sOUT = 16, 20
sWAVE, sKW, sVW, sXW, sWW = 28, 29, 30, 31, 32
sKoff, sVoff, sCNT, sB, sH, sT0, sT1 = 33, 34, 35, 36, 37, 38, 39
sKinc, sKmask, sVinc, sVmask = 6, 7, 31, 32
sST, sSTAMP = 40, 44
sWO = 76
sROT, sQS, sR, sOB = 80, 81, 82, 83
sARG = 84
pX, pK, pV, pWQ, pWO, pOUT, pDBG, pWS = [sARG + 2 * i for i in range(8)]
CSCALE = struct.unpack("<I", struct.pack("<f", math.log2(math.e) / math.sqrt(128.0)))[0]
WCONT = opt('wcont', 0)
WSTEP = 4096 if WCONT else 32 * 1280

def r(pfx, b, n=4): return f"{pfx}[{b}:{b+n-1}]"
def O(q, d): return r("v", vO + (q * 8 + d) * 4)
def S(p, q, kt): return vS + 32 * p + 8 * q + 4 * kt
def pol(srd): return "" if (srd == sV and opt("vdef", 0)) or (srd == sK and opt("kdef", 0)) else ntf()
POLS = {"n": " nt", "d": "", "s": " sc1", "t": " sc1 nt", "z": " sc0", "a": " sc0 sc1 nt", "b": " sc0 sc1", "y": " sc0 nt"}
def pol2(srd, c, i):
    m = opt("pm", "")
    if not m: return pol(srd)
    if m[0] == "i": return POLS[m[1 + i]]
    return POLS[m[(0 if srd == sK else 4) + c]]
def ntf(): return {0: "", 1: " nt", 2: " sc1 nt"}[NT]

nstamp = [0]
def stamp(a, early=False):
    if (STAMP == 5) != early and not (STAMP == 5 and nstamp[0] == 0): return
    if STAMP:
        i = nstamp[0]; nstamp[0] += 1
        assert i < 8
        a(f"s_memtime s[{sSTAMP+4*i}:{sSTAMP+4*i+1}]")
        a(f"s_memrealtime s[{sSTAMP+4*i+2}:{sSTAMP+4*i+3}]")
def rec(a):
    a("v_cmp_eq_u32 vcc, v13, v3\nv_mov_b32 v15, s100\nv_add_u32 v13, 1, v13\nv_cndmask_b32 v14, v14, v15, vcc")

def dmaK(n): return f"buffer_load_dwordx4 v{vKD+n}, s[{sK}:{sK+3}], s{sKoff} offen offset:{n*1024}{pol(sK)} lds"
def dmaV(n): return f"buffer_load_dwordx4 v{vVD+n}, s[{sV}:{sV+3}], s{sVoff} offen offset:{n*1024}{ntf() if not opt('vdef', 0) else ''} lds"
def kread(f, off, ktoff=4096, aK=aK):
    kt, s = f >> 2, f & 3
    return f"ds_read_b128 {r('a', aK+4*f)}, v{vKR+s} offset:{off + kt*ktoff}"
def vread(d, second, off, soff=4096):
    return f"ds_read_b64_tr_b16 {r('a', aV+4*d+2*second, 2)}, v{vVR+d} offset:{off + second*soff}"
def qk(p, q, kt, s, czero=False, aK=aK):
    b = S(p, q, kt)
    c = r("v", b) if s else ("0" if czero else r("v", vNM + 4 * q))
    return f"{MF} {r('v', b)}, {r('a', aK+4*(kt*4+s))}, {r('a', aQ+16*q+4*s)}, {c}"
def pv(p, q, d): return f"{MF} {O(q,d)}, {r('a', aV+4*d)}, {r('v', S(p,q,0))}, {O(q,d)}"
def sm(p, q): return f"{MF} {r('a', aL+4*q)}, {r('a', aONE)}, {r('v', S(p,q,0))}, {r('a', aL+4*q)}"
def softmax_ops(p, nq):
    ex, cv = [], []
    for kt in range(2):
        for q in range(nq):
            b = S(p, q, kt)
            for j in range(4): ex.append(f"v_exp_f32 v{b+j}, v{b+j}")
            for j in range(2):
                pre = [f"v_add_f32 v{vLV[q]}, v{vLV[q]}, v{b+2*j+i}" for i in range(2)] if valu_sum(nq, q) else []
                cv.append(pre + [f"v_cvt_pk_bf16_f32 v{S(p,q,0)+2*kt+j}, v{b+2*j}, v{b+2*j+1}"])
    return ex, cv

PRE = [(0, 4), (1, 5)]
PLAN = {28: ([0, 1], [(2, 9), (3, 4), (4, 5)]),
        29: ([2, 3], [(5, 6), (6, 0), (7, 9), (8, 4)]),
        30: ([4, 5], [(9, 7), (10, 1), (11, 5), (12, 6)]),
        31: ([], [(13, 8), (14, 2)])}
PIECE = dict(PRE)
for _b in PLAN.values(): PIECE.update(dict(_b[1]))
VBANK = [20, 48, 64, 80, 96, 112]
def bank_of(n):
    if n < 16: return "a", ((n + 10) % 16) * 16
    if n < 22: return "v", VBANK[n - 16]
    return bank_of(n - 22)
def wo_issue(n, piece):
    out = [("s", f"s_add_u32 s{sT0}, s{sR}, {n}"), ("s", f"s_and_b32 s{sT0}, s{sT0}, 31"),
           ("s", f"s_mul_i32 s{sT0}, s{sT0}, {WSTEP}"), ("s", f"s_add_u32 m0, s{sVW}, {piece*16384}")]
    out += [("M", f"buffer_load_dwordx4 v{vWO+i}, s[{sWO}:{sWO+3}], s{sT0} offen offset:{i*1024} lds") for i in range(4)]
    return out
def wo_reads(n, piece):
    rf, bank = bank_of(n)
    return [f"ds_read_b64_tr_b16 {r(rf, bank+4*t+2*h, 2)}, v{vAR[piece >> 2]+t} offset:{(piece & 3)*16384 + h*2048}" for t in range(4) for h in range(2)]
def flat(a, items):
    prev = None
    for it in items:
        k, t = it[0], it[1]
        if k == "M" and prev and "m0" in prev: a("s_nop 0")
        a(t); prev = t

class Body:
    def __init__(self):
        self.mf = []; self.big = {}; self.pre = {}; self.cv = {}; self.lastcv = 0; self.lag = 4
    def add(self, text, need=None): self.mf.append((text, need))
    def place_big(self, kind, text, target, tag=None, hi=None, req=None):
        n = len(self.mf)
        target = min(target, n - 1)
        hi = min(n - 1, target + 3 if hi is None else max(hi, target))
        g = target
        while g in self.big and g < hi: g += 1
        if g in self.big: g = min(range(target, hi + 1), key=lambda x: len(self.big[x]))
        self.big.setdefault(g, []).append((kind, text, tag, req))
        return g
    def place_d(self, text, lo, tag, cap, req=None):
        g = lo
        while True:
            kinds = [x[0] for x in self.big.get(g, [])]
            if all(k == "D" for k in kinds) and len(kinds) < cap: break
            g += 1
        assert g < len(self.mf)
        self.big.setdefault(g, []).append(("D", text, tag, req))
        return g
    def place_cvt(self, texts, lo, hi):
        for t in texts: g = self.place_cvt1(t, lo, hi)
        return g
    def place_cvt1(self, text, lo, hi):
        n = len(self.mf); best = None
        lo0 = lo
        lo = max(lo, self.lastcv)
        for g in range(lo, min(hi, lo0 + self.lag, n - 1) + 1):
            kinds = [x[0] for x in self.big.get(g, [])]
            cnt = len(self.cv.get(g, []))
            if (kinds == ["D"] and cnt == 0) or (kinds == [] and cnt < 2): best = g; break
        if best is None: best = min(lo, n - 1)
        self.cv.setdefault(best, []).append(text)
        self.lastcv = best
        return best
    def place_s(self, text, lo, hi=None):
        n = len(self.mf)
        hi = lo if hi is None else hi
        for g in range(lo, min(hi, n - 1) + 1):
            kinds = [x[0] for x in self.big.get(g, [])]
            if not self.pre.get(g) and (kinds == ["E"] or kinds == [] or (kinds == ["D"] and not self.cv.get(g))):
                self.pre.setdefault(g, []).append(text); return g
        self.pre.setdefault(lo, []).append(text); return lo
    def spread(self, it, start, span, req=None):
        nm = sum(1 for x in it if x[0] == "M")
        i = 0; pend = []; lastg = start
        for k, t, tag in it:
            if k != "M": pend.append(t); continue
            g = self.place_big("M", t, max(start + 2 + int(i * span / nm), lastg + 1 + (len(pend) + 1) // 2), tag, req=req if i == 0 else None)
            for j, pt in enumerate(pend):
                self.pre.setdefault(max(lastg + 1, g - (len(pend) - j + 1) // 2), []).append(pt)
            pend = []; lastg = g; i += 1
        return lastg
    def emit(self, a, resident=(), vm=None, vmdone=None):
        total = {}
        for items in self.big.values():
            for k, t, tag, req in items:
                if k in "DM": total[(k, tag)] = total.get((k, tag), 0) + 1
        st = dict(q=[], issued={})
        done = set(resident)
        vmdone = vmdone if vmdone is not None else set()
        def wait(tags):
            lds = [t for t in tags if t[0] != "vm" and t not in done]
            vms = [t[1] for t in tags if t[0] == "vm" and t[1] not in vmdone]
            parts = []
            if vms:
                for t in vms: assert st["issued"].get(("M", t), 0) == total.get(("M", t), 0) and t in vm, ("vm not issued", t)
                N = min(vm[::-1].index(t) for t in vms)
                N = min(N, 60)
                parts.append(f"vmcnt({N})")
                for t in vm[:len(vm) - N]: vmdone.add(t)
                for t in vm[len(vm) - N:]: vmdone.discard(t)
            if lds:
                q = st["q"]
                for t in lds: assert st["issued"].get(("D", t), 0) == total[("D", t)] and t in q, ("lds not issued", t)
                N = min(min(q[::-1].index(t) for t in lds), 10)
                parts.append(f"lgkmcnt({N})")
                for t in q[:len(q) - N]: done.add(t)
                st["q"] = q[len(q) - N:]
                for t in st["q"]: done.discard(t)
            if parts: a("s_waitcnt " + " ".join(parts))
        n = len(self.mf)
        if self.mf[0][1]: wait(self.mf[0][1])
        for g in range(n):
            a(self.mf[g][0])
            late = None
            nxt = self.mf[g + 1][1] if g + 1 < n else None
            if nxt: wait(nxt)
            for t in self.pre.get(g, []): a(t)
            for kind, text, tag, req in self.big.get(g, []):
                if req: wait(req)
                if kind == "B":
                    nv = vm[::-1].index(tag)
                    a(f"s_waitcnt vmcnt({nv}) lgkmcnt(0)")
                    for t in st["q"]: done.add(t)
                    st["q"] = []
                if not (kind in opt("drop", "") and getattr(self, "loop", False)): a(text)
                if kind in "DM": st["issued"][(kind, tag)] = st["issued"].get((kind, tag), 0) + 1
                if kind == "M" and vm is not None: vm.append(tag); vmdone.discard(tag)
                if kind == "D": st["q"].append(tag); done.discard(tag)
            for t in self.cv.get(g, []): a(t)

def estimate(lines):
    tot = 0; t = None; over = 0
    for l in lines + ["v_mfma"]:
        l = l.strip()
        if l.startswith("v_mfma"):
            if t is not None: tot += max(16, t); over += t > 16
            t = 4; lastv = False
        elif l.startswith("ds_"): t += 8 + (4 if lastv else 0)
        elif l.startswith("buffer_"): t += 12
        elif l.startswith("v_"): t = max(t, 8) + (8 if l.startswith("v_exp") else 4); lastv = True
        elif l.endswith(":"): pass
        else: t += 4
    return tot, over

def merge(a, V, M):
    pos = {}; n = [0]
    def ready(it): return all(d in pos and n[0] - pos[d] - 1 >= dist for d, dist in it[2])
    def put(it):
        a(it[1]); n[0] += len(it[1].split("\n")); pos[it[0]] = n[0] - 1
    vi = mi = 0
    while vi < len(V) or mi < len(M):
        did = False
        if mi < len(M) and ready(M[mi]): put(M[mi]); mi += 1; did = True
        cost = 0
        while vi < len(V) and cost < 2 and ready(V[vi]):
            cost += 2 if V[vi][1].startswith(("v_exp", "ds_", "buffer_")) else 1
            put(V[vi]); vi += 1; did = True
        if not did: a("s_nop 0"); n[0] += 1

NTAIL = {4: 26, 3: 20}
VMDONE = set()

def gen_body(a, nq, u, L, last=False, loopctl=None, idx=None, vm=None):
    B = Body()
    B.loop = idx is None
    if nq == 4 and NV and not last: B.lag = LAG
    vo, ko = vslot(u) * 16384, kslot(u + 1) * 16384
    def g_qk(p, kts, gen):
        for kt in kts:
            if CHAIN:
                for q in range(nq):
                    for s in range(4): B.add(qk(p, q, kt, s), ([("K", kt * 4 + x, gen) for x in range(4)] if s == 0 else None) if q == 0 else None)
            else:
                for s in range(4):
                    for q in range(nq): B.add(qk(p, q, kt, s), [("K", kt * 4 + s, gen)] if q == 0 else None)
    def g_pv(p, gen):
        for d in range(8):
            qs = list(range(nq)) if (d % 2 == 0 or not SNAKE) else list(range(nq - 1, -1, -1))
            for i, q in enumerate(qs): B.add(pv(p, q, d), [("V", d, gen)] if i == 0 else None)
        for q in range(nq):
            if not valu_sum(nq, q): B.add(sm(p, q))
    g_qk(1, [1], 0); P0 = len(B.mf)
    g_pv(0, 0); Q1 = len(B.mf)
    if not last: g_qk(0, [0, 1], 1)
    P1 = len(B.mf)
    g_pv(1, 1)
    if not last: g_qk(1, [0], 2)
    n = len(B.mf)
    resident = [("K", f, 0) for f in range(4, 8)]
    sc = nq / 4.0
    for d in range(8):
        for h in range(2): B.place_big("D", vread(d, h, vo), int((4 * d + 2 * h) * sc), ("V", d, 0))
    ex0, cv0 = softmax_ops(0, nq); ex1, cv1 = softmax_ops(1, nq)
    ne = len(ex0)
    win = P1 - P0
    full = nq * 17 - (NV if nq == 4 else 0)
    ntail = NTAIL[nq]
    if not last:
        for f in range(8): B.place_big("D", kread(f, ko), Q1 - int((22 if CHAIN else 20) * sc) + int(4 * f * sc), ("K", f, 1))
    for d in range(8):
        for h in range(2):
            lo = max(P1 - int(20 * sc) + int((4 * d + 2 * h) * sc), P0 + nq * d + nq)
            B.place_big("D", vread(d, h, vo + 8192), lo, ("V", d, 1))
    if not last:
        for f in range(8): B.place_big("D", kread(f, ko + 8192), P1 + int(12 * sc) + int(4 * f * sc), ("K", f, 2))
        mVe = 0
        if DMA3:
            if nq == 3 and (idx is None or idx == 28):
                def stream(so, srd, vd, ldsoff, tag):
                    it = [("s", f"s_add_u32 s{so}, s{so}, 16384", None), ("s", f"s_and_b32 s{so}, s{so}, 0x7ffff", None)]
                    for c in range(4):
                        it += [("s", f"s_add_u32 s4, s{so}, {c*4096}", None), ("s", f"s_mov_b32 m0, {ldsoff + c*4096}", None)]
                        it += [("M", f"buffer_load_dwordx4 v{vd+i}, s[{srd}:{srd+3}], s4 offen offset:{i*1024}{pol2(srd, c, i)} lds", tag) for i in range(4)]
                    return it
                it = stream(sVoff, sV, vVD, VBASE + vslot(u + 3) * 16384, ("V", 31))
                if idx is None: it += stream(sKoff, sK, vKD, KBASE + kslot(u + 4) * 16384, None)
                mVe = B.spread(it, 0, n - 12 if idx is None else 40)
                assert mVe < n - 8
        else:
            if idx is None or idx == 28:
                g0 = Q1 - int(18 * sc) if idx is None else 3
                gs = [B.place_big("M", dmaV(i), g0 + int((8 if idx is None else 4) * i * sc), ("V", 31)) for i in range(4)]
                mV, mVe = gs[0], gs[-1]
            if idx is None:
                g0 = P1 + int(14 * sc)
                gs = [B.place_big("M", dmaK(i), g0 + int(8 * i * sc)) for i in range(4)]
                mK, mKe = gs[0], gs[-1]
    if idx is not None:
        rd, iss = PLAN[idx]
        g = int(30 * sc)
        for j in rd:
            for i, t in enumerate(wo_reads(j, PIECE[j])):
                g = B.place_big("D", t, g, ("W", j), req=[("vm", ("w", j))] if i == 0 else None) + 2
        g = mVe + 1 if idx == 28 else 0
        span = ((n - 6 - g) // len(iss)) if not last else int(16 * sc)
        for j, pc in iss:
            src = [x for x in rd if PIECE[x] == pc]
            if src: g = max(g, int(74 * sc))
            it = [(k, t, ("w", j)) for k, t in wo_issue(j, pc)]
            g = B.spread(it, g, min(span, int(24 * sc)), req=[("W", src[0])] if src else None) + 1
            assert g < n
        for k, (bi, gp) in enumerate(W6):
            if bi == idx:
                g = int(gp * sc)
                B.place_big("M", f"buffer_load_dword v{PFD}, v{PFA}, s[{sWO}:{sWO+3}], s{sPFW+k} offen", g, ("pfw", k))
    eg0, eg1, egt = {}, {}, {}
    nh = ne - ntail
    for i in range(ntail, ne):
        eg0[i] = B.place_big("E", ex0[i], max(1 + int((i - ntail) * (P0 - 4) / max(nh, 1)), eg0.get(i - 1, 0)))
    for i in range(ne):
        t = P0 + 1 + int(i * (win - 5) / ne)
        if i >= ne // 2: t = max(t, P0 + 5)
        eg1[i] = B.place_big("E", ex1[i], max(t, eg1.get(i - 1, 0)), hi=min(t + 3, P1 - 4))
    if not last:
        for i in range(ntail):
            t = P1 + 1 + int(i * (full - 5) / ne)
            egt[i] = B.place_big("E", ex0[i], max(t, egt.get(i - 1, 0)), hi=min(t + 3, n - 2))
    for j in range(ntail // 2, ne // 2):
        q = (j // 2) % nq
        g = B.place_cvt(cv0[j], eg0[2 * j + 1] + 1, P0 + q - 2)
        assert g <= P0 + q - 2
    for j in range(ne // 2):
        q = (j // 2) % nq
        g = B.place_cvt(cv1[j], eg1[2 * j + 1] + 1, P1 + q - 3)
        assert g <= P1 + q - 3, (j, g, P1)
    assert eg1[ne // 2] >= P0 + 5
    if not last:
        for j in range(ntail // 2): B.place_cvt(cv0[j], egt[2 * j + 1] + 1, n - 1)
        assert min(egt.values()) >= Q1 + 4 * nq + 5
        if ntail > ne // 2: assert egt[ne // 2] >= P1 + 5
        if DMA3: pass
        elif idx is None:
            B.place_s(f"s_add_u32 m0, s{sVW}, {VBASE + vslot(u+3)*16384}", mV - 4, mV - 1)
            g = B.place_s(f"s_add_u32 s{sVoff}, s{sVoff}, 16384", mV - 12, mV - 6)
            B.place_s(f"s_and_b32 s{sVoff}, s{sVoff}, 0x7ffff", g + 1, mV - 1)
            B.place_s(f"s_add_u32 m0, s{sKW}, {kslot(u+4)*16384}", mK - 4, mK - 1)
            g = B.place_s(f"s_add_u32 s{sKoff}, s{sKoff}, 16384", mK - 12, mK - 6)
            B.place_s(f"s_and_b32 s{sKoff}, s{sKoff}, 0x7ffff", g + 1, mK - 1)
        elif idx == 28:
            B.pre.setdefault(0, []).extend([f"s_add_u32 s{sVoff}, s{sVoff}, 16384", f"s_and_b32 s{sVoff}, s{sVoff}, 0x7ffff"])
            B.pre.setdefault(1, []).append(f"s_add_u32 m0, s{sVW}, {VBASE + vslot(u+3)*16384}")
        if loopctl:
            B.place_s(loopctl[0], n - 8, n - 5)
            B.place_s(loopctl[1], n - 4, n - 2)
    t = Asm()
    B.emit(t, resident, vm=vm, vmdone=VMDONE if vm is not None else None)
    a.l += t.l
    if opt("est", 0): sys.stderr.write(f"body {L} u={u} idx={idx}: mfma {n} est {estimate(t.l)}\n")
    if idx is not None and not last:
        need = [("V", idx + 1)] + ([("K", idx + 2)] if idx + 2 < 32 else [])
        N = min(min(vm[::-1].index(t) if t in vm else 60 for t in need), 60)
        if STAMP == 2: a("s_memtime s[100:101]")
        a(f"s_waitcnt vmcnt({N}) lgkmcnt(0)")
        for t in vm[:len(vm) - N]: VMDONE.add(t)
        for t in vm[len(vm) - N:]: VMDONE.discard(t)
        a("s_barrier")
        if STAMP == 2: rec(a)
    elif last:
        if STAMP == 2: a("s_memtime s[100:101]\ns_waitcnt lgkmcnt(0)"); rec(a)
    else:
        if STAMP == 2: a("s_memtime s[100:101]")
        for _ in range(opt("idle", 0)): a("s_nop 15")
        a(f"s_waitcnt vmcnt({16 if not DMA3 else 60 if nq == 3 else 8 if u == 0 else 0}) lgkmcnt(0)")
        if not opt("nobar", 0): a("s_barrier")
        if STAMP == 2: rec(a)

def kv_voffsets(a, wave):
    if wave:
        a("v_lshlrev_b32 v8, 12, v1")
        a("v_lshl_add_u32 v8, v4, 8, v8")
    else:
        a("v_lshlrev_b32 v8, 8, v4")
    a("v_xor_b32 v9, v5, v4")
    for n in range(4):
        a(f"v_xor_b32 v10, {4*n}, v9")
        a(f"v_lshl_add_u32 v{vKD+n}, v10, 4, v8")
    a("v_lshlrev_b32 v9, 1, v4")
    a("v_xor_b32 v9, v9, v5")
    for p in range(2):
        a(f"v_xor_b32 v10, {8*p}, v9")
        a(f"v_lshl_add_u32 v{vVD+p}, v10, 4, v8")
        a(f"v_mov_b32 v{vVD+p+2}, v{vVD+p}")
def kv_srds(a):
    a(f"""s_lshl_b32 s{sT0}, s{sB}, 5
s_add_u32 s{sT0}, s{sT0}, s{sH}
s_lshl_b32 s{sT0}, s{sT0}, 19
s_add_u32 s{sK}, s{pK}, s{sT0}
s_addc_u32 s{sK+1}, s{pK+1}, 0
s_mov_b32 s{sK+2}, 524288
s_mov_b32 s{sK+3}, 0x20000
s_add_u32 s{sV}, s{pV}, s{sT0}
s_addc_u32 s{sV+1}, s{pV+1}, 0
s_mov_b32 s{sV+2}, 524288
s_mov_b32 s{sV+3}, 0x20000""")
def ar_setup(a):
    a("v_lshrrev_b32 v12, 2, v3\nv_lshlrev_b32 v12, 7, v12\nv_and_b32 v15, 3, v3\nv_lshl_add_u32 v12, v15, 3, v12")
    a(f"v_add_u32 v12, s{sVW}, v12\nv_bfe_u32 v15, v3, 3, 2")
    for t in range(4):
        a(f"v_xor_b32 v{vAR[0]+t}, {t}, v15")
        a(f"v_lshl_add_u32 v{vAR[0]+t}, v{vAR[0]+t}, 5, v12")
        a(f"v_add_u32 v{vAR[1]+t}, 0x10000, v{vAR[0]+t}")
        a(f"v_add_u32 v{vAR[2]+t}, 0x20000, v{vAR[0]+t}")

def xlane(a, regs, op2, tmp=1):
    for op in ("v_permlane32_swap_b32", "v_permlane16_swap_b32"):
        for m in regs: a(f"v_mov_b32 v{m+tmp}, v{m}")
        a("s_nop 1")
        for m in regs: a(f"{op} v{m}, v{m+tmp}")
        a("s_nop 1")
        for m in regs: a(f"{op2} v{m}, v{m}, v{m+tmp}")

def qstage(st, nx):
    buf = QBUF[(st + 1) % 3]
    out = [("s", f"s_lshl_b32 s{sT0}, s{sQS}, 7"), ("s", f"s_lshl_b32 s{sT1}, s{sQS}, 19"), ("s", f"s_add_u32 s{sQS}, s{sQS}, 1"),
           ("s", f"s_cmp_eq_u32 s{sQS}, 10"), ("s", f"s_cselect_b32 s{sQS}, 0, s{sQS}"), ("s", f"s_add_u32 m0, s{sXW}, {buf+XOFF}")]
    for n in range(nx):
        if n == 4: out.append(("s", f"s_add_u32 m0, s{sXW}, {buf+XOFF+4096}"))
        out.append(("M", f"buffer_load_dwordx4 v{vXD+n}, s[{sX}:{sX+3}], s{sT0} offen offset:{(n&3)*1024} lds"))
    out.append(("s", f"s_add_u32 m0, s{sWW}, {buf+WOFF}"))
    for n in range(4):
        out.append(("M", f"buffer_load_dwordx4 v{vWD+n}, s[{sW}:{sW+3}], s{sT1} offen offset:{n*1024 + 8*(n>>1)} lds"))
    return [(k, t, ("q", st)) for k, t in out]

def gen_wave(a, nq, L):
    nx = 2 * nq
    def qstage_issue(st): return qstage(st, nx)
    def kv_issue(kind, t):
        so, sw, off, f = (sKoff, sKW, kslot(t) * 16384, dmaK) if kind == "K" else (sVoff, sVW, VBASE + vslot(t) * 16384, dmaV)
        out = [("s", f"s_add_u32 s{so}, s{sROT}, {t*16384}"), ("s", f"s_and_b32 s{so}, s{so}, 0x7ffff"), ("s", f"s_add_u32 m0, s{sw}, {off}")]
        out += [("M", f(n)) for n in range(4)]
        return [(k, x, (kind, t)) for k, x in out]
    vm = []
    def now(it):
        flat(a, it)
        for x in it:
            if x[0] == "M": vm.append(x[2])
    def vmwait(tag): return vm[::-1].index(tag)
    vm += [("q", 0)] * (nx + 4) + [("tlb", 0)] * (3 if opt("tlb", 0) else 0) + [("q", 1)] * 4
    s1 = qstage_issue(1)[5:-5]
    def qreads(st, sp):
        out = [(f"ds_read_b128 {r('a', aQB[sp]+4*q)}, v{vXR+sp} offset:{XOFF + q*2048}", ("B", st, sp)) for q in range(nq)]
        for t in range(8):
            s, odd = t >> 1, t & 1
            for h in range(2):
                out.append((f"ds_read_b64_tr_b16 {r('a', aQA[sp]+4*t+2*h, 2)}, v{vWR+s} offset:{WOFF + odd*8 + h*1024 + sp*8224}", ("A", st, sp, t)))
        return out
    def rot(st):
        d = QBUF[(st + 2) % 3] - QBUF[(st + 1) % 3]
        return [f"v_add_u32 v{vXR+i}, {d}, v{vXR+i}" if d > 0 else f"v_subrev_u32 v{vXR+i}, {-d}, v{vXR+i}" for i in range(6)]
    stamp(a, True)
    a(f"s_waitcnt vmcnt({vmwait(('q', 0))})")
    stamp(a, True)
    a("s_barrier")
    stamp(a); stamp(a, True)
    B = Body()
    PH = 8 * nq
    for st in range(10):
        for sp in range(2 if st < 9 else 1):
            for t in range(8):
                for q in range(nq):
                    c = "0" if (st == 0 and sp == 0) else O(q, t)
                    B.add(f"{MF} {O(q,t)}, {r('a', aQA[sp]+4*t)}, {r('a', aQB[sp]+4*q)}, {c}",
                          ([("A", st, sp, t)] + ([("B", st, sp)] if t == 0 else [])) if q == 0 else None)
    first = qreads(0, 0)
    for t, _ in first: a(t)
    now(s1); s1 = []
    a("s_waitcnt lgkmcnt(0)")
    stamp(a, True)
    LQ = int(QLEAD * nq / 4)
    now(s1)
    g = B.spread(qstage_issue(2), -1, 2 * PH - LQ - 6)
    assert g < 2 * PH - LQ
    for st in range(9):
        bar = 2 * PH * (st + 1) - LQ
        B.place_big("B", "s_barrier", bar, ("q", st + 1), hi=bar)
        for i, t in enumerate(rot(st)): B.cv.setdefault(bar - 3 + i // 2, []).append(t)
        if st + 3 < 10: it = qstage_issue(st + 3)
        elif st == 7: it = kv_issue("K", 1) + kv_issue("K", 2)
        else: it = kv_issue("V", 0) + kv_issue("V", 1)
        if st == K0AT: it = it + kv_issue("K", 0)
        if 0 <= st - PF0 < len(PF):
            t = PF[st - PF0]
            it = it + [("s", f"s_add_u32 s4, s{sROT}, {t*16384}", None), ("s", "s_and_b32 s4, s4, 0x7ffff", None),
                       ("M", f"buffer_load_dword v12, v11, s[{sPF}:{sPF+3}], s4 offen", ("pf", t))]
        g = B.spread(it, bar, 2 * PH - 5 if st < 8 else PH + LQ - 6)
        assert g < bar + 2 * PH
    for st in range(10):
        base = 2 * PH * st
        g = base - LQ + 1
        if st > 0:
            for t, tag in qreads(st, 0): g = B.place_d(t, g, tag, 5 - nq)
        g = max(g, 0)
        rd = qreads(st, 1)
        order = rd[nq:nq + 4] + rd[:nq] + rd[nq + 4:] if st > 0 else rd
        for t, tag in order:
            lo = base if tag[0] == "B" else base - PH + nq * tag[3] + nq
            g = B.place_d(t, max(g, lo), tag, 5 - nq)
        if st < 9: assert g < base + 2 * PH - LQ - 3, (st, g)
    aK0 = 180
    g = 2 * PH * 8
    for f in range(8): g = B.place_d(kread(f, kslot(0) * 16384, aK=aK0), g, ("K0", f), 5 - nq) + 1
    c = Asm()
    c("v_lshlrev_b32 v8, 1, v4\nv_xor_b32 v8, v8, v7\nv_mul_u32_u24 v9, 1280, v6\nv_lshl_add_u32 v8, v8, 4, v9")
    for n in range(4): c(f"v_add_u32 v{vWO+n}, {n*8*1280 - n*1024}, v8")
    ar_setup(c)
    c(f"v_mul_u32_u24 v{PFA}, 1280, v3")
    for i in range(16): c(f"v_accvgpr_write_b32 a{aL+i}, 0")
    g = 2 * PH * 9 - LQ + 2
    for t in c.l:
        while any(x[0] == "M" for x in B.big.get(g, [])): g += 1
        B.cv.setdefault(g, []).append(t.strip()); g += 1
        if g >= len(B.mf): g = len(B.mf) - 1
    sc_ = [f"s_mov_b32 s{sQS}, s5", "s_lshr_b32 s4, s2, 3", "s_mul_i32 s4, s4, 52", "s_lshr_b32 s4, s4, 8", f"s_lshl_b32 s{sT0}, s4, 1", f"s_add_u32 s{sT0}, s{sT0}, s{sR}"]
    for k in range(2):
        sc_ += [f"s_add_u32 s{sPFW+k}, s{sT0}, {14 + 12*k}", f"s_and_b32 s{sPFW+k}, s{sPFW+k}, 31", f"s_mul_i32 s{sPFW+k}, s{sPFW+k}, {WSTEP}"]
    sc_ += [f"s_cmp_ge_u32 s4, 3\ns_cselect_b32 s{sPFW+1}, 0x7f000000, s{sPFW+1}", f"s_mul_i32 s{sT0}, s2, 20480",
            f"s_add_u32 s{sX}, s{pWO}, s{sT0}\ns_addc_u32 s{sX+1}, s{pWO+1}, 0", f"s_mov_b32 s{sX+2}, 20480", f"s_mov_b32 s{sT1}, {CSCALE:#x}"]
    for i, t in enumerate(sc_): B.pre.setdefault(2 * PH * 9 + i, []).append(t)
    B.emit(a, resident=[tag for _, tag in first], vm=vm)
    stamp(a)
    a("s_waitcnt lgkmcnt(0)")
    V, M = [], []
    def vadd(t, deps=(), id=None): V.append((id if id is not None else ("v", len(V)), t, list(deps)))
    def vissue(it):
        prev = ""
        for k, t, tag in it:
            vadd(("s_nop 0\n" if (k == "M" and "m0" in prev) else "") + t); prev = t
            if k == "M": vm.append(tag)
    for q in range(nq):
        for t in range(8): M.append((("lq", q, t), f"{MF} {O(q,t)}, {r('a', aQA[1]+4*t)}, {r('a', aQB[1]+4*q)}, {O(q,t)}", []))
    def conv(q):
        for s in range(4):
            b = vO + (q * 8 + 2 * s) * 4
            for j in range(8): vadd(f"v_mul_f32 v{b+j}, s{sT1}, v{b+j}", [(("lq", q, 2 * s + (j >> 2)), 8)])
            for j in range(4): vadd(f"v_cvt_pk_bf16_f32 v{b+j}, v{b+2*j}, v{b+2*j+1}")
            for j in range(4): vadd(f"v_accvgpr_write_b32 a{aQ+16*q+4*s+j}, v{b+j}", id=("Q", q, s) if j == 3 else None)
        for kt in range(2):
            for s in range(4): M.append((("qk0", q, kt, s), qk(0, q, kt, s, czero=True, aK=aK0), [(("Q", q, 3), 2)]))
        for h in range(2):
            z = r("v", vO + q * 32 + 16 * h, 16)
            M.append((("z", q, h), f"v_mfma_f32_32x32x16_bf16 {z}, {r('a', aL)}, {r('a', aL)}, 0", [(("Q", q, 3), 0)]))
    def stats(qs):
        for q in qs:
            b = S(0, q, 0); m = vNM + 4 * q
            vadd(f"v_max3_f32 v{m}, v{b}, v{b+1}, v{b+2}", [(("qk0", q, 1, 3), 8)])
            vadd(f"v_max3_f32 v{m+1}, v{b+3}, v{b+4}, v{b+5}")
            vadd(f"v_max3_f32 v{m}, v{m}, v{b+6}, v{b+7}")
            vadd(f"v_max_f32 v{m}, v{m}, v{m+1}")
        for op in ("v_permlane32_swap_b32", "v_permlane16_swap_b32"):
            for q in qs: vadd(f"v_mov_b32 v{vNM+4*q+1}, v{vNM+4*q}", id=("cp", op, q))
            for q in qs: vadd(f"{op} v{vNM+4*q}, v{vNM+4*q+1}", [(("cp", op, q), 2)], id=("sw", op, q))
            for q in qs: vadd(f"v_max_f32 v{vNM+4*q}, v{vNM+4*q}, v{vNM+4*q+1}", [(("sw", op, q), 2)])
        for q in qs:
            m = vNM + 4 * q; b = S(0, q, 0)
            vadd(f"v_sub_f32 v{m}, 0, v{m}")
            for j in range(1, 4): vadd(f"v_mov_b32 v{m+j}, v{m}", id=("nm", q) if j == 3 else None)
            for j in range(8): vadd(f"v_add_f32 v{b+j}, v{b+j}, v{m}")
    ex0, cv0 = softmax_ops(0, nq)
    ntail = NTAIL[nq]
    def exps(qs):
        for j in range(ntail // 2):
            if (j // 2) % nq in qs:
                vadd(ex0[2 * j]); vadd(ex0[2 * j + 1], id=("e", j))
        for j in range(ntail // 2):
            if (j // 2) % nq in qs:
                for t in cv0[j]: vadd(t, [(("e", j), 1)])
    def qk1(qs):
        for q in qs:
            for s in range(4): M.append((("qk1", q, s), qk(1, q, 0, s), [(("nm", q), 2), ("khi", 0)]))
    for f in range(8): vadd(kread(f, kslot(0) * 16384 + 8192))
    for q in range(nq):
        if valu_sum(nq, q): vadd(f"v_mov_b32 v{vLV[q]}, 0")
    conv(0); conv(1)
    vissue(kv_issue("K", 3))
    vadd("s_waitcnt lgkmcnt(0)", id="khi")
    conv(2)
    stats([0, 1])
    if nq == 4: conv(3)
    qk1([0, 1])
    if WARM:
        vadd("v_lshlrev_b32 v12, 7, v0")
        vadd(f"buffer_load_dword v12, v12, s[{sX}:{sX+3}], 0 offen"); vm.append(("warm", 0))
    vissue(kv_issue("V", 2))
    exps([0, 1])
    rest_q = list(range(2, nq))
    stats(rest_q); qk1(rest_q); exps(rest_q)
    merge(a, V, M)
    a(f"s_mov_b32 s{sCNT}, 7")
    if STAMP == 2: a("v_mov_b32 v13, 0\nv_mov_b32 v14, 0")
    if DMA3 and nq == 3:
        for i in range(8): a(f"v_subrev_u32 v{vKD+i}, 12288, v{vKD+i}")
    a(f"s_waitcnt vmcnt({vmwait(('V', 1 if (DMA3 and nq == 3) else 0))})")
    if opt("prew", 0): a("s_waitcnt vmcnt(0)")
    for _ in range(opt("preidle", 0)): a("s_nop 15")
    assert vmwait(("V", 1)) >= 8 and vmwait(("K", 2)) >= 8
    a("s_barrier")
    stamp(a)
    a(".p2align 6")
    a(f"L_loop{L}:")
    gen_body(a, nq, 0, L)
    gen_body(a, nq, 1, L)
    gen_body(a, nq, 2, L)
    gen_body(a, nq, 3, L, loopctl=(f"s_sub_u32 s{sCNT}, s{sCNT}, 1", f"s_cmp_gt_u32 s{sCNT}, 1"))
    a(f"s_cbranch_scc1 L_loop{L}")
    a(f"s_cmp_eq_u32 s{sCNT}, 0")
    a(f"s_cbranch_scc1 L_tail{L}")
    for j, pc in PRE: flat(a, wo_issue(j, pc))
    a(f"s_branch L_loop{L}")
    a(f"L_tail{L}:")
    c = 4 if not DMA3 else 16 if nq == 3 else 0
    vm = [("w", 0), ("w", 1), ("old", 0)] + [("V", 29)] * c + [("K", 30)] * c + [("V", 30)] * c + [("K", 31)] * c
    VMDONE.clear(); VMDONE.update([("w", 0), ("w", 1)])
    for i in (28, 29, 30): gen_body(a, nq, i % 4, L, idx=i, vm=vm)
    gen_body(a, nq, 3, L, last=True, idx=31, vm=vm)
    stamp(a)
    vq = [q for q in range(nq) if valu_sum(nq, q)]
    for q in vq: a(f"v_mov_b32 v{vNM+4*q}, v{vLV[q]}")
    if vq: xlane(a, [vNM + 4 * q for q in vq], "v_add_f32")
    else: a("s_nop 7")
    for q in range(nq):
        if q not in vq: a(f"v_accvgpr_read_b32 v{vNM+4*q}, a{aL+4*q}")
    a(f"s_mov_b32 s{sT0}, 0x5f800000")
    a("s_mov_b64 s[4:5], 0")
    for q in range(nq):
        a(f"v_cmp_ngt_f32 vcc, s{sT0}, v{vNM+4*q}")
        a("s_or_b64 s[4:5], s[4:5], vcc")
    if FORCE_SAFE: a(f"s_branch L_safe{L}")
    a(f"s_cbranch_scc1 L_safe{L}")
    a(f"L_epi{L}:")
    for q in range(nq): a(f"v_rcp_f32 v{vNM+4*q}, v{vNM+4*q}")
    a(f"s_waitcnt vmcnt({vm[::-1].index(('w', 12))})")
    rds = [t for j in range(6, 13) for t in wo_reads(j, PIECE[j])]
    per = -(-len(rds) // (4 * nq))
    for q in range(nq):
        for s in range(4):
            b = vO + (q * 8 + 2 * s) * 4
            for t in rds[:per]: a(t)
            rds = rds[per:]
            for j in range(8): a(f"v_mul_f32 v{b+j}, v{vNM+4*q}, v{b+j}")
            for j in range(4): a(f"v_cvt_pk_bf16_f32 v{b+j}, v{b+2*j}, v{b+2*j+1}")
            if s == 0:
                a(f"s_lshl_b32 s{sT0}, s{sWAVE}, 2\ns_add_u32 s{sT0}, s{sT0}, {q}\ns_mul_i32 s{sT1}, s{sT0}, 52\ns_lshr_b32 s{sT1}, s{sT1}, 8")
                a(f"s_mul_i32 s{sT1}, s{sT1}, {128*5120 - 5*1024}\ns_lshl_b32 s{sT0}, s{sT0}, 10\ns_add_u32 s{sT0}, s{sT0}, s{sT1}\ns_add_u32 s{sT0}, s{sT0}, s3")
            else:
                a(f"s_add_u32 s{sT0}, s{sT0}, 5120")
            a(f"buffer_store_dwordx4 {r('v', b)}, v2, s[{sWS}:{sWS+3}], s{sT0} offen{OST}")
    a("s_branch L_common")
    gen_safe(a, nq, L)

def gen_safe(a, nq, L):
    a(f"L_safe{L}:")
    a("s_waitcnt vmcnt(0) lgkmcnt(0)")
    for i in range(nq * 32): a(f"v_mov_b32 v{vO+i}, 0")
    for q in range(nq):
        a(f"v_mov_b32 v{vNM+4*q}, 0xff800000")
        a(f"v_mov_b32 v{vNM+4*q+3}, 0")
    kv_voffsets(a, False)
    kv_srds(a)
    a(f"s_add_u32 s{sKW}, s{sVW}, {SBASE}")
    a(f"s_sub_u32 s{sT0}, s{sKW}, {KBASE}")
    for i in range(4): a(f"v_add_u32 v{vKR+i}, s{sT0}, v{vKR+i}")
    for i in range(8): a(f"v_add_u32 v{vVR+i}, s{sKW}, v{vVR+i}")
    a(f"s_mov_b32 s{sKoff}, 0")
    a(f"L_sloop{L}:")
    def tile(vd, srd):
        for hh in range(2):
            a(f"s_add_u32 m0, s{sKW}, {hh*16384}")
            a(f"s_add_u32 s{sVoff}, s{sKoff}, {hh*4096}")
            for n in range(4): a(f"buffer_load_dwordx4 v{vd+n}, s[{srd}:{srd+3}], s{sVoff} offen offset:{n*1024} lds")
    tile(vKD, sK)
    a("s_waitcnt vmcnt(0)")
    for f in range(8): a(kread(f, 0, 16384))
    a("s_waitcnt lgkmcnt(0)")
    tile(vVD, sV)
    for kt in range(2):
        for s in range(4):
            for q in range(nq): a(qk(0, q, kt, s, czero=True))
    a("s_nop 7")
    T = vS + 32
    for q in range(nq):
        b = S(0, q, 0); m = T + 2 * q
        a(f"v_max3_f32 v{m}, v{b}, v{b+1}, v{b+2}")
        a(f"v_max3_f32 v{m+1}, v{b+3}, v{b+4}, v{b+5}")
        a(f"v_max3_f32 v{m}, v{m}, v{b+6}, v{b+7}")
        a(f"v_max3_f32 v{m}, v{m}, v{m+1}, v{vNM+4*q}")
    xlane(a, [T + 2 * q for q in range(nq)], "v_max_f32")
    for q in range(nq):
        m = vNM + 4 * q; b = S(0, q, 0)
        a(f"v_sub_f32 v{m+2}, v{m}, v{T+2*q}")
        a(f"v_exp_f32 v{m+2}, v{m+2}")
        a(f"v_mov_b32 v{m}, v{T+2*q}")
        for j in range(8): a(f"v_sub_f32 v{b+j}, v{b+j}, v{m}")
        for j in range(8): a(f"v_exp_f32 v{b+j}, v{b+j}")
        a(f"v_mul_f32 v{m+3}, v{m+3}, v{m+2}")
        for i in range(32): a(f"v_mul_f32 v{vO+q*32+i}, v{vO+q*32+i}, v{m+2}")
        for j in range(4): a(f"v_cvt_pk_bf16_f32 v{b+j}, v{b+2*j}, v{b+2*j+1}")
        for j in range(4):
            a(f"v_lshlrev_b32 v{b+4}, 16, v{b+j}")
            a(f"v_and_b32 v{b+5}, 0xffff0000, v{b+j}")
            a(f"v_add_f32 v{m+3}, v{m+3}, v{b+4}")
            a(f"v_add_f32 v{m+3}, v{m+3}, v{b+5}")
    a("s_waitcnt vmcnt(0)")
    for d in range(8):
        for h in range(2): a(vread(d, h, 0, 16384))
        if d == 3: a("s_waitcnt lgkmcnt(0)")
    a("s_waitcnt lgkmcnt(0)")
    for d in range(8):
        for q in range(nq): a(pv(0, q, d))
    a("s_nop 7")
    a(f"s_add_u32 s{sKoff}, s{sKoff}, 8192")
    a(f"s_cmp_lt_u32 s{sKoff}, 524288")
    a(f"s_cbranch_scc1 L_sloop{L}")
    xlane(a, [vNM + 4 * q + 3 for q in range(nq)], "v_add_f32", tmp=-2)
    for q in range(nq): a(f"v_mov_b32 v{vNM+4*q}, v{vNM+4*q+3}")
    ar_setup(a)
    a(f"v_mul_u32_u24 v{PFA}, 1280, v3")
    for j in (8, 11): flat(a, wo_issue(j, PIECE[j]))
    a("s_waitcnt vmcnt(0)")
    a(f"s_branch L_epi{L}")

def gen_common(a):
    a("L_common:")
    piece = dict(PIECE)
    vm = [("w", j) for j in range(15)] + [("st", 0)]
    def issue(n, p):
        piece[n] = p
        flat(a, wo_issue(n, p)); vm.extend([("w", n)] * 4)
    def vw(tag): return vm[::-1].index(tag)
    a("s_waitcnt lgkmcnt(0)")
    NPRE = opt("npre", 3)
    for i in range(NPRE): issue(15 + i, piece[6 + i])
    a(f"""s_lshl_b32 s{sT0}, s{sOB}, 2
s_add_u32 s{sT0}, s{sT0}, s{sWAVE}
s_mul_i32 s{sT0}, s{sT0}, {32*5120}
s_add_u32 s{sO}, s{pWS}, s{sT0}
s_addc_u32 s{sO+1}, s{pWS+1}, 0
s_mov_b32 s{sO+2}, {0 if opt("oskip", 0) else 32*5120}
s_mov_b32 s{sOUT}, s{pDBG}
s_mov_b32 s{sOUT+1}, s{pDBG+1}
s_mov_b32 s{sOUT+2}, 256
v_mov_b32 v12, 1
v_mov_b32 v15, 0
v_add_u32 v16, 4096, v2""")
    a(f"s_waitcnt vmcnt({vw(('st', 0))})")
    if opt("opf", 0):
        for half in range(2):
            a(f"v_lshrrev_b32 v17, 5, v3\nv_lshl_add_u32 v17, v1, 2, v17\nv_add_u32 v17, {2*half}, v17")
            a(f"v_mul_u32_u24 v18, 52, v17\nv_lshrrev_b32 v18, 8, v18\nv_mul_u32_u24 v18, {128*5120 - 5*1024}, v18\nv_lshl_add_u32 v18, v17, 10, v18")
            a(f"v_bfe_u32 v19, v3, 3, 2\nv_mul_u32_u24 v19, 5120, v19\nv_add_u32 v18, v18, v19\nv_lshl_add_u32 v18, v7, 7, v18")
            a(f"v_cmp_gt_u32 vcc, 15, v17\nv_mov_b32 v19, 0x7f000000\ns_nop 0\nv_cndmask_b32 v18, v19, v18, vcc")
            a(f"buffer_load_dword v{20+half}, v18, s[{sWS}:{sWS+3}], s3 offen sc1")
            vm.append(("opf", half))
    a("s_barrier")
    a(f"s_cmp_lg_u32 s{sWAVE}, 0")
    a("s_cbranch_scc1 L_nosig")
    a(f"s_lshl_b32 s{sT0}, s{sB}, 5")
    a("s_mov_b64 exec, 1")
    a(f"buffer_atomic_add v12, v15, s[{sOUT}:{sOUT+3}], s{sT0} offen sc1")
    a("s_mov_b64 exec, -1")
    a("L_nosig:")
    stamp(a)
    a("s_cmp_ge_u32 s2, 240")
    a("s_cbranch_scc1 L_exit")
    for j in (13, 14):
        for t in wo_reads(j, piece[j]): a(t)
    for i in range(NPRE, 7): issue(15 + i, piece[6 + i])
    a(f"s_mul_i32 s{sT1}, s{sOB}, 86\ns_lshr_b32 s{sT1}, s{sT1}, 8\ns_lshl_b32 s{sT1}, s{sT1}, 5")
    def poll():
        a(f"buffer_load_dword v12, v15, s[{sOUT}:{sOUT+3}], s{sT1} offen sc0 sc1")
        vm.append(("poll", 0))
    PA = opt("pollat", 5)
    issue(22, 3)
    pend = [13, 14]; nxt = 23
    for j in range(15, 22):
        a(f"s_waitcnt vmcnt({vw(('w', j))}) lgkmcnt(0)")
        for t in wo_reads(j, piece[j]): a(t)
        if j - 15 == PA: poll()
        for x in pend: issue(nxt, piece[x]); nxt += 1
        pend = [j]
    a("s_waitcnt lgkmcnt(0)")
    issue(nxt, piece[pend[0]])
    assert nxt == 31
    a(f"s_cmp_lg_u32 s{sWAVE}, 0")
    a("s_cbranch_scc1 L_go")
    a(f"s_waitcnt vmcnt({vw(('poll', 0))})")
    a(f"s_mov_b32 s{sCNT}, {SPIN}")
    a("L_poll:")
    a(f"v_readfirstlane_b32 s{sT0}, v12")
    a(f"s_sub_u32 s{sCNT}, s{sCNT}, 1")
    a(f"s_cbranch_scc1 L_go")
    a(f"s_cmp_ge_u32 s{sT0}, 32")
    a("s_cbranch_scc1 L_go")
    a(f"buffer_load_dword v12, v15, s[{sOUT}:{sOUT+3}], s{sT1} offen sc0 sc1")
    a("s_waitcnt vmcnt(0)")
    a("s_branch L_poll")
    a("L_go:")
    a("s_barrier")
    stamp(a)
    vAcc = 128
    ring = [208 + 4 * i for i in range(12)] + [36] + ([12] if STAMP < 2 else [])
    RD = len(ring)
    def o_pre(n): return [f"s_add_u32 s{sT1}, s{sR}, {n}", f"s_and_b32 s{sT1}, s{sT1}, 31", f"s_mul_i32 s{sT1}, s{sT1}, 5120"]
    def o_ld(i):
        n, qt = divmod(i, 5)
        return f"buffer_load_dwordx4 {r('v', ring[i % RD])}, v{2 if qt < 4 else 16}, s[{sO}:{sO+3}], s{sT1} offen offset:{(qt&3)*1024}{OLD}"
    for i in range(RD):
        if i % 5 == 0:
            for t in o_pre(i // 5): a(t)
        a(o_ld(i)); vm.append(("o", i))
    B = Body()
    for n in range(32):
        rf, bank = bank_of(n)
        for qt in range(5):
            for nt in range(4):
                acc = r("v", vAcc + (qt * 4 + nt) * 4)
                need = None
                if nt == 0: need = [("vm", ("o", 5 * n + qt))] + ([("W", n)] if (qt == 0 and n >= 22) else [])
                B.add(f"{MF} {acc}, {r(rf, bank+4*nt)}, {r('v', ring[(5*n+qt) % RD])}, {'0' if n == 0 else acc}", need)
    for i in range(160 - RD):
        j = i + RD
        if j % 5 == 0:
            for k, t in enumerate(o_pre(j // 5)): B.pre.setdefault(4 * i + k, []).append(t)
        B.place_big("M", o_ld(j), 4 * i + 3, ("o", j), hi=4 * i + 3)
    for n in range(10):
        j = n + 22
        g = 20 * (n + 1)
        for i, t in enumerate(wo_reads(j, piece[j])):
            g = B.place_d(t, g, ("W", j), 1, req=[("vm", ("w", j))] if i == 0 else None) + 1
    if STAMP == 4:
        a("v_mov_b32 v13, 0\nv_mov_b32 v14, 0\ns_memtime s[100:101]\ns_waitcnt lgkmcnt(0)"); rec(a)
        for n in range(32):
            B.cv.setdefault(20 * n + 1, []).append("s_memtime s[100:101]\ns_waitcnt lgkmcnt(0)\nv_cmp_eq_u32 vcc, v13, v3\nv_mov_b32 v15, s100\nv_add_u32 v13, 1, v13\nv_cndmask_b32 v14, v14, v15, vcc")
    B.emit(a, vm=vm)
    stamp(a)
    if opt("red2", 1):
        a(f"s_mov_b32 s{sOUT}, s{pOUT}\ns_mov_b32 s{sOUT+1}, s{pOUT+1}\ns_mov_b32 s{sOUT+2}, {8*240*640*2}")
        a(f"s_mul_i32 s{sT0}, s{sWAVE}, 20480")
        a(f"v_lshlrev_b32 v12, 8, v4\nv_add_u32 v12, s{sT0}, v12\nv_and_b32 v13, 2, v4\nv_xor_b32 v13, v13, v5")
        for nt in range(4):
            a(f"v_xor_b32 v{8+nt}, {4*nt}, v13\nv_lshl_add_u32 v{8+nt}, v{8+nt}, 4, v12")
        a("s_barrier")
        for qt in range(5):
            for nt in range(4): a(f"ds_write_b128 v{8+nt}, {r('v', vAcc+(qt*4+nt)*4)} offset:{(qt*4+nt)*1024}")
        a(f"s_mul_i32 s{sT1}, s{sWAVE}, 20")
        if NV: a("v_lshrrev_b32 v6, 3, v3\nv_and_b32 v7, 7, v3")
        for rnd in range(3):
            a(f"v_add_u32 v12, s{sT1}, v6" + (f"\nv_add_u32 v12, {8*rnd}, v12" if rnd else ""))
            a(f"""v_lshrrev_b32 v13, 4, v12
v_lshlrev_b32 v13, 12, v13
v_lshl_add_u32 v13, v7, 9, v13
v_and_b32 v14, 15, v12
v_lshlrev_b32 v15, 1, v7
v_xor_b32 v14, v14, v15
v_lshl_add_u32 v{16+rnd}, v14, 4, v13
v_mul_u32_u24 v12, 1280, v12
v_lshl_add_u32 v{20+rnd}, v7, 4, v12""")
        a("v_cmp_gt_u32 vcc, 32, v3\nv_mov_b32 v12, 0x7f000000\nv_mov_b32 v13, 0")
        a(f"s_mul_i32 s{sT0}, s{sOB}, {80*1280}\ns_lshl_b32 s{sT1}, s{sQS}, 7\ns_add_u32 s{sT0}, s{sT0}, s{sT1}")
        a("v_cndmask_b32 v22, v12, v22, vcc\nv_cndmask_b32 v18, v13, v18, vcc")
        a("s_waitcnt lgkmcnt(0)")
        a("s_barrier")
        def rd(rnd):
            for src in range(4):
                for h in range(2): a(f"ds_read_b128 {r('v', vAcc+rnd*32+src*8+4*h)}, v{16+rnd} offset:{src*20480 + h*256}")
        rd(0)
        for rnd in range(3):
            if rnd < 2: rd(rnd + 1)
            a(f"s_waitcnt lgkmcnt({8 if rnd < 2 else 0})")
            b = vAcc + rnd * 32
            for j in range(8): a(f"v_add_f32 v{b+j}, v{b+j}, v{b+8+j}")
            for j in range(8): a(f"v_add_f32 v{b+16+j}, v{b+16+j}, v{b+24+j}")
            for j in range(8): a(f"v_add_f32 v{b+j}, v{b+j}, v{b+16+j}")
            for j in range(4): a(f"v_cvt_pk_bf16_f32 v{b+j}, v{b+2*j}, v{b+2*j+1}")
            a(f"buffer_store_dwordx4 {r('v', b)}, v{20+rnd}, s[{sOUT}:{sOUT+3}], s{sT0} offen{FST}")
    else:
        vB = 48
        a(f"s_mov_b32 s{sOUT}, s{pOUT}\ns_mov_b32 s{sOUT+1}, s{pOUT+1}\ns_mov_b32 s{sOUT+2}, {8*240*640*2}")
        a(f"s_mul_i32 s{sT0}, s{sWAVE}, 5120")
        a(f"v_add_u32 v8, s{sT0}, v2")
        a("v_add_u32 v9, 40960, v8")
        a("s_nop 4")
        a("s_barrier")
        for nt in range(4):
            a(f"s_cmp_eq_u32 s{sWAVE}, {nt}")
            a(f"s_cbranch_scc1 L_skipw{nt}")
            for qt in range(5): a(f"ds_write_b128 v{8 + (nt >> 1)}, {r('v', vAcc+(qt*4+nt)*4)} offset:{(nt&1)*20480 + qt*1024}")
            a(f"s_branch L_nextw{nt}")
            a(f"L_skipw{nt}:")
            for qt in range(5):
                for j in range(4): a(f"v_mov_b32 v{vB+qt*4+j}, v{vAcc+(qt*4+nt)*4+j}")
            a(f"L_nextw{nt}:")
        a(f"s_mul_i32 s{sT0}, s{sWAVE}, 20480")
        a(f"v_add_u32 v12, s{sT0}, v2")
        for i in range(1, 4):
            a(f"s_add_u32 s{sT1}, s{sWAVE}, {i}\ns_and_b32 s{sT1}, s{sT1}, 3\ns_mul_i32 s{sT1}, s{sT1}, 5120\nv_add_u32 v{16+i}, s{sT1}, v12")
        a(f"s_mul_i32 s{sT0}, s{sOB}, {80*1280}\ns_lshl_b32 s{sT1}, s{sQS}, 7\ns_add_u32 s{sT0}, s{sT0}, s{sT1}\ns_lshl_b32 s{sT1}, s{sWAVE}, 5\ns_add_u32 s{sT0}, s{sT0}, s{sT1}")
        a("v_mul_u32_u24 v10, 1280, v5\nv_lshl_add_u32 v10, v4, 3, v10")
        a("s_waitcnt lgkmcnt(0)")
        a("s_barrier")
        for qt in range(5):
            for i in range(1, 4): a(f"ds_read_b128 {r('v', vAcc+(qt*3+i-1)*4)}, v{16+i} offset:{qt*1024}")
        for qt in range(5):
            a(f"s_waitcnt lgkmcnt({12-3*qt})")
            b0 = vAcc + qt * 12
            for j in range(4): a(f"v_add_f32 v{vB+qt*4+j}, v{vB+qt*4+j}, v{b0+j}")
            for j in range(4): a(f"v_add_f32 v{b0+4+j}, v{b0+4+j}, v{b0+8+j}")
            for j in range(4): a(f"v_add_f32 v{vB+qt*4+j}, v{vB+qt*4+j}, v{b0+4+j}")
            for j in range(2): a(f"v_cvt_pk_bf16_f32 v{vB+qt*4+j}, v{vB+qt*4+2*j}, v{vB+qt*4+2*j+1}")
            a(f"buffer_store_dwordx2 {r('v', vB+qt*4, 2)}, v10, s[{sOUT}:{sOUT+3}], s{sT0} offen{FST}")
            if qt < 4: a(f"s_add_u32 s{sT0}, s{sT0}, {16*1280}")
    if STAMP:
        a("s_waitcnt vmcnt(0)")
        a("s_waitcnt lgkmcnt(0)")
        if STAMP >= 2:
            a(f"s_lshl_b32 s{sT0}, s2, 10\ns_add_u32 s{sT0}, s{sT0}, 0x80000\nv_lshlrev_b32 v15, 2, v0")
            a(f"buffer_store_dword v14, v15, s[{sST}:{sST+3}], s{sT0} offen")
        a("s_memtime s[76:77]\ns_memrealtime s[78:79]\ns_waitcnt lgkmcnt(0)")
        if opt("dbgout", 0):
            a(f"s_cmp_lg_u32 s2, 9\ns_cbranch_scc1 L_exit\ns_cmp_lg_u32 s{sWAVE}, 0\ns_cbranch_scc1 L_exit")
            a(f"s_mov_b32 s{sOUT}, s{pDBG}\ns_mov_b32 s{sOUT+1}, s{pDBG+1}\ns_mov_b32 s{sOUT+2}, 256")
            a("s_mov_b64 exec, 1\nv_mov_b32 v15, 0")
            words = [1, 2, 3, 4, 5, 6, 7, 9]
            for i in range(8):
                a(f"s_sub_u32 s4, s{sSTAMP+4*(i+1)+2}, s{sSTAMP+4*i+2}\nv_mov_b32 v12, s4")
                a(f"buffer_store_dword v12, v15, s[{sOUT}:{sOUT+3}], 0 offen offset:{4*words[i]}\ns_nop 1")
            a(f"s_sub_u32 s4, s78, s{sSTAMP+2}\nv_mov_b32 v12, s4\nbuffer_store_dword v12, v15, s[{sOUT}:{sOUT+3}], 0 offen offset:40")
            a(f"s_sub_u32 s4, s{sSTAMP+16}, s{sSTAMP+12}\nv_mov_b32 v13, s4\nbuffer_store_dword v13, v15, s[{sOUT}:{sOUT+3}], 0 offen offset:44")
        else:
            stamp_store(a, 18, sSTAMP, sST, 4)

TICKET = opt("ticket", 0)
def gen():
    a = Asm()
    a("s_cmp_ge_u32 s2, 256")
    a("s_cbranch_scc1 L_exit")
    a("s_getpc_b64 s[8:9]")
    a(f"s_load_dwordx16 s[{sARG}:{sARG+15}], s[0:1], 0")
    stamp(a)
    a("s_getreg_b32 s6, hwreg(HW_REG_XCC_ID, 0, 3)\ns_getreg_b32 s7, hwreg(HW_REG_HW_ID, 13, 2)\ns_getreg_b32 s4, hwreg(HW_REG_HW_ID, 8, 4)")
    a("s_mul_i32 s7, s7, 9\ns_add_u32 s7, s7, s4")
    a(f"s_mov_b32 s10, L_exit-{KN}-16\ns_mov_b32 s11, 0x20000\ns_mul_i32 s4, s7, 2304")
    a("v_lshrrev_b32 v11, 2, v0\nv_lshlrev_b32 v11, 7, v11")
    a(f"""v_lshrrev_b32 v1, 6, v0
v_and_b32 v3, 63, v0
v_lshrrev_b32 v4, 4, v3
v_readfirstlane_b32 s{sWAVE}, v1
v_and_b32 v5, 15, v3
v_lshlrev_b32 v2, 4, v3
v_lshrrev_b32 v6, 3, v3
v_and_b32 v7, 7, v3""")
    if TICKET:
        a(f"""s_mul_i32 s5, s7, 114
v_add_u32 v8, s5, v0
v_and_b32 v8, 4095, v8
v_lshrrev_b32 v9, 2, v8
v_mul_u32_u24 v9, 1280, v9
v_and_b32 v10, 3, v8
v_lshl_add_u32 v13, v10, 7, v9
v_lshrrev_b32 v9, 4, v8
v_lshlrev_b32 v9, 13, v9
v_and_b32 v10, 15, v8
v_lshl_add_u32 v14, v10, 7, v9
v_mov_b32 v15, 1
v_mov_b32 v16, 0
s_and_b32 s{sT0}, s6, 1
s_mul_i32 s{sT0}, s{sT0}, 1228800
s_lshr_b32 s{sT1}, s6, 1
s_lshl_b32 s{sT1}, s{sT1}, 11
s_mov_b32 s{sX+2}, 1228800
s_mov_b32 s{sX+3}, 0x20000
s_sub_u32 s{sW+2}, 5242880, s{sT1}
s_mov_b32 s{sW+3}, 0x20000
s_mov_b32 s{sWS+2}, 256
s_mov_b32 s{sWS+3}, 0x20000
s_lshl_b32 s5, s6, 5
s_cmp_lg_u32 s{sWAVE}, 0
s_waitcnt lgkmcnt(0)
s_mov_b32 s{sWS}, s{pDBG}
s_mov_b32 s{sWS+1}, s{pDBG+1}
s_cbranch_scc1 L_notk
s_mov_b64 exec, 1
buffer_atomic_add v15, v16, s[{sWS}:{sWS+3}], s5 offen offset:4 sc0 sc1
s_mov_b64 exec, -1
L_notk:
s_add_u32 s{sX}, s{pX}, s{sT0}
s_addc_u32 s{sX+1}, s{pX+1}, 0
s_add_u32 s{sW}, s{pWQ}, s{sT1}
s_addc_u32 s{sW+1}, s{pWQ+1}, 0""")
        if opt("qpf", 0):
            a(f"buffer_load_dword v12, v14, s[{sW}:{sW+3}], 0 offen")
            a(f"buffer_load_dword v12, v13, s[{sX}:{sX+3}], 0 offen")
    TOUCH = opt("touch", 0)
    if TOUCH == 1: a("buffer_load_dword v12, v11, s[8:11], s4 offen")
    if TOUCH == 2:
        a("v_lshlrev_b32 v11, 7, v0\ns_mov_b32 s4, 32768\ns_mov_b32 s5, 65536")
        a("buffer_load_dword v12, v11, s[8:11], 0 offen\nbuffer_load_dword v12, v11, s[8:11], s4 offen\nbuffer_load_dword v12, v11, s[8:11], s5 offen")
    stamp(a, True)
    a("v_lshl_add_u32 v8, v1, 6, v6\nv_mul_u32_u24 v8, 1280, v8\nv_xor_b32 v9, v7, v4")
    for n in range(8):
        a(f"v_xor_b32 v10, {4*(n&1)}, v9")
        a(f"v_lshl_add_u32 v10, v10, 4, v8")
        a(f"v_add_u32 v{vXD+n}, {n*8*1280 - (n&3)*1024}, v10")
    a("v_lshl_add_u32 v8, v1, 4, v4\nv_lshlrev_b32 v8, 13, v8\nv_lshlrev_b32 v9, 2, v4\nv_xor_b32 v9, v9, v5\nv_lshl_add_u32 v8, v9, 4, v8")
    for n in range(4): a(f"v_add_u32 v{vWD+n}, {n*4*8192 - n*1024 - 8*(n>>1)}, v8")
    a(f"""s_lshl_b32 s{sXW}, s{sWAVE}, 13
s_lshl_b32 s{sVW}, s{sWAVE}, 12
s_add_u32 s{sKW}, s{sVW}, {KBASE}
s_mul_i32 s{sWW}, s{sWAVE}, 4112""")
    def rest_v(a):
        kv_voffsets(a, True)
        a("v_lshrrev_b32 v8, 2, v3\nv_and_b32 v9, 7, v8\nv_lshlrev_b32 v8, 8, v8\nv_and_b32 v10, 3, v3\nv_lshl_add_u32 v8, v10, 3, v8")
        for t in range(8):
            a(f"v_xor_b32 v10, {t}, v9")
            a(f"v_lshl_add_u32 v{vVR+t}, v10, 5, v8")
        a(f"v_lshlrev_b32 v8, 13, v1\nv_lshl_add_u32 v8, v5, 7, v8\nv_add_u32 v8, {QBUF[1]}, v8\nv_lshrrev_b32 v9, 1, v5\nv_xor_b32 v9, v9, v4")
        for sp in range(2):
            a(f"v_xor_b32 v10, {4*sp}, v9")
            a(f"v_lshl_add_u32 v{vXR+sp}, v10, 4, v8")
        a(f"v_bfe_u32 v9, v3, 2, 2\nv_lshl_add_u32 v8, v4, 3, v9\nv_lshlrev_b32 v8, 8, v8\nv_and_b32 v10, 3, v3\nv_lshl_add_u32 v8, v10, 4, v8")
        a(f"v_add_u32 v8, {QBUF[1]}, v8\nv_lshl_add_u32 v8, v4, 3, v8")
        for s in range(4):
            a(f"v_xor_b32 v10, {s}, v9")
            a(f"v_lshl_add_u32 v{vWR+s}, v10, 6, v8")
        a("v_and_b32 v8, 3, v3\nv_cmp_eq_u32 vcc, 0, v8\nv_mov_b32 v9, 0x3f803f80\nv_mov_b32 v10, 0\nv_cndmask_b32 v9, v10, v9, vcc")
        for j in range(4): a(f"v_accvgpr_write_b32 a{aONE+j}, v9")
    def kr_setup(a):
        a(f"v_lshlrev_b32 v8, 8, v5\nv_add_u32 v8, {KBASE}, v8\nv_xor_b32 v9, v4, v5")
        for s in range(4):
            a(f"v_xor_b32 v10, {4*s}, v9")
            a(f"v_lshl_add_u32 v{vKR+s}, v10, 4, v8")
    if TICKET:
        rest_v(a)
        a(f"""s_cmp_lg_u32 s{sWAVE}, 0
s_cbranch_scc1 L_tkwait
s_mov_b32 s{sCNT}, 8
s_waitcnt vmcnt({3 if opt("qpf", 0) else 1})
L_tkchk:
v_readfirstlane_b32 s2, v15
s_cmp_lt_u32 s2, 32
s_cbranch_scc1 L_tkok
s_add_u32 s6, s6, 1
s_and_b32 s6, s6, 7
s_lshl_b32 s5, s6, 5
v_mov_b32 v15, 1
s_mov_b64 exec, 1
buffer_atomic_add v15, v16, s[{sWS}:{sWS+3}], s5 offen offset:4 sc0 sc1
s_mov_b64 exec, -1
s_waitcnt vmcnt(0)
s_sub_u32 s{sCNT}, s{sCNT}, 1
s_cbranch_scc0 L_tkchk
s_mov_b32 s2, 32
L_tkok:
s_lshl_b32 s2, s2, 3
s_or_b32 s2, s2, s6
v_mov_b32 v15, s2
ds_write_b32 v16, v15
s_waitcnt lgkmcnt(0)
L_tkwait:
s_barrier
ds_read_b32 v15, v16
s_waitcnt lgkmcnt(0)
v_readfirstlane_b32 s2, v15
s_cmp_ge_u32 s2, 256
s_cbranch_scc1 L_exit""")
    else:
        a("s_waitcnt lgkmcnt(0)")
    stamp(a, True)
    a(f"""s_and_b32 s{sT0}, s2, 1
s_lshl_b32 s{sB}, s{sT0}, 2
s_bfe_u32 s{sT0}, s2, 0x20003
s_add_u32 s{sB}, s{sB}, s{sT0}
s_and_b32 s{sH}, s2, 6
s_lshl_b32 s{sH}, s{sH}, 2
s_lshr_b32 s{sT1}, s2, 5
s_add_u32 s{sH}, s{sH}, s{sT1}
s_add_u32 s{sQS}, s{sH}, s{sB}
s_and_b32 s{sQS}, s{sQS}, {opt("qm", 3)}
s_mul_i32 s{sT0}, s{sB}, 307200
s_lshl_b32 s{sT1}, s{sH}, 8
s_mov_b32 s{sX+2}, 307200
s_mov_b32 s{sX+3}, 0x20000
s_mov_b32 s{sW+3}, 0x20000
s_sub_u32 s{sW+2}, 5242880, s{sT1}
s_add_u32 s{sX}, s{pX}, s{sT0}
s_addc_u32 s{sX+1}, s{pX+1}, 0
s_add_u32 s{sW}, s{pWQ}, s{sT1}
s_addc_u32 s{sW+1}, s{pWQ+1}, 0""")
    s0 = qstage(0, 8)
    s0 = s0[:5] + s0[-5:] + s0[5:-5]
    flat(a, s0[:-2])
    a(f"s_cmp_eq_u32 s{sWAVE}, 3")
    a("s_cbranch_scc1 L_x6")
    flat(a, s0[-2:])
    a("L_x6:")
    if not TICKET: rest_v(a)
    kr_setup(a)
    kv_srds(a)
    a(f"""s_mov_b32 s{sWS}, s{pWS}
s_mov_b32 s{sWS+1}, s{pWS+1}
s_mov_b32 s{sWS+2}, {8*15*128*1024}
s_mov_b32 s{sWS+3}, 0x20000""")
    if STAMP:
        a(f"s_add_u32 s{sST}, s{pWS}, 0x10000000\ns_addc_u32 s{sST+1}, s{pWS+1}, 0\ns_mov_b32 s{sST+2}, 0x100000\ns_mov_b32 s{sST+3}, 0x20000")
    a(f"s_mul_i32 s3, s{sB}, 96\ns_add_u32 s3, s3, s{sH}\ns_mul_i32 s3, s3, 20480")
    a(f"s_lshr_b32 s{sROT}, s2, 3\ns_lshl_b32 s{sROT}, s{sROT}, 14")
    a(f"""s_lshr_b32 s4, s2, 3
s_mul_i32 s6, s4, 52
s_lshr_b32 s6, s6, 8
s_mul_i32 s5, s6, 5
s_sub_u32 s5, s4, s5
s_mov_b32 s{sR}, 0
s_and_b32 s7, s2, 1
s_mul_i32 s7, s7, 5
s_add_u32 s5, s5, s7
s_and_b32 s{sOB}, s2, 6
s_mul_i32 s{sOB}, s{sOB}, 3
s_add_u32 s{sOB}, s{sOB}, s6
s_mul_i32 s6, s{sWAVE}, {1024*1280}
s_lshl_b32 s7, s5, 7
s_add_u32 s6, s6, s7
s_add_u32 s{sWO}, s{pWO}, s6
s_addc_u32 s{sWO+1}, s{pWO+1}, 0
s_sub_u32 s{sWO+2}, 5242880, s6
s_cmp_ge_u32 s2, 240
s_cselect_b32 s{sWO+2}, 0, s{sWO+2}
s_mov_b32 s{sWO+3}, 0x20000""")
    if opt("tlb", 0):
        a(f"s_mov_b64 exec, 1\nv_mov_b32 v11, 0")
        a(f"buffer_load_dword v12, v11, s[{sK}:{sK+3}], s{sROT} offen nt")
        a(f"buffer_load_dword v12, v11, s[{sV}:{sV+3}], s{sROT} offen nt")
        a(f"buffer_load_dword v12, v11, s[{sWO}:{sWO+3}], 0 offen")
        a(f"s_mov_b64 exec, -1")
    s1 = qstage(1, 8)
    flat(a, s1[:5] + s1[-5:])
    stamp(a, True)
    a(f"s_cmp_eq_u32 s{sWAVE}, 3")
    a("s_cbranch_scc1 L_waveB")
    base = nstamp[0]
    gen_wave(a, 4, "A")
    a("L_waveB:")
    nstamp[0] = base
    gen_wave(a, 3, "B")
    gen_common(a)
    a("L_exit:")
    a("s_endpgm")
    return a.text()

body = gen()
print(wrap([dict(name=KN, grid=256, block=256, lds=163840, body=body, vgpr=512, sgpr=102, accum=256)]))
```

```python
import sys, struct, math
from gencommon import *

OPT = dict(kv.split("=") for kv in sys.argv[1:])
def opt(k, d): return type(d)(OPT.get(k, d))
STAMP = opt("stamp", 0)
MAP = opt("map", "mixed")
NT = opt("nt", 1)
FORCE_SAFE = opt("safe", 0)
QLEAD = opt("qlead", 28)
K0AT = opt("k0at", 2)
assert K0AT <= 4
WARM = opt("warm", 1)
OD = opt("od", 5)
OLD = {"": "", "plain": "", "nt": " nt", "sc1": " sc1", "sc01": " sc0 sc1"}[opt("old", "sc1")]
OST = {"": "", "plain": "", "sc1": " sc1", "sc01": " sc0 sc1"}[opt("ost", "sc01")]
SPIN = opt("spin", 1 << 16)
CHAIN = opt("chain", 2)
QC = opt("qc", 0)
LAG = opt("lag", 12)
NV = opt("nv", 0)
vLV = {1: 1, 2: 6, 3: 7}
def valu_sum(nq, q): return nq == 4 and q >= 4 - NV
DMA3 = opt("dma3", 1)
FST = {"": "", "sc01": " sc0 sc1", "nt": " nt"}[opt("fst", "")]
PMAP = opt("pmap", 1)
PF = [int(t) for t in opt("pf", "").split(",") if t]
PF0 = opt("pf0", 0)
sPF = 72
W6 = [tuple(int(y) for y in x.split(":")) for x in opt("w6", "29:56,30:56").split(",") if x]
sPFW = 6
PFD, PFA = (13, 14) if STAMP < 2 else (12, 1)
SNAKE = opt("snake", 1)

MF = "v_mfma_f32_16x16x32_bf16"
VBASE, SBASE, KBASE = 0, 64 * 1024, 96 * 1024
QBUF = [0, 48 * 1024, 96 * 1024]
XOFF, WOFF = 0, 31744
def kslot(t): return (t + 3) % 4
def vslot(t): return t % 4
vO = 128; vS = 64; vNM = 48
vKR = 16; vVR = 20; vKD = 28; vVD = 32; vXD = 36; vWD = 44
vXR = 64; vWR = 66
vWO = 36
vAR = [40, 44, 8]
aQ = 0; aK = 64; aV = 96; aL = 128; aONE = 144
aQA = [64, 96]; aQB = [148, 164]
sK, sV, sX, sW, sWS = 8, 12, 16, 20, 24
sO, sOUT = 16, 20
sWAVE, sKW, sVW, sXW, sWW = 28, 29, 30, 31, 32
sKoff, sVoff, sCNT, sB, sH, sT0, sT1 = 33, 34, 35, 36, 37, 38, 39
sKinc, sKmask, sVinc, sVmask = 6, 7, 31, 32
sST, sSTAMP = 40, 44
sWO = 76
sROT, sQS, sR, sOB = 80, 81, 82, 83
sARG = 84
pX, pK, pV, pWQ, pWO, pOUT, pDBG, pWS = [sARG + 2 * i for i in range(8)]
CSCALE = struct.unpack("<I", struct.pack("<f", math.log2(math.e) / math.sqrt(128.0)))[0]
WCONT = opt('wcont', 0)
WSTEP = 4096 if WCONT else 32 * 1280

def r(pfx, b, n=4): return f"{pfx}[{b}:{b+n-1}]"
def O(q, d): return r("v", vO + (q * 8 + d) * 4)
def S(p, q, kt): return vS + 32 * p + 8 * q + 4 * kt
def pol(srd): return "" if (srd == sV and opt("vdef", 0)) or (srd == sK and opt("kdef", 0)) else ntf()
POLS = {"n": " nt", "d": "", "s": " sc1", "t": " sc1 nt", "z": " sc0", "a": " sc0 sc1 nt", "b": " sc0 sc1", "y": " sc0 nt"}
def pol2(srd, c, i):
    m = opt("pm", "")
    if not m: return pol(srd)
    if m[0] == "i": return POLS[m[1 + i]]
    return POLS[m[(0 if srd == sK else 4) + c]]
def ntf(): return {0: "", 1: " nt", 2: " sc1 nt"}[NT]

nstamp = [0]
def stamp(a, early=False):
    if (STAMP == 5) != early and not (STAMP == 5 and nstamp[0] == 0): return
    if STAMP:
        i = nstamp[0]; nstamp[0] += 1
        assert i < 8
        a(f"s_memtime s[{sSTAMP+4*i}:{sSTAMP+4*i+1}]")
        a(f"s_memrealtime s[{sSTAMP+4*i+2}:{sSTAMP+4*i+3}]")
def rec(a):
    a("v_cmp_eq_u32 vcc, v13, v3\nv_mov_b32 v15, s100\nv_add_u32 v13, 1, v13\nv_cndmask_b32 v14, v14, v15, vcc")

def dmaK(n): return f"buffer_load_dwordx4 v{vKD+n}, s[{sK}:{sK+3}], s{sKoff} offen offset:{n*1024}{pol(sK)} lds"
def dmaV(n): return f"buffer_load_dwordx4 v{vVD+n}, s[{sV}:{sV+3}], s{sVoff} offen offset:{n*1024}{ntf() if not opt('vdef', 0) else ''} lds"
def kread(f, off, ktoff=4096, aK=aK):
    kt, s = f >> 2, f & 3
    return f"ds_read_b128 {r('a', aK+4*f)}, v{vKR+s} offset:{off + kt*ktoff}"
def vread(d, second, off, soff=4096):
    return f"ds_read_b64_tr_b16 {r('a', aV+4*d+2*second, 2)}, v{vVR+d} offset:{off + second*soff}"
def qk(p, q, kt, s, czero=False, aK=aK, first=None):
    b = S(p, q, kt)
    c = r("v", b) if not (s == 0 if first is None else first) else ("0" if czero else r("v", vNM + 4 * q))
    return f"{MF} {r('v', b)}, {r('a', aK+4*(kt*4+s))}, {r('a', aQ+16*q+4*s)}, {c}"
def pv(p, q, d): return f"{MF} {O(q,d)}, {r('a', aV+4*d)}, {r('v', S(p,q,0))}, {O(q,d)}"
def sm(p, q): return f"{MF} {r('a', aL+4*q)}, {r('a', aONE)}, {r('v', S(p,q,0))}, {r('a', aL+4*q)}"
def softmax_ops(p, nq):
    ex, cv = [], []
    for kt in range(2):
        for q in range(nq):
            b = S(p, q, kt)
            for j in range(4): ex.append(f"v_exp_f32 v{b+j}, v{b+j}")
            for j in range(2):
                pre = [f"v_add_f32 v{vLV[q]}, v{vLV[q]}, v{b+2*j+i}" for i in range(2)] if valu_sum(nq, q) else []
                if opt("perm", 0): cv.append(pre + [f"v_perm_b32 v{S(p,q,0)+2*kt+j}, v{b+2*j+1}, v{b+2*j}, s{sWW}"])
                else: cv.append(pre + [f"v_cvt_pk_bf16_f32 v{S(p,q,0)+2*kt+j}, v{b+2*j}, v{b+2*j+1}"])
    return ex, cv

PRE = [(0, 4), (1, 5)]
PLAN = {28: ([0, 1], [(2, 9), (3, 4), (4, 5)]),
        29: ([2, 3], [(5, 6), (6, 0), (7, 9), (8, 4)]),
        30: ([4, 5], [(9, 7), (10, 1), (11, 5), (12, 6)]),
        31: ([], [(13, 8), (14, 2)])}
PIECE = dict(PRE)
for _b in PLAN.values(): PIECE.update(dict(_b[1]))
VBANK = [20, 48, 64, 80, 96, 112]
def bank_of(n):
    if n < 16: return "a", ((n + 10) % 16) * 16
    if n < 22: return "v", VBANK[n - 16]
    return bank_of(n - 22)
def wo_issue(n, piece):
    out = [("s", f"s_add_u32 s{sT0}, s{sR}, {n}"), ("s", f"s_and_b32 s{sT0}, s{sT0}, 31"),
           ("s", f"s_mul_i32 s{sT0}, s{sT0}, {WSTEP}"), ("s", f"s_add_u32 m0, s{sVW}, {piece*16384}")]
    out += [("M", f"buffer_load_dwordx4 v{vWO+i}, s[{sWO}:{sWO+3}], s{sT0} offen offset:{i*1024} lds") for i in range(4)]
    return out
def wo_reads(n, piece):
    rf, bank = bank_of(n)
    return [f"ds_read_b64_tr_b16 {r(rf, bank+4*t+2*h, 2)}, v{vAR[piece >> 2]+t} offset:{(piece & 3)*16384 + h*2048}" for t in range(4) for h in range(2)]
def flat(a, items):
    prev = None
    for it in items:
        k, t = it[0], it[1]
        if k == "M" and prev and "m0" in prev: a("s_nop 0")
        a(t); prev = t

class Body:
    def __init__(self):
        self.mf = []; self.big = {}; self.pre = {}; self.cv = {}; self.lastcv = 0; self.lag = 4
    def add(self, text, need=None): self.mf.append((text, need))
    def place_big(self, kind, text, target, tag=None, hi=None, req=None):
        n = len(self.mf)
        target = min(target, n - 1)
        hi = min(n - 1, target + 3 if hi is None else max(hi, target))
        g = target
        while g in self.big and g < hi: g += 1
        if g in self.big: g = min(range(target, hi + 1), key=lambda x: len(self.big[x]))
        self.big.setdefault(g, []).append((kind, text, tag, req))
        return g
    def place_d(self, text, lo, tag, cap, req=None):
        g = lo
        while True:
            kinds = [x[0] for x in self.big.get(g, [])]
            if all(k == "D" for k in kinds) and len(kinds) < cap: break
            g += 1
        assert g < len(self.mf)
        self.big.setdefault(g, []).append(("D", text, tag, req))
        return g
    def place_cvt(self, texts, lo, hi):
        for t in texts: g = self.place_cvt1(t, lo, hi)
        return g
    def place_cvt1(self, text, lo, hi):
        n = len(self.mf); best = None
        lo0 = lo
        lo = max(lo, self.lastcv)
        for g in range(lo, min(hi, lo0 + self.lag, n - 1) + 1):
            kinds = [x[0] for x in self.big.get(g, [])]
            cnt = len(self.cv.get(g, []))
            if (kinds == ["D"] and cnt == 0) or (kinds == [] and cnt < 2): best = g; break
        if best is None: best = min(lo, n - 1)
        self.cv.setdefault(best, []).append(text)
        self.lastcv = best
        return best
    def place_s(self, text, lo, hi=None):
        n = len(self.mf)
        hi = lo if hi is None else hi
        for g in range(lo, min(hi, n - 1) + 1):
            kinds = [x[0] for x in self.big.get(g, [])]
            if not self.pre.get(g) and (kinds == ["E"] or kinds == [] or (kinds == ["D"] and not self.cv.get(g))):
                self.pre.setdefault(g, []).append(text); return g
        self.pre.setdefault(lo, []).append(text); return lo
    def spread(self, it, start, span, req=None):
        nm = sum(1 for x in it if x[0] == "M")
        i = 0; pend = []; lastg = start
        for k, t, tag in it:
            if k != "M": pend.append(t); continue
            g = self.place_big("M", t, max(start + 2 + int(i * span / nm), lastg + 1 + (len(pend) + 1) // 2), tag, req=req if i == 0 else None)
            for j, pt in enumerate(pend):
                self.pre.setdefault(max(lastg + 1, g - (len(pend) - j + 1) // 2), []).append(pt)
            pend = []; lastg = g; i += 1
        return lastg
    def emit(self, a, resident=(), vm=None, vmdone=None):
        total = {}
        for items in self.big.values():
            for k, t, tag, req in items:
                if k in "DM": total[(k, tag)] = total.get((k, tag), 0) + 1
        st = dict(q=[], issued={})
        done = set(resident)
        vmdone = vmdone if vmdone is not None else set()
        def wait(tags):
            lds = [t for t in tags if t[0] != "vm" and t not in done]
            vms = [t[1] for t in tags if t[0] == "vm" and t[1] not in vmdone]
            parts = []
            if vms:
                for t in vms: assert st["issued"].get(("M", t), 0) == total.get(("M", t), 0) and t in vm, ("vm not issued", t)
                N = min(vm[::-1].index(t) for t in vms)
                N = min(N, 60)
                parts.append(f"vmcnt({N})")
                for t in vm[:len(vm) - N]: vmdone.add(t)
                for t in vm[len(vm) - N:]: vmdone.discard(t)
            if lds:
                q = st["q"]
                for t in lds: assert st["issued"].get(("D", t), 0) == total[("D", t)] and t in q, ("lds not issued", t)
                N = min(min(q[::-1].index(t) for t in lds), 10)
                parts.append(f"lgkmcnt({N})")
                for t in q[:len(q) - N]: done.add(t)
                st["q"] = q[len(q) - N:]
                for t in st["q"]: done.discard(t)
            if parts: a("s_waitcnt " + " ".join(parts))
        n = len(self.mf)
        if self.mf[0][1]: wait(self.mf[0][1])
        for g in range(n):
            a(self.mf[g][0])
            late = None
            nxt = self.mf[g + 1][1] if g + 1 < n else None
            if nxt: wait(nxt)
            for t in self.pre.get(g, []): a(t)
            for kind, text, tag, req in self.big.get(g, []):
                if req: wait(req)
                if kind == "b":
                    a("s_waitcnt lgkmcnt(0)")
                    for t in st["q"]: done.add(t)
                    st["q"] = []
                if kind == "B" and STAMP == 3:
                    a("s_memtime s[100:101]\ns_waitcnt lgkmcnt(0)"); rec(a)
                    a(f"s_waitcnt vmcnt({vm[::-1].index(tag)})\ns_memtime s[100:101]\ns_waitcnt lgkmcnt(0)"); rec(a)
                if kind == "B":
                    nv = vm[::-1].index(tag)
                    a(f"s_waitcnt vmcnt({nv}) lgkmcnt(0)")
                    for t in st["q"]: done.add(t)
                    st["q"] = []
                if not (kind in opt("drop", "") and getattr(self, "loop", False)): a(text)
                if kind in "DM": st["issued"][(kind, tag)] = st["issued"].get((kind, tag), 0) + 1
                if kind == "M" and vm is not None: vm.append(tag); vmdone.discard(tag)
                if kind == "D": st["q"].append(tag); done.discard(tag)
            for t in self.cv.get(g, []): a(t)

def estimate(lines):
    tot = 0; t = None; over = 0
    for l in lines + ["v_mfma"]:
        l = l.strip()
        if l.startswith("v_mfma"):
            if t is not None: tot += max(16, t); over += t > 16
            t = 4; lastv = False
        elif l.startswith("ds_"): t += 8 + (4 if lastv else 0)
        elif l.startswith("buffer_"): t += 12
        elif l.startswith("v_"): t = max(t, 8) + (8 if l.startswith("v_exp") else 4); lastv = True
        elif l.endswith(":"): pass
        else: t += 4
    return tot, over

def merge(a, V, M):
    pos = {}; n = [0]
    def ready(it): return all(d in pos and n[0] - pos[d] - 1 >= dist for d, dist in it[2])
    def put(it):
        a(it[1]); n[0] += len(it[1].split("\n")); pos[it[0]] = n[0] - 1
    vi = mi = 0
    while vi < len(V) or mi < len(M):
        did = False
        if mi < len(M) and ready(M[mi]): put(M[mi]); mi += 1; did = True
        cost = 0
        while vi < len(V) and cost < 2 and ready(V[vi]):
            cost += 2 if V[vi][1].startswith(("v_exp", "ds_", "buffer_")) else 1
            put(V[vi]); vi += 1; did = True
        if not did: a("s_nop 0"); n[0] += 1

NTAIL = {4: 26, 3: 20}
VMDONE = set()

def gen_body(a, nq, u, L, last=False, loopctl=None, idx=None, vm=None):
    B = Body()
    B.loop = idx is None
    if nq == 4 and NV and not last: B.lag = LAG
    vo, ko = vslot(u) * 16384, kslot(u + 1) * 16384
    def g_qk(p, kts, gen):
        for kt in kts:
            if CHAIN:
                for q in range(nq):
                    ss = list(range(4)) if (q % 2 == 0 or CHAIN == 1) else [3, 2, 1, 0]
                    for i, s in enumerate(ss): B.add(qk(p, q, kt, s, first=(i == 0)), ([("K", kt * 4 + x, gen) for x in range(4)] if i == 0 else None) if q == 0 else None)
            else:
                for s in range(4):
                    for q in range(nq): B.add(qk(p, q, kt, s), [("K", kt * 4 + s, gen)] if q == 0 else None)
    def g_pv(p, gen):
        for d in range(8):
            qs = list(range(nq)) if (d % 2 == 0 or not SNAKE) else list(range(nq - 1, -1, -1))
            for i, q in enumerate(qs): B.add(pv(p, q, d), [("V", d, gen)] if i == 0 else None)
        for q in range(nq):
            if not valu_sum(nq, q): B.add(sm(p, q))
    g_qk(1, [1], 0); P0 = len(B.mf)
    g_pv(0, 0); Q1 = len(B.mf)
    if not last: g_qk(0, [0, 1], 1)
    P1 = len(B.mf)
    g_pv(1, 1)
    if not last: g_qk(1, [0], 2)
    n = len(B.mf)
    resident = [("K", f, 0) for f in range(4, 8)]
    sc = nq / 4.0
    for d in range(8):
        for h in range(2): B.place_big("D", vread(d, h, vo), int((4 * d + 2 * h) * sc), ("V", d, 0))
    ex0, cv0 = softmax_ops(0, nq); ex1, cv1 = softmax_ops(1, nq)
    ne = len(ex0)
    win = P1 - P0
    full = nq * 17 - (NV if nq == 4 else 0)
    ntail = NTAIL[nq]
    if not last:
        for f in range(8): B.place_big("D", kread(f, ko), Q1 - int((22 if CHAIN else 20) * sc) + int(4 * f * sc), ("K", f, 1))
    for d in range(8):
        for h in range(2):
            lo = max(P1 - int(20 * sc) + int((4 * d + 2 * h) * sc), P0 + nq * d + nq)
            B.place_big("D", vread(d, h, vo + 8192), lo, ("V", d, 1))
    if not last:
        for f in range(8): B.place_big("D", kread(f, ko + 8192), P1 + int(12 * sc) + int(4 * f * sc), ("K", f, 2))
        mVe = 0
        if DMA3:
            if nq == 3 and (idx is None or idx == 28):
                def stream(so, srd, vd, ldsoff, tag):
                    it = [("s", f"s_add_u32 s{so}, s{so}, 16384", None), ("s", f"s_and_b32 s{so}, s{so}, 0x7ffff", None)]
                    for c in range(4):
                        it += [("s", f"s_add_u32 s4, s{so}, {c*4096}", None), ("s", f"s_mov_b32 m0, {ldsoff + c*4096}", None)]
                        it += [("M", f"buffer_load_dwordx4 v{vd+i}, s[{srd}:{srd+3}], s4 offen offset:{i*1024}{pol2(srd, c, i)} lds", tag) for i in range(4)]
                    return it
                it = stream(sVoff, sV, vVD, VBASE + vslot(u + 3) * 16384, ("V", 31))
                if idx is None: it += stream(sKoff, sK, vKD, KBASE + kslot(u + 4) * 16384, None)
                mVe = B.spread(it, 0, n - 12 if idx is None else 40)
                assert mVe < n - 8
        else:
            if idx is None or idx == 28:
                g0 = Q1 - int(18 * sc) if idx is None else 3
                gs = [B.place_big("M", dmaV(i), g0 + int((8 if idx is None else 4) * i * sc), ("V", 31)) for i in range(4)]
                mV, mVe = gs[0], gs[-1]
            if idx is None:
                g0 = P1 + int(14 * sc)
                gs = [B.place_big("M", dmaK(i), g0 + int(8 * i * sc)) for i in range(4)]
                mK, mKe = gs[0], gs[-1]
    if idx is not None:
        rd, iss = PLAN[idx]
        g = int(30 * sc)
        for j in rd:
            for i, t in enumerate(wo_reads(j, PIECE[j])):
                g = B.place_big("D", t, g, ("W", j), req=[("vm", ("w", j))] if i == 0 else None) + 2
        g = mVe + 1 if idx == 28 else 0
        span = ((n - 6 - g) // len(iss)) if not last else int(16 * sc)
        for j, pc in iss:
            src = [x for x in rd if PIECE[x] == pc]
            if src: g = max(g, int(74 * sc))
            it = [(k, t, ("w", j)) for k, t in wo_issue(j, pc)]
            g = B.spread(it, g, min(span, int(24 * sc)), req=[("W", src[0])] if src else None) + 1
            assert g < n
        for k, (bi, gp) in enumerate(W6):
            if bi == idx:
                g = int(gp * sc)
                B.place_big("M", f"buffer_load_dword v{PFD}, v{PFA}, s[{sWO}:{sWO+3}], s{sPFW+k} offen", g, ("pfw", k))
    eg0, eg1, egt = {}, {}, {}
    nh = ne - ntail
    for i in range(ntail, ne):
        eg0[i] = B.place_big("E", ex0[i], max(1 + int((i - ntail) * (P0 - 4) / max(nh, 1)), eg0.get(i - 1, 0)))
    for i in range(ne):
        t = P0 + 1 + int(i * (win - 5) / ne)
        if i >= ne // 2: t = max(t, P0 + 5)
        eg1[i] = B.place_big("E", ex1[i], max(t, eg1.get(i - 1, 0)), hi=min(t + 3, P1 - 4))
    if not last:
        for i in range(ntail):
            t = P1 + 1 + int(i * (full - 5) / ne)
            egt[i] = B.place_big("E", ex0[i], max(t, egt.get(i - 1, 0)), hi=min(t + 3, n - 2))
    for j in range(ntail // 2, ne // 2):
        q = (j // 2) % nq
        g = B.place_cvt(cv0[j], eg0[2 * j + 1] + 1, P0 + q - 2)
        assert g <= P0 + q - 2
    for j in range(ne // 2):
        q = (j // 2) % nq
        g = B.place_cvt(cv1[j], eg1[2 * j + 1] + 1, P1 + q - 3)
        assert g <= P1 + q - 3, (j, g, P1)
    assert eg1[ne // 2] >= P0 + 5
    if not last:
        for j in range(ntail // 2): B.place_cvt(cv0[j], egt[2 * j + 1] + 1, n - 1)
        assert min(egt.values()) >= Q1 + 4 * nq + 5
        if ntail > ne // 2: assert egt[ne // 2] >= P1 + 5
        if DMA3: pass
        elif idx is None:
            B.place_s(f"s_add_u32 m0, s{sVW}, {VBASE + vslot(u+3)*16384}", mV - 4, mV - 1)
            g = B.place_s(f"s_add_u32 s{sVoff}, s{sVoff}, 16384", mV - 12, mV - 6)
            B.place_s(f"s_and_b32 s{sVoff}, s{sVoff}, 0x7ffff", g + 1, mV - 1)
            B.place_s(f"s_add_u32 m0, s{sKW}, {kslot(u+4)*16384}", mK - 4, mK - 1)
            g = B.place_s(f"s_add_u32 s{sKoff}, s{sKoff}, 16384", mK - 12, mK - 6)
            B.place_s(f"s_and_b32 s{sKoff}, s{sKoff}, 0x7ffff", g + 1, mK - 1)
        elif idx == 28:
            B.pre.setdefault(0, []).extend([f"s_add_u32 s{sVoff}, s{sVoff}, 16384", f"s_and_b32 s{sVoff}, s{sVoff}, 0x7ffff"])
            B.pre.setdefault(1, []).append(f"s_add_u32 m0, s{sVW}, {VBASE + vslot(u+3)*16384}")
        if loopctl:
            B.place_s(loopctl[0], n - 8, n - 5)
            B.place_s(loopctl[1], n - 4, n - 2)
    t = Asm()
    B.emit(t, resident, vm=vm, vmdone=VMDONE if vm is not None else None)
    a.l += t.l
    if opt("est", 0): sys.stderr.write(f"body {L} u={u} idx={idx}: mfma {n} est {estimate(t.l)}\n")
    if idx is not None and not last:
        need = [("V", idx + 1)] + ([("K", idx + 2)] if idx + 2 < 32 else [])
        N = min(min(vm[::-1].index(t) if t in vm else 60 for t in need), 60)
        if STAMP == 2: a("s_memtime s[100:101]")
        a(f"s_waitcnt vmcnt({N}) lgkmcnt(0)")
        for t in vm[:len(vm) - N]: VMDONE.add(t)
        for t in vm[len(vm) - N:]: VMDONE.discard(t)
        a("s_barrier")
        if STAMP == 2: rec(a)
    elif last:
        if STAMP == 2: a("s_memtime s[100:101]\ns_waitcnt lgkmcnt(0)"); rec(a)
    else:
        if STAMP == 2: a("s_memtime s[100:101]")
        for _ in range(opt("idle", 0)): a("s_nop 15")
        a(f"s_waitcnt vmcnt({16 if not DMA3 else 60 if nq == 3 else 8 if u == 0 else 0}) lgkmcnt(0)")
        if not opt("nobar", 0): a("s_barrier")
        if STAMP == 2: rec(a)

def kv_voffsets(a, wave):
    if wave:
        a("v_lshlrev_b32 v8, 12, v1")
        a("v_lshl_add_u32 v8, v4, 8, v8")
    else:
        a("v_lshlrev_b32 v8, 8, v4")
    a("v_xor_b32 v9, v5, v4")
    for n in range(4):
        a(f"v_xor_b32 v10, {4*n}, v9")
        a(f"v_lshl_add_u32 v{vKD+n}, v10, 4, v8")
    a("v_lshlrev_b32 v9, 1, v4")
    a("v_xor_b32 v9, v9, v5")
    for p in range(2):
        a(f"v_xor_b32 v10, {8*p}, v9")
        a(f"v_lshl_add_u32 v{vVD+p}, v10, 4, v8")
        a(f"v_mov_b32 v{vVD+p+2}, v{vVD+p}")
def kv_srds(a):
    a(f"""s_lshl_b32 s{sT0}, s{sB}, 5
s_add_u32 s{sT0}, s{sT0}, s{sH}
s_lshl_b32 s{sT0}, s{sT0}, 19
s_add_u32 s{sK}, s{pK}, s{sT0}
s_addc_u32 s{sK+1}, s{pK+1}, 0
s_mov_b32 s{sK+2}, 524288
s_mov_b32 s{sK+3}, 0x20000
s_add_u32 s{sV}, s{pV}, s{sT0}
s_addc_u32 s{sV+1}, s{pV+1}, 0
s_mov_b32 s{sV+2}, 524288
s_mov_b32 s{sV+3}, 0x20000""")
def ar_setup(a):
    a("v_lshrrev_b32 v12, 2, v3\nv_lshlrev_b32 v12, 7, v12\nv_and_b32 v15, 3, v3\nv_lshl_add_u32 v12, v15, 3, v12")
    a(f"v_add_u32 v12, s{sVW}, v12\nv_bfe_u32 v15, v3, 3, 2")
    for t in range(4):
        a(f"v_xor_b32 v{vAR[0]+t}, {t}, v15")
        a(f"v_lshl_add_u32 v{vAR[0]+t}, v{vAR[0]+t}, 5, v12")
        a(f"v_add_u32 v{vAR[1]+t}, 0x10000, v{vAR[0]+t}")
        a(f"v_add_u32 v{vAR[2]+t}, 0x20000, v{vAR[0]+t}")

def xlane(a, regs, op2, tmp=1):
    for op in ("v_permlane32_swap_b32", "v_permlane16_swap_b32"):
        for m in regs: a(f"v_mov_b32 v{m+tmp}, v{m}")
        a("s_nop 1")
        for m in regs: a(f"{op} v{m}, v{m+tmp}")
        a("s_nop 1")
        for m in regs: a(f"{op2} v{m}, v{m}, v{m+tmp}")

def qstage(st, nx):
    buf = QBUF[(st + 1) % 3]
    out = [("s", f"s_lshl_b32 s{sT0}, s{sQS}, 7"), ("s", f"s_lshl_b32 s{sT1}, s{sQS}, 19"), ("s", f"s_add_u32 s{sQS}, s{sQS}, 1"),
           ("s", f"s_cmp_eq_u32 s{sQS}, 10"), ("s", f"s_cselect_b32 s{sQS}, 0, s{sQS}"), ("s", f"s_add_u32 m0, s{sXW}, {buf+XOFF}")]
    for n in range(nx):
        if n == 4: out.append(("s", f"s_add_u32 m0, s{sXW}, {buf+XOFF+4096}"))
        out.append(("M", f"buffer_load_dwordx4 v{vXD+n}, s[{sX}:{sX+3}], s{sT0} offen offset:{(n&3)*1024} lds"))
    out.append(("s", f"s_add_u32 m0, s{sWW}, {buf+WOFF}"))
    for n in range(4):
        out.append(("M", f"buffer_load_dwordx4 v{vWD+n}, s[{sW}:{sW+3}], s{sT1} offen offset:{n*1024 + 8*(n>>1)} lds"))
    return [(k, t, ("q", st)) for k, t in out]

def gen_wave(a, nq, L):
    nx = 2 * nq
    def qstage_issue(st): return qstage(st, nx)
    def kv_issue(kind, t):
        so, sw, off, f = (sKoff, sKW, kslot(t) * 16384, dmaK) if kind == "K" else (sVoff, sVW, VBASE + vslot(t) * 16384, dmaV)
        out = [("s", f"s_add_u32 s{so}, s{sROT}, {t*16384}"), ("s", f"s_and_b32 s{so}, s{so}, 0x7ffff"), ("s", f"s_add_u32 m0, s{sw}, {off}")]
        out += [("M", f(n)) for n in range(4)]
        return [(k, x, (kind, t)) for k, x in out]
    vm = []
    def now(it):
        flat(a, it)
        for x in it:
            if x[0] == "M": vm.append(x[2])
    def vmwait(tag): return vm[::-1].index(tag)
    vm += [("q", 0)] * (nx + 4) + [("tlb", 0)] * (3 if opt("tlb", 0) else 0) + [("q", 1)] * 4
    s1 = qstage_issue(1)[5:-5]
    def qreads(st, sp):
        out = [(f"ds_read_b128 {r('a', aQB[sp]+4*q)}, v{vXR+sp} offset:{XOFF + q*2048}", ("B", st, sp)) for q in range(nq)]
        for t in range(8):
            s, odd = t >> 1, t & 1
            for h in range(2):
                out.append((f"ds_read_b64_tr_b16 {r('a', aQA[sp]+4*t+2*h, 2)}, v{vWR+s} offset:{WOFF + odd*8 + h*1024 + sp*8224}", ("A", st, sp, t)))
        return out
    def rot(st):
        d = QBUF[(st + 2) % 3] - QBUF[(st + 1) % 3]
        return [f"v_add_u32 v{vXR+i}, {d}, v{vXR+i}" if d > 0 else f"v_subrev_u32 v{vXR+i}, {-d}, v{vXR+i}" for i in range(6)]
    stamp(a, True)
    a(f"s_waitcnt vmcnt({vmwait(('q', 0))})")
    stamp(a, True)
    a("s_barrier")
    stamp(a); stamp(a, True)
    B = Body()
    PH = 8 * nq
    for st in range(10):
        for sp in range(2 if st < 9 else 1):
            for t in range(8):
                for q in range(nq):
                    c = "0" if (st == 0 and sp == 0) else O(q, t)
                    B.add(f"{MF} {O(q,t)}, {r('a', aQA[sp]+4*t)}, {r('a', aQB[sp]+4*q)}, {c}",
                          ([("A", st, sp, t)] + ([("B", st, sp)] if t == 0 else [])) if q == 0 else None)
    if STAMP == 3:
        a("v_mov_b32 v13, 0\nv_mov_b32 v14, 0\ns_memtime s[100:101]\ns_waitcnt lgkmcnt(0)"); rec(a)
    first = qreads(0, 0)
    for t, _ in first: a(t)
    UP = opt("up1", 8)
    mi = [i for i, x in enumerate(s1) if x[0] == "M"]
    cut = mi[min(UP, len(mi)) - 1] + 1 if UP else 0
    now(s1[:cut]); s1 = s1[cut:]
    a("s_waitcnt lgkmcnt(0)")
    stamp(a, True)
    LQ = int(QLEAD * nq / 4)
    for st in range(9):
        bar = 2 * PH * (st + 1) - LQ
        B.place_big("B", "s_barrier", bar, ("q", st + 1), hi=bar)
        for i, t in enumerate(rot(st)): B.cv.setdefault(bar - 3 + i // 2, []).append(t)
    def nM(it): return sum(1 for x in it if x[0] == "M")
    RATE = opt("qrate", 2.5) * nq / 4 * 12 / (nx + 4)
    g = -1
    if s1: g = B.spread(s1, g, int(nM(s1) * opt("r1", 2.0)))
    it = qstage_issue(2)
    qcoop = [("M", f"buffer_load_dword v12, v13, s[{sX}:{sX+3}], 0 offen", ("qc", 0)), ("M", f"buffer_load_dword v12, v14, s[{sW}:{sW+3}], 0 offen", ("qc", 1))]
    if QC == 1: it = it + qcoop
    g = B.spread(it, g, int(nM(it) * RATE))
    for st in range(9):
        bar = 2 * PH * (st + 1) - LQ
        if st + 3 < 10: it = qstage_issue(st + 3)
        elif st == 7: it = kv_issue("K", 1) + kv_issue("K", 2)
        else: it = kv_issue("V", 0) + kv_issue("V", 1)
        if st == K0AT: it = it + kv_issue("K", 0)
        if QC and st == QC - 2: it = qcoop + it
        start = max(bar, g)
        full = 2 * PH - 5 if st < 8 else PH + LQ - 6
        g = B.spread(it, start, max(bar + full - start, int(nM(it) * RATE)))
        assert g < bar + 4 * PH - 8 and g < len(B.mf)
    for st in range(10):
        base = 2 * PH * st
        g = base - LQ + 1
        if st > 0:
            for t, tag in qreads(st, 0): g = B.place_d(t, g, tag, 5 - nq)
        g = max(g, 0)
        rd = qreads(st, 1)
        order = rd[nq:nq + 4] + rd[:nq] + rd[nq + 4:] if st > 0 else rd
        for t, tag in order:
            lo = base if tag[0] == "B" else base - PH + nq * tag[3] + nq
            g = B.place_d(t, max(g, lo), tag, 5 - nq)
        if st < 9: assert g < base + 2 * PH - LQ - 3, (st, g)
    aK0 = 180
    g = 2 * PH * 8
    for f in range(8): g = B.place_d(kread(f, kslot(0) * 16384, aK=aK0), g, ("K0", f), 5 - nq) + 1
    c = Asm()
    c("v_lshlrev_b32 v8, 1, v4\nv_xor_b32 v8, v8, v7\nv_mul_u32_u24 v9, 1280, v6\nv_lshl_add_u32 v8, v8, 4, v9")
    for n in range(4): c(f"v_add_u32 v{vWO+n}, {n*8*1280 - n*1024}, v8")
    ar_setup(c)
    c(f"v_mul_u32_u24 v{PFA}, 1280, v3")
    for i in range(16): c(f"v_accvgpr_write_b32 a{aL+i}, 0")
    g = 2 * PH * 9 - LQ + 2
    for t in c.l:
        while any(x[0] == "M" for x in B.big.get(g, [])): g += 1
        B.cv.setdefault(g, []).append(t.strip()); g += 1
        if g >= len(B.mf): g = len(B.mf) - 1
    sc_ = [f"s_mov_b32 s{sQS}, s5", "s_lshr_b32 s4, s2, 3", "s_mul_i32 s4, s4, 52", "s_lshr_b32 s4, s4, 8", f"s_lshl_b32 s{sT0}, s4, 1", f"s_add_u32 s{sT0}, s{sT0}, s{sR}"]
    for k in range(2):
        sc_ += [f"s_add_u32 s{sPFW+k}, s{sT0}, {14 + 12*k}", f"s_and_b32 s{sPFW+k}, s{sPFW+k}, 31", f"s_mul_i32 s{sPFW+k}, s{sPFW+k}, {WSTEP}"]
    sc_ += [f"s_cmp_ge_u32 s4, 3\ns_cselect_b32 s{sPFW+1}, 0x7f000000, s{sPFW+1}", f"s_mul_i32 s{sT0}, s2, 20480",
            f"s_add_u32 s{sX}, s{pWO}, s{sT0}\ns_addc_u32 s{sX+1}, s{pWO+1}, 0", f"s_mov_b32 s{sX+2}, 20480", f"s_mov_b32 s{sT1}, {CSCALE:#x}", f"s_mov_b32 s{sWW}, 0x07060302"]
    for i, t in enumerate(sc_): B.pre.setdefault(2 * PH * 9 + i, []).append(t)
    B.emit(a, resident=[tag for _, tag in first], vm=vm)
    if STAMP == 3:
        a("s_memtime s[100:101]\ns_waitcnt lgkmcnt(0)"); rec(a)
    stamp(a)
    a("s_waitcnt lgkmcnt(0)")
    V, M = [], []
    def vadd(t, deps=(), id=None): V.append((id if id is not None else ("v", len(V)), t, list(deps)))
    def vissue(it):
        prev = ""
        for k, t, tag in it:
            vadd(("s_nop 0\n" if (k == "M" and "m0" in prev) else "") + t); prev = t
            if k == "M": vm.append(tag)
    for q in range(nq):
        for t in range(8): M.append((("lq", q, t), f"{MF} {O(q,t)}, {r('a', aQA[1]+4*t)}, {r('a', aQB[1]+4*q)}, {O(q,t)}", []))
    def conv(q):
        for s in range(4):
            b = vO + (q * 8 + 2 * s) * 4
            for j in range(8): vadd(f"v_mul_f32 v{b+j}, s{sT1}, v{b+j}", [(("lq", q, 2 * s + (j >> 2)), 8)])
            for j in range(4): vadd(f"v_cvt_pk_bf16_f32 v{b+j}, v{b+2*j}, v{b+2*j+1}")
            for j in range(4): vadd(f"v_accvgpr_write_b32 a{aQ+16*q+4*s+j}, v{b+j}", id=("Q", q, s) if j == 3 else None)
        for kt in range(2):
            for s in range(4): M.append((("qk0", q, kt, s), qk(0, q, kt, s, czero=True, aK=aK0), [(("Q", q, 3), 2)]))
        for h in range(2):
            z = r("v", vO + q * 32 + 16 * h, 16)
            M.append((("z", q, h), f"v_mfma_f32_32x32x16_bf16 {z}, {r('a', aL)}, {r('a', aL)}, 0", [(("Q", q, 3), 0)]))
    def stats(qs):
        for q in qs:
            b = S(0, q, 0); m = vNM + 4 * q
            vadd(f"v_max3_f32 v{m}, v{b}, v{b+1}, v{b+2}", [(("qk0", q, 1, 3), 8)])
            vadd(f"v_max3_f32 v{m+1}, v{b+3}, v{b+4}, v{b+5}")
            vadd(f"v_max3_f32 v{m}, v{m}, v{b+6}, v{b+7}")
            vadd(f"v_max_f32 v{m}, v{m}, v{m+1}")
        for op in ("v_permlane32_swap_b32", "v_permlane16_swap_b32"):
            for q in qs: vadd(f"v_mov_b32 v{vNM+4*q+1}, v{vNM+4*q}", id=("cp", op, q))
            for q in qs: vadd(f"{op} v{vNM+4*q}, v{vNM+4*q+1}", [(("cp", op, q), 2)], id=("sw", op, q))
            for q in qs: vadd(f"v_max_f32 v{vNM+4*q}, v{vNM+4*q}, v{vNM+4*q+1}", [(("sw", op, q), 2)])
        for q in qs:
            m = vNM + 4 * q; b = S(0, q, 0)
            vadd(f"v_sub_f32 v{m}, 0, v{m}")
            for j in range(1, 4): vadd(f"v_mov_b32 v{m+j}, v{m}", id=("nm", q) if j == 3 else None)
            for j in range(8): vadd(f"v_add_f32 v{b+j}, v{b+j}, v{m}")
    ex0, cv0 = softmax_ops(0, nq)
    ntail = NTAIL[nq]
    def exps(qs):
        for j in range(ntail // 2):
            if (j // 2) % nq in qs:
                vadd(ex0[2 * j]); vadd(ex0[2 * j + 1], id=("e", j))
        for j in range(ntail // 2):
            if (j // 2) % nq in qs:
                for t in cv0[j]: vadd(t, [(("e", j), 1)])
    def qk1(qs):
        for q in qs:
            for s in range(4): M.append((("qk1", q, s), qk(1, q, 0, s), [(("nm", q), 2), ("khi", 0)]))
    for f in range(8): vadd(kread(f, kslot(0) * 16384 + 8192))
    for q in range(nq):
        if valu_sum(nq, q): vadd(f"v_mov_b32 v{vLV[q]}, 0")
    conv(0); conv(1)
    vissue(kv_issue("K", 3))
    vadd("s_waitcnt lgkmcnt(0)", id="khi")
    conv(2)
    stats([0, 1])
    if nq == 4: conv(3)
    qk1([0, 1])
    if WARM:
        vadd("v_lshlrev_b32 v12, 7, v0")
        vadd(f"buffer_load_dword v12, v12, s[{sX}:{sX+3}], 0 offen"); vm.append(("warm", 0))
    vissue(kv_issue("V", 2))
    exps([0, 1])
    rest_q = list(range(2, nq))
    stats(rest_q); qk1(rest_q); exps(rest_q)
    merge(a, V, M)
    a(f"s_mov_b32 s{sCNT}, 7")
    if STAMP == 2: a("v_mov_b32 v13, 0\nv_mov_b32 v14, 0")
    if DMA3 and nq == 3:
        for i in range(8): a(f"v_subrev_u32 v{vKD+i}, 12288, v{vKD+i}")
    a(f"s_waitcnt vmcnt({vmwait(('V', 1 if (DMA3 and nq == 3) else 0))})")
    if opt("prew", 0): a("s_waitcnt vmcnt(0)")
    for _ in range(opt("preidle", 0)): a("s_nop 15")
    assert vmwait(("V", 1)) >= 8 and vmwait(("K", 2)) >= 8
    a("s_barrier")
    stamp(a)
    a(".p2align 6")
    a(f"L_loop{L}:")
    gen_body(a, nq, 0, L)
    gen_body(a, nq, 1, L)
    gen_body(a, nq, 2, L)
    gen_body(a, nq, 3, L, loopctl=(f"s_sub_u32 s{sCNT}, s{sCNT}, 1", f"s_cmp_gt_u32 s{sCNT}, 1"))
    a(f"s_cbranch_scc1 L_loop{L}")
    a(f"s_cmp_eq_u32 s{sCNT}, 0")
    a(f"s_cbranch_scc1 L_tail{L}")
    for j, pc in PRE: flat(a, wo_issue(j, pc))
    a(f"s_branch L_loop{L}")
    a(f"L_tail{L}:")
    c = 4 if not DMA3 else 16 if nq == 3 else 0
    vm = [("w", 0), ("w", 1), ("old", 0)] + [("V", 29)] * c + [("K", 30)] * c + [("V", 30)] * c + [("K", 31)] * c
    VMDONE.clear(); VMDONE.update([("w", 0), ("w", 1)])
    for i in (28, 29, 30): gen_body(a, nq, i % 4, L, idx=i, vm=vm)
    gen_body(a, nq, 3, L, last=True, idx=31, vm=vm)
    stamp(a)
    vq = [q for q in range(nq) if valu_sum(nq, q)]
    for q in vq: a(f"v_mov_b32 v{vNM+4*q}, v{vLV[q]}")
    if vq: xlane(a, [vNM + 4 * q for q in vq], "v_add_f32")
    else: a("s_nop 7")
    for q in range(nq):
        if q not in vq: a(f"v_accvgpr_read_b32 v{vNM+4*q}, a{aL+4*q}")
    if opt("one1", 1): xlane(a, [vNM + 4 * q for q in range(nq) if q not in vq], "v_add_f32")
    a(f"s_mov_b32 s{sT0}, 0x5f800000")
    a("s_mov_b64 s[4:5], 0")
    for q in range(nq):
        a(f"v_cmp_ngt_f32 vcc, s{sT0}, v{vNM+4*q}")
        a("s_or_b64 s[4:5], s[4:5], vcc")
    if FORCE_SAFE: a(f"s_branch L_safe{L}")
    a(f"s_cbranch_scc1 L_safe{L}")
    a(f"L_epi{L}:")
    for q in range(nq): a(f"v_rcp_f32 v{vNM+4*q}, v{vNM+4*q}")
    nw12 = vm[::-1].index(('w', 12))
    for q in range(nq):
        a(f"s_lshl_b32 s{sT0}, s{sWAVE}, 2\ns_add_u32 s{sT0}, s{sT0}, {q}\ns_mul_i32 s{sT1}, s{sT0}, 52\ns_lshr_b32 s{sT1}, s{sT1}, 8")
        a(f"s_mul_i32 s{sT1}, s{sT1}, {31*20480}\ns_lshl_b32 s{sT0}, s{sT0}, 12\ns_add_u32 s{sT0}, s{sT0}, s{sT1}\ns_add_u32 s{sT0}, s{sT0}, s3")
        for s in range(4):
            b = vO + (q * 8 + 2 * s) * 4
            if opt("pk", 1):
                for j in range(4): a(f"v_pk_mul_f32 v[{b+2*j}:{b+2*j+1}], v[{b+2*j}:{b+2*j+1}], v[{vNM+4*q}:{vNM+4*q+1}] op_sel_hi:[1,0]")
            else:
                for j in range(8): a(f"v_mul_f32 v{b+j}, v{vNM+4*q}, v{b+j}")
            for j in range(4): a(f"v_cvt_pk_bf16_f32 v{b+j}, v{b+2*j}, v{b+2*j+1}")
            a(f"buffer_store_dwordx4 {r('v', b)}, v2, s[{sWS}:{sWS+3}], s{sT0} offen offset:{s*1024}{OST}")
    a(f"s_waitcnt vmcnt({nw12 + 4*nq})")
    a("s_branch L_common")
    gen_safe(a, nq, L)

def gen_safe(a, nq, L):
    a(f"L_safe{L}:")
    a("s_waitcnt vmcnt(0) lgkmcnt(0)")
    for i in range(nq * 32): a(f"v_mov_b32 v{vO+i}, 0")
    for q in range(nq):
        a(f"v_mov_b32 v{vNM+4*q}, 0xff800000")
        a(f"v_mov_b32 v{vNM+4*q+3}, 0")
    kv_voffsets(a, False)
    kv_srds(a)
    a(f"s_add_u32 s{sKW}, s{sVW}, {SBASE}")
    a(f"s_sub_u32 s{sT0}, s{sKW}, {KBASE}")
    for i in range(4): a(f"v_add_u32 v{vKR+i}, s{sT0}, v{vKR+i}")
    for i in range(8): a(f"v_add_u32 v{vVR+i}, s{sKW}, v{vVR+i}")
    a(f"s_mov_b32 s{sKoff}, 0")
    a(f"L_sloop{L}:")
    def tile(vd, srd):
        for hh in range(2):
            a(f"s_add_u32 m0, s{sKW}, {hh*16384}")
            a(f"s_add_u32 s{sVoff}, s{sKoff}, {hh*4096}")
            for n in range(4): a(f"buffer_load_dwordx4 v{vd+n}, s[{srd}:{srd+3}], s{sVoff} offen offset:{n*1024} lds")
    tile(vKD, sK)
    a("s_waitcnt vmcnt(0)")
    for f in range(8): a(kread(f, 0, 16384))
    a("s_waitcnt lgkmcnt(0)")
    tile(vVD, sV)
    for kt in range(2):
        for s in range(4):
            for q in range(nq): a(qk(0, q, kt, s, czero=True))
    a("s_nop 7")
    T = vS + 32
    for q in range(nq):
        b = S(0, q, 0); m = T + 2 * q
        a(f"v_max3_f32 v{m}, v{b}, v{b+1}, v{b+2}")
        a(f"v_max3_f32 v{m+1}, v{b+3}, v{b+4}, v{b+5}")
        a(f"v_max3_f32 v{m}, v{m}, v{b+6}, v{b+7}")
        a(f"v_max3_f32 v{m}, v{m}, v{m+1}, v{vNM+4*q}")
    xlane(a, [T + 2 * q for q in range(nq)], "v_max_f32")
    for q in range(nq):
        m = vNM + 4 * q; b = S(0, q, 0)
        a(f"v_sub_f32 v{m+2}, v{m}, v{T+2*q}")
        a(f"v_exp_f32 v{m+2}, v{m+2}")
        a(f"v_mov_b32 v{m}, v{T+2*q}")
        for j in range(8): a(f"v_sub_f32 v{b+j}, v{b+j}, v{m}")
        for j in range(8): a(f"v_exp_f32 v{b+j}, v{b+j}")
        a(f"v_mul_f32 v{m+3}, v{m+3}, v{m+2}")
        for i in range(32): a(f"v_mul_f32 v{vO+q*32+i}, v{vO+q*32+i}, v{m+2}")
        for j in range(4): a(f"v_cvt_pk_bf16_f32 v{b+j}, v{b+2*j}, v{b+2*j+1}")
        for j in range(4):
            a(f"v_lshlrev_b32 v{b+4}, 16, v{b+j}")
            a(f"v_and_b32 v{b+5}, 0xffff0000, v{b+j}")
            a(f"v_add_f32 v{m+3}, v{m+3}, v{b+4}")
            a(f"v_add_f32 v{m+3}, v{m+3}, v{b+5}")
    a("s_waitcnt vmcnt(0)")
    for d in range(8):
        for h in range(2): a(vread(d, h, 0, 16384))
        if d == 3: a("s_waitcnt lgkmcnt(0)")
    a("s_waitcnt lgkmcnt(0)")
    for d in range(8):
        for q in range(nq): a(pv(0, q, d))
    a("s_nop 7")
    a(f"s_add_u32 s{sKoff}, s{sKoff}, 8192")
    a(f"s_cmp_lt_u32 s{sKoff}, 524288")
    a(f"s_cbranch_scc1 L_sloop{L}")
    xlane(a, [vNM + 4 * q + 3 for q in range(nq)], "v_add_f32", tmp=-2)
    for q in range(nq): a(f"v_mov_b32 v{vNM+4*q}, v{vNM+4*q+3}")
    ar_setup(a)
    a(f"v_mul_u32_u24 v{PFA}, 1280, v3")
    for j in (8, 11): flat(a, wo_issue(j, PIECE[j]))
    a("s_waitcnt vmcnt(0)")
    a(f"s_branch L_epi{L}")

def gen_common(a):
    a("L_common:")
    piece = dict(PIECE)
    vm = [("w", j) for j in range(15)] + [("st", 0)]
    def issue(n, p):
        piece[n] = p
        flat(a, wo_issue(n, p)); vm.extend([("w", n)] * 4)
    def vw(tag): return vm[::-1].index(tag)
    NPRE = opt("npre", 2)
    for j in range(6, 6 + NPRE):
        for t in wo_reads(j, piece[j]): a(t)
    for t in wo_reads(6 + NPRE, piece[6 + NPRE]): a(t)
    a("s_waitcnt lgkmcnt(8)")
    for i in range(NPRE): issue(15 + i, piece[6 + i])
    for j in range(7 + NPRE, 13):
        for t in wo_reads(j, piece[j]): a(t)
    a(f"""s_lshl_b32 s{sT0}, s{sOB}, 2
s_add_u32 s{sT0}, s{sT0}, s{sWAVE}
s_mul_i32 s{sT0}, s{sT0}, {32*5120}
s_add_u32 s{sO}, s{pWS}, s{sT0}
s_addc_u32 s{sO+1}, s{pWS+1}, 0
s_mov_b32 s{sO+2}, {0 if opt("oskip", 0) else 32*5120}
s_mov_b32 s{sOUT}, s{pDBG}
s_mov_b32 s{sOUT+1}, s{pDBG+1}
s_mov_b32 s{sOUT+2}, 256
v_mov_b32 v12, 1
v_mov_b32 v15, 0""")
    a(f"s_waitcnt vmcnt({vw(('st', 0))}) lgkmcnt(0)")
    if opt("opf", 0):
        for half in range(2):
            a(f"v_lshrrev_b32 v17, 5, v3\nv_lshl_add_u32 v17, v1, 2, v17\nv_add_u32 v17, {2*half}, v17")
            a(f"v_mul_u32_u24 v18, 52, v17\nv_lshrrev_b32 v18, 8, v18\nv_mul_u32_u24 v18, {128*5120 - 5*1024}, v18\nv_lshl_add_u32 v18, v17, 10, v18")
            a(f"v_bfe_u32 v19, v3, 3, 2\nv_mul_u32_u24 v19, 5120, v19\nv_add_u32 v18, v18, v19\nv_lshl_add_u32 v18, v7, 7, v18")
            a(f"v_cmp_gt_u32 vcc, 15, v17\nv_mov_b32 v19, 0x7f000000\ns_nop 0\nv_cndmask_b32 v18, v19, v18, vcc")
            a(f"buffer_load_dword v{20+half}, v18, s[{sWS}:{sWS+3}], s3 offen sc1")
            vm.append(("opf", half))
    a("s_barrier")
    a(f"s_cmp_lg_u32 s{sWAVE}, 0")
    a("s_cbranch_scc1 L_nosig")
    a(f"s_lshl_b32 s{sT0}, s{sB}, 5")
    a("s_mov_b64 exec, 1")
    a(f"buffer_atomic_add v12, v15, s[{sOUT}:{sOUT+3}], s{sT0} offen sc1")
    a("s_mov_b64 exec, -1")
    a("L_nosig:")
    stamp(a)
    a("s_cmp_ge_u32 s2, 240")
    a("s_cbranch_scc1 L_exit")
    for j in (13, 14):
        for t in wo_reads(j, piece[j]): a(t)
    for i in range(NPRE, 7): issue(15 + i, piece[6 + i])
    a(f"s_mul_i32 s{sT1}, s{sOB}, 86\ns_lshr_b32 s{sT1}, s{sT1}, 8\ns_lshl_b32 s{sT1}, s{sT1}, 5")
    def poll():
        a(f"buffer_load_dword v12, v15, s[{sOUT}:{sOUT+3}], s{sT1} offen sc0 sc1")
        vm.append(("poll", 0))
    PA = opt("pollat", 5)
    issue(22, 3)
    pend = [13, 14]; nxt = 23
    for j in range(15, 22):
        a(f"s_waitcnt vmcnt({vw(('w', j))}) lgkmcnt(0)")
        for t in wo_reads(j, piece[j]): a(t)
        if j - 15 == PA: poll()
        for x in pend: issue(nxt, piece[x]); nxt += 1
        pend = [j]
    a("s_waitcnt lgkmcnt(0)")
    issue(nxt, piece[pend[0]])
    assert nxt == 31
    a(f"s_cmp_lg_u32 s{sWAVE}, 0")
    a("s_cbranch_scc1 L_go")
    a(f"s_waitcnt vmcnt({vw(('poll', 0))})")
    a(f"s_mov_b32 s{sCNT}, {SPIN}")
    a("L_poll:")
    a(f"v_readfirstlane_b32 s{sT0}, v12")
    a(f"s_sub_u32 s{sCNT}, s{sCNT}, 1")
    a(f"s_cbranch_scc1 L_go")
    a(f"s_cmp_ge_u32 s{sT0}, 32")
    a("s_cbranch_scc1 L_go")
    a(f"buffer_load_dword v12, v15, s[{sOUT}:{sOUT+3}], s{sT1} offen sc0 sc1")
    a("s_waitcnt vmcnt(0)")
    a("s_branch L_poll")
    a("L_go:")
    a("s_barrier")
    stamp(a)
    vAcc = 128
    ring = [208 + 4 * i for i in range(12)] + [36, 16, 4] + ([12] if STAMP < 2 else [])
    ring = ring[:opt("rd", 16)]
    RD = len(ring)
    G = opt("gg", 4)
    blocks = [list(range(n, n + G)) for n in range(0, 28, G)] + [[28, 29, 30, 31]]
    seq = [(n, qt) for blk in blocks for qt in range(5) for n in blk]
    pos = {f: i for i, f in enumerate(seq)}
    def o_so(i): return (seq[i][0] >> 2) * 20480 + seq[i][1] * 4096
    def o_ld(i): return f"buffer_load_dwordx4 {r('v', ring[i % RD])}, v2, s[{sO}:{sO+3}], s{sT1} offen offset:{(seq[i][0]&3)*1024}{OLD}"
    for i in range(RD):
        if i == 0 or o_so(i) != o_so(i - 1): a(f"s_mov_b32 s{sT1}, {o_so(i)}")
        a(o_ld(i)); vm.append(("o", i))
    B = Body()
    lastuse, blkend, fin = {}, {}, {}
    for blk in blocks:
        for qt in range(5):
            for nt in range(4):
                acc = r("v", vAcc + (qt * 4 + nt) * 4)
                for n in (blk if nt % 2 == 0 else blk[::-1]):
                    rf, bank = bank_of(n)
                    need = None
                    if nt == 0: need = [("vm", ("o", pos[(n, qt)]))] + ([("W", n)] if (qt == 0 and n >= 22) else [])
                    first = blk[0] == 0 and n == (blk if nt % 2 == 0 else blk[::-1])[0]
                    lastuse[pos[(n, qt)]] = len(B.mf); fin[(qt, nt)] = len(B.mf)
                    B.add(f"{MF} {acc}, {r(rf, bank+4*nt)}, {r('v', ring[pos[(n, qt)] % RD])}, {'0' if first else acc}", need)
        for n in blk: blkend[n] = len(B.mf)
    g = -1
    for j in range(RD, 160):
        g = max(lastuse[j - RD], g + 2, 4 * (j - RD) + 3)
        if o_so(j) != o_so(j - 1): B.pre.setdefault(g - 1, []).append(f"s_mov_b32 s{sT1}, {o_so(j)}")
        B.place_big("M", o_ld(j), g, ("o", j), hi=g)
    g = 0
    for n in range(10):
        j = n + 22
        g = max(g, blkend[n])
        for i, t in enumerate(wo_reads(j, piece[j])):
            g = B.place_d(t, g, ("W", j), 1, req=[("vm", ("w", j))] if i == 0 else None) + 1
    g += 10
    while g in B.big: g += 1
    B.place_big("b", "s_barrier", g, hi=g)
    c = Asm()
    c(f"v_lshrrev_b32 v43, 4, v3\nv_lshlrev_b32 v47, 8, v43\nv_add_u32 v47, s{sKoff}, v47\nv_and_b32 v43, 2, v43\nv_and_b32 v40, 15, v3\nv_xor_b32 v43, v43, v40")
    for nt in range(4): c(f"v_xor_b32 v{8+nt}, {4*nt}, v43\nv_lshl_add_u32 v{8+nt}, v{8+nt}, 4, v47")
    c("v_and_b32 v1, 7, v3")
    for rnd in range(3):
        c(f"""v_lshrrev_b32 v43, 3, v3
v_add_u32 v43, s{sVoff}, v43
v_add_u32 v43, {8*rnd}, v43
v_lshrrev_b32 v47, 4, v43
v_lshlrev_b32 v47, 12, v47
v_lshl_add_u32 v47, v1, 9, v47
v_and_b32 v{40+rnd}, 15, v43
v_lshlrev_b32 v{44+rnd}, 1, v1
v_xor_b32 v{40+rnd}, v{40+rnd}, v{44+rnd}
v_lshl_add_u32 v{40+rnd}, v{40+rnd}, 4, v47
v_mul_u32_u24 v43, 1280, v43
v_lshl_add_u32 v{44+rnd}, v1, 4, v43""")
    c("v_cmp_gt_u32 vcc, 32, v3\nv_mov_b32 v43, 0x7f000000\nv_mov_b32 v47, 0\nv_cndmask_b32 v46, v43, v46, vcc\nv_cndmask_b32 v42, v47, v42, vcc")
    for k, t in enumerate([f"s_mul_i32 s{sKoff}, s{sWAVE}, 20480", f"s_mul_i32 s{sVoff}, s{sWAVE}, 20", f"s_mov_b32 s{sOUT}, s{pOUT}", f"s_mov_b32 s{sOUT+1}, s{pOUT+1}",
                           f"s_mov_b32 s{sOUT+2}, {8*240*640*2}", f"s_mul_i32 s{sT0}, s{sOB}, {80*1280}", f"s_lshl_b32 s4, s{sQS}, 7", f"s_add_u32 s{sT0}, s{sT0}, s4"]):
        B.pre.setdefault(4 * k + 1, []).append(t)
    g += 1
    for t in c.l:
        while g in B.big: g += 1
        B.cv.setdefault(g, []).append(t.strip()); g += 1
    assert g < blkend[27]
    late = []
    for qt in range(5):
        for nt in range(4):
            t = f"ds_write_b128 v{8+nt}, {r('v', vAcc+(qt*4+nt)*4)} offset:{(qt*4+nt)*1024}"
            if fin[(qt, nt)] + 8 < len(B.mf): B.place_big("w", t, fin[(qt, nt)] + 8)
            else: late.append(t)
    B.emit(a, vm=vm)
    stamp(a)
    if True:
        a("s_nop 3")
        a(late[0]); a("s_nop 2")
        for t in late[1:]: a(t)
        assert len(late) == 2
        a("s_waitcnt lgkmcnt(0)")
        a("s_barrier")
        def rd(rnd):
            for src in range(4):
                for h in range(2): a(f"ds_read_b128 {r('v', vAcc+rnd*32+src*8+4*h)}, v{40+rnd} offset:{src*20480 + h*256}")
        rd(0)
        for rnd in range(3):
            if rnd < 2: rd(rnd + 1)
            a(f"s_waitcnt lgkmcnt({8 if rnd < 2 else 0})")
            b = vAcc + rnd * 32
            for j in range(8): a(f"v_add_f32 v{b+j}, v{b+j}, v{b+8+j}")
            for j in range(8): a(f"v_add_f32 v{b+16+j}, v{b+16+j}, v{b+24+j}")
            for j in range(8): a(f"v_add_f32 v{b+j}, v{b+j}, v{b+16+j}")
            for j in range(4): a(f"v_cvt_pk_bf16_f32 v{b+j}, v{b+2*j}, v{b+2*j+1}")
            a(f"buffer_store_dwordx4 {r('v', b)}, v{44+rnd}, s[{sOUT}:{sOUT+3}], s{sT0} offen{FST}")
    if STAMP:
        a("s_waitcnt vmcnt(0)")
        a("s_waitcnt lgkmcnt(0)")
        if STAMP >= 2:
            a(f"s_lshl_b32 s{sT0}, s2, 10\ns_add_u32 s{sT0}, s{sT0}, 0x80000\nv_lshlrev_b32 v15, 2, v0")
            a(f"buffer_store_dword v14, v15, s[{sST}:{sST+3}], s{sT0} offen")
        a("s_memtime s[76:77]\ns_memrealtime s[78:79]\ns_waitcnt lgkmcnt(0)")
        if opt("dbgout", 0):
            a(f"s_cmp_lg_u32 s2, 9\ns_cbranch_scc1 L_exit\ns_cmp_lg_u32 s{sWAVE}, 0\ns_cbranch_scc1 L_exit")
            a(f"s_mov_b32 s{sOUT}, s{pDBG}\ns_mov_b32 s{sOUT+1}, s{pDBG+1}\ns_mov_b32 s{sOUT+2}, 256")
            a("s_mov_b64 exec, 1\nv_mov_b32 v15, 0")
            words = [1, 2, 3, 4, 5, 6, 7, 9]
            for i in range(8):
                a(f"s_sub_u32 s4, s{sSTAMP+4*(i+1)+2}, s{sSTAMP+4*i+2}\nv_mov_b32 v12, s4")
                a(f"buffer_store_dword v12, v15, s[{sOUT}:{sOUT+3}], 0 offen offset:{4*words[i]}\ns_nop 1")
            a(f"s_sub_u32 s4, s78, s{sSTAMP+2}\nv_mov_b32 v12, s4\nbuffer_store_dword v12, v15, s[{sOUT}:{sOUT+3}], 0 offen offset:40")
            a(f"s_sub_u32 s4, s{sSTAMP+16}, s{sSTAMP+12}\nv_mov_b32 v13, s4\nbuffer_store_dword v13, v15, s[{sOUT}:{sOUT+3}], 0 offen offset:44")
        else:
            stamp_store(a, 18, sSTAMP, sST, 4)

TICKET = opt("ticket", 0)
def gen():
    a = Asm()
    a("s_cmp_ge_u32 s2, 256")
    a("s_cbranch_scc1 L_exit")
    a("s_getpc_b64 s[8:9]")
    a(f"s_load_dwordx16 s[{sARG}:{sARG+15}], s[0:1], 0")
    stamp(a)
    a("s_getreg_b32 s6, hwreg(HW_REG_XCC_ID, 0, 3)\ns_getreg_b32 s7, hwreg(HW_REG_HW_ID, 13, 2)\ns_getreg_b32 s4, hwreg(HW_REG_HW_ID, 8, 4)")
    a("s_mul_i32 s7, s7, 9\ns_add_u32 s7, s7, s4")
    a(f"s_mov_b32 s10, L_exit-{KN}-16\ns_mov_b32 s11, 0x20000\ns_mul_i32 s4, s7, 2304")
    a("v_lshrrev_b32 v11, 2, v0\nv_lshlrev_b32 v11, 7, v11")
    a(f"""v_lshrrev_b32 v1, 6, v0
v_and_b32 v3, 63, v0
v_lshrrev_b32 v4, 4, v3
v_readfirstlane_b32 s{sWAVE}, v1
v_and_b32 v5, 15, v3
v_lshlrev_b32 v2, 4, v3
v_lshrrev_b32 v6, 3, v3
v_and_b32 v7, 7, v3""")
    if TICKET:
        a(f"""s_mul_i32 s5, s7, 114
v_add_u32 v8, s5, v0
v_and_b32 v8, 4095, v8
v_lshrrev_b32 v9, 2, v8
v_mul_u32_u24 v9, 1280, v9
v_and_b32 v10, 3, v8
v_lshl_add_u32 v13, v10, 7, v9
v_lshrrev_b32 v9, 4, v8
v_lshlrev_b32 v9, 13, v9
v_and_b32 v10, 15, v8
v_lshl_add_u32 v14, v10, 7, v9
v_mov_b32 v15, 1
v_mov_b32 v16, 0
s_and_b32 s{sT0}, s6, 1
s_mul_i32 s{sT0}, s{sT0}, 1228800
s_lshr_b32 s{sT1}, s6, 1
s_lshl_b32 s{sT1}, s{sT1}, 11
s_mov_b32 s{sX+2}, 1228800
s_mov_b32 s{sX+3}, 0x20000
s_sub_u32 s{sW+2}, 5242880, s{sT1}
s_mov_b32 s{sW+3}, 0x20000
s_mov_b32 s{sWS+2}, 256
s_mov_b32 s{sWS+3}, 0x20000
s_lshl_b32 s5, s6, 5
s_cmp_lg_u32 s{sWAVE}, 0
s_waitcnt lgkmcnt(0)
s_mov_b32 s{sWS}, s{pDBG}
s_mov_b32 s{sWS+1}, s{pDBG+1}
s_cbranch_scc1 L_notk
s_mov_b64 exec, 1
buffer_atomic_add v15, v16, s[{sWS}:{sWS+3}], s5 offen offset:4 sc0 sc1
s_mov_b64 exec, -1
L_notk:
s_add_u32 s{sX}, s{pX}, s{sT0}
s_addc_u32 s{sX+1}, s{pX+1}, 0
s_add_u32 s{sW}, s{pWQ}, s{sT1}
s_addc_u32 s{sW+1}, s{pWQ+1}, 0""")
        if opt("qpf", 0):
            a(f"buffer_load_dword v12, v14, s[{sW}:{sW+3}], 0 offen")
            a(f"buffer_load_dword v12, v13, s[{sX}:{sX+3}], 0 offen")
    TOUCH = opt("touch", 1)
    if TOUCH == 1: a("buffer_load_dword v12, v11, s[8:11], s4 offen")
    if TOUCH == 2:
        a("v_lshlrev_b32 v11, 7, v0\ns_mov_b32 s4, 32768\ns_mov_b32 s5, 65536")
        a("buffer_load_dword v12, v11, s[8:11], 0 offen\nbuffer_load_dword v12, v11, s[8:11], s4 offen\nbuffer_load_dword v12, v11, s[8:11], s5 offen")
    stamp(a, True)
    a("v_lshl_add_u32 v8, v1, 6, v6\nv_mul_u32_u24 v8, 1280, v8\nv_xor_b32 v9, v7, v4")
    for n in range(8):
        a(f"v_xor_b32 v10, {4*(n&1)}, v9")
        a(f"v_lshl_add_u32 v10, v10, 4, v8")
        a(f"v_add_u32 v{vXD+n}, {n*8*1280 - (n&3)*1024}, v10")
    a("v_lshl_add_u32 v8, v1, 4, v4\nv_lshlrev_b32 v8, 13, v8\nv_lshlrev_b32 v9, 2, v4\nv_xor_b32 v9, v9, v5\nv_lshl_add_u32 v8, v9, 4, v8")
    for n in range(4): a(f"v_add_u32 v{vWD+n}, {n*4*8192 - n*1024 - 8*(n>>1)}, v8")
    a(f"""s_lshl_b32 s{sXW}, s{sWAVE}, 13
s_lshl_b32 s{sVW}, s{sWAVE}, 12
s_add_u32 s{sKW}, s{sVW}, {KBASE}
s_mul_i32 s{sWW}, s{sWAVE}, 4112""")
    def rest_v(a):
        kv_voffsets(a, True)
        a("v_lshrrev_b32 v8, 2, v3\nv_and_b32 v9, 7, v8\nv_lshlrev_b32 v8, 8, v8\nv_and_b32 v10, 3, v3\nv_lshl_add_u32 v8, v10, 3, v8")
        for t in range(8):
            a(f"v_xor_b32 v10, {t}, v9")
            a(f"v_lshl_add_u32 v{vVR+t}, v10, 5, v8")
        a(f"v_lshlrev_b32 v8, 13, v1\nv_lshl_add_u32 v8, v5, 7, v8\nv_add_u32 v8, {QBUF[1]}, v8\nv_lshrrev_b32 v9, 1, v5\nv_xor_b32 v9, v9, v4")
        for sp in range(2):
            a(f"v_xor_b32 v10, {4*sp}, v9")
            a(f"v_lshl_add_u32 v{vXR+sp}, v10, 4, v8")
        a(f"v_bfe_u32 v9, v3, 2, 2\nv_lshl_add_u32 v8, v4, 3, v9\nv_lshlrev_b32 v8, 8, v8\nv_and_b32 v10, 3, v3\nv_lshl_add_u32 v8, v10, 4, v8")
        a(f"v_add_u32 v8, {QBUF[1]}, v8\nv_lshl_add_u32 v8, v4, 3, v8")
        for s in range(4):
            a(f"v_xor_b32 v10, {s}, v9")
            a(f"v_lshl_add_u32 v{vWR+s}, v10, 6, v8")
        a(f"v_and_b32 v8, {15 if opt('one1', 1) else 3}, v3\nv_cmp_eq_u32 vcc, 0, v8\nv_mov_b32 v9, 0x3f803f80\nv_mov_b32 v10, 0\nv_cndmask_b32 v9, v10, v9, vcc")
        for j in range(4): a(f"v_accvgpr_write_b32 a{aONE+j}, v9")
    def kr_setup(a):
        a(f"v_lshlrev_b32 v8, 8, v5\nv_add_u32 v8, {KBASE}, v8\nv_xor_b32 v9, v4, v5")
        for s in range(4):
            a(f"v_xor_b32 v10, {4*s}, v9")
            a(f"v_lshl_add_u32 v{vKR+s}, v10, 4, v8")
    if TICKET:
        rest_v(a)
        a(f"""s_cmp_lg_u32 s{sWAVE}, 0
s_cbranch_scc1 L_tkwait
s_mov_b32 s{sCNT}, 8
s_waitcnt vmcnt({3 if opt("qpf", 0) else 1})
L_tkchk:
v_readfirstlane_b32 s2, v15
s_cmp_lt_u32 s2, 32
s_cbranch_scc1 L_tkok
s_add_u32 s6, s6, 1
s_and_b32 s6, s6, 7
s_lshl_b32 s5, s6, 5
v_mov_b32 v15, 1
s_mov_b64 exec, 1
buffer_atomic_add v15, v16, s[{sWS}:{sWS+3}], s5 offen offset:4 sc0 sc1
s_mov_b64 exec, -1
s_waitcnt vmcnt(0)
s_sub_u32 s{sCNT}, s{sCNT}, 1
s_cbranch_scc0 L_tkchk
s_mov_b32 s2, 32
L_tkok:
s_lshl_b32 s2, s2, 3
s_or_b32 s2, s2, s6
v_mov_b32 v15, s2
ds_write_b32 v16, v15
s_waitcnt lgkmcnt(0)
L_tkwait:
s_barrier
ds_read_b32 v15, v16
s_waitcnt lgkmcnt(0)
v_readfirstlane_b32 s2, v15
s_cmp_ge_u32 s2, 256
s_cbranch_scc1 L_exit""")
    else:
        a("s_waitcnt lgkmcnt(0)")
    stamp(a, True)
    a(f"""s_and_b32 s{sT0}, s2, 1
s_lshl_b32 s{sB}, s{sT0}, 2
s_bfe_u32 s{sT0}, s2, 0x20003
s_add_u32 s{sB}, s{sB}, s{sT0}
s_and_b32 s{sH}, s2, 6
s_lshl_b32 s{sH}, s{sH}, 2
s_lshr_b32 s{sT1}, s2, 5
s_add_u32 s{sH}, s{sH}, s{sT1}
s_add_u32 s{sQS}, s{sH}, s{sB}
s_and_b32 s{sQS}, s{sQS}, {opt("qm", 3)}
s_mul_i32 s{sT0}, s{sB}, 307200
s_lshl_b32 s{sT1}, s{sH}, 8
s_mov_b32 s{sX+2}, 307200
s_mov_b32 s{sX+3}, 0x20000
s_mov_b32 s{sW+3}, 0x20000
s_sub_u32 s{sW+2}, 5242880, s{sT1}
s_add_u32 s{sX}, s{pX}, s{sT0}
s_addc_u32 s{sX+1}, s{pX+1}, 0
s_add_u32 s{sW}, s{pWQ}, s{sT1}
s_addc_u32 s{sW+1}, s{pWQ+1}, 0""")
    s0 = qstage(0, 8)
    s0 = s0[:5] + s0[-5:] + s0[5:-5]
    flat(a, s0[:-2])
    a(f"s_cmp_eq_u32 s{sWAVE}, 3")
    a("s_cbranch_scc1 L_x6")
    flat(a, s0[-2:])
    a("L_x6:")
    if not TICKET: rest_v(a)
    if QC:
        a(f"""s_lshr_b32 s4, s2, 5
s_mul_i32 s4, s4, 30
v_lshrrev_b32 v8, 3, v0
v_add_u32 v9, s4, v8
v_mul_u32_u24 v9, 1280, v9
v_lshl_add_u32 v13, v7, 7, v9
v_add_u32 v13, 512, v13
v_mov_b32 v10, 0x7f000000
v_cmp_gt_u32 vcc, 30, v8
s_bfe_u32 s4, s2, 0x20003
s_mul_i32 s4, s4, 96
v_cndmask_b32 v13, v10, v13, vcc
v_cmp_gt_u32 vcc, 6, v7
s_add_u32 s4, s4, 256
v_lshrrev_b32 v8, 1, v0
v_cndmask_b32 v13, v10, v13, vcc
v_add_u32 v9, s4, v8
v_lshlrev_b32 v9, 13, v9
v_and_b32 v14, 1, v0
v_cmp_gt_u32 vcc, 96, v8
v_lshl_add_u32 v14, v14, 7, v9
s_nop 0
v_cndmask_b32 v14, v10, v14, vcc""")
    kr_setup(a)
    kv_srds(a)
    a(f"""s_mov_b32 s{sWS}, s{pWS}
s_mov_b32 s{sWS+1}, s{pWS+1}
s_mov_b32 s{sWS+2}, {8*15*128*1024}
s_mov_b32 s{sWS+3}, 0x20000""")
    if STAMP:
        a(f"s_add_u32 s{sST}, s{pWS}, 0x10000000\ns_addc_u32 s{sST+1}, s{pWS+1}, 0\ns_mov_b32 s{sST+2}, 0x100000\ns_mov_b32 s{sST+3}, 0x20000")
    a(f"s_mul_i32 s3, s{sB}, 96\ns_add_u32 s3, s3, s{sH}\ns_mul_i32 s3, s3, 20480")
    a(f"s_lshr_b32 s{sROT}, s2, 3\ns_lshl_b32 s{sROT}, s{sROT}, 14")
    a(f"""s_lshr_b32 s4, s2, 3
s_mul_i32 s6, s4, 52
s_lshr_b32 s6, s6, 8
s_mul_i32 s5, s6, 5
s_sub_u32 s5, s4, s5
s_mov_b32 s{sR}, 0
s_and_b32 s7, s2, 1
s_mul_i32 s7, s7, 5
s_add_u32 s5, s5, s7
s_and_b32 s{sOB}, s2, 6
s_mul_i32 s{sOB}, s{sOB}, 3
s_add_u32 s{sOB}, s{sOB}, s6
s_mul_i32 s6, s{sWAVE}, {1024*1280}
s_lshl_b32 s7, s5, 7
s_add_u32 s6, s6, s7
s_add_u32 s{sWO}, s{pWO}, s6
s_addc_u32 s{sWO+1}, s{pWO+1}, 0
s_sub_u32 s{sWO+2}, 5242880, s6
s_cmp_ge_u32 s2, 240
s_cselect_b32 s{sWO+2}, 0, s{sWO+2}
s_mov_b32 s{sWO+3}, 0x20000""")
    if opt("tlb", 0):
        a(f"s_mov_b64 exec, 1\nv_mov_b32 v11, 0")
        a(f"buffer_load_dword v12, v11, s[{sK}:{sK+3}], s{sROT} offen nt")
        a(f"buffer_load_dword v12, v11, s[{sV}:{sV+3}], s{sROT} offen nt")
        a(f"buffer_load_dword v12, v11, s[{sWO}:{sWO+3}], 0 offen")
        a(f"s_mov_b64 exec, -1")
    s1 = qstage(1, 8)
    flat(a, s1[:5] + s1[-5:])
    stamp(a, True)
    a(f"s_cmp_eq_u32 s{sWAVE}, 3")
    a("s_cbranch_scc1 L_waveB")
    base = nstamp[0]
    gen_wave(a, 4, "A")
    a("L_waveB:")
    nstamp[0] = base
    gen_wave(a, 3, "B")
    gen_common(a)
    a("L_exit:")
    a("s_endpgm")
    return a.text()

body = gen()
print(wrap([dict(name=KN, grid=256, block=256, lds=163840, body=body, vgpr=512, sgpr=102, accum=256)]))
```

```python
import sys, struct, math
from gencommon import *

OPT = dict(kv.split("=") for kv in sys.argv[1:])
def opt(k, d): return type(d)(OPT.get(k, d))
STAMP = opt("stamp", 0)
MAP = opt("map", "mixed")
NT = opt("nt", 1)
FORCE_SAFE = opt("safe", 0)
QLEAD = opt("qlead", 28)
K0AT = opt("k0at", 2)
assert K0AT <= 4
WARM = opt("warm", 1)
OD = opt("od", 5)
OLD = {"": "", "plain": "", "nt": " nt", "sc1": " sc1", "sc01": " sc0 sc1"}[opt("old", "sc1")]
OST = {"": "", "plain": "", "sc1": " sc1", "sc01": " sc0 sc1"}[opt("ost", "sc01")]
SPIN = opt("spin", 1 << 16)
CHAIN = opt("chain", 2)
EPRE = opt("epre", 0)
QC = opt("qc", 0)
LAG = opt("lag", 12)
NV = opt("nv", 0)
vLV = {1: 1, 2: 6, 3: 7}
def valu_sum(nq, q): return nq == 4 and q >= 4 - NV
DMA3 = opt("dma3", 1)
FST = {"": "", "sc01": " sc0 sc1", "nt": " nt"}[opt("fst", "")]
PMAP = opt("pmap", 1)
PF = [int(t) for t in opt("pf", "").split(",") if t]
PF0 = opt("pf0", 0)
sPF = 72
W6 = [tuple(int(y) for y in x.split(":")) for x in opt("w6", "29:56,30:56").split(",") if x]
sPFW = 6
PFD, PFA = (13, 14) if STAMP < 2 else (12, 1)
SNAKE = opt("snake", 1)

MF = "v_mfma_f32_16x16x32_bf16"
VBASE, SBASE, KBASE = 0, 64 * 1024, 96 * 1024
QBUF = [0, 48 * 1024, 96 * 1024]
XOFF, WOFF = 0, 31744
def kslot(t): return (t + 3) % 4
def vslot(t): return t % 4
vO = 128; vS = 64; vNM = 48
vKR = 16; vVR = 20; vKD = 28; vVD = 32; vXD = 36; vWD = 44
vXR = 64; vWR = 66
vWO = 36
vAR = [40, 44, 8]
aQ = 0; aK = 64; aV = 96; aL = 128; aONE = 144
aQA = [64, 96]; aQB = [148, 164]
sK, sV, sX, sW, sWS = 8, 12, 16, 20, 24
sO, sOUT = 16, 20
sWAVE, sKW, sVW, sXW, sWW = 28, 29, 30, 31, 32
sKoff, sVoff, sCNT, sB, sH, sT0, sT1 = 33, 34, 35, 36, 37, 38, 39
sKinc, sKmask, sVinc, sVmask = 6, 7, 31, 32
sST, sSTAMP = 40, 44
sWO = 76
sROT, sQS, sR, sOB = 80, 81, 82, 83
sARG = 84
pX, pK, pV, pWQ, pWO, pOUT, pDBG, pWS = [sARG + 2 * i for i in range(8)]
CSCALE = struct.unpack("<I", struct.pack("<f", math.log2(math.e) / math.sqrt(128.0)))[0]
WCONT = opt('wcont', 0)
WSTEP = 4096 if WCONT else 32 * 1280

def r(pfx, b, n=4): return f"{pfx}[{b}:{b+n-1}]"
def O(q, d): return r("v", vO + (q * 8 + d) * 4)
def S(p, q, kt): return vS + 32 * p + 8 * q + 4 * kt
def pol(srd): return "" if (srd == sV and opt("vdef", 0)) or (srd == sK and opt("kdef", 0)) else ntf()
POLS = {"n": " nt", "d": "", "s": " sc1", "t": " sc1 nt", "z": " sc0", "a": " sc0 sc1 nt", "b": " sc0 sc1", "y": " sc0 nt"}
def pol2(srd, c, i):
    m = opt("pm", "")
    if not m: return pol(srd)
    if m[0] == "i": return POLS[m[1 + i]]
    return POLS[m[(0 if srd == sK else 4) + c]]
def ntf(): return {0: "", 1: " nt", 2: " sc1 nt"}[NT]

nstamp = [0]
def stamp(a, early=False):
    if (STAMP == 5) != early and not (STAMP == 5 and nstamp[0] == 0): return
    if STAMP:
        i = nstamp[0]; nstamp[0] += 1
        assert i < 8
        a(f"s_memtime s[{sSTAMP+4*i}:{sSTAMP+4*i+1}]")
        a(f"s_memrealtime s[{sSTAMP+4*i+2}:{sSTAMP+4*i+3}]")
def rec(a):
    a("v_cmp_eq_u32 vcc, v13, v3\nv_mov_b32 v15, s100\nv_add_u32 v13, 1, v13\nv_cndmask_b32 v14, v14, v15, vcc")

def dmaK(n): return f"buffer_load_dwordx4 v{vKD+n}, s[{sK}:{sK+3}], s{sKoff} offen offset:{n*1024}{pol(sK)} lds"
def dmaV(n): return f"buffer_load_dwordx4 v{vVD+n}, s[{sV}:{sV+3}], s{sVoff} offen offset:{n*1024}{ntf() if not opt('vdef', 0) else ''} lds"
def kread(f, off, ktoff=4096, aK=aK):
    kt, s = f >> 2, f & 3
    return f"ds_read_b128 {r('a', aK+4*f)}, v{vKR+s} offset:{off + kt*ktoff}"
def vread(d, second, off, soff=4096):
    return f"ds_read_b64_tr_b16 {r('a', aV+4*d+2*second, 2)}, v{vVR+d} offset:{off + second*soff}"
def qk(p, q, kt, s, czero=False, aK=aK, first=None):
    b = S(p, q, kt)
    c = r("v", b) if not (s == 0 if first is None else first) else ("0" if czero else r("v", vNM + 4 * q))
    return f"{MF} {r('v', b)}, {r('a', aK+4*(kt*4+s))}, {r('a', aQ+16*q+4*s)}, {c}"
def pv(p, q, d): return f"{MF} {O(q,d)}, {r('a', aV+4*d)}, {r('v', S(p,q,0))}, {O(q,d)}"
def sm(p, q): return f"{MF} {r('a', aL+4*q)}, {r('a', aONE)}, {r('v', S(p,q,0))}, {r('a', aL+4*q)}"
def softmax_ops(p, nq):
    ex, cv = [], []
    for kt in range(2):
        for q in range(nq):
            b = S(p, q, kt)
            for j in range(4): ex.append(f"v_exp_f32 v{b+j}, v{b+j}")
            for j in range(2):
                pre = [f"v_add_f32 v{vLV[q]}, v{vLV[q]}, v{b+2*j+i}" for i in range(2)] if valu_sum(nq, q) else []
                if opt("perm", 0): cv.append(pre + [f"v_perm_b32 v{S(p,q,0)+2*kt+j}, v{b+2*j+1}, v{b+2*j}, s{sWW}"])
                else: cv.append(pre + [f"v_cvt_pk_bf16_f32 v{S(p,q,0)+2*kt+j}, v{b+2*j}, v{b+2*j+1}"])
    return ex, cv

PRE = [(0, 4), (1, 5)]
PLAN = {28: ([0, 1], [(2, 9), (3, 4), (4, 5)]),
        29: ([2, 3], [(5, 6), (6, 0), (7, 9), (8, 4)]),
        30: ([4, 5], [(9, 7), (10, 1), (11, 5), (12, 6)]),
        31: ([], [(13, 8), (14, 2)])}
PIECE = dict(PRE)
for _b in PLAN.values(): PIECE.update(dict(_b[1]))
VBANK = [20, 48, 64, 80, 96, 112]
def bank_of(n):
    if n < 16: return "a", ((n + 10) % 16) * 16
    if n < 22: return "v", VBANK[n - 16]
    return bank_of(n - 22)
def wo_issue(n, piece, st=None):
    st = sT0 if st is None else st
    out = [("s", f"s_add_u32 m0, s{sVW}, {piece*16384}"), ("s", f"s_mov_b32 s{st}, {n*WSTEP}")]
    out += [("M", f"buffer_load_dwordx4 v{vWO+i}, s[{sWO}:{sWO+3}], s{st} offen offset:{i*1024} lds") for i in range(4)]
    return out
def wo_reads(n, piece):
    rf, bank = bank_of(n)
    return [f"ds_read_b64_tr_b16 {r(rf, bank+4*t+2*h, 2)}, v{vAR[piece >> 2]+t} offset:{(piece & 3)*16384 + h*2048}" for t in range(4) for h in range(2)]
def flat(a, items):
    prev = None
    for it in items:
        k, t = it[0], it[1]
        if k == "M" and prev and "m0" in prev: a("s_nop 0")
        a(t); prev = t

class Body:
    def __init__(self):
        self.mf = []; self.big = {}; self.pre = {}; self.cv = {}; self.lastcv = 0; self.lag = 4
    def add(self, text, need=None): self.mf.append((text, need))
    def place_big(self, kind, text, target, tag=None, hi=None, req=None):
        n = len(self.mf)
        target = min(target, n - 1)
        hi = min(n - 1, target + 3 if hi is None else max(hi, target))
        g = target
        while g in self.big and g < hi: g += 1
        if g in self.big: g = min(range(target, hi + 1), key=lambda x: len(self.big[x]))
        self.big.setdefault(g, []).append((kind, text, tag, req))
        return g
    def place_d(self, text, lo, tag, cap, req=None):
        g = lo
        while True:
            kinds = [x[0] for x in self.big.get(g, [])]
            if all(k == "D" for k in kinds) and len(kinds) < cap: break
            g += 1
        assert g < len(self.mf)
        self.big.setdefault(g, []).append(("D", text, tag, req))
        return g
    def place_cvt(self, texts, lo, hi):
        for t in texts: g = self.place_cvt1(t, lo, hi)
        return g
    def place_cvt1(self, text, lo, hi):
        n = len(self.mf); best = None
        lo0 = lo
        lo = max(lo, self.lastcv)
        for g in range(lo, min(hi, lo0 + self.lag, n - 1) + 1):
            kinds = [x[0] for x in self.big.get(g, [])]
            cnt = len(self.cv.get(g, []))
            if (kinds == ["D"] and cnt == 0) or (kinds == [] and cnt < 2): best = g; break
        if best is None: best = min(lo, n - 1)
        self.cv.setdefault(best, []).append(text)
        self.lastcv = best
        return best
    def place_s(self, text, lo, hi=None):
        n = len(self.mf)
        hi = lo if hi is None else hi
        for g in range(lo, min(hi, n - 1) + 1):
            kinds = [x[0] for x in self.big.get(g, [])]
            if not self.pre.get(g) and (kinds == ["E"] or kinds == [] or (kinds == ["D"] and not self.cv.get(g))):
                self.pre.setdefault(g, []).append(text); return g
        self.pre.setdefault(lo, []).append(text); return lo
    def spread(self, it, start, span, req=None):
        nm = sum(1 for x in it if x[0] == "M")
        i = 0; pend = []; lastg = start
        for k, t, tag in it:
            if k != "M": pend.append(t); continue
            g = self.place_big("M", t, max(start + 2 + int(i * span / nm), lastg + 1 + (len(pend) + 1) // 2), tag, req=req if i == 0 else None)
            for j, pt in enumerate(pend):
                self.pre.setdefault(max(lastg + 1, g - (len(pend) - j + 1) // 2), []).append(pt)
            pend = []; lastg = g; i += 1
        return lastg
    def emit(self, a, resident=(), vm=None, vmdone=None):
        total = {}
        for items in self.big.values():
            for k, t, tag, req in items:
                if k in "DM": total[(k, tag)] = total.get((k, tag), 0) + 1
        st = dict(q=[], issued={})
        done = set(resident)
        vmdone = vmdone if vmdone is not None else set()
        def wait(tags):
            lds = [t for t in tags if t[0] != "vm" and t not in done]
            vms = [t[1] for t in tags if t[0] == "vm" and t[1] not in vmdone]
            parts = []
            if vms:
                for t in vms: assert st["issued"].get(("M", t), 0) == total.get(("M", t), 0) and t in vm, ("vm not issued", t)
                N = min(vm[::-1].index(t) for t in vms)
                N = min(N, 60)
                parts.append(f"vmcnt({N})")
                for t in vm[:len(vm) - N]: vmdone.add(t)
                for t in vm[len(vm) - N:]: vmdone.discard(t)
            if lds:
                q = st["q"]
                for t in lds: assert st["issued"].get(("D", t), 0) == total[("D", t)] and t in q, ("lds not issued", t)
                N = min(min(q[::-1].index(t) for t in lds), 10)
                parts.append(f"lgkmcnt({N})")
                for t in q[:len(q) - N]: done.add(t)
                st["q"] = q[len(q) - N:]
                for t in st["q"]: done.discard(t)
            if parts: a("s_waitcnt " + " ".join(parts))
        n = len(self.mf)
        if self.mf[0][1]: wait(self.mf[0][1])
        for g in range(n):
            a(self.mf[g][0])
            late = None
            nxt = self.mf[g + 1][1] if g + 1 < n else None
            if nxt: wait(nxt)
            for t in self.pre.get(g, []): a(t)
            for kind, text, tag, req in self.big.get(g, []):
                if req: wait(req)
                if kind == "b":
                    a("s_waitcnt lgkmcnt(0)")
                    for t in st["q"]: done.add(t)
                    st["q"] = []
                if kind == "B" and STAMP == 3:
                    a("s_memtime s[100:101]\ns_waitcnt lgkmcnt(0)"); rec(a)
                    a(f"s_waitcnt vmcnt({vm[::-1].index(tag)})\ns_memtime s[100:101]\ns_waitcnt lgkmcnt(0)"); rec(a)
                if kind == "B":
                    nv = vm[::-1].index(tag)
                    a(f"s_waitcnt vmcnt({nv}) lgkmcnt(0)")
                    for t in st["q"]: done.add(t)
                    st["q"] = []
                if not (kind in opt("drop", "") and getattr(self, "loop", False)): a(text)
                if kind in "DM": st["issued"][(kind, tag)] = st["issued"].get((kind, tag), 0) + 1
                if kind == "M" and vm is not None: vm.append(tag); vmdone.discard(tag)
                if kind == "D": st["q"].append(tag); done.discard(tag)
            for t in self.cv.get(g, []): a(t)

def estimate(lines):
    tot = 0; t = None; over = 0
    for l in lines + ["v_mfma"]:
        l = l.strip()
        if l.startswith("v_mfma"):
            if t is not None: tot += max(16, t); over += t > 16
            t = 4; lastv = False
        elif l.startswith("ds_"): t += 8 + (4 if lastv else 0)
        elif l.startswith("buffer_"): t += 12
        elif l.startswith("v_"): t = max(t, 8) + (8 if l.startswith("v_exp") else 4); lastv = True
        elif l.endswith(":"): pass
        else: t += 4
    return tot, over

def merge(a, V, M):
    pos = {}; n = [0]
    def ready(it): return all(d in pos and n[0] - pos[d] - 1 >= dist for d, dist in it[2])
    def put(it):
        a(it[1]); n[0] += len(it[1].split("\n")); pos[it[0]] = n[0] - 1
    vi = mi = 0
    while vi < len(V) or mi < len(M):
        did = False
        if mi < len(M) and ready(M[mi]): put(M[mi]); mi += 1; did = True
        cost = 0
        while vi < len(V) and cost < 2 and ready(V[vi]):
            cost += 2 if V[vi][1].startswith(("v_exp", "ds_", "buffer_")) else 1
            put(V[vi]); vi += 1; did = True
        if not did: a("s_nop 0"); n[0] += 1

NTAIL = {4: 26, 3: 20}
VMDONE = set()

def gen_body(a, nq, u, L, last=False, loopctl=None, idx=None, vm=None):
    B = Body()
    B.loop = idx is None
    if nq == 4 and NV and not last: B.lag = LAG
    vo, ko = vslot(u) * 16384, kslot(u + 1) * 16384
    def g_qk(p, kts, gen):
        for kt in kts:
            if CHAIN:
                for q in range(nq):
                    ss = list(range(4)) if (q % 2 == 0 or CHAIN == 1) else [3, 2, 1, 0]
                    for i, s in enumerate(ss): B.add(qk(p, q, kt, s, first=(i == 0)), ([("K", kt * 4 + x, gen) for x in range(4)] if i == 0 else None) if q == 0 else None)
            else:
                for s in range(4):
                    for q in range(nq): B.add(qk(p, q, kt, s), [("K", kt * 4 + s, gen)] if q == 0 else None)
    def g_pv(p, gen):
        for d in range(8):
            qs = list(range(nq)) if (d % 2 == 0 or not SNAKE) else list(range(nq - 1, -1, -1))
            for i, q in enumerate(qs): B.add(pv(p, q, d), [("V", d, gen)] if i == 0 else None)
        for q in range(nq):
            if not valu_sum(nq, q): B.add(sm(p, q))
    g_qk(1, [1], 0); P0 = len(B.mf)
    g_pv(0, 0); Q1 = len(B.mf)
    if not last: g_qk(0, [0, 1], 1)
    P1 = len(B.mf)
    g_pv(1, 1)
    if not last: g_qk(1, [0], 2)
    n = len(B.mf)
    resident = [("K", f, 0) for f in range(4, 8)]
    sc = nq / 4.0
    for d in range(8):
        for h in range(2): B.place_big("D", vread(d, h, vo), int((4 * d + 2 * h) * sc), ("V", d, 0))
    ex0, cv0 = softmax_ops(0, nq); ex1, cv1 = softmax_ops(1, nq)
    ne = len(ex0)
    win = P1 - P0
    full = nq * 17 - (NV if nq == 4 else 0)
    ntail = NTAIL[nq]
    if not last:
        for f in range(8): B.place_big("D", kread(f, ko), Q1 - int((22 if CHAIN else 20) * sc) + int(4 * f * sc), ("K", f, 1))
    for d in range(8):
        for h in range(2):
            lo = max(P1 - int(20 * sc) + int((4 * d + 2 * h) * sc), P0 + nq * d + nq)
            B.place_big("D", vread(d, h, vo + 8192), lo, ("V", d, 1))
    if not last:
        for f in range(8): B.place_big("D", kread(f, ko + 8192), P1 + int(12 * sc) + int(4 * f * sc), ("K", f, 2))
        mVe = 0
        if DMA3:
            if nq == 3 and (idx is None or idx == 28):
                def stream(so, srd, vd, ldsoff, tag):
                    it = [("s", f"s_add_u32 s{so}, s{so}, 16384", None), ("s", f"s_and_b32 s{so}, s{so}, 0x7ffff", None)]
                    for c in range(4):
                        it += [("s", f"s_add_u32 s4, s{so}, {c*4096}", None), ("s", f"s_mov_b32 m0, {ldsoff + c*4096}", None)]
                        it += [("M", f"buffer_load_dwordx4 v{vd+i}, s[{srd}:{srd+3}], s4 offen offset:{i*1024}{pol2(srd, c, i)} lds", tag) for i in range(4)]
                    return it
                it = stream(sVoff, sV, vVD, VBASE + vslot(u + 3) * 16384, ("V", 31))
                if idx is None: it += stream(sKoff, sK, vKD, KBASE + kslot(u + 4) * 16384, None)
                mVe = B.spread(it, 0, n - 12 if idx is None else 40)
                assert mVe < n - 8
        else:
            if idx is None or idx == 28:
                g0 = Q1 - int(18 * sc) if idx is None else 3
                gs = [B.place_big("M", dmaV(i), g0 + int((8 if idx is None else 4) * i * sc), ("V", 31)) for i in range(4)]
                mV, mVe = gs[0], gs[-1]
            if idx is None:
                g0 = P1 + int(14 * sc)
                gs = [B.place_big("M", dmaK(i), g0 + int(8 * i * sc)) for i in range(4)]
                mK, mKe = gs[0], gs[-1]
    if idx is not None:
        rd, iss = PLAN[idx]
        g = int(30 * sc)
        for j in rd:
            for i, t in enumerate(wo_reads(j, PIECE[j])):
                g = B.place_big("D", t, g, ("W", j), req=[("vm", ("w", j))] if i == 0 else None) + 2
        g = mVe + 1 if idx == 28 else 0
        span = ((n - 6 - g) // len(iss)) if not last else int(16 * sc)
        for j, pc in iss:
            src = [x for x in rd if PIECE[x] == pc]
            if src: g = max(g, int(74 * sc))
            it = [(k, t, ("w", j)) for k, t in wo_issue(j, pc)]
            g = B.spread(it, g, min(span, int(24 * sc)), req=[("W", src[0])] if src else None) + 1
            assert g < n
        for k, (bi, gp) in enumerate(W6):
            if bi == idx:
                g = int(gp * sc)
                B.place_big("M", f"buffer_load_dword v{PFD}, v{PFA}, s[{sWO}:{sWO+3}], s{sPFW+k} offen", g, ("pfw", k))
    eg0, eg1, egt = {}, {}, {}
    nh = ne - ntail
    for i in range(ntail, ne):
        eg0[i] = B.place_big("E", ex0[i], max(1 + int((i - ntail) * (P0 - 4) / max(nh, 1)), eg0.get(i - 1, 0)))
    for i in range(ne):
        t = P0 + 1 + int(i * (win - 5) / ne)
        if i >= ne // 2: t = max(t, P0 + 5)
        eg1[i] = B.place_big("E", ex1[i], max(t, eg1.get(i - 1, 0)), hi=min(t + 3, P1 - 4))
    if not last:
        for i in range(ntail):
            t = P1 + 1 + int(i * (full - 5) / ne)
            egt[i] = B.place_big("E", ex0[i], max(t, egt.get(i - 1, 0)), hi=min(t + 3, n - 2))
    for j in range(ntail // 2, ne // 2):
        q = (j // 2) % nq
        g = B.place_cvt(cv0[j], eg0[2 * j + 1] + 1, P0 + q - 2)
        assert g <= P0 + q - 2
    for j in range(ne // 2):
        q = (j // 2) % nq
        g = B.place_cvt(cv1[j], eg1[2 * j + 1] + 1, P1 + q - 3)
        assert g <= P1 + q - 3, (j, g, P1)
    assert eg1[ne // 2] >= P0 + 5
    if not last:
        for j in range(ntail // 2): B.place_cvt(cv0[j], egt[2 * j + 1] + 1, n - 1)
        assert min(egt.values()) >= Q1 + 4 * nq + 5
        if ntail > ne // 2: assert egt[ne // 2] >= P1 + 5
        if DMA3: pass
        elif idx is None:
            B.place_s(f"s_add_u32 m0, s{sVW}, {VBASE + vslot(u+3)*16384}", mV - 4, mV - 1)
            g = B.place_s(f"s_add_u32 s{sVoff}, s{sVoff}, 16384", mV - 12, mV - 6)
            B.place_s(f"s_and_b32 s{sVoff}, s{sVoff}, 0x7ffff", g + 1, mV - 1)
            B.place_s(f"s_add_u32 m0, s{sKW}, {kslot(u+4)*16384}", mK - 4, mK - 1)
            g = B.place_s(f"s_add_u32 s{sKoff}, s{sKoff}, 16384", mK - 12, mK - 6)
            B.place_s(f"s_and_b32 s{sKoff}, s{sKoff}, 0x7ffff", g + 1, mK - 1)
        elif idx == 28:
            B.pre.setdefault(0, []).extend([f"s_add_u32 s{sVoff}, s{sVoff}, 16384", f"s_and_b32 s{sVoff}, s{sVoff}, 0x7ffff"])
            B.pre.setdefault(1, []).append(f"s_add_u32 m0, s{sVW}, {VBASE + vslot(u+3)*16384}")
        if loopctl:
            B.place_s(loopctl[0], n - 8, n - 5)
            B.place_s(loopctl[1], n - 4, n - 2)
    t = Asm()
    B.emit(t, resident, vm=vm, vmdone=VMDONE if vm is not None else None)
    a.l += t.l
    if opt("est", 0): sys.stderr.write(f"body {L} u={u} idx={idx}: mfma {n} est {estimate(t.l)}\n")
    if idx is not None and not last:
        need = [("V", idx + 1)] + ([("K", idx + 2)] if idx + 2 < 32 else [])
        N = min(min(vm[::-1].index(t) if t in vm else 60 for t in need), 60)
        if STAMP == 2: a("s_memtime s[100:101]")
        a(f"s_waitcnt vmcnt({N}) lgkmcnt(0)")
        for t in vm[:len(vm) - N]: VMDONE.add(t)
        for t in vm[len(vm) - N:]: VMDONE.discard(t)
        a("s_barrier")
        if STAMP == 2: rec(a)
    elif last:
        if STAMP == 2: a("s_memtime s[100:101]\ns_waitcnt lgkmcnt(0)"); rec(a)
    else:
        if STAMP == 2: a("s_memtime s[100:101]")
        for _ in range(opt("idle", 0)): a("s_nop 15")
        a(f"s_waitcnt vmcnt({16 if not DMA3 else 60 if nq == 3 else 8 if u == 0 else 0}) lgkmcnt(0)")
        if not opt("nobar", 0): a("s_barrier")
        if STAMP == 2: rec(a)

def kv_voffsets(a, wave):
    if wave:
        a("v_lshlrev_b32 v8, 12, v1")
        a("v_lshl_add_u32 v8, v4, 8, v8")
    else:
        a("v_lshlrev_b32 v8, 8, v4")
    a("v_xor_b32 v9, v5, v4")
    for n in range(4):
        a(f"v_xor_b32 v10, {4*n}, v9")
        a(f"v_lshl_add_u32 v{vKD+n}, v10, 4, v8")
    a("v_lshlrev_b32 v9, 1, v4")
    a("v_xor_b32 v9, v9, v5")
    for p in range(2):
        a(f"v_xor_b32 v10, {8*p}, v9")
        a(f"v_lshl_add_u32 v{vVD+p}, v10, 4, v8")
        a(f"v_mov_b32 v{vVD+p+2}, v{vVD+p}")
def kv_srds(a):
    a(f"""s_lshl_b32 s{sT0}, s{sB}, 5
s_add_u32 s{sT0}, s{sT0}, s{sH}
s_lshl_b32 s{sT0}, s{sT0}, 19
s_add_u32 s{sK}, s{pK}, s{sT0}
s_addc_u32 s{sK+1}, s{pK+1}, 0
s_mov_b32 s{sK+2}, 524288
s_mov_b32 s{sK+3}, 0x20000
s_add_u32 s{sV}, s{pV}, s{sT0}
s_addc_u32 s{sV+1}, s{pV+1}, 0
s_mov_b32 s{sV+2}, 524288
s_mov_b32 s{sV+3}, 0x20000""")
def ar_setup(a):
    a("v_lshrrev_b32 v12, 2, v3\nv_lshlrev_b32 v12, 7, v12\nv_and_b32 v15, 3, v3\nv_lshl_add_u32 v12, v15, 3, v12")
    a(f"v_add_u32 v12, s{sVW}, v12\nv_bfe_u32 v15, v3, 3, 2")
    for t in range(4):
        a(f"v_xor_b32 v{vAR[0]+t}, {t}, v15")
        a(f"v_lshl_add_u32 v{vAR[0]+t}, v{vAR[0]+t}, 5, v12")
        a(f"v_add_u32 v{vAR[1]+t}, 0x10000, v{vAR[0]+t}")
        a(f"v_add_u32 v{vAR[2]+t}, 0x20000, v{vAR[0]+t}")

def xlane(a, regs, op2, tmp=1):
    for op in ("v_permlane32_swap_b32", "v_permlane16_swap_b32"):
        for m in regs: a(f"v_mov_b32 v{m+tmp}, v{m}")
        a("s_nop 1")
        for m in regs: a(f"{op} v{m}, v{m+tmp}")
        a("s_nop 1")
        for m in regs: a(f"{op2} v{m}, v{m}, v{m+tmp}")

def qstage(st, nx):
    buf = QBUF[(st + 1) % 3]
    out = [("s", f"s_lshl_b32 s{sT0}, s{sQS}, 7"), ("s", f"s_lshl_b32 s{sT1}, s{sQS}, 19"), ("s", f"s_add_u32 s{sQS}, s{sQS}, 1"),
           ("s", f"s_cmp_eq_u32 s{sQS}, 10"), ("s", f"s_cselect_b32 s{sQS}, 0, s{sQS}"), ("s", f"s_add_u32 m0, s{sXW}, {buf+XOFF}")]
    for n in range(nx):
        if n == 4: out.append(("s", f"s_add_u32 m0, s{sXW}, {buf+XOFF+4096}"))
        out.append(("M", f"buffer_load_dwordx4 v{vXD+n}, s[{sX}:{sX+3}], s{sT0} offen offset:{(n&3)*1024} lds"))
    out.append(("s", f"s_add_u32 m0, s{sWW}, {buf+WOFF}"))
    for n in range(4):
        out.append(("M", f"buffer_load_dwordx4 v{vWD+n}, s[{sW}:{sW+3}], s{sT1} offen offset:{n*1024 + 8*(n>>1)} lds"))
    return [(k, t, ("q", st)) for k, t in out]

def gen_wave(a, nq, L):
    nx = 2 * nq
    def qstage_issue(st): return qstage(st, nx)
    def kv_issue(kind, t):
        so, sw, off, f = (sKoff, sKW, kslot(t) * 16384, dmaK) if kind == "K" else (sVoff, sVW, VBASE + vslot(t) * 16384, dmaV)
        out = [("s", f"s_add_u32 s{so}, s{sROT}, {t*16384}"), ("s", f"s_and_b32 s{so}, s{so}, 0x7ffff"), ("s", f"s_add_u32 m0, s{sw}, {off}")]
        out += [("M", f(n)) for n in range(4)]
        return [(k, x, (kind, t)) for k, x in out]
    vm = []
    def now(it):
        flat(a, it)
        for x in it:
            if x[0] == "M": vm.append(x[2])
    def vmwait(tag): return vm[::-1].index(tag)
    vm += [("q", 0)] * (nx + 4) + [("tlb", 0)] * (3 if opt("tlb", 0) else 0) + [("q", 1)] * 4
    s1 = qstage_issue(1)[5:-5]
    def qreads(st, sp):
        out = [(f"ds_read_b128 {r('a', aQB[sp]+4*q)}, v{vXR+sp} offset:{XOFF + q*2048}", ("B", st, sp)) for q in range(nq)]
        for t in range(8):
            s, odd = t >> 1, t & 1
            for h in range(2):
                out.append((f"ds_read_b64_tr_b16 {r('a', aQA[sp]+4*t+2*h, 2)}, v{vWR+s} offset:{WOFF + odd*8 + h*1024 + sp*8224}", ("A", st, sp, t)))
        return out
    def rot(st):
        d = QBUF[(st + 2) % 3] - QBUF[(st + 1) % 3]
        return [f"v_add_u32 v{vXR+i}, {d}, v{vXR+i}" if d > 0 else f"v_subrev_u32 v{vXR+i}, {-d}, v{vXR+i}" for i in range(6)]
    stamp(a, True)
    a(f"s_waitcnt vmcnt({vmwait(('q', 0))})")
    stamp(a, True)
    a("s_barrier")
    stamp(a); stamp(a, True)
    B = Body()
    PH = 8 * nq
    for st in range(10):
        for sp in range(2 if st < 9 else 1):
            for t in range(8):
                for q in range(nq):
                    c = "0" if (st == 0 and sp == 0) else O(q, t)
                    B.add(f"{MF} {O(q,t)}, {r('a', aQA[sp]+4*t)}, {r('a', aQB[sp]+4*q)}, {c}",
                          ([("A", st, sp, t)] + ([("B", st, sp)] if t == 0 else [])) if q == 0 else None)
    if STAMP == 3:
        a("v_mov_b32 v13, 0\nv_mov_b32 v14, 0\ns_memtime s[100:101]\ns_waitcnt lgkmcnt(0)"); rec(a)
    first = qreads(0, 0)
    for t, _ in first: a(t)
    UP = opt("up1", 8)
    mi = [i for i, x in enumerate(s1) if x[0] == "M"]
    cut = mi[min(UP, len(mi)) - 1] + 1 if UP else 0
    now(s1[:cut]); s1 = s1[cut:]
    a("s_waitcnt lgkmcnt(0)")
    stamp(a, True)
    LQ = int(QLEAD * nq / 4)
    for st in range(9):
        bar = 2 * PH * (st + 1) - LQ
        B.place_big("B", "s_barrier", bar, ("q", st + 1), hi=bar)
        for i, t in enumerate(rot(st)): B.cv.setdefault(bar - 3 + i // 2, []).append(t)
    def nM(it): return sum(1 for x in it if x[0] == "M")
    RATE = opt("qrate", 2.5) * nq / 4 * 12 / (nx + 4)
    g = -1
    if s1: g = B.spread(s1, g, int(nM(s1) * opt("r1", 2.0)))
    it = qstage_issue(2)
    qcoop = [("M", f"buffer_load_dword v12, v13, s[{sX}:{sX+3}], 0 offen", ("qc", 0)), ("M", f"buffer_load_dword v12, v14, s[{sW}:{sW+3}], 0 offen", ("qc", 1))]
    if QC == 1: it = it + qcoop
    g = B.spread(it, g, int(nM(it) * RATE))
    for st in range(9):
        bar = 2 * PH * (st + 1) - LQ
        if st + 3 < 10: it = qstage_issue(st + 3)
        elif st == 7: it = kv_issue("K", 1) + kv_issue("K", 2)
        else: it = kv_issue("V", 0) + kv_issue("V", 1)
        if st == K0AT: it = it + kv_issue("K", 0)
        if QC and st == QC - 2: it = qcoop + it
        start = max(bar, g)
        full = 2 * PH - 5 if st < 8 else PH + LQ - 6
        g = B.spread(it, start, max(bar + full - start, int(nM(it) * RATE)))
        assert g < bar + 4 * PH - 8 and g < len(B.mf)
    for st in range(10):
        base = 2 * PH * st
        g = base - LQ + 1
        if st > 0:
            for t, tag in qreads(st, 0): g = B.place_d(t, g, tag, 5 - nq)
        g = max(g, 0)
        rd = qreads(st, 1)
        order = rd[nq:nq + 4] + rd[:nq] + rd[nq + 4:] if st > 0 else rd
        for t, tag in order:
            lo = base if tag[0] == "B" else base - PH + nq * tag[3] + nq
            g = B.place_d(t, max(g, lo), tag, 5 - nq)
        if st < 9: assert g < base + 2 * PH - LQ - 3, (st, g)
    aK0 = 180
    g = 2 * PH * 8
    for f in range(8): g = B.place_d(kread(f, kslot(0) * 16384, aK=aK0), g, ("K0", f), 5 - nq) + 1
    c = Asm()
    c("v_lshlrev_b32 v8, 1, v4\nv_xor_b32 v8, v8, v7\nv_mul_u32_u24 v9, 1280, v6\nv_lshl_add_u32 v8, v8, 4, v9")
    for n in range(4): c(f"v_add_u32 v{vWO+n}, {n*8*1280 - n*1024}, v8")
    ar_setup(c)
    c(f"v_mul_u32_u24 v{PFA}, 1280, v3")
    for i in range(16): c(f"v_accvgpr_write_b32 a{aL+i}, 0")
    g = 2 * PH * 9 - LQ + 2
    for t in c.l:
        while any(x[0] == "M" for x in B.big.get(g, [])): g += 1
        B.cv.setdefault(g, []).append(t.strip()); g += 1
        if g >= len(B.mf): g = len(B.mf) - 1
    sc_ = [f"s_mov_b32 s{sQS}, s5", "s_lshr_b32 s4, s2, 3", "s_mul_i32 s4, s4, 52", "s_lshr_b32 s4, s4, 8", f"s_lshl_b32 s{sT0}, s4, 1", f"s_add_u32 s{sT0}, s{sT0}, s{sR}"]
    for k in range(2):
        sc_ += [f"s_add_u32 s{sPFW+k}, s{sT0}, {14 + 12*k}", f"s_and_b32 s{sPFW+k}, s{sPFW+k}, 31", f"s_mul_i32 s{sPFW+k}, s{sPFW+k}, {WSTEP}"]
    sc_ += [f"s_cmp_ge_u32 s4, 3\ns_cselect_b32 s{sPFW+1}, 0x7f000000, s{sPFW+1}", f"s_mul_i32 s{sT0}, s2, 20480",
            f"s_add_u32 s{sX}, s{pWO}, s{sT0}\ns_addc_u32 s{sX+1}, s{pWO+1}, 0", f"s_mov_b32 s{sX+2}, 20480", f"s_mov_b32 s{sT1}, {CSCALE:#x}", f"s_mov_b32 s{sWW}, 0x07060302"]
    for i, t in enumerate(sc_): B.pre.setdefault(2 * PH * 9 + i, []).append(t)
    B.emit(a, resident=[tag for _, tag in first], vm=vm)
    if STAMP == 3:
        a("s_memtime s[100:101]\ns_waitcnt lgkmcnt(0)"); rec(a)
    stamp(a)
    a("s_waitcnt lgkmcnt(0)")
    V, M = [], []
    def vadd(t, deps=(), id=None): V.append((id if id is not None else ("v", len(V)), t, list(deps)))
    def vissue(it):
        prev = ""
        for k, t, tag in it:
            vadd(("s_nop 0\n" if (k == "M" and "m0" in prev) else "") + t); prev = t
            if k == "M": vm.append(tag)
    for q in range(nq):
        for t in range(8): M.append((("lq", q, t), f"{MF} {O(q,t)}, {r('a', aQA[1]+4*t)}, {r('a', aQB[1]+4*q)}, {O(q,t)}", []))
    def conv(q):
        for s in range(4):
            b = vO + (q * 8 + 2 * s) * 4
            for j in range(8): vadd(f"v_mul_f32 v{b+j}, s{sT1}, v{b+j}", [(("lq", q, 2 * s + (j >> 2)), 8)])
            for j in range(4): vadd(f"v_cvt_pk_bf16_f32 v{b+j}, v{b+2*j}, v{b+2*j+1}")
            for j in range(4): vadd(f"v_accvgpr_write_b32 a{aQ+16*q+4*s+j}, v{b+j}", id=("Q", q, s) if j == 3 else None)
        for kt in range(2):
            for s in range(4): M.append((("qk0", q, kt, s), qk(0, q, kt, s, czero=True, aK=aK0), [(("Q", q, 3), 2)]))
        for h in range(2):
            z = r("v", vO + q * 32 + 16 * h, 16)
            M.append((("z", q, h), f"v_mfma_f32_32x32x16_bf16 {z}, {r('a', aL)}, {r('a', aL)}, 0", [(("Q", q, 3), 0)]))
    def stats(qs):
        for q in qs:
            b = S(0, q, 0); m = vNM + 4 * q
            vadd(f"v_max3_f32 v{m}, v{b}, v{b+1}, v{b+2}", [(("qk0", q, 1, 3), 8)])
            vadd(f"v_max3_f32 v{m+1}, v{b+3}, v{b+4}, v{b+5}")
            vadd(f"v_max3_f32 v{m}, v{m}, v{b+6}, v{b+7}")
            vadd(f"v_max_f32 v{m}, v{m}, v{m+1}")
        for op in ("v_permlane32_swap_b32", "v_permlane16_swap_b32"):
            for q in qs: vadd(f"v_mov_b32 v{vNM+4*q+1}, v{vNM+4*q}", id=("cp", op, q))
            for q in qs: vadd(f"{op} v{vNM+4*q}, v{vNM+4*q+1}", [(("cp", op, q), 2)], id=("sw", op, q))
            for q in qs: vadd(f"v_max_f32 v{vNM+4*q}, v{vNM+4*q}, v{vNM+4*q+1}", [(("sw", op, q), 2)])
        for q in qs:
            m = vNM + 4 * q; b = S(0, q, 0)
            vadd(f"v_sub_f32 v{m}, 0, v{m}")
            for j in range(1, 4): vadd(f"v_mov_b32 v{m+j}, v{m}", id=("nm", q) if j == 3 else None)
            for j in range(8): vadd(f"v_add_f32 v{b+j}, v{b+j}, v{m}")
    ex0, cv0 = softmax_ops(0, nq)
    ntail = NTAIL[nq]
    def exps(qs):
        for j in range(ntail // 2):
            if (j // 2) % nq in qs:
                vadd(ex0[2 * j]); vadd(ex0[2 * j + 1], id=("e", j))
        for j in range(ntail // 2):
            if (j // 2) % nq in qs:
                for t in cv0[j]: vadd(t, [(("e", j), 1)])
    def qk1(qs):
        for q in qs:
            for s in range(4): M.append((("qk1", q, s), qk(1, q, 0, s), [(("nm", q), 2), ("khi", 0)]))
    for f in range(8): vadd(kread(f, kslot(0) * 16384 + 8192))
    for q in range(nq):
        if valu_sum(nq, q): vadd(f"v_mov_b32 v{vLV[q]}, 0")
    conv(0); conv(1)
    vissue(kv_issue("K", 3))
    vadd("s_waitcnt lgkmcnt(0)", id="khi")
    conv(2)
    stats([0, 1])
    if nq == 4: conv(3)
    qk1([0, 1])
    if WARM:
        vadd("v_lshlrev_b32 v12, 7, v0")
        vadd(f"buffer_load_dword v12, v12, s[{sX}:{sX+3}], 0 offen"); vm.append(("warm", 0))
    vissue(kv_issue("V", 2))
    exps([0, 1])
    rest_q = list(range(2, nq))
    stats(rest_q); qk1(rest_q); exps(rest_q)
    merge(a, V, M)
    a(f"s_mov_b32 s{sCNT}, 7")
    if STAMP == 2: a("v_mov_b32 v13, 0\nv_mov_b32 v14, 0")
    if DMA3 and nq == 3:
        for i in range(8): a(f"v_subrev_u32 v{vKD+i}, 12288, v{vKD+i}")
    a(f"s_waitcnt vmcnt({vmwait(('V', 1 if (DMA3 and nq == 3) else 0))})")
    if opt("prew", 0): a("s_waitcnt vmcnt(0)")
    for _ in range(opt("preidle", 0)): a("s_nop 15")
    assert vmwait(("V", 1)) >= 8 and vmwait(("K", 2)) >= 8
    a("s_barrier")
    stamp(a)
    a(".p2align 6")
    a(f"L_loop{L}:")
    gen_body(a, nq, 0, L)
    gen_body(a, nq, 1, L)
    gen_body(a, nq, 2, L)
    gen_body(a, nq, 3, L, loopctl=(f"s_sub_u32 s{sCNT}, s{sCNT}, 1", f"s_cmp_gt_u32 s{sCNT}, 1"))
    a(f"s_cbranch_scc1 L_loop{L}")
    a(f"s_cmp_eq_u32 s{sCNT}, 0")
    a(f"s_cbranch_scc1 L_tail{L}")
    for j, pc in PRE: flat(a, wo_issue(j, pc))
    a(f"s_branch L_loop{L}")
    a(f"L_tail{L}:")
    c = 4 if not DMA3 else 16 if nq == 3 else 0
    vm = [("w", 0), ("w", 1), ("old", 0)] + [("V", 29)] * c + [("K", 30)] * c + [("V", 30)] * c + [("K", 31)] * c
    VMDONE.clear(); VMDONE.update([("w", 0), ("w", 1)])
    for i in (28, 29, 30): gen_body(a, nq, i % 4, L, idx=i, vm=vm)
    gen_body(a, nq, 3, L, last=True, idx=31, vm=vm)
    stamp(a)
    vq = [q for q in range(nq) if valu_sum(nq, q)]
    for q in vq: a(f"v_mov_b32 v{vNM+4*q}, v{vLV[q]}")
    if vq: xlane(a, [vNM + 4 * q for q in vq], "v_add_f32")
    else: a("s_nop 7")
    for q in range(nq):
        if q not in vq: a(f"v_accvgpr_read_b32 v{vNM+4*q}, a{aL+4*q}")
    if opt("one1", 1): xlane(a, [vNM + 4 * q for q in range(nq) if q not in vq], "v_add_f32")
    a(f"s_mov_b32 s{sT0}, 0x5f800000")
    a("s_mov_b64 s[4:5], 0")
    for q in range(nq):
        a(f"v_cmp_ngt_f32 vcc, s{sT0}, v{vNM+4*q}")
        a("s_or_b64 s[4:5], s[4:5], vcc")
    if FORCE_SAFE: a(f"s_branch L_safe{L}")
    a(f"s_cbranch_scc1 L_safe{L}")
    a(f"L_epi{L}:")
    for q in range(nq): a(f"v_rcp_f32 v{vNM+4*q}, v{vNM+4*q}")
    nw12 = vm[::-1].index(('w', 12))
    early = []
    if EPRE:
        a(f"s_waitcnt vmcnt({vm[::-1].index(('w', 5 + EPRE))})")
        for j in range(6, 6 + EPRE):
            for t in wo_reads(j, PIECE[j]): a(t)
        early = [wo_issue(15 + i, PIECE[6 + i], 4) for i in range(EPRE)]
        nw12 += 4 * EPRE
    for q in range(nq):
        a(f"s_lshl_b32 s{sT0}, s{sWAVE}, 2\ns_add_u32 s{sT0}, s{sT0}, {q}\ns_mul_i32 s{sT1}, s{sT0}, 52\ns_lshr_b32 s{sT1}, s{sT1}, 8")
        a(f"s_mul_i32 s{sT1}, s{sT1}, {31*20480}\ns_lshl_b32 s{sT0}, s{sT0}, 12\ns_add_u32 s{sT0}, s{sT0}, s{sT1}\ns_add_u32 s{sT0}, s{sT0}, s3")
        for s in range(4):
            b = vO + (q * 8 + 2 * s) * 4
            if opt("pk", 1):
                for j in range(4): a(f"v_pk_mul_f32 v[{b+2*j}:{b+2*j+1}], v[{b+2*j}:{b+2*j+1}], v[{vNM+4*q}:{vNM+4*q+1}] op_sel_hi:[1,0]")
            else:
                for j in range(8): a(f"v_mul_f32 v{b+j}, v{vNM+4*q}, v{b+j}")
            for j in range(4): a(f"v_cvt_pk_bf16_f32 v{b+j}, v{b+2*j}, v{b+2*j+1}")
            if early and q == 0 and s == 0:
                a("s_waitcnt lgkmcnt(0)")
                for it in early: flat(a, it)
            a(f"buffer_store_dwordx4 {r('v', b)}, v2, s[{sWS}:{sWS+3}], s{sT0} offen offset:{s*1024}{OST}")
    a(f"s_waitcnt vmcnt({nw12 + 4*nq})")
    a("s_branch L_common")
    gen_safe(a, nq, L)

def gen_safe(a, nq, L):
    a("; fallback: online softmax with the true running maximum")
    a(f"L_safe{L}:")
    a("s_waitcnt vmcnt(0) lgkmcnt(0)")
    for i in range(nq * 32): a(f"v_mov_b32 v{vO+i}, 0")
    for q in range(nq):
        a(f"v_mov_b32 v{vNM+4*q}, 0xff800000")
        a(f"v_mov_b32 v{vNM+4*q+3}, 0")
    kv_voffsets(a, False)
    kv_srds(a)
    a(f"s_add_u32 s{sKW}, s{sVW}, {SBASE}")
    a(f"s_sub_u32 s{sT0}, s{sKW}, {KBASE}")
    for i in range(4): a(f"v_add_u32 v{vKR+i}, s{sT0}, v{vKR+i}")
    for i in range(8): a(f"v_add_u32 v{vVR+i}, s{sKW}, v{vVR+i}")
    a(f"s_mov_b32 s{sKoff}, 0")
    a(f"L_sloop{L}:")
    def tile(vd, srd):
        for hh in range(2):
            a(f"s_add_u32 m0, s{sKW}, {hh*16384}")
            a(f"s_add_u32 s{sVoff}, s{sKoff}, {hh*4096}")
            for n in range(4): a(f"buffer_load_dwordx4 v{vd+n}, s[{srd}:{srd+3}], s{sVoff} offen offset:{n*1024} lds")
    tile(vKD, sK)
    a("s_waitcnt vmcnt(0)")
    for f in range(8): a(kread(f, 0, 16384))
    a("s_waitcnt lgkmcnt(0)")
    tile(vVD, sV)
    for kt in range(2):
        for s in range(4):
            for q in range(nq): a(qk(0, q, kt, s, czero=True))
    a("s_nop 7")
    T = vS + 32
    for q in range(nq):
        b = S(0, q, 0); m = T + 2 * q
        a(f"v_max3_f32 v{m}, v{b}, v{b+1}, v{b+2}")
        a(f"v_max3_f32 v{m+1}, v{b+3}, v{b+4}, v{b+5}")
        a(f"v_max3_f32 v{m}, v{m}, v{b+6}, v{b+7}")
        a(f"v_max3_f32 v{m}, v{m}, v{m+1}, v{vNM+4*q}")
    xlane(a, [T + 2 * q for q in range(nq)], "v_max_f32")
    for q in range(nq):
        m = vNM + 4 * q; b = S(0, q, 0)
        a(f"v_sub_f32 v{m+2}, v{m}, v{T+2*q}")
        a(f"v_exp_f32 v{m+2}, v{m+2}")
        a(f"v_mov_b32 v{m}, v{T+2*q}")
        for j in range(8): a(f"v_sub_f32 v{b+j}, v{b+j}, v{m}")
        for j in range(8): a(f"v_exp_f32 v{b+j}, v{b+j}")
        a(f"v_mul_f32 v{m+3}, v{m+3}, v{m+2}")
        for i in range(32): a(f"v_mul_f32 v{vO+q*32+i}, v{vO+q*32+i}, v{m+2}")
        for j in range(4): a(f"v_cvt_pk_bf16_f32 v{b+j}, v{b+2*j}, v{b+2*j+1}")
        for j in range(4):
            a(f"v_lshlrev_b32 v{b+4}, 16, v{b+j}")
            a(f"v_and_b32 v{b+5}, 0xffff0000, v{b+j}")
            a(f"v_add_f32 v{m+3}, v{m+3}, v{b+4}")
            a(f"v_add_f32 v{m+3}, v{m+3}, v{b+5}")
    a("s_waitcnt vmcnt(0)")
    for d in range(8):
        for h in range(2): a(vread(d, h, 0, 16384))
        if d == 3: a("s_waitcnt lgkmcnt(0)")
    a("s_waitcnt lgkmcnt(0)")
    for d in range(8):
        for q in range(nq): a(pv(0, q, d))
    a("s_nop 7")
    a(f"s_add_u32 s{sKoff}, s{sKoff}, 8192")
    a(f"s_cmp_lt_u32 s{sKoff}, 524288")
    a(f"s_cbranch_scc1 L_sloop{L}")
    xlane(a, [vNM + 4 * q + 3 for q in range(nq)], "v_add_f32", tmp=-2)
    for q in range(nq): a(f"v_mov_b32 v{vNM+4*q}, v{vNM+4*q+3}")
    ar_setup(a)
    a(f"v_mul_u32_u24 v{PFA}, 1280, v3")
    for j in (8, 11): flat(a, wo_issue(j, PIECE[j]))
    a("s_waitcnt vmcnt(0)")
    a(f"s_branch L_epi{L}")

def gen_common(a):
    a("; hand-over and output projection")
    a("L_common:")
    piece = dict(PIECE)
    vm = [("w", j) for j in range(15 + EPRE)] + [("st", 0)]
    for i in range(EPRE): piece[15 + i] = piece[6 + i]
    def issue(n, p):
        piece[n] = p
        flat(a, wo_issue(n, p)); vm.extend([("w", n)] * 4)
    def vw(tag): return vm[::-1].index(tag)
    NPRE = EPRE + opt("npre", 2)
    assert NPRE <= 6
    for j in range(6 + EPRE, 7 + NPRE):
        for t in wo_reads(j, piece[j]): a(t)
    a("s_waitcnt lgkmcnt(8)")
    for i in range(EPRE, NPRE): issue(15 + i, piece[6 + i])
    for j in range(7 + NPRE, 13):
        for t in wo_reads(j, piece[j]): a(t)
    a(f"""s_lshl_b32 s{sT0}, s{sOB}, 2
s_add_u32 s{sT0}, s{sT0}, s{sWAVE}
s_mul_i32 s{sT0}, s{sT0}, {32*5120}
s_add_u32 s{sO}, s{pWS}, s{sT0}
s_addc_u32 s{sO+1}, s{pWS+1}, 0
s_mov_b32 s{sO+2}, {0 if opt("oskip", 0) else 32*5120}
s_mov_b32 s{sOUT}, s{pDBG}
s_mov_b32 s{sOUT+1}, s{pDBG+1}
s_mov_b32 s{sOUT+2}, 256
v_mov_b32 v12, 1
v_mov_b32 v15, 0""")
    a(f"s_waitcnt vmcnt({vw(('st', 0))}) lgkmcnt(0)")
    if opt("opf", 0):
        for half in range(2):
            a(f"v_lshrrev_b32 v17, 5, v3\nv_lshl_add_u32 v17, v1, 2, v17\nv_add_u32 v17, {2*half}, v17")
            a(f"v_mul_u32_u24 v18, 52, v17\nv_lshrrev_b32 v18, 8, v18\nv_mul_u32_u24 v18, {128*5120 - 5*1024}, v18\nv_lshl_add_u32 v18, v17, 10, v18")
            a(f"v_bfe_u32 v19, v3, 3, 2\nv_mul_u32_u24 v19, 5120, v19\nv_add_u32 v18, v18, v19\nv_lshl_add_u32 v18, v7, 7, v18")
            a(f"v_cmp_gt_u32 vcc, 15, v17\nv_mov_b32 v19, 0x7f000000\ns_nop 0\nv_cndmask_b32 v18, v19, v18, vcc")
            a(f"buffer_load_dword v{20+half}, v18, s[{sWS}:{sWS+3}], s3 offen sc1")
            vm.append(("opf", half))
    a("s_barrier")
    a(f"s_cmp_lg_u32 s{sWAVE}, 0")
    a("s_cbranch_scc1 L_nosig")
    a(f"s_lshl_b32 s{sT0}, s{sB}, 5")
    a("s_mov_b64 exec, 1")
    a(f"buffer_atomic_add v12, v15, s[{sOUT}:{sOUT+3}], s{sT0} offen sc1")
    a("s_mov_b64 exec, -1")
    a("L_nosig:")
    stamp(a)
    a("s_cmp_ge_u32 s2, 240")
    a("s_cbranch_scc1 L_exit")
    for j in (13, 14):
        for t in wo_reads(j, piece[j]): a(t)
    for i in range(NPRE, 7): issue(15 + i, piece[6 + i])
    a(f"s_mul_i32 s{sT1}, s{sOB}, 86\ns_lshr_b32 s{sT1}, s{sT1}, 8\ns_lshl_b32 s{sT1}, s{sT1}, 5")
    def poll():
        a(f"buffer_load_dword v12, v15, s[{sOUT}:{sOUT+3}], s{sT1} offen sc0 sc1")
        vm.append(("poll", 0))
    PA = opt("pollat", 5)
    issue(22, 3)
    pend = [13, 14]; nxt = 23
    for j in range(15, 22):
        a(f"s_waitcnt vmcnt({vw(('w', j))}) lgkmcnt(0)")
        for t in wo_reads(j, piece[j]): a(t)
        if j - 15 == PA: poll()
        for x in pend: issue(nxt, piece[x]); nxt += 1
        pend = [j]
    a("s_waitcnt lgkmcnt(0)")
    issue(nxt, piece[pend[0]])
    assert nxt == 31
    a(f"s_cmp_lg_u32 s{sWAVE}, 0")
    a("s_cbranch_scc1 L_go")
    a(f"s_waitcnt vmcnt({vw(('poll', 0))})")
    a(f"s_mov_b32 s{sCNT}, {SPIN}")
    a("L_poll:")
    a(f"v_readfirstlane_b32 s{sT0}, v12")
    a(f"s_sub_u32 s{sCNT}, s{sCNT}, 1")
    a(f"s_cbranch_scc1 L_go")
    a(f"s_cmp_ge_u32 s{sT0}, 32")
    a("s_cbranch_scc1 L_go")
    a(f"buffer_load_dword v12, v15, s[{sOUT}:{sOUT+3}], s{sT1} offen sc0 sc1")
    a("s_waitcnt vmcnt(0)")
    a("s_branch L_poll")
    a("L_go:")
    a("s_barrier")
    stamp(a)
    vAcc = 128
    ring = [208 + 4 * i for i in range(12)] + [36, 16, 4] + ([12] if STAMP < 2 else [])
    ring = ring[:opt("rd", 16)]
    RD = len(ring)
    G = opt("gg", 4)
    blocks = [list(range(n, n + G)) for n in range(0, 28, G)] + [[28, 29, 30, 31]]
    seq = [(n, qt) for blk in blocks for qt in range(5) for n in blk]
    pos = {f: i for i, f in enumerate(seq)}
    def o_so(i): return (seq[i][0] >> 2) * 20480 + seq[i][1] * 4096
    def o_ld(i): return f"buffer_load_dwordx4 {r('v', ring[i % RD])}, v2, s[{sO}:{sO+3}], s{sT1} offen offset:{(seq[i][0]&3)*1024}{OLD}"
    for i in range(RD):
        if i == 0 or o_so(i) != o_so(i - 1): a(f"s_mov_b32 s{sT1}, {o_so(i)}")
        a(o_ld(i)); vm.append(("o", i))
    B = Body()
    lastuse, blkend, fin = {}, {}, {}
    for blk in blocks:
        for qt in range(5):
            for nt in range(4):
                acc = r("v", vAcc + (qt * 4 + nt) * 4)
                for n in (blk if nt % 2 == 0 else blk[::-1]):
                    rf, bank = bank_of(n)
                    need = None
                    if nt == 0: need = [("vm", ("o", pos[(n, qt)]))] + ([("W", n)] if (qt == 0 and n >= 22) else [])
                    first = blk[0] == 0 and n == (blk if nt % 2 == 0 else blk[::-1])[0]
                    lastuse[pos[(n, qt)]] = len(B.mf); fin[(qt, nt)] = len(B.mf)
                    B.add(f"{MF} {acc}, {r(rf, bank+4*nt)}, {r('v', ring[pos[(n, qt)] % RD])}, {'0' if first else acc}", need)
        for n in blk: blkend[n] = len(B.mf)
    g = -1
    for j in range(RD, 160):
        g = max(lastuse[j - RD], g + 2, 4 * (j - RD) + 3)
        if o_so(j) != o_so(j - 1): B.pre.setdefault(g - 1, []).append(f"s_mov_b32 s{sT1}, {o_so(j)}")
        B.place_big("M", o_ld(j), g, ("o", j), hi=g)
    g = 0
    for n in range(10):
        j = n + 22
        g = max(g, blkend[n])
        for i, t in enumerate(wo_reads(j, piece[j])):
            g = B.place_d(t, g, ("W", j), 1, req=[("vm", ("w", j))] if i == 0 else None) + 1
    g += 10
    while g in B.big: g += 1
    B.place_big("b", "s_barrier", g, hi=g)
    c = Asm()
    c(f"v_lshrrev_b32 v43, 4, v3\nv_lshlrev_b32 v47, 8, v43\nv_add_u32 v47, s{sKoff}, v47\nv_and_b32 v43, 2, v43\nv_and_b32 v40, 15, v3\nv_xor_b32 v43, v43, v40")
    for nt in range(4): c(f"v_xor_b32 v{8+nt}, {4*nt}, v43\nv_lshl_add_u32 v{8+nt}, v{8+nt}, 4, v47")
    c("v_and_b32 v1, 7, v3")
    for rnd in range(3):
        c(f"""v_lshrrev_b32 v43, 3, v3
v_add_u32 v43, s{sVoff}, v43
v_add_u32 v43, {8*rnd}, v43
v_lshrrev_b32 v47, 4, v43
v_lshlrev_b32 v47, 12, v47
v_lshl_add_u32 v47, v1, 9, v47
v_and_b32 v{40+rnd}, 15, v43
v_lshlrev_b32 v{44+rnd}, 1, v1
v_xor_b32 v{40+rnd}, v{40+rnd}, v{44+rnd}
v_lshl_add_u32 v{40+rnd}, v{40+rnd}, 4, v47
v_mul_u32_u24 v43, 1280, v43
v_lshl_add_u32 v{44+rnd}, v1, 4, v43""")
    c("v_cmp_gt_u32 vcc, 32, v3\nv_mov_b32 v43, 0x7f000000\nv_mov_b32 v47, 0\nv_cndmask_b32 v46, v43, v46, vcc\nv_cndmask_b32 v42, v47, v42, vcc")
    for k, t in enumerate([f"s_mul_i32 s{sKoff}, s{sWAVE}, 20480", f"s_mul_i32 s{sVoff}, s{sWAVE}, 20", f"s_mov_b32 s{sOUT}, s{pOUT}", f"s_mov_b32 s{sOUT+1}, s{pOUT+1}",
                           f"s_mov_b32 s{sOUT+2}, {8*240*640*2}", f"s_mul_i32 s{sT0}, s{sOB}, {80*1280}", f"s_lshl_b32 s4, s{sQS}, 7", f"s_add_u32 s{sT0}, s{sT0}, s4"]):
        B.pre.setdefault(4 * k + 1, []).append(t)
    g += 1
    for t in c.l:
        while g in B.big: g += 1
        B.cv.setdefault(g, []).append(t.strip()); g += 1
    assert g < blkend[27]
    late = []
    for qt in range(5):
        for nt in range(4):
            t = f"ds_write_b128 v{8+nt}, {r('v', vAcc+(qt*4+nt)*4)} offset:{(qt*4+nt)*1024}"
            if fin[(qt, nt)] + 8 < len(B.mf): B.place_big("w", t, fin[(qt, nt)] + 8)
            else: late.append(t)
    B.emit(a, vm=vm)
    stamp(a)
    if True:
        a("s_nop 3")
        a(late[0]); a("s_nop 2")
        for t in late[1:]: a(t)
        assert len(late) == 2
        a("s_waitcnt lgkmcnt(0)")
        a("s_barrier")
        def rd(rnd):
            for src in range(4):
                for h in range(2): a(f"ds_read_b128 {r('v', vAcc+rnd*32+src*8+4*h)}, v{40+rnd} offset:{src*20480 + h*256}")
        rd(0)
        for rnd in range(3):
            if rnd < 2: rd(rnd + 1)
            a(f"s_waitcnt lgkmcnt({8 if rnd < 2 else 0})")
            b = vAcc + rnd * 32
            for j in range(8): a(f"v_add_f32 v{b+j}, v{b+j}, v{b+8+j}")
            for j in range(8): a(f"v_add_f32 v{b+16+j}, v{b+16+j}, v{b+24+j}")
            for j in range(8): a(f"v_add_f32 v{b+j}, v{b+j}, v{b+16+j}")
            for j in range(4): a(f"v_cvt_pk_bf16_f32 v{b+j}, v{b+2*j}, v{b+2*j+1}")
            a(f"buffer_store_dwordx4 {r('v', b)}, v{44+rnd}, s[{sOUT}:{sOUT+3}], s{sT0} offen{FST}")
    if STAMP:
        a("s_waitcnt vmcnt(0)")
        a("s_waitcnt lgkmcnt(0)")
        if STAMP >= 2:
            a(f"s_lshl_b32 s{sT0}, s2, 10\ns_add_u32 s{sT0}, s{sT0}, 0x80000\nv_lshlrev_b32 v15, 2, v0")
            a(f"buffer_store_dword v14, v15, s[{sST}:{sST+3}], s{sT0} offen")
        a("s_memtime s[76:77]\ns_memrealtime s[78:79]\ns_waitcnt lgkmcnt(0)")
        if opt("dbgout", 0):
            a(f"s_cmp_lg_u32 s2, 9\ns_cbranch_scc1 L_exit\ns_cmp_lg_u32 s{sWAVE}, 0\ns_cbranch_scc1 L_exit")
            a(f"s_mov_b32 s{sOUT}, s{pDBG}\ns_mov_b32 s{sOUT+1}, s{pDBG+1}\ns_mov_b32 s{sOUT+2}, 256")
            a("s_mov_b64 exec, 1\nv_mov_b32 v15, 0")
            words = [1, 2, 3, 4, 5, 6, 7, 9]
            for i in range(8):
                a(f"s_sub_u32 s4, s{sSTAMP+4*(i+1)+2}, s{sSTAMP+4*i+2}\nv_mov_b32 v12, s4")
                a(f"buffer_store_dword v12, v15, s[{sOUT}:{sOUT+3}], 0 offen offset:{4*words[i]}\ns_nop 1")
            a(f"s_sub_u32 s4, s78, s{sSTAMP+2}\nv_mov_b32 v12, s4\nbuffer_store_dword v12, v15, s[{sOUT}:{sOUT+3}], 0 offen offset:40")
            a(f"s_sub_u32 s4, s{sSTAMP+16}, s{sSTAMP+12}\nv_mov_b32 v13, s4\nbuffer_store_dword v13, v15, s[{sOUT}:{sOUT+3}], 0 offen offset:44")
        else:
            stamp_store(a, 18, sSTAMP, sST, 4)

TICKET = opt("ticket", 0)
def gen():
    a = Asm()
    a("s_cmp_ge_u32 s2, 256")
    a("s_cbranch_scc1 L_exit")
    a("s_getpc_b64 s[8:9]")
    a(f"s_load_dwordx16 s[{sARG}:{sARG+15}], s[0:1], 0")
    stamp(a)
    a("s_getreg_b32 s6, hwreg(HW_REG_XCC_ID, 0, 3)\ns_getreg_b32 s7, hwreg(HW_REG_HW_ID, 13, 2)\ns_getreg_b32 s4, hwreg(HW_REG_HW_ID, 8, 4)")
    a("s_mul_i32 s7, s7, 9\ns_add_u32 s7, s7, s4")
    a(f"s_mov_b32 s10, L_exit-{KN}-16\ns_mov_b32 s11, 0x20000\ns_mul_i32 s4, s7, 2304")
    a("v_lshrrev_b32 v11, 2, v0\nv_lshlrev_b32 v11, 7, v11")
    a(f"""v_lshrrev_b32 v1, 6, v0
v_and_b32 v3, 63, v0
v_lshrrev_b32 v4, 4, v3
v_readfirstlane_b32 s{sWAVE}, v1
v_and_b32 v5, 15, v3
v_lshlrev_b32 v2, 4, v3
v_lshrrev_b32 v6, 3, v3
v_and_b32 v7, 7, v3""")
    if TICKET:
        a(f"""s_mul_i32 s5, s7, 114
v_add_u32 v8, s5, v0
v_and_b32 v8, 4095, v8
v_lshrrev_b32 v9, 2, v8
v_mul_u32_u24 v9, 1280, v9
v_and_b32 v10, 3, v8
v_lshl_add_u32 v13, v10, 7, v9
v_lshrrev_b32 v9, 4, v8
v_lshlrev_b32 v9, 13, v9
v_and_b32 v10, 15, v8
v_lshl_add_u32 v14, v10, 7, v9
v_mov_b32 v15, 1
v_mov_b32 v16, 0
s_and_b32 s{sT0}, s6, 1
s_mul_i32 s{sT0}, s{sT0}, 1228800
s_lshr_b32 s{sT1}, s6, 1
s_lshl_b32 s{sT1}, s{sT1}, 11
s_mov_b32 s{sX+2}, 1228800
s_mov_b32 s{sX+3}, 0x20000
s_sub_u32 s{sW+2}, 5242880, s{sT1}
s_mov_b32 s{sW+3}, 0x20000
s_mov_b32 s{sWS+2}, 256
s_mov_b32 s{sWS+3}, 0x20000
s_lshl_b32 s5, s6, 5
s_cmp_lg_u32 s{sWAVE}, 0
s_waitcnt lgkmcnt(0)
s_mov_b32 s{sWS}, s{pDBG}
s_mov_b32 s{sWS+1}, s{pDBG+1}
s_cbranch_scc1 L_notk
s_mov_b64 exec, 1
buffer_atomic_add v15, v16, s[{sWS}:{sWS+3}], s5 offen offset:4 sc0 sc1
s_mov_b64 exec, -1
L_notk:
s_add_u32 s{sX}, s{pX}, s{sT0}
s_addc_u32 s{sX+1}, s{pX+1}, 0
s_add_u32 s{sW}, s{pWQ}, s{sT1}
s_addc_u32 s{sW+1}, s{pWQ+1}, 0""")
        if opt("qpf", 0):
            a(f"buffer_load_dword v12, v14, s[{sW}:{sW+3}], 0 offen")
            a(f"buffer_load_dword v12, v13, s[{sX}:{sX+3}], 0 offen")
    TOUCH = opt("touch", 1)
    if TOUCH == 1: a("buffer_load_dword v12, v11, s[8:11], s4 offen")
    if TOUCH == 2:
        a("v_lshlrev_b32 v11, 7, v0\ns_mov_b32 s4, 32768\ns_mov_b32 s5, 65536")
        a("buffer_load_dword v12, v11, s[8:11], 0 offen\nbuffer_load_dword v12, v11, s[8:11], s4 offen\nbuffer_load_dword v12, v11, s[8:11], s5 offen")
    stamp(a, True)
    a("v_lshl_add_u32 v8, v1, 6, v6\nv_mul_u32_u24 v8, 1280, v8\nv_xor_b32 v9, v7, v4")
    for n in range(8):
        a(f"v_xor_b32 v10, {4*(n&1)}, v9")
        a(f"v_lshl_add_u32 v10, v10, 4, v8")
        a(f"v_add_u32 v{vXD+n}, {n*8*1280 - (n&3)*1024}, v10")
    a("v_lshl_add_u32 v8, v1, 4, v4\nv_lshlrev_b32 v8, 13, v8\nv_lshlrev_b32 v9, 2, v4\nv_xor_b32 v9, v9, v5\nv_lshl_add_u32 v8, v9, 4, v8")
    for n in range(4): a(f"v_add_u32 v{vWD+n}, {n*4*8192 - n*1024 - 8*(n>>1)}, v8")
    a(f"""s_lshl_b32 s{sXW}, s{sWAVE}, 13
s_lshl_b32 s{sVW}, s{sWAVE}, 12
s_add_u32 s{sKW}, s{sVW}, {KBASE}
s_mul_i32 s{sWW}, s{sWAVE}, 4112""")
    def rest_v(a):
        kv_voffsets(a, True)
        a("v_lshrrev_b32 v8, 2, v3\nv_and_b32 v9, 7, v8\nv_lshlrev_b32 v8, 8, v8\nv_and_b32 v10, 3, v3\nv_lshl_add_u32 v8, v10, 3, v8")
        for t in range(8):
            a(f"v_xor_b32 v10, {t}, v9")
            a(f"v_lshl_add_u32 v{vVR+t}, v10, 5, v8")
        a(f"v_lshlrev_b32 v8, 13, v1\nv_lshl_add_u32 v8, v5, 7, v8\nv_add_u32 v8, {QBUF[1]}, v8\nv_lshrrev_b32 v9, 1, v5\nv_xor_b32 v9, v9, v4")
        for sp in range(2):
            a(f"v_xor_b32 v10, {4*sp}, v9")
            a(f"v_lshl_add_u32 v{vXR+sp}, v10, 4, v8")
        a(f"v_bfe_u32 v9, v3, 2, 2\nv_lshl_add_u32 v8, v4, 3, v9\nv_lshlrev_b32 v8, 8, v8\nv_and_b32 v10, 3, v3\nv_lshl_add_u32 v8, v10, 4, v8")
        a(f"v_add_u32 v8, {QBUF[1]}, v8\nv_lshl_add_u32 v8, v4, 3, v8")
        for s in range(4):
            a(f"v_xor_b32 v10, {s}, v9")
            a(f"v_lshl_add_u32 v{vWR+s}, v10, 6, v8")
        a(f"v_and_b32 v8, {15 if opt('one1', 1) else 3}, v3\nv_cmp_eq_u32 vcc, 0, v8\nv_mov_b32 v9, 0x3f803f80\nv_mov_b32 v10, 0\nv_cndmask_b32 v9, v10, v9, vcc")
        for j in range(4): a(f"v_accvgpr_write_b32 a{aONE+j}, v9")
    def kr_setup(a):
        a(f"v_lshlrev_b32 v8, 8, v5\nv_add_u32 v8, {KBASE}, v8\nv_xor_b32 v9, v4, v5")
        for s in range(4):
            a(f"v_xor_b32 v10, {4*s}, v9")
            a(f"v_lshl_add_u32 v{vKR+s}, v10, 4, v8")
    if TICKET:
        rest_v(a)
        a(f"""s_cmp_lg_u32 s{sWAVE}, 0
s_cbranch_scc1 L_tkwait
s_mov_b32 s{sCNT}, 8
s_waitcnt vmcnt({3 if opt("qpf", 0) else 1})
L_tkchk:
v_readfirstlane_b32 s2, v15
s_cmp_lt_u32 s2, 32
s_cbranch_scc1 L_tkok
s_add_u32 s6, s6, 1
s_and_b32 s6, s6, 7
s_lshl_b32 s5, s6, 5
v_mov_b32 v15, 1
s_mov_b64 exec, 1
buffer_atomic_add v15, v16, s[{sWS}:{sWS+3}], s5 offen offset:4 sc0 sc1
s_mov_b64 exec, -1
s_waitcnt vmcnt(0)
s_sub_u32 s{sCNT}, s{sCNT}, 1
s_cbranch_scc0 L_tkchk
s_mov_b32 s2, 32
L_tkok:
s_lshl_b32 s2, s2, 3
s_or_b32 s2, s2, s6
v_mov_b32 v15, s2
ds_write_b32 v16, v15
s_waitcnt lgkmcnt(0)
L_tkwait:
s_barrier
ds_read_b32 v15, v16
s_waitcnt lgkmcnt(0)
v_readfirstlane_b32 s2, v15
s_cmp_ge_u32 s2, 256
s_cbranch_scc1 L_exit""")
    else:
        a("s_waitcnt lgkmcnt(0)")
    stamp(a, True)
    a(f"""s_and_b32 s{sT0}, s2, 1
s_lshl_b32 s{sB}, s{sT0}, 2
s_bfe_u32 s{sT0}, s2, 0x20003
s_add_u32 s{sB}, s{sB}, s{sT0}
s_and_b32 s{sH}, s2, 6
s_lshl_b32 s{sH}, s{sH}, 2
s_lshr_b32 s{sT1}, s2, 5
s_add_u32 s{sH}, s{sH}, s{sT1}
s_add_u32 s{sQS}, s{sH}, s{sB}
s_and_b32 s{sQS}, s{sQS}, {opt("qm", 3)}
s_mul_i32 s{sT0}, s{sB}, 307200
s_lshl_b32 s{sT1}, s{sH}, 8
s_mov_b32 s{sX+2}, 307200
s_mov_b32 s{sX+3}, 0x20000
s_mov_b32 s{sW+3}, 0x20000
s_sub_u32 s{sW+2}, 5242880, s{sT1}
s_add_u32 s{sX}, s{pX}, s{sT0}
s_addc_u32 s{sX+1}, s{pX+1}, 0
s_add_u32 s{sW}, s{pWQ}, s{sT1}
s_addc_u32 s{sW+1}, s{pWQ+1}, 0""")
    s0 = qstage(0, 8)
    s0 = s0[:5] + s0[-5:] + s0[5:-5]
    flat(a, s0[:-2])
    a(f"s_cmp_eq_u32 s{sWAVE}, 3")
    a("s_cbranch_scc1 L_x6")
    flat(a, s0[-2:])
    a("L_x6:")
    if not TICKET: rest_v(a)
    if QC:
        a(f"""s_lshr_b32 s4, s2, 5
s_mul_i32 s4, s4, 30
v_lshrrev_b32 v8, 3, v0
v_add_u32 v9, s4, v8
v_mul_u32_u24 v9, 1280, v9
v_lshl_add_u32 v13, v7, 7, v9
v_add_u32 v13, 512, v13
v_mov_b32 v10, 0x7f000000
v_cmp_gt_u32 vcc, 30, v8
s_bfe_u32 s4, s2, 0x20003
s_mul_i32 s4, s4, 96
v_cndmask_b32 v13, v10, v13, vcc
v_cmp_gt_u32 vcc, 6, v7
s_add_u32 s4, s4, 256
v_lshrrev_b32 v8, 1, v0
v_cndmask_b32 v13, v10, v13, vcc
v_add_u32 v9, s4, v8
v_lshlrev_b32 v9, 13, v9
v_and_b32 v14, 1, v0
v_cmp_gt_u32 vcc, 96, v8
v_lshl_add_u32 v14, v14, 7, v9
s_nop 0
v_cndmask_b32 v14, v10, v14, vcc""")
    kr_setup(a)
    kv_srds(a)
    a(f"""s_mov_b32 s{sWS}, s{pWS}
s_mov_b32 s{sWS+1}, s{pWS+1}
s_mov_b32 s{sWS+2}, {8*15*128*1024}
s_mov_b32 s{sWS+3}, 0x20000""")
    if STAMP:
        a(f"s_add_u32 s{sST}, s{pWS}, 0x10000000\ns_addc_u32 s{sST+1}, s{pWS+1}, 0\ns_mov_b32 s{sST+2}, 0x100000\ns_mov_b32 s{sST+3}, 0x20000")
    a(f"s_mul_i32 s3, s{sB}, 96\ns_add_u32 s3, s3, s{sH}\ns_mul_i32 s3, s3, 20480")
    a(f"s_lshr_b32 s{sROT}, s2, 3\ns_lshl_b32 s{sROT}, s{sROT}, 14")
    a(f"""s_lshr_b32 s4, s2, 3
s_mul_i32 s6, s4, 52
s_lshr_b32 s6, s6, 8
s_mul_i32 s5, s6, 5
s_sub_u32 s5, s4, s5
s_mov_b32 s{sR}, 0
s_and_b32 s7, s2, 1
s_mul_i32 s7, s7, 5
s_add_u32 s5, s5, s7
s_and_b32 s{sOB}, s2, 6
s_mul_i32 s{sOB}, s{sOB}, 3
s_add_u32 s{sOB}, s{sOB}, s6
s_mul_i32 s6, s{sWAVE}, {1024*1280}
s_lshl_b32 s7, s5, 7
s_add_u32 s6, s6, s7
s_add_u32 s{sWO}, s{pWO}, s6
s_addc_u32 s{sWO+1}, s{pWO+1}, 0
s_sub_u32 s{sWO+2}, 5242880, s6
s_cmp_ge_u32 s2, 240
s_cselect_b32 s{sWO+2}, 0, s{sWO+2}
s_mov_b32 s{sWO+3}, 0x20000""")
    if opt("tlb", 0):
        a(f"s_mov_b64 exec, 1\nv_mov_b32 v11, 0")
        a(f"buffer_load_dword v12, v11, s[{sK}:{sK+3}], s{sROT} offen nt")
        a(f"buffer_load_dword v12, v11, s[{sV}:{sV+3}], s{sROT} offen nt")
        a(f"buffer_load_dword v12, v11, s[{sWO}:{sWO+3}], 0 offen")
        a(f"s_mov_b64 exec, -1")
    s1 = qstage(1, 8)
    flat(a, s1[:5] + s1[-5:])
    stamp(a, True)
    a(f"s_cmp_eq_u32 s{sWAVE}, 3")
    a("s_cbranch_scc1 L_waveB")
    base = nstamp[0]
    gen_wave(a, 4, "A")
    a("L_waveB:")
    nstamp[0] = base
    gen_wave(a, 3, "B")
    gen_common(a)
    a("L_exit:")
    a("s_endpgm")
    return a.text()

DOC = """; ---------------------------------------------------------------------------------------------------------------
;  1. q-projection: Q^T = wq^T x^T through a 3-stage LDS ring (LDS-DMA), scaled by log2(e)/sqrt(128), kept as
; ---------------------------------------------------------------------------------------------------------------
"""
body = gen()
txt = wrap([dict(name=KN, grid=256, block=256, lds=163840, body=body, vgpr=512, sgpr=102, accum=256)])
txt = txt.replace(".amdgcn_target", DOC + ".amdgcn_target", 1)
print(txt)
```
